```python
import torch

def _softmax(x, axis=-1):
    return torch.softmax(x, dim=axis)
def _gelu(x):
    return torch.nn.functional.gelu(x, approximate="tanh")
def _silu(x):
    return torch.nn.functional.silu(x)
def _sigmoid(x):
    return torch.sigmoid(x)
def _layernorm(x, axis=-1, eps=1e-5):
    m = x.mean(dim=axis, keepdim=True)
    v = x.var(dim=axis, keepdim=True, unbiased=False)
    return (x - m) / torch.sqrt(v + eps)
def _scatter_add(tgt, idx, src, axis=0):
    return tgt.clone().index_add_(axis, idx, src)
def _segment_sum(src, seg, n):
    out = torch.zeros((n,) + src.shape[1:], dtype=src.dtype)
    return out.index_add_(0, seg, src)
def _pad(x, pw):
    flat = tuple(v for pair in reversed(pw) for v in pair)
    return torch.nn.functional.pad(x, flat)

kernel_name = 'sequential_preLN__compressed_kv_cla__mixer_token_mlp__decode'

def setup_inputs():

    _w = (lambda a: (lambda t: t.to(torch.bfloat16) if t.is_floating_point() else t)(torch.as_tensor(a)))
    def _A_setup():
        B, H, Sq, Sk, D, M = 1, 32, 1, 4096, 128, 640
        Dc = 4 * D
        return {
            "x": _w((lambda *s: torch.randn(*s, dtype=torch.bfloat16) * 0.05)(B, Sq, M)),
            "c_kv": _w((lambda *s: torch.randn(*s, dtype=torch.bfloat16) * 0.8)(B, Sk, Dc)),
            "w_q": _w((lambda *s: torch.randn(*s, dtype=torch.bfloat16) * 0.8)(M, H, D) * (M ** -0.5)),
            "w_uk": _w((lambda *s: torch.randn(*s, dtype=torch.bfloat16) * 0.8)(Dc, H, D) * (Dc ** -0.5)),
            "w_uv": _w((lambda *s: torch.randn(*s, dtype=torch.bfloat16) * 0.8)(Dc, H, D) * (Dc ** -0.5)),
            "w_o": _w((lambda *s: torch.randn(*s, dtype=torch.bfloat16) * 0.8)(H, D, M) * ((H * D) ** -0.5)),
        }
    _A_in = _A_setup()

    def _B_setup():
        B, S, D, F = 1, 1, 640, 1728
        return {
            "x": _w((lambda *s: torch.randn(*s, dtype=torch.bfloat16) * 0.05)(B, S, D)),
            "w1": _w((lambda *s: torch.randn(*s, dtype=torch.bfloat16) * 0.2)(S, F) * (S ** -0.5)),
            "b1": _w((lambda *s: torch.randn(*s, dtype=torch.bfloat16) * 0.2)(F) * 0.02),
            "w2": _w((lambda *s: torch.randn(*s, dtype=torch.bfloat16) * 0.2)(F, S) * (F ** -0.5)),
            "b2": _w((lambda *s: torch.randn(*s, dtype=torch.bfloat16) * 0.2)(S) * 0.02),
        }
    _B_in = _B_setup()

    return {
        "A_x": _A_in["x"],
        "A_c_kv": _A_in["c_kv"],
        "A_w_q": _A_in["w_q"],
        "A_w_uk": _A_in["w_uk"],
        "A_w_uv": _A_in["w_uv"],
        "A_w_o": _A_in["w_o"],
        "B_x": _B_in["x"],
        "B_w1": _B_in["w1"],
        "B_b1": _B_in["b1"],
        "B_w2": _B_in["w2"],
        "B_b2": _B_in["b2"],
    }

def reference(A_x, A_c_kv, A_w_q, A_w_uk, A_w_uv, A_w_o, B_x, B_w1, B_b1, B_w2, B_b2):
    def _A_ref(x, c_kv, w_q, w_uk, w_uv, w_o):
        B, Sq, M = x.shape[0], x.shape[1], x.shape[2]
        Sk = c_kv.shape[1]
        H, D = w_q.shape[1], w_q.shape[2]
        q = torch.einsum("bqm,mhd->bhqd", x, w_q)
        k = torch.einsum("bkc,chd->bhkd", c_kv, w_uk)
        v = torch.einsum("bkc,chd->bhkd", c_kv, w_uv)
        scores = torch.einsum("bhqd,bhkd->bhqk", q, k) * (D ** -0.5)
        off = Sk - Sq
        qi = torch.arange(Sq)[:, None]
        kj = torch.arange(Sk)[None, :]
        cmask = kj <= (qi + off)
        scores = torch.where(cmask[None, None], scores, -1e9)
        p = _softmax(scores, axis=-1)
        ctx = torch.einsum("bhqk,bhkd->bhqd", p, v)
        return torch.einsum("bhqd,hdm->bqm", ctx, w_o)

    def _B_ref(x, w1, b1, w2, b2):
        B, S, D = x.shape
        h = _layernorm(x, axis=-1)
        u = torch.einsum("bsd,sf->bdf", h, w1) + b1
        u = _gelu(u)
        y = torch.einsum("bdf,fs->bds", u, w2) + b2
        return (lambda x, *d: x.permute(*d))(y, 0, 2, 1)

    x = A_x
    h = x + _A_ref(_layernorm(x, axis=-1), A_c_kv, A_w_q, A_w_uk, A_w_uv, A_w_o)
    h2 = h + _B_ref(_layernorm(h, axis=-1), B_w1, B_b1, B_w2, B_b2)
    return h2
```

```python
import re

REG_RE = re.compile(r'^(v|a|s)(\d+)$')
RNG_RE = re.compile(r'^(v|a|s)\[(\d+):(\d+)\]$')

def regs_of(tok):
    tok = tok.strip()
    neg = tok.lstrip('-')
    if neg.startswith('abs(') or neg.startswith('|'):
        neg = neg.replace('abs(', '').replace(')', '').replace('|', '')
    tok = neg
    m = REG_RE.match(tok)
    if m: return {m.group(1) + m.group(2)}
    m = RNG_RE.match(tok)
    if m: return {m.group(1) + str(i) for i in range(int(m.group(2)), int(m.group(3)) + 1)}
    if tok in ('vcc', 'vcc_lo', 'vcc_hi'): return {'vcc'}
    if tok in ('exec', 'exec_lo', 'exec_hi'): return {'exec'}
    if tok == 'm0': return {'m0'}
    return set()

TRANS = ('v_exp_f32', 'v_log_f32', 'v_rcp_f32', 'v_rsq_f32', 'v_sqrt_f32', 'v_sin_f32', 'v_cos_f32')

class Ins:
    def __init__(self, text):
        self.text = text
        t = text.split(';')[0].strip()
        self.label = None
        self.is_dir = False
        if t.endswith(':'):
            self.label = t[:-1]; self.mn = None; return
        if t.startswith('.') or t == '':
            self.is_dir = True; self.mn = None; return
        parts = t.split(None, 1)
        self.mn = parts[0]
        rest = parts[1] if len(parts) > 1 else ''
        ops = []; depth = 0; cur = ''
        for ch in rest:
            if ch in '[(': depth += 1
            if ch in '])': depth -= 1
            if ch == ',' and depth == 0: ops.append(cur.strip()); cur = ''
            else: cur += ch
        if cur.strip(): ops.append(cur.strip())
        mods = ''
        if ops:
            sp = ops[-1].split(None, 1)
            if len(sp) > 1 and not ops[-1].startswith('hwreg') and not ops[-1].startswith('vmcnt') and not ops[-1].startswith('lgkmcnt'):
                ops[-1] = sp[0]; mods = sp[1]
        self.ops = ops; self.mods = mods
        self.classify()

    def classify(self):
        mn = self.mn; ops = self.ops
        self.w = set(); self.r = set()
        self.valu = mn.startswith('v_') and not mn.startswith('v_mfma')
        self.mfma = mn.startswith('v_mfma')
        self.salu = mn.startswith('s_')
        self.vmem = mn.startswith('buffer_') or mn.startswith('global_')
        self.ds = mn.startswith('ds_')
        self.dpp = ('_dpp' in mn) or ('row_' in self.mods) or ('quad_perm' in self.mods)
        self.trans = any(mn.startswith(x) for x in TRANS)
        self.perml = mn.startswith('v_permlane')
        self.rdlane = mn.startswith('v_readlane') or mn.startswith('v_readfirstlane')
        self.ldsdma = self.vmem and (' lds' in (' ' + self.mods) or 'load_lds' in mn)
        self.nop = 0
        self.passes = 0
        R = lambda i: regs_of(ops[i]) if i < len(ops) else set()
        allr = lambda a=0: set().union(*[R(i) for i in range(a, len(ops))]) if len(ops) > a else set()
        if mn == 's_nop':
            self.nop = int(ops[0], 0) + 1
        elif self.mfma:
            self.w = R(0); self.srcA = R(1); self.srcB = R(2); self.srcC = R(3)
            self.r = self.srcA | self.srcB | self.srcC
            self.passes = 8 if '32x32' in mn else 4
        elif self.valu:
            if mn.startswith('v_cmp'):
                self.w = R(0); self.r = allr(1)
            elif self.perml and 'swap' in mn:
                self.w = R(0) | R(1); self.r = R(0) | R(1)
            elif mn.startswith('v_add_co') or mn.startswith('v_addc_co') or mn.startswith('v_sub_co'):
                self.w = R(0) | R(1); self.r = allr(2)
            else:
                self.w = R(0); self.r = allr(1)
                if mn.startswith('v_fmac') or mn.startswith('v_dot2c') or self.dpp or mn.startswith('v_writelane'):
                    self.r |= R(0)
                if mn.startswith('v_cndmask') and len(ops) == 3: self.r |= {'vcc'}
            self.r |= {'exec'}
        elif self.vmem:
            if 'store' in mn or ('atomic' in mn):
                self.r = allr(0); self.store_data = R(0) if mn.startswith('buffer_') else R(1)
                self.wide = ('x4' in mn or 'x3' in mn)
            elif self.ldsdma:
                self.r = allr(0) | {'m0'}
            else:
                self.w = R(0); self.r = allr(1)
        elif self.ds:
            if mn.startswith('ds_write'):
                self.r = allr(0)
            else:
                self.w = R(0); self.r = allr(1)
        elif self.salu:
            if mn.startswith('s_cmp') or mn.startswith('s_cbranch') or mn.startswith('s_branch') or mn in ('s_waitcnt', 's_barrier', 's_endpgm', 's_sleep', 's_setprio', 's_bitcmp1_b32'):
                self.r = allr(0)
            elif 'saveexec' in mn:
                self.w = R(0) | {'exec'}; self.r = allr(1) | {'exec'}
            else:
                self.w = R(0); self.r = allr(1)

def need(prod, cons):
    n = 0
    vw = {x for x in prod.w if x[0] in 'va' and x not in ('vcc',)}
    sw = {x for x in prod.w if x[0] == 's' or x == 'vcc'}
    if prod.valu:
        if cons.mfma and (vw & cons.r): n = max(n, 2)
        if cons.valu and cons.dpp and (vw & cons.r): n = max(n, 2)
        if cons.valu and cons.perml and (vw & cons.r): n = max(n, 2)
        if cons.valu and cons.rdlane and (vw & cons.r): n = max(n, 1)
        if sw:
            if cons.valu and (sw & cons.r): n = max(n, 4 if cons.rdlane else 2)
            if cons.vmem and (sw & cons.r): n = max(n, 5)
            if cons.salu and (sw & cons.r): n = max(n, 1)
            if cons.mfma and (sw & cons.r): n = max(n, 2)
        if prod.trans and (cons.valu or cons.mfma) and (vw & cons.r): n = max(n, 1 if not cons.mfma else 2)
        if 'op_sel' in prod.mods and 'pk' not in prod.mn and cons.valu and (vw & (cons.r | cons.w)): n = max(n, 1)
    if prod.mfma:
        big = prod.passes == 8
        if cons.mfma:
            if prod.w & (cons.srcA | cons.srcB): n = max(n, 12 if big else 8)
            if prod.w & cons.srcC:
                if not (prod.w == cons.srcC and prod.passes == cons.passes): n = max(n, 10 if big else 6)
            if (prod.w & cons.w) and not (prod.w & cons.srcC): n = max(n, 10 if big else 6)
        else:
            if prod.w & (cons.r | cons.w): n = max(n, 12 if big else 8)
            if cons.valu and (prod.srcC & cons.w): n = max(n, 7 if big else 3)
    if prod.vmem and getattr(prod, 'wide', False):
        if (cons.valu or cons.mfma) and (prod.store_data & cons.w): n = max(n, 2)
        elif (prod.store_data & cons.w): n = max(n, 1)
    if prod.salu and 'm0' in prod.w and (cons.ldsdma): n = max(n, 1)
    if prod.salu and 'exec' in prod.w and cons.valu and cons.dpp: n = max(n, 1)
    return n

class Asm:
    def __init__(self):
        self.lines = []
    def __call__(self, s):
        for l in s.split('\n'):
            l = l.strip()
            if l: self.lines.append(l)
    def c(self, s):
        self.lines.append('; ' + s)
    def hazard_pass(self):
        WIN = 14
        ins = [Ins(l) if not l.startswith(';') else None for l in self.lines]
        out = []
        real = [(i, x) for i, x in enumerate(ins) if x is not None and not x.is_dir]
        lab = {x.label: k for k, (i, x) in enumerate(real) if x.label}
        extra = [0] * len(real)
        def preds(k):
            res = []
            j = k - 1
            while j >= 0 and real[j][1].label:
                for q, (_, y) in enumerate(real):
                    if y.mn and (y.mn.startswith('s_cbranch') or y.mn == 's_branch') and y.ops and y.ops[0] == real[j][1].label:
                        res.append(q)
                j -= 1
            if j >= 0 and real[j][1].mn not in ('s_branch', 's_endpgm'):
                res.append(j)
            return res
        predc = {}
        def P(k):
            if k not in predc: predc[k] = preds(k)
            return predc[k]
        def required(k):
            cons = real[k][1]
            best = 0
            stack = [(p, 0) for p in P(k)]
            seen = {}
            while stack:
                q, dist = stack.pop()
                if dist >= WIN: continue
                if seen.get(q, 99) <= dist: continue
                seen[q] = dist
                prod = real[q][1]
                nreq = need(prod, cons)
                if nreq - dist > best: best = nreq - dist
                step = (prod.nop if prod.mn == 's_nop' else 1) + extra[q]
                for pq in P(q): stack.append((pq, dist + step))
            return best
        changed = True
        it = 0
        while changed and it < 5:
            changed = False; it += 1
            for k, (i, x) in enumerate(real):
                if x.label or x.mn == 's_nop': continue
                saved = extra[k]; extra[k] = 0
                r = required(k)
                extra[k] = max(saved, r) if it > 1 else r
                if extra[k] != saved: changed = True
        res = []
        kmap = {i: k for k, (i, x) in enumerate(real)}
        total = 0
        for i, l in enumerate(self.lines):
            if i in kmap and extra[kmap[i]] > 0:
                n = extra[kmap[i]]; total += n
                while n > 0:
                    m = min(n, 16); res.append(f's_nop {m-1}    ; auto'); n -= m
            res.append(l)
        self.lines = res
        return total
    def text(self):
        out = []
        for l in self.lines:
            if l.endswith(':') or l.startswith('.') or l.startswith(';'): out.append(l)
            else: out.append('    ' + l)
        return '\n'.join(out) + '\n'
```

```python
import sys, math, struct
from asmlib import Asm

NAME = "sequential_preLN__compressed_kv_cla__mixer_token_mlp__decode_kernel"
HEADER = open('sequential_preLN__compressed_kv_cla__mixer_token_mlp__decode.s.ref').read().split('; Override')[0]

def f2u(x): return struct.unpack('<I', struct.pack('<f', x))[0]

QG, QA, ST, CP, HG, OUTP, OP, TS = 4096, 20480, 86016, 102400, 167936, 172032, 524288, 3145728
WS_SIZE = 4 << 20
CKV_STRIDE = 1056
QS = 135168; PX = 143616; MX = 147712; LX = 147968; MRED = 148224
WUV = 0; OS = 32768; S1RED = 41984; WX = 44032; RRED = 44544; MB = 148288
LDS_BYTES = 148480
WO_STRIDE = 1312

SCALE = (128 ** -0.5) * math.log2(math.e)
C0 = -2.0 * math.sqrt(2.0 / math.pi) * math.log2(math.e)
C1 = C0 * 0.044715
EPS = 1e-5

S_WS, S_X, S_A, S_B, S_C, S_T = 's[32:35]', 's[36:39]', 's[40:43]', 's[44:47]', 's[48:51]', 's[52:55]'
TAG, SW, SR, SH, SSUB = 's56', 's57', 's58', 's59', 's60'

def gen(profile=False, spin_limit=400000):
    a = Asm()
    def stamp(k):
        if profile:
            assert k < 12
            a(f"s_memrealtime s[{76+2*k}:{77+2*k}]")
    def srd(dst, ptr, size):
        d = int(dst[2:dst.index(':')])
        a(f"s_mov_b32 s{d}, s{ptr}\ns_mov_b32 s{d+1}, s{ptr+1}\ns_mov_b32 s{d+2}, {size}\ns_mov_b32 s{d+3}, 0x00020000")
    def row_allreduce(op, v):
        for m in ("quad_perm:[1,0,3,2]", "quad_perm:[2,3,0,1]", "row_half_mirror", "row_mirror"):
            a(f"{op}_dpp {v}, {v}, {v} {m} row_mask:0xf bank_mask:0xf")
    def swap16(op, v, t):
        a(f"v_mov_b32 {t}, {v}\nv_permlane16_swap_b32 {v}, {t}\n{op} {v}, {v}, {t}")
    def swap32(op, v, t):
        a(f"v_mov_b32 {t}, {v}\nv_permlane32_swap_b32 {v}, {t}\n{op} {v}, {v}, {t}")
    def wave_allreduce(op, v, t):
        row_allreduce(op, v); swap16(op, v, t); swap32(op, v, t)
    def wave_allreduce_multi(op, vs, ts):
        for m in ("quad_perm:[1,0,3,2]", "quad_perm:[2,3,0,1]", "row_half_mirror", "row_mirror"):
            for v in vs: a(f"{op}_dpp {v}, {v}, {v} {m} row_mask:0xf bank_mask:0xf")
        for sw in ("v_permlane16_swap_b32", "v_permlane32_swap_b32"):
            for v, t in zip(vs, ts): a(f"v_mov_b32 {t}, {v}")
            for v, t in zip(vs, ts): a(f"{sw} {v}, {t}")
            for v, t in zip(vs, ts): a(f"{op} {v}, {v}, {t}")
    lbl = [0]
    def poll_begin(name):
        a(f"s_mov_b32 s61, 0")
        a(f"{name}:")
    def poll_end(name, bad):
        a(f"v_cmp_ne_u32 vcc, 0, {bad}")
        a(f"s_add_u32 s61, s61, 1")
        a(f"s_cmp_gt_u32 s61, {spin_limit}")
        a(f"s_cbranch_scc1 {name}_x")
        a(f"s_cbranch_vccnz {name}")
        a(f"{name}_x:")
    def tagcheck(bad, tags):
        a(f"v_xor_b32 {bad}, {TAG}, {tags[0]}")
        for t in tags[1:]:
            a(f"v_bitop3_b32 {bad}, {t}, {TAG}, {bad} bitop3:0xbe")

    a.lines += [l for l in HEADER.strip().split('\n')]
    a(f"; @launch grid=(256,1,1) block=(256,1,1) lds={LDS_BYTES}")
    a('.amdgcn_target "amdgcn-amd-amdhsa--gfx950"')
    a(f".text\n.globl {NAME}\n.p2align 8\n.type {NAME},@function\n{NAME}:")
    stamp(0)
    a("s_cmp_ge_u32 s2, 256\ns_cbranch_scc1 L_end")
    a("s_load_dwordx16 s[4:19], s[0:1], 0\ns_load_dwordx8 s[20:27], s[0:1], 64\ns_load_dwordx4 s[28:31], s[0:1], 96")
    a("v_and_b32 v1, 63, v0\nv_lshrrev_b32 v2, 6, v0\nv_and_b32 v3, 15, v0\nv_bfe_u32 v4, v0, 4, 2")
    a(f"v_readfirstlane_b32 {SW}, v2")
    a(f"s_and_b32 s61, s2, 7\ns_bfe_u32 s62, s2, 0x40003\ns_lshl_b32 {SR}, s61, 4\ns_add_u32 {SR}, {SR}, s62")
    a(f"s_lshr_b32 {SH}, {SR}, 2\ns_and_b32 {SSUB}, {SR}, 3")
    a("s_waitcnt lgkmcnt(0)")
    srd(S_WS, 30, WS_SIZE); srd(S_X, 4, 1280)
    a(f"v_mov_b32 v18, 0\nbuffer_load_dword v250, v18, {S_WS}, 0 offen")
    a("s_bitcmp1_b32 s2, 7\ns_cbranch_scc1 L_Y")

    a.c("================= X role: S1 (q), S2 (q_abs), S4 (ctx partial), R")
    srd(S_A, 8, 5242880); srd(S_B, 10, 4194304); srd(S_C, 12, 4194304)
    a("v_lshlrev_b32 v5, 2, v1")
    for j in range(5): a(f"buffer_load_dword v{32+j}, v5, {S_X}, 0 offen offset:{256*j}")
    a("v_lshrrev_b32 v6, 2, v0\nv_lshlrev_b32 v7, 1, v6")
    for i in range(10): a(f"buffer_load_ushort v{40+2*i}, v7, {S_X}, 0 offen offset:{128*i}")
    a("v_and_b32 v8, 3, v0\nv_lshlrev_b32 v8, 4, v8\nv_lshl_add_u32 v8, v6, 13, v8")
    a(f"s_lshl_b32 s61, {SH}, 8\ns_lshl_b32 s62, {SSUB}, 6\ns_add_u32 s61, s61, s62")
    for i in range(10):
        a(f"buffer_load_dwordx4 v[{60+4*i}:{63+4*i}], v8, {S_A}, s61 offen")
        if i < 9: a("s_add_u32 s61, s61, 524288")
    a(f"s_lshl_b32 s62, {SW}, 5\nv_add_u32 v9, s62, v3\nv_lshlrev_b32 v9, 13, v9\nv_lshl_add_u32 v9, v4, 4, v9")
    a(f"s_lshl_b32 s61, {SSUB}, 20\ns_lshl_b32 s62, {SH}, 8\ns_add_u32 s61, s61, s62\ns_add_u32 s62, s61, 131072")
    for tile in range(2):
        for s in range(4):
            r = 116 + (tile*4+s)*4
            a(f"buffer_load_dwordx4 v[{r}:{r+3}], v9, {S_B}, {'s61' if tile==0 else 's62'} offen offset:{64*s}")
    stamp(1)
    a("s_waitcnt vmcnt(28)")
    a(f"v_readfirstlane_b32 {TAG}, v250\ns_add_u32 {TAG}, {TAG}, 1")
    a("s_mov_b32 s63, 0xffff0000")
    for j in range(5):
        a(f"v_lshlrev_b32 v{100+2*j}, 16, v{32+j}\nv_and_b32 v{101+2*j}, s63, v{32+j}")
    a("v_add_f32 v110, v100, v101")
    for k in range(102, 110): a(f"v_add_f32 v110, v110, v{k}")
    wave_allreduce("v_add_f32", "v110", "v111")
    a(f"s_mov_b32 s64, {f2u(1.0/640):#x}\nv_mul_f32 v110, s64, v110")
    for k in range(100, 110): a(f"v_sub_f32 v{k}, v{k}, v110")
    a("v_mul_f32 v112, v100, v100")
    for k in range(101, 110): a(f"v_fmac_f32 v112, v{k}, v{k}")
    wave_allreduce("v_add_f32", "v112", "v111")
    a(f"v_mov_b32 v113, {f2u(EPS):#x}\nv_fmac_f32 v113, s64, v112\nv_rsq_f32 v113, v113")
    a("s_waitcnt vmcnt(18)")
    for i in range(10):
        r = 40+2*i
        a(f"v_lshlrev_b32 v{r}, 16, v{r}\nv_sub_f32 v{r}, v{r}, v110\nv_mul_f32 v{r}, v{r}, v113")
    for k in range(100, 108): a(f"v_mov_b32 v{k}, 0")
    for i in range(10):
        a(f"s_waitcnt vmcnt({8+9-i})")
        w = 60+4*i; l = 40+2*i
        for d in range(4):
            a(f"v_lshlrev_b32 v{108+2*(d&1)}, 16, v{w+d}\nv_and_b32 v{109+2*(d&1)}, s63, v{w+d}")
            a(f"v_pk_fma_f32 v[{100+2*d}:{101+2*d}], v[{108+2*(d&1)}:{109+2*(d&1)}], v[{l}:{l+1}], v[{100+2*d}:{101+2*d}] op_sel_hi:[1,0,1]")
    stamp(2)
    for m in ("row_ror:4", "row_ror:8"):
        for k in range(100, 108): a(f"v_add_f32_dpp v{k}, v{k}, v{k} {m} row_mask:0xf bank_mask:0xf")
    a(f"s_lshl_b32 s62, {SW}, 9\nv_lshlrev_b32 v10, 7, v4\nv_lshl_add_u32 v10, v3, 5, v10\nv_add_u32 v10, s62, v10")
    a("s_mov_b32 exec_lo, 0x000f000f\ns_mov_b32 exec_hi, 0x000f000f")
    a(f"ds_write_b128 v10, v[100:103] offset:{S1RED}\nds_write_b128 v10, v[104:107] offset:{S1RED+16}")
    a("s_mov_b64 exec, -1")
    a(f"s_waitcnt lgkmcnt(0)\ns_barrier")
    a(f"s_cmp_eq_u32 {SW}, 0\ns_cbranch_scc0 L_X_g1")
    a("v_and_b32 v11, 31, v1\nv_lshrrev_b32 v12, 5, v1\nv_lshlrev_b32 v12, 10, v12\nv_lshl_add_u32 v12, v11, 2, v12")
    a(f"v_add_u32 v12, {S1RED}, v12")
    for k in range(4): a(f"ds_read2_b32 v[{100+2*k}:{101+2*k}], v12 offset0:{64*k} offset1:{64*k+32}")
    a("s_waitcnt lgkmcnt(0)")
    a("v_add_f32 v100, v100, v101\nv_add_f32 v102, v102, v103\nv_add_f32 v104, v104, v105\nv_add_f32 v106, v106, v107")
    a("v_add_f32 v100, v100, v102\nv_add_f32 v104, v104, v106\nv_add_f32 v100, v100, v104")
    swap32("v_add_f32", "v100", "v101")
    a("v_mov_b32_dpp v101, v100 row_shl:1 row_mask:0xf bank_mask:0xf")
    a(f"v_cvt_pk_bf16_f32 v102, v100, v101\nv_mov_b32 v103, {TAG}")
    a(f"v_lshlrev_b32 v12, 2, v11")
    a(f"s_lshl_b32 s62, {SR}, 7\ns_add_u32 s62, s62, {QG}")
    a("s_mov_b32 exec_lo, 0x55555555\ns_mov_b32 exec_hi, 0")
    a(f"buffer_store_dwordx2 v[102:103], v12, {S_WS}, s62 offen sc1")
    a("s_mov_b64 exec, -1")
    a("L_X_g1:")
    stamp(3)
    a(f"v_lshlrev_b32 v13, 5, v4\ns_lshl_b32 s62, {SH}, 9\ns_add_u32 s62, s62, {QG}")
    poll_begin("L_p1")
    for s in range(4):
        r = 148+8*s
        a(f"buffer_load_dwordx4 v[{r}:{r+3}], v13, {S_WS}, s62 offen offset:{128*s} sc1")
        a(f"buffer_load_dwordx4 v[{r+4}:{r+7}], v13, {S_WS}, s62 offen offset:{128*s+16} sc1")
    a("s_waitcnt vmcnt(0)")
    tagcheck("v14", [f"v{148+8*s+k}" for s in range(4) for k in (1,3,5,7)])
    poll_end("L_p1", "v14")
    stamp(4)
    a("v_lshrrev_b32 v15, 1, v3\nv_xor_b32 v15, v15, v4\nv_lshlrev_b32 v15, 5, v15\nv_and_b32 v16, 1, v0\nv_lshl_add_u32 v15, v16, 4, v15\nv_lshl_add_u32 v15, v4, 13, v15")
    a("v_xor_b32 v16, 128, v15")
    a(f"s_lshl_b32 s62, {SSUB}, 20\ns_lshl_b32 s63, {SH}, 8\ns_add_u32 s62, s62, s63\ns_lshl_b32 s63, {SW}, 18\ns_add_u32 s62, s62, s63")
    a(f"s_lshl_b32 s63, {SW}, 13\ns_add_u32 m0, s63, {WUV}")
    for k in range(8):
        a(f"buffer_load_dwordx4 {'v15' if k%2==0 else 'v16'}, {S_C}, s62 offen lds")
        if k < 7: a("s_add_u32 s62, s62, 32768\ns_add_u32 m0, m0, 1024")
    for s in range(4):
        r = 148+8*s
        a(f"v_mov_b32 v{r+1}, v{r+2}\nv_mov_b32 v{r+2}, v{r+4}\nv_mov_b32 v{r+3}, v{r+6}")
    for s in range(4):
        for tile in range(2):
            ar = 116+(tile*4+s)*4; br = 148+8*s; d = 180+4*tile
            a(f"v_mfma_f32_16x16x32_bf16 v[{d}:{d+3}], v[{ar}:{ar+3}], v[{br}:{br+3}], {'0' if s==0 else f'v[{d}:{d+3}]'}")
    a(f"s_mov_b32 s63, {f2u(SCALE):#x}")
    for tile in range(2):
        d = 180+4*tile; o = 188+4*tile
        for k in range(4): a(f"v_mul_f32 v{d+k}, s63, v{d+k}")
        a(f"v_cvt_pk_bf16_f32 v{o}, v{d}, v{d+1}\nv_mov_b32 v{o+1}, {TAG}\nv_cvt_pk_bf16_f32 v{o+2}, v{d+2}, v{d+3}\nv_mov_b32 v{o+3}, {TAG}")
    a("v_and_b32 v13, 1, v3\nv_cmp_eq_u32 vcc, 1, v13\nv_lshlrev_b32 v13, 6, v13\nv_lshl_add_u32 v13, v4, 4, v13")
    a("v_cndmask_b32 v188, v188, v192, vcc\nv_cndmask_b32 v190, v190, v194, vcc")
    a(f"s_lshl_b32 s62, {SR}, 9\ns_lshl_b32 s63, {SW}, 7\ns_add_u32 s62, s62, s63\ns_add_u32 s62, s62, {QA}")
    a("s_mov_b32 exec_lo, 0x00030003\ns_mov_b32 exec_hi, 0x00030003")
    a(f"buffer_store_dwordx4 v[188:191], v13, {S_WS}, s62 offen sc1")
    a("s_mov_b64 exec, -1")
    stamp(5)
    def m_coef_loads():
        a("v_lshlrev_b32 v17, 2, v0")
        for k, p in enumerate((18, 20, 22)):
            srd(S_T, p, 3456)
            for i in range(4):
                a(f"buffer_load_dword v{196+4*k+i}, v17, {S_T}, 0 offen offset:{1024*i}")
        srd(S_T, 24, 2)
        a(f"v_mov_b32 v18, 0\nbuffer_load_ushort v208, v18, {S_T}, 0 offen")
    def m_coef_unpack():
        a("s_mov_b32 s63, 0xffff0000")
        for k in range(3):
            for i in range(4):
                s_ = 196+4*k+i; d = 210+8*k+2*i
                a(f"v_lshlrev_b32 v{d}, 16, v{s_}\nv_and_b32 v{d+1}, s63, v{s_}")
        a("v_lshlrev_b32 v208, 16, v208")
    m_coef_loads()
    a(f"v_and_b32 v26, 7, v0\nv_lshlrev_b32 v26, 3, v26\ns_lshl_b32 s66, {SR}, 6\nbuffer_load_dwordx2 v[234:235], v26, {S_X}, s66 offen")
    a("s_waitcnt vmcnt(0)\ns_barrier")
    m_coef_unpack()
    a("v_lshrrev_b32 v19, 2, v3\nv_lshl_add_u32 v19, v4, 2, v19")
    a(f"v_and_b32 v20, 7, v19\ns_lshl_b32 s62, {SW}, 1\nv_xor_b32 v20, s62, v20\nv_lshlrev_b32 v20, 5, v20")
    a("v_lshl_add_u32 v20, v19, 8, v20\nv_and_b32 v21, 3, v3\nv_lshl_add_u32 v20, v21, 3, v20\nv_xor_b32 v21, 32, v20")
    for tt in range(2):
        for j in range(4):
            for u in range(2):
                r = 60+(tt*4+j)*4+2*u
                a(f"ds_read_b64_tr_b16 v[{r}:{r+1}], {'v20' if tt==0 else 'v21'} offset:{WUV+8192*j+4096*u}")
    a("v_lshlrev_b32 v22, 4, v0\nv_and_b32 v23, 31, v1\nv_lshlrev_b32 v23, 9, v23")
    a(f"s_lshl_b32 s62, {SR}, 14\ns_add_u32 s66, s62, {OP}\ns_add_u32 s67, s66, 4096\ns_add_u32 s68, s66, 8192\ns_add_u32 s69, s66, 12288")
    a(f"s_lshr_b32 s62, {SH}, 3\ns_lshl_b32 s62, s62, 7\ns_and_b32 s63, {SH}, 7\ns_lshl_b32 s63, s63, 4\ns_add_u32 s62, s62, s63\ns_add_u32 s70, s62, {ST}")
    stamp(6)
    poll_begin("L_p3")
    for i in range(4):
        a(f"buffer_load_dwordx4 v[{100+4*i}:{103+4*i}], v22, {S_WS}, s{66+i} offen sc1")
    a(f"buffer_load_dwordx4 v[116:119], v23, {S_WS}, s70 offen sc1")
    a("s_waitcnt vmcnt(0)")
    tagcheck("v14", [f"v{100+4*i+k}" for i in range(5) for k in (1,3)])
    poll_end("L_p3", "v14")
    stamp(7)
    a(f"v_lshrrev_b32 v24, 5, v0\nv_mul_u32_u24 v24, 288, v24\nv_and_b32 v25, 31, v0\nv_lshl_add_u32 v24, v25, 3, v24")
    for i in range(4):
        a(f"v_mov_b32 v{101+4*i}, v{102+4*i}\nds_write_b64 v24, v[{100+4*i}:{101+4*i}] offset:{OS+2304*i}")
    a("v_mov_b32 v120, v116")
    row_allreduce("v_max_f32", "v120"); swap16("v_max_f32", "v120", "v121")
    a("v_sub_f32 v116, v116, v120\nv_exp_f32 v116, v116\nv_mul_f32 v118, v116, v118")
    row_allreduce("v_add_f32", "v118"); swap16("v_add_f32", "v118", "v121")
    a("v_rcp_f32 v118, v118\nv_mul_f32 v116, v116, v118")
    a(f"s_lshl_b32 s62, {SW}, 7\ns_add_u32 s62, s62, {WX}\nv_and_b32 v25, 31, v1\nv_lshlrev_b32 v25, 2, v25\nv_add_u32 v25, s62, v25")
    a("ds_write_b32 v25, v116")
    a("v_lshlrev_b32 v25, 4, v4\nv_add_u32 v25, s62, v25")
    a("ds_read_b128 v[120:123], v25\nds_read_b128 v[124:127], v25 offset:64")
    a("s_waitcnt lgkmcnt(0)\ns_barrier")
    a("v_cvt_pk_bf16_f32 v128, v120, v121\nv_cvt_pk_bf16_f32 v129, v122, v123\nv_cvt_pk_bf16_f32 v130, v124, v125\nv_cvt_pk_bf16_f32 v131, v126, v127")
    a("v_mul_u32_u24 v25, 288, v19\nv_and_b32 v26, 3, v3\nv_lshl_add_u32 v25, v26, 3, v25")
    for t in range(8):
        for u in range(2):
            r = 132+4*t+2*u
            a(f"ds_read_b64_tr_b16 v[{r}:{r+1}], v25 offset:{OS+4608*u+32*t}")
    for t in range(8):
        a(f"s_waitcnt lgkmcnt({min(15,14-2*t)})")
        a(f"v_mfma_f32_16x16x32_bf16 v[{164+4*t}:{167+4*t}], v[{132+4*t}:{135+4*t}], v[128:131], 0")
    for j in range(4):
        d0 = 164+8*j; o = 100+4*j
        a(f"v_cvt_pk_bf16_f32 v{o}, v{d0}, v{d0+1}\nv_cvt_pk_bf16_f32 v{o+1}, v{d0+2}, v{d0+3}\nv_cvt_pk_bf16_f32 v{o+2}, v{d0+4}, v{d0+5}\nv_cvt_pk_bf16_f32 v{o+3}, v{d0+6}, v{d0+7}")
    for j in range(4):
        for tt in range(2):
            d = 116+4*tt; b = 60+(tt*4+j)*4
            a(f"v_mfma_f32_16x16x32_bf16 v[{d}:{d+3}], v[{100+4*j}:{103+4*j}], v[{b}:{b+3}], {'0' if j==0 else f'v[{d}:{d+3}]'}")
    for tt in range(2):
        d = 116+4*tt
        a(f"v_mov_b32_dpp v{d+1}, v{d} row_shl:1 row_mask:0xf bank_mask:0xf")
        a(f"v_cvt_pk_bf16_f32 v{d+2}, v{d}, v{d+1}\nv_mov_b32 v{d+3}, {TAG}")
    a(f"s_lshl_b32 s62, {SH}, 11\ns_lshl_b32 s63, {SW}, 9\ns_add_u32 s62, s62, s63\ns_lshl_b32 s63, {SSUB}, 7\ns_add_u32 s62, s62, s63\ns_add_u32 s62, s62, {CP}")
    a("v_lshlrev_b32 v13, 2, v3\nv_lshl_add_u32 v13, v4, 6, v13\nv_cmp_eq_u32 vcc, 1, v4\nv_cndmask_b32 v118, v118, v122, vcc")
    a("s_mov_b32 exec_lo, 0x55555555\ns_mov_b32 exec_hi, 0")
    a(f"buffer_store_dwordx2 v[118:119], v13, {S_WS}, s62 offen sc1")
    a("s_mov_b64 exec, -1")
    stamp(8)
    a(f"s_cmp_lt_u32 {SR}, 20\ns_cbranch_scc0 L_M")
    a(f"v_lshrrev_b32 v13, 3, v0\nv_mul_u32_u24 v13, 2560, v13\nv_and_b32 v26, 7, v0\nv_lshl_add_u32 v13, v26, 4, v13")
    a(f"s_lshl_b32 s62, {SR}, 7\ns_add_u32 s66, s62, {OUTP}\ns_add_u32 s67, s66, {32*2560}\ns_add_u32 s68, s66, {64*2560}\ns_add_u32 s69, s66, {96*2560}")
    poll_begin("L_p5")
    for i in range(4):
        a(f"buffer_load_dwordx4 v[{100+4*i}:{103+4*i}], v13, {S_WS}, s{66+i} offen sc1")
    a("s_waitcnt vmcnt(0)")
    tagcheck("v14", [f"v{100+4*i+k}" for i in range(4) for k in (1,3)])
    poll_end("L_p5", "v14")
    a("s_mov_b32 s63, 0xffff0000")
    for i in range(4):
        for e in range(2):
            s_ = 100+4*i+2*e; d = 120+4*i+2*e
            a(f"v_lshlrev_b32 v{d}, 16, v{s_}\nv_and_b32 v{d+1}, s63, v{s_}")
    for k in range(4): a(f"v_add_f32 v{120+k}, v{120+k}, v{124+k}\nv_add_f32 v{128+k}, v{128+k}, v{132+k}")
    for k in range(4): a(f"v_add_f32 v{120+k}, v{120+k}, v{128+k}")
    for k in range(4): a(f"v_add_f32_dpp v{120+k}, v{120+k}, v{120+k} row_ror:8 row_mask:0xf bank_mask:0xf")
    for sw in ("v_permlane16_swap_b32", "v_permlane32_swap_b32"):
        for k in range(4): a(f"v_mov_b32 v{124+k}, v{120+k}")
        for k in range(4): a(f"{sw} v{120+k}, v{124+k}")
        for k in range(4): a(f"v_add_f32 v{120+k}, v{120+k}, v{124+k}")
    a(f"s_lshl_b32 s62, {SW}, 7\ns_add_u32 s62, s62, {RRED}\nv_lshlrev_b32 v27, 4, v26\nv_add_u32 v28, s62, v27")
    a("s_mov_b64 exec, 0xff\nds_write_b128 v28, v[120:123]\ns_mov_b64 exec, -1")
    a("s_waitcnt lgkmcnt(0)\ns_barrier")
    a(f"s_cmp_eq_u32 {SW}, 0\ns_cbranch_scc0 L_M")
    a(f"v_add_u32 v28, {RRED}, v27")
    for wv in range(4): a(f"ds_read_b128 v[{120+4*wv}:{123+4*wv}], v28 offset:{128*wv}")
    a("v_lshlrev_b32 v112, 16, v234\nv_and_b32 v113, s63, v234\nv_lshlrev_b32 v114, 16, v235\nv_and_b32 v115, s63, v235")
    a("s_waitcnt lgkmcnt(0)")
    for k in range(4): a(f"v_add_f32 v{120+k}, v{120+k}, v{124+k}\nv_add_f32 v{128+k}, v{128+k}, v{132+k}")
    for k in range(4): a(f"v_add_f32 v{120+k}, v{120+k}, v{128+k}")
    for k in range(4): a(f"v_add_f32 v{120+k}, v{120+k}, v{112+k}")
    a(f"v_cvt_pk_bf16_f32 v100, v120, v121\nv_mov_b32 v101, {TAG}\nv_cvt_pk_bf16_f32 v102, v122, v123\nv_mov_b32 v103, {TAG}")
    a(f"s_lshl_b32 s62, {SR}, 7\ns_add_u32 s62, s62, {HG}")
    a("s_mov_b64 exec, 0xff")
    a(f"buffer_store_dwordx4 v[100:103], v27, {S_WS}, s62 offen sc1")
    a("s_mov_b64 exec, -1")
    a("s_branch L_M")

    a.c("================= Y role: S3 (attention), S5 (out partial)")
    a("L_Y:")
    srd(S_A, 6, 4194304); srd(S_B, 14, 5242880)
    a("v_lshlrev_b32 v5, 4, v1")
    a(f"s_lshl_b32 s62, {SH}, 17\ns_lshl_b32 s63, {SW}, 15\ns_add_u32 s62, s62, s63")
    a(f"s_mul_i32 s63, {SW}, {32*CKV_STRIDE}\ns_mov_b32 m0, s63")
    for j in range(32):
        a(f"buffer_load_dwordx4 v5, {S_A}, s62 offen lds")
        if j < 31: a(f"s_add_u32 s62, s62, 1024\ns_add_u32 m0, m0, {CKV_STRIDE}")
    stamp(1)
    m_coef_loads()
    a(f"s_lshl_b32 s62, {SW}, 5\nv_add_u32 v6, s62, v3\nv_mul_u32_u24 v6, {CKV_STRIDE}, v6\nv_lshl_add_u32 v6, v4, 4, v6")
    a("s_waitcnt vmcnt(13)")
    a(f"v_readfirstlane_b32 {TAG}, v250\ns_add_u32 {TAG}, {TAG}, 1")
    stamp(2)
    for tile in range(2):
        for s in range(16):
            r = (tile*16+s)*4
            a(f"ds_read_b128 a[{r}:{r+3}], v6 offset:{tile*16*CKV_STRIDE+64*s}")
    a("s_barrier")
    a("v_lshrrev_b32 v19, 2, v3\nv_lshl_add_u32 v19, v4, 2, v19")
    a(f"v_mul_u32_u24 v7, {CKV_STRIDE}, v19\nv_and_b32 v8, 3, v3\nv_lshl_add_u32 v7, v8, 3, v7\ns_lshl_b32 s62, {SW}, 8\nv_add_u32 v7, s62, v7\nv_add_u32 v8, {64*CKV_STRIDE}, v7")
    for t in range(8):
        for j in range(4):
            for u in range(2):
                r = 128+(t*4+j)*4+2*u
                base = 'v7' if j < 2 else 'v8'
                a(f"ds_read_b64_tr_b16 a[{r}:{r+1}], {base} offset:{(32*(j&1)+16*u)*CKV_STRIDE+32*t}")
    a("s_waitcnt vmcnt(0)")
    m_coef_unpack()
    a(f"s_waitcnt lgkmcnt(0)\ns_barrier")
    stamp(3)
    a("v_lshlrev_b32 v22, 4, v0")
    a(f"s_lshl_b32 s62, {SSUB}, 14\ns_add_u32 s66, s62, {QA}\ns_add_u32 s67, s66, 4096\ns_add_u32 s68, s66, 8192\ns_add_u32 s69, s66, 12288")
    poll_begin("L_p2")
    for i in range(4):
        a(f"buffer_load_dwordx4 v[{100+4*i}:{103+4*i}], v22, {S_WS}, s{66+i} offen sc1")
    a("s_waitcnt vmcnt(0)")
    tagcheck("v14", [f"v{100+4*i+k}" for i in range(4) for k in (1,3)])
    poll_end("L_p2", "v14")
    stamp(4)
    a(f"s_mul_i32 s62, {SR}, 40960\ns_mul_i32 s63, {SW}, {8*1280}\ns_add_u32 s62, s62, s63\ns_mul_i32 s63, {SW}, {8*WO_STRIDE}\ns_mov_b32 m0, s63\ns_mov_b32 s71, s62\ns_mov_b32 s72, s63")
    a(f"v_lshrrev_b32 v24, 7, v0\nv_mul_u32_u24 v24, {CKV_STRIDE}, v24\nv_and_b32 v25, 127, v0\nv_lshl_add_u32 v24, v25, 3, v24")
    a(f"v_add_u32 v24, {QS}, v24")
    for i in range(4):
        a(f"v_mov_b32 v{101+4*i}, v{102+4*i}\nds_write_b64 v24, v[{100+4*i}:{101+4*i}] offset:{2*CKV_STRIDE*i}")
    for j in range(8):
        a(f"buffer_load_dwordx4 v5, {S_B}, s62 offen lds")
        if j < 7: a(f"s_add_u32 s62, s62, 1280\ns_add_u32 m0, m0, {WO_STRIDE}")
    a("s_add_u32 s62, s71, 1024\ns_add_u32 m0, s72, 1024\ns_mov_b64 exec, 0xffff")
    for j in range(8):
        a(f"buffer_load_dwordx4 v5, {S_B}, s62 offen lds")
        if j < 7: a(f"s_add_u32 s62, s62, 1280\ns_add_u32 m0, m0, {WO_STRIDE}")
    a("s_mov_b64 exec, -1")
    a("s_waitcnt lgkmcnt(0)\ns_barrier")
    a(f"v_and_b32 v25, 7, v3\nv_mul_u32_u24 v25, {CKV_STRIDE}, v25\nv_lshl_add_u32 v25, v4, 4, v25\nv_add_u32 v25, {QS}, v25")
    for s in range(16):
        a(f"ds_read_b128 v[{32+4*s}:{35+4*s}], v25 offset:{64*s}")
    for s in range(16):
        a(f"s_waitcnt lgkmcnt({15-s})")
        for tile in range(2):
            ar = (tile*16+s)*4; d = 100+4*tile
            a(f"v_mfma_f32_16x16x32_bf16 v[{d}:{d+3}], a[{ar}:{ar+3}], v[{32+4*s}:{35+4*s}], {'0' if s==0 else f'v[{d}:{d+3}]'}")
    stamp(5)
    a("v_max3_f32 v108, v100, v101, v102\nv_max3_f32 v109, v103, v104, v105\nv_max3_f32 v108, v108, v106, v107\nv_max_f32 v108, v108, v109")
    swap16("v_max_f32", "v108", "v109"); swap32("v_max_f32", "v108", "v109")
    a(f"s_lshl_b32 s62, {SW}, 2\ns_add_u32 s62, s62, {MX}\nv_lshlrev_b32 v26, 4, v3\nv_add_u32 v27, s62, v26")
    a("ds_write_b32 v27, v108")
    a("s_waitcnt lgkmcnt(0)\ns_barrier")
    a(f"v_add_u32 v28, {MX}, v26\nds_read_b128 v[108:111], v28\ns_waitcnt lgkmcnt(0)")
    a("v_max3_f32 v108, v108, v109, v110\nv_max_f32 v108, v108, v111")
    for k in range(8): a(f"v_sub_f32 v{100+k}, v{100+k}, v108")
    for k in range(8): a(f"v_exp_f32 v{100+k}, v{100+k}")
    a("v_cvt_pk_bf16_f32 v112, v100, v101\nv_cvt_pk_bf16_f32 v113, v102, v103\nv_cvt_pk_bf16_f32 v114, v104, v105\nv_cvt_pk_bf16_f32 v115, v106, v107")
    a(f"s_lshl_b32 s62, {SW}, 10\ns_add_u32 s62, s62, {PX}\nv_add_u32 v29, s62, v5")
    a("ds_write_b128 v29, v[112:115]")
    a("v_add_f32 v100, v100, v101\nv_add_f32 v102, v102, v103\nv_add_f32 v104, v104, v105\nv_add_f32 v106, v106, v107\nv_add_f32 v100, v100, v102\nv_add_f32 v104, v104, v106\nv_add_f32 v100, v100, v104")
    swap16("v_add_f32", "v100", "v109"); swap32("v_add_f32", "v100", "v109")
    a(f"ds_write_b32 v27, v100 offset:{LX-MX}")
    a("s_waitcnt lgkmcnt(0)\ns_barrier")
    a(f"v_add_u32 v29, {PX}, v5")
    for j in range(4): a(f"ds_read_b128 v[{32+4*j}:{35+4*j}], v29 offset:{1024*j}")
    a(f"ds_read_b128 v[112:115], v28 offset:{LX-MX}")
    for j in range(4):
        a(f"s_waitcnt lgkmcnt({4-j})")
        for t in range(8):
            ar = 128+(t*4+j)*4; d = 120+4*t
            a(f"v_mfma_f32_16x16x32_bf16 v[{d}:{d+3}], a[{ar}:{ar+3}], v[{32+4*j}:{35+4*j}], {'0' if j==0 else f'v[{d}:{d+3}]'}")
    a("s_waitcnt lgkmcnt(0)")
    a("v_add_f32 v112, v112, v113\nv_add_f32 v114, v114, v115\nv_add_f32 v110, v112, v114")
    a(f"v_and_b32 v30, 7, v3\nv_lshlrev_b32 v30, 16, v30\nv_lshl_add_u32 v30, v4, 4, v30\nv_lshrrev_b32 v31, 3, v3\nv_lshl_add_u32 v30, v31, 6, v30\nv_cmp_eq_u32 vcc, 1, v31")
    a(f"s_lshl_b32 s62, {SSUB}, 19\ns_lshl_b32 s63, {SW}, 14\ns_add_u32 s62, s62, s63\ns_lshl_b32 s63, {SH}, 9\ns_add_u32 s62, s62, s63\ns_add_u32 s62, s62, {OP}")
    for k in range(4):
        d = 120+8*k; o = 160+4*k
        for e in range(4): a(f"v_cndmask_b32 v{d+e}, v{d+e}, v{d+4+e}, vcc")
        a(f"v_cvt_pk_bf16_f32 v{o}, v{d}, v{d+1}\nv_mov_b32 v{o+1}, {TAG}\nv_cvt_pk_bf16_f32 v{o+2}, v{d+2}, v{d+3}\nv_mov_b32 v{o+3}, {TAG}")
        a(f"buffer_store_dwordx4 v[{o}:{o+3}], v30, {S_WS}, s62 offen offset:{128*k} sc1")
    a(f"s_mov_b64 exec, -1\ns_cmp_eq_u32 {SW}, 0\ns_cbranch_scc0 L_Y_nostat")
    a(f"v_mov_b32 v109, {TAG}\nv_mov_b32 v111, {TAG}\nv_lshlrev_b32 v30, 4, v3")
    a(f"s_lshl_b32 s62, {SR}, 7\ns_add_u32 s62, s62, {ST}")
    a("s_mov_b64 exec, 0xff")
    a(f"buffer_store_dwordx4 v[108:111], v30, {S_WS}, s62 offen sc1")
    a("s_mov_b64 exec, -1")
    a("L_Y_nostat:")
    stamp(6)
    a("s_waitcnt vmcnt(0)\ns_barrier")
    a(f"v_mul_u32_u24 v7, {WO_STRIDE}, v19\nv_and_b32 v8, 3, v3\nv_lshl_add_u32 v7, v8, 3, v7\ns_mul_i32 s62, {SW}, 320\nv_add_u32 v7, s62, v7")
    for tile in range(10):
        for u in range(2):
            r = 32+4*tile+2*u
            a(f"ds_read_b64_tr_b16 v[{r}:{r+1}], v7 offset:{16*WO_STRIDE*u+32*tile}")
    a(f"v_and_b32 v13, 3, v3\nv_lshlrev_b32 v13, 7, v13\nv_lshl_add_u32 v13, v4, 4, v13\ns_lshl_b32 s62, {SR}, 9\ns_add_u32 s62, s62, {CP}")
    a("s_waitcnt lgkmcnt(0)")
    stamp(7)
    poll_begin("L_p4")
    a(f"buffer_load_dwordx4 v[100:103], v13, {S_WS}, s62 offen sc1\nbuffer_load_dwordx4 v[104:107], v13, {S_WS}, s62 offen offset:64 sc1")
    a("s_waitcnt vmcnt(0)")
    tagcheck("v14", ["v101","v103","v105","v107"])
    poll_end("L_p4", "v14")
    stamp(8)
    a("v_mov_b32 v101, v102\nv_mov_b32 v102, v104\nv_mov_b32 v103, v106")
    for tile in range(10):
        d = 120+4*tile
        a(f"v_mfma_f32_16x16x32_bf16 v[{d}:{d+3}], v[100:103], v[{32+4*tile}:{35+4*tile}], 0")
    for tile in range(10):
        d = 120+4*tile
        a(f"v_add_f32 v{d}, v{d}, v{d+1}\nv_add_f32 v{d+2}, v{d+2}, v{d+3}")
    for tile in range(10):
        d = 120+4*tile
        a(f"v_add_f32 v{d}, v{d}, v{d+2}")
    a("v_lshlrev_b32 v13, 2, v3\nv_lshl_add_u32 v13, v4, 6, v13\nv_cmp_eq_u32 vcc, 1, v4")
    for k in range(5):
        d = 120+8*k
        a(f"v_cndmask_b32 v{d}, v{d}, v{d+4}, vcc")
    for k in range(5):
        d = 120+8*k
        a(f"v_mov_b32_dpp v{d+1}, v{d} row_shl:1 row_mask:0xf bank_mask:0xf")
    for k in range(5):
        d = 120+8*k
        a(f"v_cvt_pk_bf16_f32 v{d+2}, v{d}, v{d+1}\nv_mov_b32 v{d+3}, {TAG}")
    a(f"s_mul_i32 s62, {SR}, 2560\ns_mul_i32 s63, {SW}, 640\ns_add_u32 s62, s62, s63\ns_add_u32 s62, s62, {OUTP}")
    a("s_mov_b32 exec_lo, 0x55555555\ns_mov_b32 exec_hi, 0")
    for k in range(5):
        d = 120+8*k
        a(f"buffer_store_dwordx2 v[{d+2}:{d+3}], v13, {S_WS}, s62 offen offset:{128*k} sc1")
    a("s_mov_b64 exec, -1")
    a("v_mov_b32 v18, 0")
    pass

    a.c("================= M stage")
    a("L_M:")
    a("s_mul_i32 s64, s2, 3\ns_cmp_ge_u32 s64, 640\ns_cbranch_scc1 L_fin")
    a("s_add_u32 s65, s64, 1\ns_min_u32 s65, s65, 639\ns_add_u32 s66, s64, 2\ns_min_u32 s66, s66, 639")
    for k in range(3):
        a(f"s_lshr_b32 s{67+k}, s{64+k}, 1\ns_lshl_b32 s{67+k}, s{67+k}, 3\ns_add_u32 s{67+k}, s{67+k}, {HG}")
    a(f"s_cmp_eq_u32 {SW}, 0\ns_cbranch_scc0 L_M_wait")
    a(f"v_lshlrev_b32 v13, 3, v1\ns_mov_b32 s62, {HG}")
    stamp(9)
    poll_begin("L_p6")
    for k in range(5):
        a(f"buffer_load_dwordx2 v[{100+2*k}:{101+2*k}], v13, {S_WS}, s62 offen offset:{512*k} sc1")
    for k in range(3):
        a(f"buffer_load_dwordx2 v[{110+2*k}:{111+2*k}], v18, {S_WS}, s{67+k} offen sc1")
    a("s_waitcnt vmcnt(0)")
    tagcheck("v14", [f"v{101+2*k}" for k in range(8)])
    poll_end("L_p6", "v14")
    stamp(10)
    a(f"s_cmp_eq_u32 s2, 0\ns_cbranch_scc0 L_noep")
    a(f"v_mov_b32 v15, {TAG}\ns_mov_b64 exec, 1\nbuffer_store_dword v15, v18, {S_WS}, 0 offen sc1\ns_mov_b64 exec, -1")
    a("L_noep:")
    a("s_mov_b32 s63, 0xffff0000")
    for k in range(5):
        a(f"v_lshlrev_b32 v{120+2*k}, 16, v{100+2*k}\nv_and_b32 v{121+2*k}, s63, v{100+2*k}")
    a("v_add_f32 v130, v120, v121")
    for k in range(122, 130): a(f"v_add_f32 v130, v130, v{k}")
    wave_allreduce("v_add_f32", "v130", "v131")
    a(f"s_mov_b32 s62, {f2u(1.0/640):#x}\nv_mul_f32 v130, s62, v130")
    for k in range(120, 130): a(f"v_sub_f32 v{k}, v{k}, v130")
    a("v_mul_f32 v132, v120, v120")
    for k in range(121, 130): a(f"v_fmac_f32 v132, v{k}, v{k}")
    wave_allreduce("v_add_f32", "v132", "v131")
    a(f"v_mul_f32 v132, s62, v132")
    a(f"v_add_f32 v133, {f2u(EPS):#x}, v132\nv_rsq_f32 v133, v133")
    a("v_mul_f32 v134, v133, v133\nv_mul_f32 v134, v134, v132")
    a(f"v_add_f32 v134, {f2u(EPS):#x}, v134\nv_rsq_f32 v134, v134\nv_mul_f32 v133, v133, v134")
    for k in range(3):
        a(f"s_bitcmp1_b32 s{64+k}, 0\ns_cselect_b32 s70, 0, 16\nv_lshlrev_b32 v{136+k}, s70, v{110+2*k}\nv_and_b32 v{136+k}, s63, v{136+k}")
    for k in range(3):
        a(f"v_sub_f32 v{140+k}, v{136+k}, v130\nv_mul_f32 v{140+k}, v{140+k}, v133")
    a(f"v_mov_b32 v15, {MB}\ns_mov_b64 exec, 1\nds_write_b96 v15, v[140:142]\ns_mov_b64 exec, -1\ns_waitcnt lgkmcnt(0)")
    a("L_M_wait:")
    a("s_barrier")
    a(f"v_mov_b32 v15, {MB}\nds_read_b96 v[140:142], v15\ns_waitcnt lgkmcnt(0)")
    for k in range(3):
        a(f"v_readfirstlane_b32 s{70+2*k}, v{140+k}")
    a(f"v_mov_b32 v144, {f2u(C0):#x}\nv_mov_b32 v145, {f2u(C0):#x}\ns_mov_b32 s62, {f2u(C1):#x}")
    for k in range(3): a(f"v_mov_b32 v{146+2*k}, 0\nv_mov_b32 v{147+2*k}, 0")
    for k in range(3):
        t = f"s[{70+2*k}:{71+2*k}]"
        U = lambda i: f"v[{152+2*i}:{153+2*i}]"
        Z = lambda i: f"v[{160+2*i}:{161+2*i}]"
        for i in range(4): a(f"v_pk_fma_f32 {U(i)}, v[{210+2*i}:{211+2*i}], {t}, v[{218+2*i}:{219+2*i}] op_sel_hi:[1,0,1]")
        for i in range(4): a(f"v_pk_mul_f32 {Z(i)}, {U(i)}, {U(i)}")
        for i in range(4): a(f"v_pk_fma_f32 {Z(i)}, {Z(i)}, s[62:63], v[144:145] op_sel_hi:[1,0,1]")
        for i in range(4): a(f"v_pk_mul_f32 {Z(i)}, {Z(i)}, {U(i)}")
        for i in range(4): a(f"v_exp_f32 v{160+2*i}, v{160+2*i}\nv_exp_f32 v{161+2*i}, v{161+2*i}")
        for i in range(4): a(f"v_pk_mul_f32 {U(i)}, {U(i)}, v[{226+2*i}:{227+2*i}]")
        for i in range(4): a(f"v_pk_add_f32 {Z(i)}, {Z(i)}, 1.0 op_sel_hi:[1,0]")
        for i in range(4): a(f"v_rcp_f32 v{160+2*i}, v{160+2*i}\nv_rcp_f32 v{161+2*i}, v{161+2*i}")
        for i in range(4): a(f"v_pk_fma_f32 v[{146+2*k}:{147+2*k}], {U(i)}, {Z(i)}, v[{146+2*k}:{147+2*k}]")
    for k in range(3): a(f"v_add_f32 v{146+2*k}, v{146+2*k}, v{147+2*k}")
    wave_allreduce_multi("v_add_f32", ["v146","v148","v150"], ["v147","v149","v151"])
    a(f"s_lshl_b32 s62, {SW}, 4\ns_add_u32 s62, s62, {MRED}\nv_mov_b32 v15, s62\nv_mov_b32 v147, v148\nv_mov_b32 v148, v150")
    a("s_mov_b64 exec, 1\nds_write_b96 v15, v[146:148]\ns_mov_b64 exec, -1")
    a("s_waitcnt lgkmcnt(0)\ns_barrier")
    a(f"s_cmp_eq_u32 {SW}, 0\ns_cbranch_scc0 L_fin")
    a(f"v_lshlrev_b32 v15, 2, v1\nv_add_u32 v15, {MRED}, v15")
    a("ds_read_b32 v100, v15\nds_read_b32 v101, v15 offset:16\nds_read_b32 v102, v15 offset:32\nds_read_b32 v103, v15 offset:48")
    a("v_cmp_eq_u32 vcc, 1, v1\nv_cndmask_b32 v136, v136, v137, vcc\nv_cmp_eq_u32 vcc, 2, v1\nv_cndmask_b32 v136, v136, v138, vcc")
    a("s_waitcnt lgkmcnt(0)")
    a("v_add_f32 v100, v100, v101\nv_add_f32 v102, v102, v103\nv_add_f32 v100, v100, v102\nv_add_f32 v100, v100, v208\nv_add_f32 v100, v100, v136")
    a("v_cvt_pk_bf16_f32 v100, v100, v100")
    a("v_add_u32 v15, s64, v1\nv_lshlrev_b32 v16, 1, v15")
    srd(S_T, 26, 1280)
    a("v_cmp_gt_u32 vcc, 640, v15\ns_and_b64 exec, vcc, 7")
    a("s_cbranch_execz L_fin")
    a(f"buffer_store_short v100, v16, {S_T}, 0 offen")
    a("L_fin:")
    if profile:
        stamp(11)
        a("s_mov_b64 exec, -1\ns_waitcnt lgkmcnt(0)")
        a(f"s_lshl_b32 s62, s2, 2\ns_add_u32 s62, s62, {SW}\ns_lshl_b32 s62, s62, 6\ns_add_u32 s62, s62, {TS}")
        a("v_mov_b32 v18, 0\ns_mov_b64 exec, 1")
        for k in range(12):
            a(f"v_mov_b32 v15, s{76+2*k}\nbuffer_store_dword v15, v18, {S_WS}, s62 offen offset:{4*k}")
    a("L_end:")
    a("s_endpgm")
    a('.section .rodata,"a"\n.p2align 6')
    a(f".amdhsa_kernel {NAME}")
    a("  .amdhsa_next_free_vgpr 512\n  .amdhsa_next_free_sgpr 102\n  .amdhsa_accum_offset 256\n  .amdhsa_group_segment_fixed_size 0\n  .amdhsa_kernarg_size 112\n  .amdhsa_user_sgpr_count 2\n  .amdhsa_user_sgpr_kernarg_segment_ptr 1\n  .amdhsa_system_sgpr_workgroup_id_x 1")
    a(".end_amdhsa_kernel")
    n = a.hazard_pass()
    return a.text(), n

if __name__ == "__main__":
    prof = len(sys.argv) > 2 and sys.argv[2] == "prof"
    txt, n = gen(profile=prof)
    open(sys.argv[1], "w").write(txt)
    print("auto nops:", n, "lines:", txt.count("\n"))
```

```python
import sys, math, struct
from asmlib import Asm

NAME = "sequential_preLN__compressed_kv_cla__mixer_token_mlp__decode_kernel"
HEADER = open('sequential_preLN__compressed_kv_cla__mixer_token_mlp__decode.s.ref').read().split('; Override')[0]

def f2u(x): return struct.unpack('<I', struct.pack('<f', x))[0]

QG   = 4096
QA   = QG + 131072
ST   = QA + 65536
CP   = ST + 16384
HG   = CP + 65536
SENT2 = HG + 4096
SENT5 = SENT2 + 16384
QGB  = SENT5 + 16384
CPB  = QGB + 131072
OUTP = CPB + 65536
OP   = 1 << 20
TS   = 3145728
assert OUTP + 128*2560 <= OP
WS_SIZE = 4 << 20
CKV_STRIDE = 1056
QS = 135168; PX = 143616; MX = 147712; LX = 147968; MRED = 148224; MB = 148288
WUK = 0; WUV = 32768; OS = 65536; S1RED = 74752; WX = 82944; RRED = 83456
S1RED_C = 135168
LDS_BYTES = 148480
WO_STRIDE = 1312

SCALE = (128 ** -0.5) * math.log2(math.e)
C0 = -2.0 * math.sqrt(2.0 / math.pi) * math.log2(math.e)
C1 = C0 * 0.044715
EPS = 1e-5

S_WS, S_X, S_A, S_B, S_C, S_T = 's[32:35]', 's[36:39]', 's[40:43]', 's[44:47]', 's[48:51]', 's[52:55]'
TAG, SW, SR, SH, SSUB = 's56', 's57', 's58', 's59', 's60'

def gen(profile=False, spin_limit=400000, opt=None):
    opt = opt or {}
    WARM = opt.get('warm', 1)
    STPOS = opt.get('stpos', 1)
    a = Asm()
    SMASK = opt.get('smask', 0xfff)
    def stamp(k):
        if profile and (SMASK >> k) & 1:
            assert k < 12
            a(f"s_memrealtime s[{76+2*k}:{77+2*k}]")
    def srd(dst, ptr, size):
        d = int(dst[2:dst.index(':')])
        a(f"s_mov_b32 s{d}, s{ptr}\ns_mov_b32 s{d+1}, s{ptr+1}\ns_mov_b32 s{d+2}, {size}\ns_mov_b32 s{d+3}, 0x00020000")
    DPPS = ("quad_perm:[1,0,3,2]", "quad_perm:[2,3,0,1]", "row_half_mirror", "row_mirror")
    def row_allreduce(op, vs):
        for m in DPPS:
            for v in vs: a(f"{op}_dpp {v}, {v}, {v} {m} row_mask:0xf bank_mask:0xf")
    def swapred(sw, op, vs, ts):
        for v, t in zip(vs, ts): a(f"v_mov_b32 {t}, {v}")
        for v, t in zip(vs, ts): a(f"{sw} {v}, {t}")
        for v, t in zip(vs, ts): a(f"{op} {v}, {v}, {t}")
    def swap16(op, vs, ts): swapred("v_permlane16_swap_b32", op, vs, ts)
    def swap32(op, vs, ts): swapred("v_permlane32_swap_b32", op, vs, ts)
    def wave_allreduce(op, vs, ts):
        row_allreduce(op, vs); swap16(op, vs, ts); swap32(op, vs, ts)
    MASKED = opt.get('masked', 1)
    def poll_begin(name, dual=None):
        a(f"s_mov_b32 s61, 0")
        a(f"{name}:")
        if dual:
            a(f"s_and_b32 s75, s61, 7\ns_cmp_eq_u32 s75, 7\ns_cselect_b32 {dual[0]}, {dual[2]}, {dual[1]}")
    def poll_end(name, bad):
        a(f"v_cmp_ne_u32 vcc, 0, {bad}")
        a(f"s_add_u32 s61, s61, 1")
        a(f"s_cmp_gt_u32 s61, {spin_limit}")
        a(f"s_cbranch_scc1 {name}_x")
        if MASKED:
            a(f"s_and_b64 exec, exec, vcc")
            a(f"s_cbranch_execnz {name}")
        else:
            a(f"s_cbranch_vccnz {name}")
        a(f"{name}_x:")
        if MASKED: a("s_mov_b64 exec, -1")
        if profile and opt.get('cntfor') == name:
            a("s_mov_b32 s100, s61")
    def tagcheck(bad, tags):
        a(f"v_xor_b32 {bad}, {TAG}, {tags[0]}")
        for t in tags[1:]:
            a(f"v_bitop3_b32 {bad}, {t}, {TAG}, {bad} bitop3:0xbe")
    def mfma(d, A, B, first):
        a(f"v_mfma_f32_16x16x32_bf16 {d}, {A}, {B}, {'0' if first else d}")
    def vr(b, n=4): return f"v[{b}:{b+n-1}]"
    def ar(b, n=4): return f"a[{b}:{b+n-1}]"

    a.lines += [l for l in HEADER.strip().split('\n')]
    a(f"; @launch grid=(256,1,1) block=(256,1,1) lds={LDS_BYTES}")
    a('.amdgcn_target "amdgcn-amd-amdhsa--gfx950"')
    a(f".text\n.globl {NAME}\n.p2align 8\n.type {NAME},@function\n{NAME}:")
    if WARM:
        a("s_getpc_b64 s[40:41]\nv_lshlrev_b32 v5, 7, v0\ns_mov_b32 s42, CODE_BYTES\ns_mov_b32 s43, 0x00020000")
        a("buffer_load_dword v251, v5, s[40:43], 0 offen")
    stamp(0)
    if profile: a("s_mov_b32 s100, 99")
    a("s_cmp_ge_u32 s2, 256\ns_cbranch_scc1 L_end")
    a("s_load_dwordx16 s[4:19], s[0:1], 0\ns_load_dwordx8 s[20:27], s[0:1], 64\ns_load_dwordx4 s[28:31], s[0:1], 96")
    a("v_and_b32 v1, 63, v0\nv_lshrrev_b32 v2, 6, v0\nv_and_b32 v3, 15, v0\nv_bfe_u32 v4, v0, 4, 2")
    a(f"v_readfirstlane_b32 {SW}, v2")
    a(f"s_and_b32 s61, s2, 7\ns_bfe_u32 s62, s2, 0x40003\ns_lshl_b32 {SR}, s61, 4\ns_add_u32 {SR}, {SR}, s62")
    a(f"s_lshr_b32 {SH}, {SR}, 2\ns_and_b32 {SSUB}, {SR}, 3")
    a("v_mov_b32 v18, 0")
    a("s_waitcnt lgkmcnt(0)")
    srd(S_WS, 30, WS_SIZE)
    a(f"buffer_load_dword v250, v18, {S_WS}, 0 offen")
    srd(S_X, 4, 1280)
    def m_coef_loads():
        a("v_lshlrev_b32 v17, 2, v0")
        for k, p in enumerate((18, 20, 22)):
            srd(S_T, p, 3456)
            for i in range(4):
                a(f"buffer_load_dword v{196+4*k+i}, v17, {S_T}, 0 offen offset:{1024*i}")
        srd(S_T, 24, 2)
        a(f"buffer_load_ushort v208, v18, {S_T}, 0 offen")
    def m_coef_unpack():
        a("s_mov_b32 s63, 0xffff0000")
        for k in range(3):
            for i in range(4):
                s_ = 196+4*k+i; d = 210+8*k+2*i
                a(f"v_lshlrev_b32 v{d}, 16, v{s_}\nv_and_b32 v{d+1}, s63, v{s_}")
        a("v_lshlrev_b32 v208, 16, v208")
    def sentinel(base):
        lab = f"L_s{base}"
        a(f"s_cmp_eq_u32 {SW}, 0\ns_cbranch_scc0 {lab}")
        a(f"v_mov_b32 v240, {TAG}\nv_mov_b32 v241, {TAG}\nv_mov_b32 v242, {TAG}\nv_mov_b32 v243, {TAG}\nv_lshlrev_b32 v244, 4, v1")
        a(f"s_lshl_b32 s62, {SR}, 7\ns_add_u32 s62, s62, {base}\ns_mov_b64 exec, 0xff")
        a(f"buffer_store_dwordx4 v[240:243], v244, {S_WS}, s62 offen sc1")
        a(f"s_mov_b64 exec, -1\n{lab}:")

    NW = 1 if WARM else 0
    PWX = 1 if opt.get("prewarm", 1) else 0

    a.c("================= S1: q partials, head h1 = 4*xcd + (idx>>3), rows 80*me..80*me+79, me = idx&7")
    a("s_lshr_b32 s72, s2, 6\ns_and_b32 s73, s2, 7\ns_lshl_b32 s73, s73, 2\ns_add_u32 s72, s72, s73")
    a("s_bfe_u32 s73, s2, 0x30003")
    srd(S_A, 8, 5242880)
    a("v_lshlrev_b32 v5, 2, v1")
    for j in range(5): a(f"buffer_load_dword v{32+j}, v5, {S_X}, 0 offen offset:{256*j}")
    a(f"v_lshrrev_b32 v6, 4, v0\ns_mul_i32 s62, s73, 80\nv_add_u32 v7, s62, v6\nv_lshlrev_b32 v7, 1, v7")
    for i in range(5): a(f"buffer_load_ushort v{40+2*i}, v7, {S_X}, 0 offen offset:{32*i}")
    a("v_lshlrev_b32 v8, 4, v3\nv_lshl_add_u32 v8, v6, 13, v8")
    a(f"s_mul_i32 s61, s73, {80*8192}\ns_lshl_b32 s62, s72, 8\ns_add_u32 s61, s61, s62")
    for i in range(5):
        a(f"buffer_load_dwordx4 {vr(60+4*i)}, v8, {S_A}, s61 offen")
        if i < 4: a(f"s_add_u32 s61, s61, {16*8192}")
    a("v_xor_b32 v9, v3, v4\nv_lshlrev_b32 v9, 4, v9\nv_lshl_add_u32 v9, v4, 13, v9")
    a("v_xor_b32 v10, 64, v9\nv_xor_b32 v11, 128, v9\nv_xor_b32 v12, 192, v9")
    a("s_bitcmp1_b32 s2, 7\ns_cbranch_scc1 L_nouk")
    srd(S_B, 10, 4194304)
    a(f"s_lshl_b32 s66, {SSUB}, 20\ns_lshl_b32 s63, {SH}, 8\ns_add_u32 s66, s66, s63\ns_lshl_b32 s63, {SW}, 18\ns_add_u32 s66, s66, s63")
    a(f"s_lshl_b32 s67, {SW}, 13")
    NUP = opt.get('nup', 4)
    def uk_dma(k):
        a(f"s_mov_b32 m0, s67\ns_add_u32 s67, s67, 1024")
        a(f"buffer_load_dwordx4 v{9+(k&3)}, {S_B}, s66 offen lds")
        if k < 7: a(f"s_add_u32 s66, s66, 32768")
    for k in range(NUP): uk_dma(k)
    if PWX:
        a(f"v_and_b32 v253, 31, v1\nv_lshlrev_b32 v253, 7, v253\ns_lshl_b32 s62, {SH}, 12\ns_add_u32 s62, s62, {QG}")
        a(f"buffer_load_dword v252, v253, {S_WS}, s62 offen nt")
    a("s_branch L_s1c")
    a("L_nouk:")
    EARLY = opt.get('early', 1)
    def ckv_group(q):
        a(f"s_add_u32 s62, {SSUB}, {q}\ns_and_b32 s62, s62, 3\ns_mul_i32 s63, s62, {8*CKV_STRIDE}\ns_add_u32 s63, s63, s69\ns_lshl_b32 s62, s62, 13\ns_add_u32 s62, s62, s68")
        for j in range(8):
            a(f"s_mov_b32 m0, s63\ns_add_u32 s63, s63, {CKV_STRIDE}")
            a(f"buffer_load_dwordx4 v9, {S_B}, s62 offen lds")
            if j < 7: a(f"s_add_u32 s62, s62, 1024")
    srd(S_B, 6, 4194304)
    a("v_lshlrev_b32 v9, 4, v1")
    a(f"s_lshl_b32 s68, {SH}, 17\ns_lshl_b32 s63, {SW}, 15\ns_add_u32 s68, s68, s63")
    a(f"s_mul_i32 s69, {SW}, {32*CKV_STRIDE}")
    for q in range(EARLY): ckv_group(q)
    a("L_s1c:")
    stamp(1)
    def s1_body(extra, late=()):
        late = list(late)
        a(f"s_waitcnt vmcnt({10+extra})")
        a(f"v_readfirstlane_b32 {TAG}, v250\ns_add_u32 {TAG}, {TAG}, 1")
        a("s_mov_b32 s63, 0xffff0000")
        for j in range(5):
            a(f"v_lshlrev_b32 v{100+2*j}, 16, v{32+j}\nv_and_b32 v{101+2*j}, s63, v{32+j}")
        a("v_readfirstlane_b32 s64, v100")
        for k in range(100, 110): a(f"v_subrev_f32 v{k}, s64, v{k}")
        a("v_add_f32 v110, v100, v101\nv_mul_f32 v112, v100, v100")
        a("v_fmac_f32 v112, v101, v101")
        for k in range(102, 110): a(f"v_add_f32 v110, v110, v{k}\nv_fmac_f32 v112, v{k}, v{k}")
        wave_allreduce("v_add_f32", ["v110", "v112"], ["v111", "v113"])
        a(f"s_mov_b32 s65, {f2u(1.0/640):#x}\nv_mul_f32 v110, s65, v110\nv_mul_f32 v112, s65, v112")
        a(f"v_fma_f32 v112, -v110, v110, v112\nv_add_f32 v112, {f2u(EPS):#x}, v112\nv_rsq_f32 v113, v112")
        a("v_add_f32 v110, s64, v110")
        a(f"s_waitcnt vmcnt({5+extra})")
        for i in range(5):
            r = 40+2*i
            a(f"v_lshlrev_b32 v{r}, 16, v{r}\nv_sub_f32 v{r}, v{r}, v110\nv_mul_f32 v{r}, v{r}, v113")
        for k in range(100, 108): a(f"v_mov_b32 v{k}, 0")
        issued = 0
        for i in range(5):
            a(f"s_waitcnt vmcnt({4-i+extra+issued})")
            w = 60+4*i; l = 40+2*i
            for d in range(4):
                a(f"v_lshlrev_b32 v{108+2*(d&1)}, 16, v{w+d}\nv_and_b32 v{109+2*(d&1)}, s63, v{w+d}")
                a(f"v_pk_fma_f32 v[{100+2*d}:{101+2*d}], v[{108+2*(d&1)}:{109+2*(d&1)}], v[{l}:{l+1}], v[{100+2*d}:{101+2*d}] op_sel_hi:[1,0,1]")
            if late:
                late.pop(0)(); issued += 1
    a("s_bitcmp1_b32 s2, 7\ns_cbranch_scc1 L_s1y")
    s1_body(NUP+PWX, [(lambda k=k: uk_dma(k)) for k in range(NUP, 8)])
    a("s_branch L_s1r")
    a("L_s1y:")
    s1_body(8*EARLY)
    a("L_s1r:")
    stamp(2)
    s1red = S1RED
    a(f"v_lshlrev_b32 v13, 9, v6\nv_lshl_add_u32 v13, v3, 4, v13")
    a(f"v_add_u32 v13, {S1RED_C}, v13")
    a("ds_write_b128 v13, v[100:103]\nds_write_b128 v13, v[104:107] offset:256")
    a(f"v_and_b32 v14, 31, v1\nv_lshrrev_b32 v15, 3, v14\ns_lshl_b32 s62, {SW}, 2\nv_add_u32 v15, s62, v15\nv_lshlrev_b32 v15, 4, v15")
    a("v_bfe_u32 v16, v1, 2, 1\nv_lshl_add_u32 v15, v16, 8, v15\nv_and_b32 v16, 3, v1\nv_lshl_add_u32 v15, v16, 2, v15\nv_lshrrev_b32 v16, 5, v1\nv_lshl_add_u32 v15, v16, 12, v15")
    a(f"v_add_u32 v15, {S1RED_C}, v15")
    a(f"s_lshl_b32 s62, s72, 12\ns_lshl_b32 s63, {SW}, 10\ns_add_u32 s62, s62, s63\ns_lshl_b32 s63, s73, 4\ns_add_u32 s62, s62, s63\ns_add_u32 s62, s62, {QG}\ns_add_u32 s63, s62, {QGB-QG}")
    a("v_lshrrev_b32 v17, 3, v14\nv_lshlrev_b32 v17, 7, v17\nv_bfe_u32 v12, v14, 2, 1\nv_lshl_add_u32 v17, v12, 9, v17\nv_bfe_u32 v12, v14, 1, 1\nv_lshl_add_u32 v17, v12, 3, v17")
    a("s_waitcnt lgkmcnt(0)\ns_barrier")
    for k in range(4): a(f"ds_read2st64_b32 v[{100+2*k}:{101+2*k}], v15 offset0:{4*k} offset1:{4*k+2}")
    a("v_mov_b32 v14, v17")
    a("s_waitcnt lgkmcnt(0)")
    a("v_add_f32 v100, v100, v101\nv_add_f32 v102, v102, v103\nv_add_f32 v104, v104, v105\nv_add_f32 v106, v106, v107")
    a("v_add_f32 v100, v100, v102\nv_add_f32 v104, v104, v106\nv_add_f32 v100, v100, v104")
    swap32("v_add_f32", ["v100"], ["v101"])
    a("v_mov_b32_dpp v101, v100 row_shl:1 row_mask:0xf bank_mask:0xf")
    a(f"v_cvt_pk_bf16_f32 v102, v100, v101\nv_mov_b32 v103, {TAG}")
    a("s_mov_b32 exec_lo, 0x55555555\ns_mov_b32 exec_hi, 0")
    a(f"buffer_store_dwordx2 v[102:103], v14, {S_WS}, s62 offen")
    a("s_bitcmp1_b32 s2, 7\ns_cbranch_scc0 L_Xgo")
    a(f"buffer_store_dwordx2 v[102:103], v14, {S_WS}, s63 offen sc1")
    a("s_mov_b64 exec, -1")
    a("s_branch L_Y")
    a("L_Xgo:")
    a("s_mov_b64 exec, -1")
    a("v_mov_b32 v238, v102\nv_mov_b32 v239, v103\nv_mov_b32 v237, v14\ns_mov_b32 s71, s63")

    a.c("================= X role: S2 (q_abs), S4 (ctx partial), R")
    srd(S_C, 12, 4194304)
    a("s_waitcnt vmcnt(0)" if opt.get('dbg1') else "s_waitcnt vmcnt(1)")
    a(f"s_lshl_b32 s62, {SW}, 5\nv_add_u32 v13, s62, v3\nv_lshlrev_b32 v13, 8, v13\nv_xor_b32 v14, v3, v4\nv_lshl_add_u32 v13, v14, 4, v13")
    a("v_xor_b32 v14, 64, v13\nv_xor_b32 v15, 128, v13\nv_xor_b32 v16, 192, v13")
    for tile in range(2):
        for s in range(4):
            a(f"ds_read_b128 {vr(116+(tile*4+s)*4)}, v{13+s} offset:{WUK+4096*tile}")
    stamp(3)
    a(f"v_and_b32 v13, 7, v3\nv_lshlrev_b32 v13, 4, v13\nv_lshl_add_u32 v13, v4, 7, v13\ns_lshl_b32 s63, {SH}, 12\ns_add_u32 s63, s63, {QG}\ns_add_u32 s64, s63, {QGB-QG}")
    def qgb_store():
        a("s_mov_b64 s[78-2:78-1], exec" if False else "s_mov_b64 s[98:99], exec")
        a("s_mov_b32 exec_lo, 0x55555555\ns_mov_b32 exec_hi, 0")
        a(f"buffer_store_dwordx2 v[238:239], v237, {S_WS}, s71 offen sc1")
        a("s_mov_b64 exec, s[98:99]")
    poll_begin("L_p1", ("s62", "s63", "s64"))
    a("s_cmp_eq_u32 s61, 7\ns_cbranch_scc0 L_p1n")
    qgb_store()
    a("L_p1n:")
    LF = opt.get('lflag', 'nt')
    def dual_loads(name, emit):
        a(f"s_cmp_eq_u32 s75, 7\ns_cbranch_scc1 {name}_b")
        emit(LF)
        a(f"s_branch {name}_c\n{name}_b:")
        emit("sc1")
        a(f"{name}_c:")
    def g1_loads(fl):
        for s in range(4):
            r = 148+8*s
            a(f"buffer_load_dwordx4 {vr(r)}, v13, {S_WS}, s62 offen offset:{1024*s} {fl}")
            a(f"buffer_load_dwordx4 {vr(r+4)}, v13, {S_WS}, s62 offen offset:{1024*s+512} {fl}")
    dual_loads("L_p1", g1_loads)
    a("s_waitcnt vmcnt(0)")
    tagcheck("v14", [f"v{148+8*s+k}" for s in range(4) for k in (1,3,5,7)])
    poll_end("L_p1", "v14")
    a("s_cmp_gt_u32 s61, 7\ns_cbranch_scc1 L_p1m")
    qgb_store()
    a("L_p1m:")
    stamp(4)
    if opt.get('sent2', 0): sentinel(SENT2)
    for s in range(4):
        r = 148+8*s
        a(f"v_mov_b32 v{r+1}, v{r+2}\nv_mov_b32 v{r+2}, v{r+4}\nv_mov_b32 v{r+3}, v{r+6}")
    a("s_waitcnt lgkmcnt(0)")
    for s in range(4):
        for tile in range(2):
            mfma(vr(180+4*tile), vr(148+8*s), vr(116+(tile*4+s)*4), s == 0)
    a(f"s_mov_b32 s63, {f2u(SCALE):#x}")
    a("v_lshlrev_b32 v13, 2, v3\nv_lshl_add_u32 v13, v4, 6, v13\nv_cmp_eq_u32 vcc, 1, v4")
    a(f"s_lshl_b32 s62, {SR}, 9\ns_lshl_b32 s64, {SW}, 7\ns_add_u32 s62, s62, s64\ns_add_u32 s62, s62, {QA}")
    a("v_add_f32 v180, v180, v181\nv_add_f32 v184, v184, v185\nv_add_f32 v182, v182, v183\nv_add_f32 v186, v186, v187")
    a("v_add_f32 v180, v180, v182\nv_add_f32 v184, v184, v186")
    swap16("v_add_f32", ["v180", "v184"], ["v181", "v185"])
    a("v_cndmask_b32 v180, v180, v184, vcc\nv_mul_f32 v180, s63, v180")
    a("v_mov_b32_dpp v181, v180 row_shl:1 row_mask:0xf bank_mask:0xf")
    a(f"v_cvt_pk_bf16_f32 v188, v180, v181\nv_mov_b32 v189, {TAG}")
    a("s_mov_b32 exec_lo, 0x55555555\ns_mov_b32 exec_hi, 0")
    a(f"buffer_store_dwordx2 v[188:189], v13, {S_WS}, s62 offen sc1")
    a("s_mov_b64 exec, -1")
    stamp(5)
    a("v_lshrrev_b32 v15, 1, v3\nv_and_b32 v16, 1, v4\nv_lshlrev_b32 v16, 2, v16\nv_xor_b32 v15, v15, v16\nv_lshlrev_b32 v15, 5, v15\nv_and_b32 v16, 1, v0\nv_lshl_add_u32 v15, v16, 4, v15\nv_lshl_add_u32 v15, v4, 13, v15")
    a(f"s_lshl_b32 s62, {SW}, 1\ns_and_b32 s63, s62, 3\ns_lshl_b32 s63, s63, 5\nv_xor_b32 v16, s63, v15\ns_add_u32 s62, s62, 1\ns_and_b32 s63, s62, 3\ns_lshl_b32 s63, s63, 5\nv_xor_b32 v15, s63, v15")
    a(f"s_lshl_b32 s62, {SSUB}, 20\ns_lshl_b32 s63, {SH}, 8\ns_add_u32 s62, s62, s63\ns_lshl_b32 s63, {SW}, 18\ns_add_u32 s62, s62, s63")
    a(f"s_lshl_b32 s63, {SW}, 13\ns_add_u32 s63, s63, {WUV}")
    for k in range(8):
        a(f"s_mov_b32 m0, s63\ns_add_u32 s63, s63, 1024")
        a(f"buffer_load_dwordx4 {'v16' if k < 4 else 'v15'}, {S_C}, s62 offen lds")
        if k < 7: a("s_add_u32 s62, s62, 32768")
    m_coef_loads()
    a(f"s_and_b32 s74, {SR}, 15\ns_lshl_b32 s74, s74, 3\ns_lshr_b32 s62, {SR}, 4\ns_add_u32 s74, s74, s62")
    a(f"v_and_b32 v26, 7, v0\nv_lshlrev_b32 v26, 3, v26\ns_lshl_b32 s66, s74, 6\nbuffer_load_dwordx2 v[234:235], v26, {S_X}, s66 offen")
    a("s_waitcnt vmcnt(0)\ns_barrier")
    a("v_lshrrev_b32 v19, 2, v3\nv_lshl_add_u32 v19, v4, 2, v19")
    a("v_lshrrev_b32 v20, 2, v3\nv_and_b32 v21, 1, v4\nv_lshl_add_u32 v21, v21, 2, v20")
    a(f"s_lshl_b32 s62, {SW}, 1\nv_xor_b32 v21, s62, v21\nv_lshlrev_b32 v21, 5, v21")
    a("v_lshl_add_u32 v20, v20, 4, v4\nv_lshl_add_u32 v20, v20, 8, v21\nv_and_b32 v21, 3, v3\nv_lshl_add_u32 v20, v21, 3, v20\nv_xor_b32 v21, 32, v20")
    for tt in range(2):
        for j in range(4):
            for u in range(2):
                r = 60+(tt*4+j)*4+2*u; tau = 2*j+u
                a(f"ds_read_b64_tr_b16 v[{r}:{r+1}], {'v20' if tt==0 else 'v21'} offset:{WUV+16384*(tau>>2)+1024*(tau&3)}")
    m_coef_unpack()
    a("v_lshlrev_b32 v22, 4, v0\nv_and_b32 v23, 31, v1\nv_lshlrev_b32 v23, 9, v23")
    a(f"s_lshl_b32 s62, {SR}, 14\ns_add_u32 s66, s62, {OP}\ns_add_u32 s67, s66, 4096\ns_add_u32 s68, s66, 8192\ns_add_u32 s69, s66, 12288")
    a(f"s_lshr_b32 s62, {SH}, 3\ns_lshl_b32 s62, s62, 7\ns_and_b32 s63, {SH}, 7\ns_lshl_b32 s63, s63, 4\ns_add_u32 s62, s62, s63\ns_add_u32 s70, s62, {ST}")
    a(f"v_lshrrev_b32 v24, 5, v0\nv_mul_u32_u24 v24, 288, v24\nv_and_b32 v25, 31, v0\nv_lshl_add_u32 v24, v25, 3, v24\nv_add_u32 v24, {OS}, v24")
    a(f"s_lshl_b32 s62, {SW}, 7\ns_add_u32 s71, s62, {WX}\nv_and_b32 v25, 31, v1\nv_lshlrev_b32 v25, 2, v25\nv_add_u32 v25, s71, v25")
    a(f"v_lshlrev_b32 v27, 4, v4\nv_add_u32 v27, s71, v27")
    a(f"v_mul_u32_u24 v28, 288, v19\nv_and_b32 v29, 3, v3\nv_lshl_add_u32 v28, v29, 3, v28\nv_add_u32 v28, {OS}, v28")
    stamp(6)
    a("s_mov_b32 exec_hi, 0")
    poll_begin("L_p3a")
    a(f"buffer_load_dwordx4 v[116:119], v23, {S_WS}, s70 offen sc1")
    a("s_waitcnt vmcnt(0)")
    tagcheck("v14", ["v117", "v119"])
    poll_end("L_p3a", "v14")
    for i in range(4):
        a(f"buffer_load_dwordx4 {vr(100+4*i)}, v22, {S_WS}, s{66+i} offen sc1")
    a("v_mov_b32 v120, v116")
    row_allreduce("v_max_f32", ["v120"]); swap16("v_max_f32", ["v120"], ["v121"])
    a("v_sub_f32 v116, v116, v120\nv_exp_f32 v116, v116\nv_mul_f32 v118, v116, v118")
    row_allreduce("v_add_f32", ["v118"]); swap16("v_add_f32", ["v118"], ["v121"])
    a("v_rcp_f32 v118, v118\nv_mul_f32 v116, v116, v118")
    a("s_mov_b32 exec_hi, 0\nds_write_b32 v25, v116\ns_mov_b64 exec, -1")
    a("ds_read_b128 v[120:123], v27\nds_read_b128 v[124:127], v27 offset:64")
    a("s_waitcnt vmcnt(0)")
    tagcheck("v14", [f"v{100+4*i+k}" for i in range(4) for k in (1,3)])
    a("v_cmp_ne_u32 vcc, 0, v14\ns_cbranch_vccz L_p3b_x")
    if MASKED: a("s_and_b64 exec, exec, vcc")
    poll_begin("L_p3b")
    for i in range(4):
        a(f"buffer_load_dwordx4 {vr(100+4*i)}, v22, {S_WS}, s{66+i} offen sc1")
    a("s_waitcnt vmcnt(0)")
    tagcheck("v14", [f"v{100+4*i+k}" for i in range(4) for k in (1,3)])
    poll_end("L_p3b", "v14")
    stamp(7)
    for i in range(4):
        a(f"v_mov_b32 v{101+4*i}, v{102+4*i}\nds_write_b64 v24, v[{100+4*i}:{101+4*i}] offset:{2304*i}")
    a("s_waitcnt lgkmcnt(0)\ns_barrier")
    for t in range(8):
        for u in range(2):
            r = 132+4*t+2*u
            a(f"ds_read_b64_tr_b16 v[{r}:{r+1}], v28 offset:{4608*u+32*t}")
    a("v_cvt_pk_bf16_f32 v128, v120, v121\nv_cvt_pk_bf16_f32 v129, v122, v123\nv_cvt_pk_bf16_f32 v130, v124, v125\nv_cvt_pk_bf16_f32 v131, v126, v127")
    for t in range(8):
        a(f"s_waitcnt lgkmcnt({14-2*t})")
        mfma(vr(164+4*t), vr(132+4*t), vr(128), True)
    for j in range(4):
        d0 = 164+8*j; o = 100+4*j
        a(f"v_cvt_pk_bf16_f32 v{o}, v{d0}, v{d0+1}\nv_cvt_pk_bf16_f32 v{o+1}, v{d0+2}, v{d0+3}\nv_cvt_pk_bf16_f32 v{o+2}, v{d0+4}, v{d0+5}\nv_cvt_pk_bf16_f32 v{o+3}, v{d0+6}, v{d0+7}")
    for j in range(4):
        for tt in range(2):
            mfma(vr(116+4*tt), vr(100+4*j), vr(60+(tt*4+j)*4), j == 0)
    a(f"s_lshl_b32 s62, {SH}, 11\ns_lshl_b32 s63, {SW}, 9\ns_add_u32 s62, s62, s63\ns_lshl_b32 s63, {SSUB}, 4\ns_add_u32 s62, s62, s63\ns_add_u32 s62, s62, {CP}")
    a("v_lshrrev_b32 v13, 2, v3\nv_lshlrev_b32 v13, 6, v13\nv_bfe_u32 v14, v3, 1, 1\nv_lshl_add_u32 v13, v14, 3, v13\nv_lshl_add_u32 v13, v4, 8, v13\nv_cmp_eq_u32 vcc, 1, v4")
    a("v_cndmask_b32 v116, v116, v120, vcc")
    a("v_mov_b32_dpp v117, v116 row_shl:1 row_mask:0xf bank_mask:0xf")
    a(f"v_cvt_pk_bf16_f32 v118, v116, v117\nv_mov_b32 v119, {TAG}")
    a("s_mov_b32 exec_lo, 0x55555555\ns_mov_b32 exec_hi, 0")
    a(f"buffer_store_dwordx2 v[118:119], v13, {S_WS}, s62 offen")
    a(f"s_add_u32 s62, s62, {CPB-CP}")
    a(f"buffer_store_dwordx2 v[118:119], v13, {S_WS}, s62 offen sc1")
    a("s_mov_b64 exec, -1")
    stamp(8)
    a(f"s_cmp_lt_u32 s74, 20\ns_cbranch_scc0 L_M")
    a(f"v_lshrrev_b32 v13, 3, v0\nv_mul_u32_u24 v13, 2560, v13\nv_and_b32 v26, 7, v0\nv_lshl_add_u32 v13, v26, 4, v13")
    a(f"s_lshl_b32 s62, s74, 7\ns_add_u32 s66, s62, {OUTP}\ns_add_u32 s67, s66, {32*2560}\ns_add_u32 s68, s66, {64*2560}\ns_add_u32 s69, s66, {96*2560}")
    a(f"v_lshlrev_b32 v14, 7, v1\ns_mov_b32 s62, {SENT5}\ns_mov_b32 s63, {SENT5+8192}\nv_mov_b32 v15, v14")
    if opt.get('sent5', 0):
        poll_begin("L_p5a")
        a(f"buffer_load_dword v100, v15, {S_WS}, s62 offen sc1\nbuffer_load_dword v101, v15, {S_WS}, s63 offen sc1")
        a("s_waitcnt vmcnt(0)")
        tagcheck("v14", ["v100", "v101"])
        poll_end("L_p5a", "v14")
    poll_begin("L_p5")
    for i in range(4):
        a(f"buffer_load_dwordx4 {vr(100+4*i)}, v13, {S_WS}, s{66+i} offen sc1")
    a("s_waitcnt vmcnt(0)")
    tagcheck("v14", [f"v{100+4*i+k}" for i in range(4) for k in (1,3)])
    poll_end("L_p5", "v14")
    a("s_mov_b32 s63, 0xffff0000")
    for i in range(4):
        for e in range(2):
            s_ = 100+4*i+2*e; d = 120+4*i+2*e
            a(f"v_lshlrev_b32 v{d}, 16, v{s_}\nv_and_b32 v{d+1}, s63, v{s_}")
    for k in range(4): a(f"v_add_f32 v{120+k}, v{120+k}, v{124+k}\nv_add_f32 v{128+k}, v{128+k}, v{132+k}")
    for k in range(4): a(f"v_add_f32 v{120+k}, v{120+k}, v{128+k}")
    for k in range(4): a(f"v_add_f32_dpp v{120+k}, v{120+k}, v{120+k} row_ror:8 row_mask:0xf bank_mask:0xf")
    vs = [f"v{120+k}" for k in range(4)]; ts = [f"v{124+k}" for k in range(4)]
    swap16("v_add_f32", vs, ts); swap32("v_add_f32", vs, ts)
    a(f"s_lshl_b32 s62, {SW}, 7\ns_add_u32 s62, s62, {RRED}\nv_lshlrev_b32 v27, 4, v26\nv_add_u32 v28, s62, v27")
    a("s_mov_b64 exec, 0xff\nds_write_b128 v28, v[120:123]\ns_mov_b64 exec, -1")
    a("s_waitcnt lgkmcnt(0)\ns_barrier")
    a(f"s_cmp_eq_u32 {SW}, 0\ns_cbranch_scc0 L_M")
    a(f"v_add_u32 v28, {RRED}, v27")
    for wv in range(4): a(f"ds_read_b128 {vr(120+4*wv)}, v28 offset:{128*wv}")
    a("v_lshlrev_b32 v112, 16, v234\nv_and_b32 v113, s63, v234\nv_lshlrev_b32 v114, 16, v235\nv_and_b32 v115, s63, v235")
    a("s_waitcnt lgkmcnt(0)")
    for k in range(4): a(f"v_add_f32 v{120+k}, v{120+k}, v{124+k}\nv_add_f32 v{128+k}, v{128+k}, v{132+k}")
    for k in range(4): a(f"v_add_f32 v{120+k}, v{120+k}, v{128+k}")
    for k in range(4): a(f"v_add_f32 v{120+k}, v{120+k}, v{112+k}")
    a(f"v_cvt_pk_bf16_f32 v100, v120, v121\nv_mov_b32 v101, {TAG}\nv_cvt_pk_bf16_f32 v102, v122, v123\nv_mov_b32 v103, {TAG}")
    a(f"s_lshl_b32 s62, s74, 7\ns_add_u32 s62, s62, {HG}")
    a("s_mov_b64 exec, 0xff")
    a(f"buffer_store_dwordx4 v[100:103], v27, {S_WS}, s62 offen sc1")
    a("s_mov_b64 exec, -1")
    a("s_branch L_M")

    a.c("================= Y role: S3 (attention), S5 (out partial)")
    a("L_Y:")
    a("v_lshlrev_b32 v5, 4, v1")
    YD = 0
    for q in range(EARLY, 4): ckv_group(q)
    stamp(1)
    srd(S_B, 14, 5242880)
    PWY = 1 if opt.get('prewarm', 1) else 0
    if PWY:
        a(f"v_and_b32 v253, 3, v3\nv_lshlrev_b32 v253, 7, v253\ns_lshl_b32 s62, {SR}, 9\ns_add_u32 s62, s62, {CP}")
        a(f"buffer_load_dword v252, v253, {S_WS}, s62 offen nt")
    a(f"s_lshl_b32 s62, {SW}, 5\nv_add_u32 v6, s62, v3\nv_mul_u32_u24 v6, {CKV_STRIDE}, v6\nv_lshl_add_u32 v6, v4, 4, v6")
    a("v_lshrrev_b32 v19, 2, v3\nv_lshl_add_u32 v19, v4, 2, v19")
    a(f"v_mul_u32_u24 v7, {CKV_STRIDE}, v19\nv_and_b32 v8, 3, v3\nv_lshl_add_u32 v7, v8, 3, v7\ns_lshl_b32 s62, {SW}, 8\nv_add_u32 v7, s62, v7\nv_add_u32 v8, {64*CKV_STRIDE}, v7")
    a("v_lshlrev_b32 v22, 4, v0")
    a(f"s_lshl_b32 s62, {SSUB}, 14\ns_add_u32 s66, s62, {QA}\ns_add_u32 s67, s66, 4096\ns_add_u32 s68, s66, 8192\ns_add_u32 s69, s66, 12288")
    a(f"v_lshrrev_b32 v24, 7, v0\nv_mul_u32_u24 v24, {CKV_STRIDE}, v24\nv_and_b32 v25, 127, v0\nv_lshl_add_u32 v24, v25, 3, v24\nv_add_u32 v24, {QS}, v24")
    a(f"v_and_b32 v25, 7, v3\nv_mul_u32_u24 v25, {CKV_STRIDE}, v25\nv_lshl_add_u32 v25, v4, 4, v25\nv_add_u32 v25, {QS}, v25")
    a(f"s_lshl_b32 s62, {SW}, 2\ns_add_u32 s62, s62, {MX}\nv_lshlrev_b32 v26, 4, v3\nv_add_u32 v27, s62, v26\nv_add_u32 v28, {MX}, v26")
    a(f"s_lshl_b32 s62, {SW}, 10\ns_add_u32 s62, s62, {PX}\nv_add_u32 v29, s62, v5\nv_add_u32 v31, {PX}, v5")
    a(f"v_and_b32 v23, 31, v1\nv_lshlrev_b32 v23, 7, v23\ns_lshl_b32 s70, {SSUB}, 12\ns_add_u32 s70, s70, {SENT2}")
    a(f"s_waitcnt vmcnt({PWY})")
    stamp(2)
    for tile in range(2):
        for s in range(16):
            a(f"ds_read_b128 {ar((tile*16+s)*4)}, v6 offset:{tile*16*CKV_STRIDE+64*s}")
    stamp(3)
    if opt.get('sent2', 0):
        poll_begin("L_p2a")
        a(f"buffer_load_dword v100, v23, {S_WS}, s70 offen sc1")
        a("s_waitcnt vmcnt(0)")
        tagcheck("v14", ["v100"])
        poll_end("L_p2a", "v14")
    poll_begin("L_p2")
    for i in range(4):
        a(f"buffer_load_dwordx4 {vr(100+4*i)}, v22, {S_WS}, s{66+i} offen sc1")
    a("s_waitcnt vmcnt(0)")
    tagcheck("v14", [f"v{100+4*i+k}" for i in range(4) for k in (1,3)])
    poll_end("L_p2", "v14")
    stamp(4)
    for i in range(4):
        a(f"v_mov_b32 v{101+4*i}, v{102+4*i}\nds_write_b64 v24, v[{100+4*i}:{101+4*i}] offset:{2*CKV_STRIDE*i}")
    a("s_waitcnt lgkmcnt(0)\ns_barrier")
    for s in range(16):
        a(f"ds_read_b128 {vr(32+4*s)}, v25 offset:{64*s}")
    pv = []
    for t in range(8):
        for j in range(4):
            for u in range(2):
                r = 128+(t*4+j)*4+2*u
                pv.append(f"ds_read_b64_tr_b16 a[{r}:{r+1}], {'v7' if j < 2 else 'v8'} offset:{(32*(j&1)+16*u)*CKV_STRIDE+32*t}")
    for s in range(16):
        if s < 4: a(f"s_waitcnt lgkmcnt({12-4*s})")
        for tile in range(2):
            sidx = s
            mfma(vr(100+4*tile), ar((tile*16+s)*4), vr(32+4*s), s == 0)
            if s >= 3:
                for _ in range(3 if pv else 0):
                    if pv: a(pv.pop(0))
    while pv: a(pv.pop(0))
    stamp(5)
    a("v_max3_f32 v108, v100, v101, v102\nv_max3_f32 v109, v103, v104, v105\nv_max3_f32 v108, v108, v106, v107\nv_max_f32 v108, v108, v109")
    swap16("v_max_f32", ["v108"], ["v109"]); swap32("v_max_f32", ["v108"], ["v109"])
    a("ds_write_b32 v27, v108")
    a("s_waitcnt lgkmcnt(0)\ns_barrier")
    a(f"ds_read_b128 v[108:111], v28\ns_waitcnt lgkmcnt(0)")
    a("v_max3_f32 v108, v108, v109, v110\nv_max_f32 v108, v108, v111")
    for k in range(8): a(f"v_sub_f32 v{100+k}, v{100+k}, v108")
    for k in range(8): a(f"v_exp_f32 v{100+k}, v{100+k}")
    a("v_cvt_pk_bf16_f32 v112, v100, v101\nv_cvt_pk_bf16_f32 v113, v102, v103\nv_cvt_pk_bf16_f32 v114, v104, v105\nv_cvt_pk_bf16_f32 v115, v106, v107")
    a("ds_write_b128 v29, v[112:115]")
    a("v_add_f32 v100, v100, v101\nv_add_f32 v102, v102, v103\nv_add_f32 v104, v104, v105\nv_add_f32 v106, v106, v107\nv_add_f32 v100, v100, v102\nv_add_f32 v104, v104, v106\nv_add_f32 v100, v100, v104")
    swap16("v_add_f32", ["v100"], ["v109"]); swap32("v_add_f32", ["v100"], ["v109"])
    a(f"ds_write_b32 v27, v100 offset:{LX-MX}")
    a("s_waitcnt lgkmcnt(0)\ns_barrier")
    for j in range(4): a(f"ds_read_b128 {vr(32+4*j)}, v31 offset:{1024*j}")
    a(f"ds_read_b128 v[112:115], v28 offset:{LX-MX}")
    def stats_store():
        lab = "L_Y_nostat"
        a(f"s_cmp_eq_u32 {SW}, 0\ns_cbranch_scc0 {lab}")
        a(f"v_mov_b32 v109, {TAG}\nv_mov_b32 v111, {TAG}")
        a(f"s_lshl_b32 s63, {SR}, 7\ns_add_u32 s63, s63, {ST}")
        a("s_mov_b64 exec, 0xff")
        a(f"buffer_store_dwordx4 v[108:111], v26, {S_WS}, s63 offen sc1")
        a(f"s_mov_b64 exec, -1\n{lab}:")
    if STPOS == 0:
        a("s_waitcnt lgkmcnt(0)")
        a("v_add_f32 v112, v112, v113\nv_add_f32 v114, v114, v115\nv_add_f32 v110, v112, v114")
        stats_store()
    for j in range(4):
        if STPOS != 0: a(f"s_waitcnt lgkmcnt({4-j})")
        for t in range(8):
            mfma(vr(120+4*t), vr(32+4*j), ar(128+(t*4+j)*4), j == 0)
    if STPOS != 0:
        a("s_waitcnt lgkmcnt(0)")
        a("v_add_f32 v112, v112, v113\nv_add_f32 v114, v114, v115\nv_add_f32 v110, v112, v114")
    if STPOS == 1: stats_store()
    a("v_and_b32 v30, 1, v4\nv_lshlrev_b32 v30, 18, v30\nv_lshl_add_u32 v30, v3, 4, v30\nv_lshrrev_b32 v21, 1, v4\nv_lshl_add_u32 v30, v21, 8, v30\nv_cmp_eq_u32 vcc, 1, v21")
    a(f"s_lshl_b32 s62, {SSUB}, 19\ns_lshl_b32 s63, {SW}, 14\ns_add_u32 s62, s62, s63\ns_lshl_b32 s63, {SH}, 9\ns_add_u32 s62, s62, s63\ns_add_u32 s62, s62, {OP}")
    for r in range(4):
        o = 160+4*r
        for e in range(4): a(f"v_cndmask_b32 v{120+4*e+r}, v{120+4*e+r}, v{136+4*e+r}, vcc")
        a(f"v_cvt_pk_bf16_f32 v{o}, v{120+r}, v{124+r}\nv_mov_b32 v{o+1}, {TAG}\nv_cvt_pk_bf16_f32 v{o+2}, v{128+r}, v{132+r}\nv_mov_b32 v{o+3}, {TAG}")
        a(f"buffer_store_dwordx4 {vr(o)}, v30, {S_WS}, s62 offen sc1")
        if r < 3: a("s_add_u32 s62, s62, 65536")
    if STPOS == 2: stats_store()
    stamp(6)
    a(f"s_mul_i32 s62, {SR}, 40960\ns_mul_i32 s63, {SW}, {8*1280}\ns_add_u32 s62, s62, s63\ns_mul_i32 s63, {SW}, {8*WO_STRIDE}\ns_mov_b32 s71, s62\ns_mov_b32 s72, s63")
    for j in range(8):
        a(f"s_mov_b32 m0, s63\ns_add_u32 s63, s63, {WO_STRIDE}")
        a(f"buffer_load_dwordx4 v5, {S_B}, s62 offen lds")
        if j < 7: a(f"s_add_u32 s62, s62, 1280")
    a("s_add_u32 s62, s71, 1024\ns_add_u32 s63, s72, 1024\ns_mov_b64 exec, 0xffff")
    for j in range(8):
        a(f"s_mov_b32 m0, s63\ns_add_u32 s63, s63, {WO_STRIDE}")
        a(f"buffer_load_dwordx4 v5, {S_B}, s62 offen lds")
        if j < 7: a(f"s_add_u32 s62, s62, 1280")
    a("s_mov_b64 exec, -1")
    m_coef_loads()
    a(f"v_mul_u32_u24 v7, {WO_STRIDE}, v19\nv_and_b32 v8, 3, v3\nv_lshl_add_u32 v7, v8, 3, v7\ns_mul_i32 s62, {SW}, 320\nv_add_u32 v7, s62, v7")
    a("s_waitcnt vmcnt(0)\ns_barrier")
    for tile in range(10):
        for u in range(2):
            r = 32+4*tile+2*u
            a(f"ds_read_b64_tr_b16 v[{r}:{r+1}], v7 offset:{16*WO_STRIDE*u+32*tile}")
    m_coef_unpack()
    a(f"v_and_b32 v13, 3, v3\nv_lshlrev_b32 v13, 4, v13\nv_lshl_add_u32 v13, v4, 6, v13\ns_lshl_b32 s68, {SR}, 9\ns_add_u32 s68, s68, {CP}\ns_add_u32 s69, s68, {CPB-CP}")
    a(f"s_mul_i32 s62, {SR}, 2560\ns_mul_i32 s63, {SW}, 640\ns_add_u32 s62, s62, s63\ns_add_u32 s67, s62, {OUTP}")
    a("v_lshlrev_b32 v12, 2, v3\nv_lshl_add_u32 v12, v4, 6, v12")
    a("s_waitcnt lgkmcnt(0)")
    stamp(7)
    poll_begin("L_p4", ("s66", "s68", "s69"))
    dual_loads("L_p4", lambda fl: a(f"buffer_load_dwordx4 v[100:103], v13, {S_WS}, s66 offen {fl}\nbuffer_load_dwordx4 v[104:107], v13, {S_WS}, s66 offen offset:256 {fl}"))
    a("s_waitcnt vmcnt(0)")
    tagcheck("v14", ["v101","v103","v105","v107"])
    poll_end("L_p4", "v14")
    stamp(8)
    if opt.get('sent5', 0): sentinel(SENT5)
    a("v_mov_b32 v101, v102\nv_mov_b32 v102, v104\nv_mov_b32 v103, v106\nv_cmp_eq_u32 vcc, 1, v4")
    for tile in range(10):
        mfma(vr(120+4*tile), vr(100), vr(32+4*tile), True)
    for tile in range(10):
        d = 120+4*tile
        a(f"v_add_f32 v{d}, v{d}, v{d+1}\nv_add_f32 v{d+2}, v{d+2}, v{d+3}")
    for tile in range(10):
        d = 120+4*tile
        a(f"v_add_f32 v{d}, v{d}, v{d+2}")
    for k in range(5):
        d = 120+8*k
        a(f"v_cndmask_b32 v{d}, v{d}, v{d+4}, vcc")
    for k in range(5):
        d = 120+8*k
        a(f"v_mov_b32_dpp v{d+1}, v{d} row_shl:1 row_mask:0xf bank_mask:0xf")
    for k in range(5):
        d = 120+8*k
        a(f"v_cvt_pk_bf16_f32 v{d+2}, v{d}, v{d+1}\nv_mov_b32 v{d+3}, {TAG}")
    a("s_mov_b32 exec_lo, 0x55555555\ns_mov_b32 exec_hi, 0")
    for k in range(5):
        d = 120+8*k
        a(f"buffer_store_dwordx2 v[{d+2}:{d+3}], v12, {S_WS}, s67 offen offset:{128*k} sc1")
    a("s_mov_b64 exec, -1")

    a.c("================= M stage")
    a("L_M:")
    a("s_mul_i32 s64, s2, 3\ns_cmp_ge_u32 s64, 640\ns_cbranch_scc1 L_fin")
    a("s_add_u32 s65, s64, 1\ns_min_u32 s65, s65, 639\ns_add_u32 s66, s64, 2\ns_min_u32 s66, s66, 639")
    for k in range(3):
        a(f"s_lshr_b32 s{67+k}, s{64+k}, 1\ns_lshl_b32 s{67+k}, s{67+k}, 3\ns_add_u32 s{67+k}, s{67+k}, {HG}")
    a(f"v_mov_b32 v144, {f2u(C0):#x}\nv_mov_b32 v145, {f2u(C0):#x}")
    for k in range(3): a(f"v_mov_b32 v{146+2*k}, 0\nv_mov_b32 v{147+2*k}, 0")
    a(f"s_cmp_eq_u32 {SW}, 0\ns_cbranch_scc0 L_M_wait")
    a(f"v_lshlrev_b32 v13, 3, v1\ns_mov_b32 s62, {HG}")
    stamp(9)
    poll_begin("L_p6")
    for k in range(5):
        a(f"buffer_load_dwordx2 v[{100+2*k}:{101+2*k}], v13, {S_WS}, s62 offen offset:{512*k} sc1")
    for k in range(3):
        a(f"buffer_load_dwordx2 v[{110+2*k}:{111+2*k}], v18, {S_WS}, s{67+k} offen sc1")
    a("s_waitcnt vmcnt(0)")
    tagcheck("v14", [f"v{101+2*k}" for k in range(8)])
    poll_end("L_p6", "v14")
    stamp(10)
    a("s_mov_b32 s63, 0xffff0000")
    for k in range(5):
        a(f"v_lshlrev_b32 v{120+2*k}, 16, v{100+2*k}\nv_and_b32 v{121+2*k}, s63, v{100+2*k}")
    a("v_readfirstlane_b32 s70, v120")
    for k in range(3):
        a(f"s_bitcmp1_b32 s{64+k}, 0\ns_cselect_b32 s71, 0, 16\nv_lshlrev_b32 v{136+k}, s71, v{110+2*k}\nv_and_b32 v{136+k}, s63, v{136+k}")
    for k in range(120, 130): a(f"v_subrev_f32 v{k}, s70, v{k}")
    a("v_add_f32 v130, v120, v121\nv_mul_f32 v132, v120, v120\nv_fmac_f32 v132, v121, v121")
    for k in range(122, 130): a(f"v_add_f32 v130, v130, v{k}\nv_fmac_f32 v132, v{k}, v{k}")
    wave_allreduce("v_add_f32", ["v130", "v132"], ["v131", "v133"])
    a(f"s_mov_b32 s62, {f2u(1.0/640):#x}\nv_mul_f32 v130, s62, v130\nv_mul_f32 v132, s62, v132")
    a("v_fma_f32 v132, -v130, v130, v132")
    a("v_add_f32 v130, s70, v130")
    a(f"v_add_f32 v133, {f2u(EPS):#x}, v132\nv_rsq_f32 v133, v133")
    a("v_mul_f32 v134, v133, v133\nv_mul_f32 v134, v134, v132")
    a(f"v_add_f32 v134, {f2u(EPS):#x}, v134\nv_rsq_f32 v134, v134\nv_mul_f32 v133, v133, v134")
    for k in range(3):
        a(f"v_sub_f32 v{140+k}, v{136+k}, v130\nv_mul_f32 v{140+k}, v{140+k}, v133")
    a(f"v_mov_b32 v15, {MB}\ns_mov_b64 exec, 1\nds_write_b96 v15, v[140:142]\ns_mov_b64 exec, -1")
    a(f"s_cmp_eq_u32 s2, 0\ns_cbranch_scc0 L_noep")
    a(f"v_mov_b32 v16, {TAG}\ns_mov_b64 exec, 1\nbuffer_store_dword v16, v18, {S_WS}, 0 offen sc1\ns_mov_b64 exec, -1")
    a("L_noep:")
    a("s_waitcnt lgkmcnt(0)")
    a("L_M_wait:")
    a("s_barrier")
    a(f"v_mov_b32 v15, {MB}\nds_read_b96 v[140:142], v15\ns_mov_b32 s62, {f2u(C1):#x}\ns_waitcnt lgkmcnt(0)")
    for k in range(3):
        a(f"v_readfirstlane_b32 s{70+2*k}, v{140+k}")
    for k in range(3):
        t = f"s[{70+2*k}:{71+2*k}]"
        U = lambda i: f"v[{152+2*i}:{153+2*i}]"
        Z = lambda i: f"v[{160+2*i}:{161+2*i}]"
        for i in range(4): a(f"v_pk_fma_f32 {U(i)}, v[{210+2*i}:{211+2*i}], {t}, v[{218+2*i}:{219+2*i}] op_sel_hi:[1,0,1]")
        for i in range(4): a(f"v_pk_mul_f32 {Z(i)}, {U(i)}, {U(i)}")
        for i in range(4): a(f"v_pk_fma_f32 {Z(i)}, {Z(i)}, s[62:63], v[144:145] op_sel_hi:[1,0,1]")
        for i in range(4): a(f"v_pk_mul_f32 {Z(i)}, {Z(i)}, {U(i)}")
        for i in range(4): a(f"v_exp_f32 v{160+2*i}, v{160+2*i}\nv_exp_f32 v{161+2*i}, v{161+2*i}")
        for i in range(4): a(f"v_pk_mul_f32 {U(i)}, {U(i)}, v[{226+2*i}:{227+2*i}]")
        for i in range(4): a(f"v_pk_add_f32 {Z(i)}, {Z(i)}, 1.0 op_sel_hi:[1,0]")
        for i in range(4): a(f"v_rcp_f32 v{160+2*i}, v{160+2*i}\nv_rcp_f32 v{161+2*i}, v{161+2*i}")
        for i in range(4): a(f"v_pk_fma_f32 v[{146+2*k}:{147+2*k}], {U(i)}, {Z(i)}, v[{146+2*k}:{147+2*k}]")
    for k in range(3): a(f"v_add_f32 v{146+2*k}, v{146+2*k}, v{147+2*k}")
    wave_allreduce("v_add_f32", ["v146","v148","v150"], ["v147","v149","v151"])
    a(f"s_lshl_b32 s62, {SW}, 4\ns_add_u32 s62, s62, {MRED}\nv_mov_b32 v15, s62\nv_mov_b32 v147, v148\nv_mov_b32 v148, v150")
    a("s_mov_b64 exec, 1\nds_write_b96 v15, v[146:148]\ns_mov_b64 exec, -1")
    a("s_waitcnt lgkmcnt(0)\ns_barrier")
    a(f"s_cmp_eq_u32 {SW}, 0\ns_cbranch_scc0 L_fin")
    a(f"v_lshlrev_b32 v15, 2, v1\nv_add_u32 v15, {MRED}, v15")
    a("ds_read_b32 v100, v15\nds_read_b32 v101, v15 offset:16\nds_read_b32 v102, v15 offset:32\nds_read_b32 v103, v15 offset:48")
    a("v_cmp_eq_u32 vcc, 1, v1\nv_cndmask_b32 v136, v136, v137, vcc\nv_cmp_eq_u32 vcc, 2, v1\nv_cndmask_b32 v136, v136, v138, vcc")
    srd(S_T, 26, 1280)
    a("v_add_u32 v15, s64, v1\nv_lshlrev_b32 v16, 1, v15")
    a("v_add_f32 v136, v136, v208")
    a("s_waitcnt lgkmcnt(0)")
    a("v_add_f32 v100, v100, v101\nv_add_f32 v102, v102, v103\nv_add_f32 v100, v100, v102\nv_add_f32 v100, v100, v136")
    a("v_cvt_pk_bf16_f32 v100, v100, v100")
    a("v_cmp_gt_u32 vcc, 640, v15\ns_and_b64 exec, vcc, 7")
    a("s_cbranch_execz L_fin")
    a(f"buffer_store_short v100, v16, {S_T}, 0 offen")
    a("L_fin:")
    if profile:
        stamp(11)
        a("s_mov_b64 exec, -1\ns_waitcnt lgkmcnt(0)")
        a(f"s_lshl_b32 s62, s2, 2\ns_add_u32 s62, s62, {SW}\ns_lshl_b32 s62, s62, 6\ns_add_u32 s62, s62, {TS}")
        a("v_mov_b32 v18, 0\ns_mov_b64 exec, 1")
        for k in range(12):
            a(f"v_mov_b32 v15, s{76+2*k}\nbuffer_store_dword v15, v18, {S_WS}, s62 offen offset:{4*k}")
        a(f"v_mov_b32 v15, s100\nbuffer_store_dword v15, v18, {S_WS}, s62 offen offset:48")
        a(f"s_getreg_b32 s100, hwreg(HW_REG_XCC_ID)\nv_mov_b32 v15, s100\nbuffer_store_dword v15, v18, {S_WS}, s62 offen offset:52")
        a(f"s_getreg_b32 s100, hwreg(HW_REG_HW_ID)\nv_mov_b32 v15, s100\nbuffer_store_dword v15, v18, {S_WS}, s62 offen offset:56")
    a("L_end:")
    a("s_endpgm")
    a("L_code_end:")
    a(f".set CODE_BYTES, L_code_end - {NAME}")
    a('.section .rodata,"a"\n.p2align 6')
    a(f".amdhsa_kernel {NAME}")
    a("  .amdhsa_next_free_vgpr 512\n  .amdhsa_next_free_sgpr 102\n  .amdhsa_accum_offset 256\n  .amdhsa_group_segment_fixed_size 0\n  .amdhsa_kernarg_size 112\n  .amdhsa_user_sgpr_count 2\n  .amdhsa_user_sgpr_kernarg_segment_ptr 1\n  .amdhsa_system_sgpr_workgroup_id_x 1")
    a(".end_amdhsa_kernel")
    n = a.hazard_pass()
    return a.text(), n

LAYOUT = dict(QG=QG, QA=QA, ST=ST, CP=CP, HG=HG, OUTP=OUTP, OP=OP, TS=TS)
if __name__ == "__main__":
    prof = "prof" in sys.argv[2:]
    opt = {}
    for x in sys.argv[2:]:
        if '=' in x:
            k, v = x.split('='); opt[k] = int(v) if v.lstrip('-').isdigit() else v
    txt, n = gen(profile=prof, opt=opt)
    open(sys.argv[1], "w").write(txt)
    print("auto nops:", n, "lines:", txt.count("\n"), LAYOUT)
```

```python
import sys, math, struct
from asmlib import Asm

NAME = "sequential_preLN__compressed_kv_cla__mixer_token_mlp__decode_kernel"
HEADER = open('sequential_preLN__compressed_kv_cla__mixer_token_mlp__decode.s.ref').read().split('; Override')[0]

def f2u(x): return struct.unpack('<I', struct.pack('<f', x))[0]

QG   = 4096
QA   = QG + 131072
ST   = QA + 65536
CP   = ST + 16384
HG   = CP + 65536
SENT2 = HG + 4096
SENT5 = SENT2 + 16384
QGB  = SENT5 + 16384
CPB  = QGB + 131072
OUTP = CPB + 65536
OP   = 1 << 20
TS   = 3145728
assert OUTP + 128*2560 <= OP
WS_SIZE = 4 << 20
CKV_STRIDE = 1056
QS = 135168; PX = 143616; MX = 147712; LX = 147968; MRED = 148224; MB = 148288
WUK = 0; WUV = 32768; OS = 65536; S1RED = 74752; WX = 82944; RRED = 83456
S1RED_C = 135168
LDS_BYTES = 148480
WO_STRIDE = 1312

SCALE = (128 ** -0.5) * math.log2(math.e)
C0 = -2.0 * math.sqrt(2.0 / math.pi) * math.log2(math.e)
C1 = C0 * 0.044715
EPS = 1e-5

S_WS, S_X, S_A, S_B, S_C, S_T = 's[32:35]', 's[36:39]', 's[40:43]', 's[44:47]', 's[48:51]', 's[52:55]'
TAG, SW, SR, SH, SSUB = 's56', 's57', 's58', 's59', 's60'

def gen(profile=False, spin_limit=400000, opt=None):
    opt = opt or {}
    WARM = opt.get('warm', 1)
    STPOS = opt.get('stpos', 1)
    a = Asm()
    SMASK = opt.get('smask', 0xfff)
    def stamp(k):
        if profile and (SMASK >> k) & 1:
            assert k < 12
            a(f"s_memrealtime s[{76+2*k}:{77+2*k}]")
    def srd(dst, ptr, size):
        d = int(dst[2:dst.index(':')])
        a(f"s_mov_b32 s{d}, s{ptr}\ns_mov_b32 s{d+1}, s{ptr+1}\ns_mov_b32 s{d+2}, {size}\ns_mov_b32 s{d+3}, 0x00020000")
    DPPS = ("quad_perm:[1,0,3,2]", "quad_perm:[2,3,0,1]", "row_half_mirror", "row_mirror")
    def row_allreduce(op, vs):
        for m in DPPS:
            for v in vs: a(f"{op}_dpp {v}, {v}, {v} {m} row_mask:0xf bank_mask:0xf")
    def swapred(sw, op, vs, ts):
        for v, t in zip(vs, ts): a(f"v_mov_b32 {t}, {v}")
        for v, t in zip(vs, ts): a(f"{sw} {v}, {t}")
        for v, t in zip(vs, ts): a(f"{op} {v}, {v}, {t}")
    def swap16(op, vs, ts): swapred("v_permlane16_swap_b32", op, vs, ts)
    def swap32(op, vs, ts): swapred("v_permlane32_swap_b32", op, vs, ts)
    def wave_allreduce(op, vs, ts):
        row_allreduce(op, vs); swap16(op, vs, ts); swap32(op, vs, ts)
    MASKED = opt.get('masked', 1)
    def poll_begin(name, dual=None):
        a(f"s_mov_b32 s61, 0")
        a(f"{name}:")
        if dual:
            a(f"s_and_b32 s75, s61, 7\ns_cmp_eq_u32 s75, 7\ns_cselect_b32 {dual[0]}, {dual[2]}, {dual[1]}")
    def poll_end(name, bad):
        a(f"v_cmp_ne_u32 vcc, 0, {bad}")
        a(f"s_add_u32 s61, s61, 1")
        a(f"s_cmp_gt_u32 s61, {spin_limit}")
        a(f"s_cbranch_scc1 {name}_x")
        if MASKED:
            a(f"s_and_b64 exec, exec, vcc")
            a(f"s_cbranch_execnz {name}")
        else:
            a(f"s_cbranch_vccnz {name}")
        a(f"{name}_x:")
        if MASKED: a("s_mov_b64 exec, -1")
        if profile and opt.get('cntfor') == name:
            a("s_mov_b32 s100, s61")
    def tagcheck(bad, tags):
        a(f"v_xor_b32 {bad}, {TAG}, {tags[0]}")
        for t in tags[1:]:
            a(f"v_bitop3_b32 {bad}, {t}, {TAG}, {bad} bitop3:0xbe")
    def mfma(d, A, B, first):
        a(f"v_mfma_f32_16x16x32_bf16 {d}, {A}, {B}, {'0' if first else d}")
    def vr(b, n=4): return f"v[{b}:{b+n-1}]"
    def ar(b, n=4): return f"a[{b}:{b+n-1}]"

    a.lines += [l for l in HEADER.strip().split('\n')]
    a(f"; @launch grid=(256,1,1) block=(256,1,1) lds={LDS_BYTES}")
    a('.amdgcn_target "amdgcn-amd-amdhsa--gfx950"')
    a(f".text\n.globl {NAME}\n.p2align 8\n.type {NAME},@function\n{NAME}:")
    if WARM:
        a("s_getpc_b64 s[40:41]\nv_lshlrev_b32 v5, 7, v0\ns_mov_b32 s42, CODE_BYTES\ns_mov_b32 s43, 0x00020000")
        a("buffer_load_dword v251, v5, s[40:43], 0 offen")
    stamp(0)
    if opt.get('pin'): a("s_memrealtime s[76:77]")
    if profile: a("s_mov_b32 s100, 99")
    a("s_cmp_ge_u32 s2, 256\ns_cbranch_scc1 L_end")
    a("s_load_dwordx16 s[4:19], s[0:1], 0\ns_load_dwordx8 s[20:27], s[0:1], 64\ns_load_dwordx4 s[28:31], s[0:1], 96")
    a("v_and_b32 v1, 63, v0\nv_lshrrev_b32 v2, 6, v0\nv_and_b32 v3, 15, v0\nv_bfe_u32 v4, v0, 4, 2")
    a(f"v_readfirstlane_b32 {SW}, v2")
    a(f"s_and_b32 s61, s2, 7\ns_bfe_u32 s62, s2, 0x40003\ns_lshl_b32 {SR}, s61, 4\ns_add_u32 {SR}, {SR}, s62")
    a(f"s_lshr_b32 {SH}, {SR}, 2\ns_and_b32 {SSUB}, {SR}, 3")
    a("v_mov_b32 v18, 0")
    a("s_waitcnt lgkmcnt(0)")
    srd(S_WS, 30, WS_SIZE)
    a(f"buffer_load_dword v250, v18, {S_WS}, 0 offen")
    srd(S_X, 4, 1280)
    def m_coef_loads():
        a("v_lshlrev_b32 v17, 2, v0")
        for k, p in enumerate((18, 20, 22)):
            srd(S_T, p, 3456)
            for i in range(4):
                a(f"buffer_load_dword v{196+4*k+i}, v17, {S_T}, 0 offen offset:{1024*i}")
        srd(S_T, 24, 2)
        a(f"buffer_load_ushort v208, v18, {S_T}, 0 offen")
    def m_coef_unpack():
        a("s_mov_b32 s63, 0xffff0000")
        for k in range(3):
            for i in range(4):
                s_ = 196+4*k+i; d = 210+8*k+2*i
                a(f"v_lshlrev_b32 v{d}, 16, v{s_}\nv_and_b32 v{d+1}, s63, v{s_}")
        a("v_lshlrev_b32 v208, 16, v208")
    def sentinel(base):
        lab = f"L_s{base}"
        a(f"s_cmp_eq_u32 {SW}, 0\ns_cbranch_scc0 {lab}")
        a(f"v_mov_b32 v240, {TAG}\nv_mov_b32 v241, {TAG}\nv_mov_b32 v242, {TAG}\nv_mov_b32 v243, {TAG}\nv_lshlrev_b32 v244, 4, v1")
        a(f"s_lshl_b32 s62, {SR}, 7\ns_add_u32 s62, s62, {base}\ns_mov_b64 exec, 0xff")
        a(f"buffer_store_dwordx4 v[240:243], v244, {S_WS}, s62 offen sc1")
        a(f"s_mov_b64 exec, -1\n{lab}:")

    NW = 1 if WARM else 0
    PWX = 1 if opt.get("prewarm", 1) else 0

    a.c("================= S1: q partials, head h1 = 4*xcd + (idx>>3), rows 80*me..80*me+79, me = idx&7")
    a("s_lshr_b32 s72, s2, 6\ns_and_b32 s73, s2, 7\ns_lshl_b32 s73, s73, 2\ns_add_u32 s72, s72, s73")
    a("s_bfe_u32 s73, s2, 0x30003")
    srd(S_A, 8, 5242880)
    a("v_lshlrev_b32 v5, 2, v1")
    for j in range(5): a(f"buffer_load_dword v{32+j}, v5, {S_X}, 0 offen offset:{256*j}")
    a(f"v_lshrrev_b32 v6, 4, v0\ns_mul_i32 s62, s73, 80\nv_add_u32 v7, s62, v6\nv_lshlrev_b32 v7, 1, v7")
    for i in range(5): a(f"buffer_load_ushort v{40+2*i}, v7, {S_X}, 0 offen offset:{32*i}")
    a("v_lshlrev_b32 v8, 4, v3\nv_lshl_add_u32 v8, v6, 13, v8")
    a(f"s_mul_i32 s61, s73, {80*8192}\ns_lshl_b32 s62, s72, 8\ns_add_u32 s61, s61, s62")
    for i in range(5):
        a(f"buffer_load_dwordx4 {vr(60+4*i)}, v8, {S_A}, s61 offen")
        if i < 4: a(f"s_add_u32 s61, s61, {16*8192}")
    a("v_xor_b32 v9, v3, v4\nv_lshlrev_b32 v9, 4, v9\nv_lshl_add_u32 v9, v4, 13, v9")
    a("v_xor_b32 v10, 64, v9\nv_xor_b32 v11, 128, v9\nv_xor_b32 v12, 192, v9")
    a("s_bitcmp1_b32 s2, 7\ns_cbranch_scc1 L_nouk")
    srd(S_B, 10, 4194304)
    a(f"s_lshl_b32 s66, {SSUB}, 20\ns_lshl_b32 s63, {SH}, 8\ns_add_u32 s66, s66, s63\ns_lshl_b32 s63, {SW}, 18\ns_add_u32 s66, s66, s63")
    a(f"s_lshl_b32 s67, {SW}, 13")
    NUP = opt.get('nup', 4)
    def uk_dma(k):
        a(f"s_mov_b32 m0, s67\ns_add_u32 s67, s67, 1024")
        a(f"buffer_load_dwordx4 v{9+(k&3)}, {S_B}, s66 offen lds")
        if k < 7: a(f"s_add_u32 s66, s66, 32768")
    for k in range(NUP): uk_dma(k)
    if PWX:
        a(f"v_and_b32 v253, 31, v1\nv_lshlrev_b32 v253, 7, v253\ns_lshl_b32 s62, {SH}, 12\ns_add_u32 s62, s62, {QG}")
        a(f"buffer_load_dword v252, v253, {S_WS}, s62 offen nt")
    a("s_branch L_s1c")
    a("L_nouk:")
    EARLY = opt.get('early', 1)
    def ckv_group(q):
        a(f"s_add_u32 s62, {SSUB}, {q}\ns_and_b32 s62, s62, 3\ns_mul_i32 s63, s62, {8*CKV_STRIDE}\ns_add_u32 s63, s63, s69\ns_lshl_b32 s62, s62, 13\ns_add_u32 s62, s62, s68")
        for j in range(8):
            a(f"s_mov_b32 m0, s63\ns_add_u32 s63, s63, {CKV_STRIDE}")
            a(f"buffer_load_dwordx4 v9, {S_B}, s62 offen lds")
            if j < 7: a(f"s_add_u32 s62, s62, 1024")
    srd(S_B, 6, 4194304)
    a("v_lshlrev_b32 v9, 4, v1")
    a(f"s_lshl_b32 s68, {SH}, 17\ns_lshl_b32 s63, {SW}, 15\ns_add_u32 s68, s68, s63")
    a(f"s_mul_i32 s69, {SW}, {32*CKV_STRIDE}")
    for q in range(EARLY): ckv_group(q)
    a("L_s1c:")
    stamp(1)
    def s1_body(extra, late=()):
        late = list(late)
        a(f"s_waitcnt vmcnt({10+extra})")
        a(f"v_readfirstlane_b32 {TAG}, v250\ns_add_u32 {TAG}, {TAG}, 1")
        a("s_mov_b32 s63, 0xffff0000")
        for j in range(5):
            a(f"v_lshlrev_b32 v{100+2*j}, 16, v{32+j}\nv_and_b32 v{101+2*j}, s63, v{32+j}")
        a("v_readfirstlane_b32 s64, v100")
        for k in range(100, 110): a(f"v_subrev_f32 v{k}, s64, v{k}")
        a("v_add_f32 v110, v100, v101\nv_mul_f32 v112, v100, v100")
        a("v_fmac_f32 v112, v101, v101")
        for k in range(102, 110): a(f"v_add_f32 v110, v110, v{k}\nv_fmac_f32 v112, v{k}, v{k}")
        wave_allreduce("v_add_f32", ["v110", "v112"], ["v111", "v113"])
        a(f"s_mov_b32 s65, {f2u(1.0/640):#x}\nv_mul_f32 v110, s65, v110\nv_mul_f32 v112, s65, v112")
        a(f"v_fma_f32 v112, -v110, v110, v112\nv_add_f32 v112, {f2u(EPS):#x}, v112\nv_rsq_f32 v113, v112")
        a("v_add_f32 v110, s64, v110")
        a(f"s_waitcnt vmcnt({5+extra})")
        for i in range(5):
            r = 40+2*i
            a(f"v_lshlrev_b32 v{r}, 16, v{r}\nv_sub_f32 v{r}, v{r}, v110\nv_mul_f32 v{r}, v{r}, v113")
        for k in range(100, 108): a(f"v_mov_b32 v{k}, 0")
        issued = 0
        for i in range(5):
            a(f"s_waitcnt vmcnt({4-i+extra+issued})")
            w = 60+4*i; l = 40+2*i
            for d in range(4):
                a(f"v_lshlrev_b32 v{108+2*(d&1)}, 16, v{w+d}\nv_and_b32 v{109+2*(d&1)}, s63, v{w+d}")
                a(f"v_pk_fma_f32 v[{100+2*d}:{101+2*d}], v[{108+2*(d&1)}:{109+2*(d&1)}], v[{l}:{l+1}], v[{100+2*d}:{101+2*d}] op_sel_hi:[1,0,1]")
            if late:
                late.pop(0)(); issued += 1
    a("s_bitcmp1_b32 s2, 7\ns_cbranch_scc1 L_s1y")
    s1_body(NUP+PWX, [(lambda k=k: uk_dma(k)) for k in range(NUP, 8)])
    a("s_branch L_s1r")
    a("L_s1y:")
    s1_body(8*EARLY)
    a("L_s1r:")
    stamp(2)
    s1red = S1RED
    a(f"v_lshlrev_b32 v13, 9, v6\nv_lshl_add_u32 v13, v3, 4, v13")
    a(f"v_add_u32 v13, {S1RED_C}, v13")
    a("ds_write_b128 v13, v[100:103]\nds_write_b128 v13, v[104:107] offset:256")
    a(f"v_and_b32 v14, 31, v1\nv_lshrrev_b32 v15, 3, v14\ns_lshl_b32 s62, {SW}, 2\nv_add_u32 v15, s62, v15\nv_lshlrev_b32 v15, 4, v15")
    a("v_bfe_u32 v16, v1, 2, 1\nv_lshl_add_u32 v15, v16, 8, v15\nv_and_b32 v16, 3, v1\nv_lshl_add_u32 v15, v16, 2, v15\nv_lshrrev_b32 v16, 5, v1\nv_lshl_add_u32 v15, v16, 12, v15")
    a(f"v_add_u32 v15, {S1RED_C}, v15")
    a(f"s_lshl_b32 s62, s72, 12\ns_lshl_b32 s63, {SW}, 10\ns_add_u32 s62, s62, s63\ns_lshl_b32 s63, s73, 4\ns_add_u32 s62, s62, s63\ns_add_u32 s62, s62, {QG}\ns_add_u32 s63, s62, {QGB-QG}")
    a("v_lshrrev_b32 v17, 3, v14\nv_lshlrev_b32 v17, 7, v17\nv_bfe_u32 v12, v14, 2, 1\nv_lshl_add_u32 v17, v12, 9, v17\nv_bfe_u32 v12, v14, 1, 1\nv_lshl_add_u32 v17, v12, 3, v17")
    a("s_waitcnt lgkmcnt(0)\ns_barrier")
    for k in range(4): a(f"ds_read2st64_b32 v[{100+2*k}:{101+2*k}], v15 offset0:{4*k} offset1:{4*k+2}")
    a("v_mov_b32 v14, v17")
    a("s_waitcnt lgkmcnt(0)")
    a("v_add_f32 v100, v100, v101\nv_add_f32 v102, v102, v103\nv_add_f32 v104, v104, v105\nv_add_f32 v106, v106, v107")
    a("v_add_f32 v100, v100, v102\nv_add_f32 v104, v104, v106\nv_add_f32 v100, v100, v104")
    swap32("v_add_f32", ["v100"], ["v101"])
    a("v_mov_b32_dpp v101, v100 row_shl:1 row_mask:0xf bank_mask:0xf")
    a(f"v_cvt_pk_bf16_f32 v102, v100, v101\nv_mov_b32 v103, {TAG}")
    a("s_mov_b32 exec_lo, 0x55555555\ns_mov_b32 exec_hi, 0")
    a(f"buffer_store_dwordx2 v[102:103], v14, {S_WS}, s62 offen")
    a("s_bitcmp1_b32 s2, 7\ns_cbranch_scc0 L_Xgo")
    a(f"buffer_store_dwordx2 v[102:103], v14, {S_WS}, s63 offen sc1")
    a("s_mov_b64 exec, -1")
    a("s_branch L_Y")
    a("L_Xgo:")
    a("s_mov_b64 exec, -1")
    a("v_mov_b32 v238, v102\nv_mov_b32 v239, v103\nv_mov_b32 v237, v14\ns_mov_b32 s71, s63")

    a.c("================= X role: S2 (q_abs), S4 (ctx partial), R")
    srd(S_C, 12, 4194304)
    a("s_waitcnt vmcnt(0)" if opt.get('dbg1') else "s_waitcnt vmcnt(1)")
    a(f"s_lshl_b32 s62, {SW}, 5\nv_add_u32 v13, s62, v3\nv_lshlrev_b32 v13, 8, v13\nv_xor_b32 v14, v3, v4\nv_lshl_add_u32 v13, v14, 4, v13")
    a("v_xor_b32 v14, 64, v13\nv_xor_b32 v15, 128, v13\nv_xor_b32 v16, 192, v13")
    for tile in range(2):
        for s in range(4):
            a(f"ds_read_b128 {vr(116+(tile*4+s)*4)}, v{13+s} offset:{WUK+4096*tile}")
    stamp(3)
    a(f"v_and_b32 v13, 7, v3\nv_lshlrev_b32 v13, 4, v13\nv_lshl_add_u32 v13, v4, 7, v13\ns_lshl_b32 s63, {SH}, 12\ns_add_u32 s63, s63, {QG}\ns_add_u32 s64, s63, {QGB-QG}")
    def qgb_store():
        a("s_mov_b64 s[78-2:78-1], exec" if False else "s_mov_b64 s[98:99], exec")
        a("s_mov_b32 exec_lo, 0x55555555\ns_mov_b32 exec_hi, 0")
        a(f"buffer_store_dwordx2 v[238:239], v237, {S_WS}, s71 offen sc1")
        a("s_mov_b64 exec, s[98:99]")
    poll_begin("L_p1", ("s62", "s63", "s64"))
    a("s_cmp_eq_u32 s61, 7\ns_cbranch_scc0 L_p1n")
    qgb_store()
    a("L_p1n:")
    LF = opt.get('lflag', 'nt')
    def dual_loads(name, emit):
        a(f"s_cmp_eq_u32 s75, 7\ns_cbranch_scc1 {name}_b")
        emit(LF)
        a(f"s_branch {name}_c\n{name}_b:")
        emit("sc1")
        a(f"{name}_c:")
    def g1_loads(fl):
        for s in range(4):
            r = 148+8*s
            a(f"buffer_load_dwordx4 {vr(r)}, v13, {S_WS}, s62 offen offset:{1024*s} {fl}")
            a(f"buffer_load_dwordx4 {vr(r+4)}, v13, {S_WS}, s62 offen offset:{1024*s+512} {fl}")
    dual_loads("L_p1", g1_loads)
    a("s_waitcnt vmcnt(0)")
    tagcheck("v14", [f"v{148+8*s+k}" for s in range(4) for k in (1,3,5,7)])
    poll_end("L_p1", "v14")
    a("s_cmp_gt_u32 s61, 7\ns_cbranch_scc1 L_p1m")
    qgb_store()
    a("L_p1m:")
    stamp(4)
    if opt.get('sent2', 0): sentinel(SENT2)
    for s in range(4):
        r = 148+8*s
        a(f"v_mov_b32 v{r+1}, v{r+2}\nv_mov_b32 v{r+2}, v{r+4}\nv_mov_b32 v{r+3}, v{r+6}")
    a("s_waitcnt lgkmcnt(0)")
    for s in range(4):
        for tile in range(2):
            mfma(vr(180+4*tile), vr(148+8*s), vr(116+(tile*4+s)*4), s == 0)
    a(f"s_mov_b32 s63, {f2u(SCALE):#x}")
    a("v_lshlrev_b32 v13, 2, v3\nv_lshl_add_u32 v13, v4, 6, v13\nv_cmp_eq_u32 vcc, 1, v4")
    a(f"s_lshl_b32 s62, {SR}, 9\ns_lshl_b32 s64, {SW}, 7\ns_add_u32 s62, s62, s64\ns_add_u32 s62, s62, {QA}")
    a("v_add_f32 v180, v180, v181\nv_add_f32 v184, v184, v185\nv_add_f32 v182, v182, v183\nv_add_f32 v186, v186, v187")
    a("v_add_f32 v180, v180, v182\nv_add_f32 v184, v184, v186")
    swap16("v_add_f32", ["v180", "v184"], ["v181", "v185"])
    a("v_cndmask_b32 v180, v180, v184, vcc\nv_mul_f32 v180, s63, v180")
    a("v_mov_b32_dpp v181, v180 row_shl:1 row_mask:0xf bank_mask:0xf")
    a(f"v_cvt_pk_bf16_f32 v188, v180, v181\nv_mov_b32 v189, {TAG}")
    a("s_mov_b32 exec_lo, 0x55555555\ns_mov_b32 exec_hi, 0")
    a(f"buffer_store_dwordx2 v[188:189], v13, {S_WS}, s62 offen sc1")
    a("s_mov_b64 exec, -1")
    stamp(5)
    a("v_lshrrev_b32 v15, 1, v3\nv_and_b32 v16, 1, v4\nv_lshlrev_b32 v16, 2, v16\nv_xor_b32 v15, v15, v16\nv_lshlrev_b32 v15, 5, v15\nv_and_b32 v16, 1, v0\nv_lshl_add_u32 v15, v16, 4, v15\nv_lshl_add_u32 v15, v4, 13, v15")
    a(f"s_lshl_b32 s62, {SW}, 1\ns_and_b32 s63, s62, 3\ns_lshl_b32 s63, s63, 5\nv_xor_b32 v16, s63, v15\ns_add_u32 s62, s62, 1\ns_and_b32 s63, s62, 3\ns_lshl_b32 s63, s63, 5\nv_xor_b32 v15, s63, v15")
    a(f"s_lshl_b32 s62, {SSUB}, 20\ns_lshl_b32 s63, {SH}, 8\ns_add_u32 s62, s62, s63\ns_lshl_b32 s63, {SW}, 18\ns_add_u32 s62, s62, s63")
    a(f"s_lshl_b32 s63, {SW}, 13\ns_add_u32 s63, s63, {WUV}")
    for k in range(8):
        a(f"s_mov_b32 m0, s63\ns_add_u32 s63, s63, 1024")
        a(f"buffer_load_dwordx4 {'v16' if k < 4 else 'v15'}, {S_C}, s62 offen lds")
        if k < 7: a("s_add_u32 s62, s62, 32768")
    m_coef_loads()
    a(f"s_and_b32 s74, {SR}, 15\ns_lshl_b32 s74, s74, 3\ns_lshr_b32 s62, {SR}, 4\ns_add_u32 s74, s74, s62")
    a(f"v_and_b32 v26, 7, v0\nv_lshlrev_b32 v26, 3, v26\ns_lshl_b32 s66, s74, 6\nbuffer_load_dwordx2 v[234:235], v26, {S_X}, s66 offen")
    a("s_waitcnt vmcnt(0)\ns_barrier")
    a("v_lshrrev_b32 v19, 2, v3\nv_lshl_add_u32 v19, v4, 2, v19")
    a("v_lshrrev_b32 v20, 2, v3\nv_and_b32 v21, 1, v4\nv_lshl_add_u32 v21, v21, 2, v20")
    a(f"s_lshl_b32 s62, {SW}, 1\nv_xor_b32 v21, s62, v21\nv_lshlrev_b32 v21, 5, v21")
    a("v_lshl_add_u32 v20, v20, 4, v4\nv_lshl_add_u32 v20, v20, 8, v21\nv_and_b32 v21, 3, v3\nv_lshl_add_u32 v20, v21, 3, v20\nv_xor_b32 v21, 32, v20")
    for tt in range(2):
        for j in range(4):
            for u in range(2):
                r = 60+(tt*4+j)*4+2*u; tau = 2*j+u
                a(f"ds_read_b64_tr_b16 v[{r}:{r+1}], {'v20' if tt==0 else 'v21'} offset:{WUV+16384*(tau>>2)+1024*(tau&3)}")
    m_coef_unpack()
    a("v_lshlrev_b32 v22, 4, v0\nv_and_b32 v23, 31, v1\nv_lshlrev_b32 v23, 9, v23")
    a(f"s_lshl_b32 s62, {SR}, 14\ns_add_u32 s66, s62, {OP}\ns_add_u32 s67, s66, 4096\ns_add_u32 s68, s66, 8192\ns_add_u32 s69, s66, 12288")
    a(f"s_lshr_b32 s62, {SH}, 3\ns_lshl_b32 s62, s62, 7\ns_and_b32 s63, {SH}, 7\ns_lshl_b32 s63, s63, 4\ns_add_u32 s62, s62, s63\ns_add_u32 s70, s62, {ST}")
    a(f"v_lshrrev_b32 v24, 5, v0\nv_mul_u32_u24 v24, 288, v24\nv_and_b32 v25, 31, v0\nv_lshl_add_u32 v24, v25, 3, v24\nv_add_u32 v24, {OS}, v24")
    a(f"s_lshl_b32 s62, {SW}, 7\ns_add_u32 s71, s62, {WX}\nv_and_b32 v25, 31, v1\nv_lshlrev_b32 v25, 2, v25\nv_add_u32 v25, s71, v25")
    a(f"v_lshlrev_b32 v27, 4, v4\nv_add_u32 v27, s71, v27")
    a(f"v_mul_u32_u24 v28, 288, v19\nv_and_b32 v29, 3, v3\nv_lshl_add_u32 v28, v29, 3, v28\nv_add_u32 v28, {OS}, v28")
    stamp(6)
    a("s_mov_b32 exec_hi, 0")
    poll_begin("L_p3a")
    a(f"buffer_load_dwordx4 v[116:119], v23, {S_WS}, s70 offen sc1")
    a("s_waitcnt vmcnt(0)")
    tagcheck("v14", ["v117", "v119"])
    poll_end("L_p3a", "v14")
    for i in range(4):
        a(f"buffer_load_dwordx4 {vr(100+4*i)}, v22, {S_WS}, s{66+i} offen sc1")
    a("v_mov_b32 v120, v116")
    row_allreduce("v_max_f32", ["v120"]); swap16("v_max_f32", ["v120"], ["v121"])
    a("v_sub_f32 v116, v116, v120\nv_exp_f32 v116, v116\nv_mul_f32 v118, v116, v118")
    row_allreduce("v_add_f32", ["v118"]); swap16("v_add_f32", ["v118"], ["v121"])
    a("v_rcp_f32 v118, v118\nv_mul_f32 v116, v116, v118")
    a("s_mov_b32 exec_hi, 0\nds_write_b32 v25, v116\ns_mov_b64 exec, -1")
    a("ds_read_b128 v[120:123], v27\nds_read_b128 v[124:127], v27 offset:64")
    a("s_waitcnt vmcnt(0)")
    tagcheck("v14", [f"v{100+4*i+k}" for i in range(4) for k in (1,3)])
    a("v_cmp_ne_u32 vcc, 0, v14\ns_cbranch_vccz L_p3b_x")
    if MASKED: a("s_and_b64 exec, exec, vcc")
    poll_begin("L_p3b")
    for i in range(4):
        a(f"buffer_load_dwordx4 {vr(100+4*i)}, v22, {S_WS}, s{66+i} offen sc1")
    a("s_waitcnt vmcnt(0)")
    tagcheck("v14", [f"v{100+4*i+k}" for i in range(4) for k in (1,3)])
    poll_end("L_p3b", "v14")
    stamp(7)
    for i in range(4):
        a(f"v_mov_b32 v{101+4*i}, v{102+4*i}\nds_write_b64 v24, v[{100+4*i}:{101+4*i}] offset:{2304*i}")
    a("s_waitcnt lgkmcnt(0)\ns_barrier")
    for t in range(8):
        for u in range(2):
            r = 132+4*t+2*u
            a(f"ds_read_b64_tr_b16 v[{r}:{r+1}], v28 offset:{4608*u+32*t}")
    a("v_cvt_pk_bf16_f32 v128, v120, v121\nv_cvt_pk_bf16_f32 v129, v122, v123\nv_cvt_pk_bf16_f32 v130, v124, v125\nv_cvt_pk_bf16_f32 v131, v126, v127")
    for t in range(8):
        a(f"s_waitcnt lgkmcnt({14-2*t})")
        mfma(vr(164+4*t), vr(132+4*t), vr(128), True)
    for j in range(4):
        d0 = 164+8*j; o = 100+4*j
        a(f"v_cvt_pk_bf16_f32 v{o}, v{d0}, v{d0+1}\nv_cvt_pk_bf16_f32 v{o+1}, v{d0+2}, v{d0+3}\nv_cvt_pk_bf16_f32 v{o+2}, v{d0+4}, v{d0+5}\nv_cvt_pk_bf16_f32 v{o+3}, v{d0+6}, v{d0+7}")
    for j in range(4):
        for tt in range(2):
            mfma(vr(116+4*tt), vr(100+4*j), vr(60+(tt*4+j)*4), j == 0)
    a(f"s_lshl_b32 s62, {SH}, 11\ns_lshl_b32 s63, {SW}, 9\ns_add_u32 s62, s62, s63\ns_lshl_b32 s63, {SSUB}, 4\ns_add_u32 s62, s62, s63\ns_add_u32 s62, s62, {CP}")
    a("v_lshrrev_b32 v13, 2, v3\nv_lshlrev_b32 v13, 6, v13\nv_bfe_u32 v14, v3, 1, 1\nv_lshl_add_u32 v13, v14, 3, v13\nv_lshl_add_u32 v13, v4, 8, v13\nv_cmp_eq_u32 vcc, 1, v4")
    a("v_cndmask_b32 v116, v116, v120, vcc")
    a("v_mov_b32_dpp v117, v116 row_shl:1 row_mask:0xf bank_mask:0xf")
    a(f"v_cvt_pk_bf16_f32 v118, v116, v117\nv_mov_b32 v119, {TAG}")
    a("s_mov_b32 exec_lo, 0x55555555\ns_mov_b32 exec_hi, 0")
    a(f"buffer_store_dwordx2 v[118:119], v13, {S_WS}, s62 offen")
    a(f"s_add_u32 s62, s62, {CPB-CP}")
    a(f"buffer_store_dwordx2 v[118:119], v13, {S_WS}, s62 offen sc1")
    a("s_mov_b64 exec, -1")
    stamp(8)
    a(f"s_cmp_lt_u32 s74, 20\ns_cbranch_scc0 L_M")
    a(f"v_lshrrev_b32 v13, 3, v0\nv_mul_u32_u24 v13, 2560, v13\nv_and_b32 v26, 7, v0\nv_lshl_add_u32 v13, v26, 4, v13")
    a(f"s_lshl_b32 s62, s74, 7\ns_add_u32 s66, s62, {OUTP}\ns_add_u32 s67, s66, {32*2560}\ns_add_u32 s68, s66, {64*2560}\ns_add_u32 s69, s66, {96*2560}")
    a(f"v_lshlrev_b32 v14, 7, v1\ns_mov_b32 s62, {SENT5}\ns_mov_b32 s63, {SENT5+8192}\nv_mov_b32 v15, v14")
    if opt.get('sent5', 0):
        poll_begin("L_p5a")
        a(f"buffer_load_dword v100, v15, {S_WS}, s62 offen sc1\nbuffer_load_dword v101, v15, {S_WS}, s63 offen sc1")
        a("s_waitcnt vmcnt(0)")
        tagcheck("v14", ["v100", "v101"])
        poll_end("L_p5a", "v14")
    poll_begin("L_p5")
    for i in range(4):
        a(f"buffer_load_dwordx4 {vr(100+4*i)}, v13, {S_WS}, s{66+i} offen sc1")
    a("s_waitcnt vmcnt(0)")
    tagcheck("v14", [f"v{100+4*i+k}" for i in range(4) for k in (1,3)])
    poll_end("L_p5", "v14")
    a("s_mov_b32 s63, 0xffff0000")
    for i in range(4):
        for e in range(2):
            s_ = 100+4*i+2*e; d = 120+4*i+2*e
            a(f"v_lshlrev_b32 v{d}, 16, v{s_}\nv_and_b32 v{d+1}, s63, v{s_}")
    for k in range(4): a(f"v_add_f32 v{120+k}, v{120+k}, v{124+k}\nv_add_f32 v{128+k}, v{128+k}, v{132+k}")
    for k in range(4): a(f"v_add_f32 v{120+k}, v{120+k}, v{128+k}")
    for k in range(4): a(f"v_add_f32_dpp v{120+k}, v{120+k}, v{120+k} row_ror:8 row_mask:0xf bank_mask:0xf")
    vs = [f"v{120+k}" for k in range(4)]; ts = [f"v{124+k}" for k in range(4)]
    swap16("v_add_f32", vs, ts); swap32("v_add_f32", vs, ts)
    a(f"s_lshl_b32 s62, {SW}, 7\ns_add_u32 s62, s62, {RRED}\nv_lshlrev_b32 v27, 4, v26\nv_add_u32 v28, s62, v27")
    a("s_mov_b64 exec, 0xff\nds_write_b128 v28, v[120:123]\ns_mov_b64 exec, -1")
    a("s_waitcnt lgkmcnt(0)\ns_barrier")
    a(f"s_cmp_eq_u32 {SW}, 0\ns_cbranch_scc0 L_M")
    a(f"v_add_u32 v28, {RRED}, v27")
    for wv in range(4): a(f"ds_read_b128 {vr(120+4*wv)}, v28 offset:{128*wv}")
    a("v_lshlrev_b32 v112, 16, v234\nv_and_b32 v113, s63, v234\nv_lshlrev_b32 v114, 16, v235\nv_and_b32 v115, s63, v235")
    a("s_waitcnt lgkmcnt(0)")
    for k in range(4): a(f"v_add_f32 v{120+k}, v{120+k}, v{124+k}\nv_add_f32 v{128+k}, v{128+k}, v{132+k}")
    for k in range(4): a(f"v_add_f32 v{120+k}, v{120+k}, v{128+k}")
    for k in range(4): a(f"v_add_f32 v{120+k}, v{120+k}, v{112+k}")
    a(f"v_cvt_pk_bf16_f32 v100, v120, v121\nv_mov_b32 v101, {TAG}\nv_cvt_pk_bf16_f32 v102, v122, v123\nv_mov_b32 v103, {TAG}")
    a(f"s_lshl_b32 s62, s74, 7\ns_add_u32 s62, s62, {HG}")
    a("s_mov_b64 exec, 0xff")
    a(f"buffer_store_dwordx4 v[100:103], v27, {S_WS}, s62 offen sc1")
    a("s_mov_b64 exec, -1")
    a("s_branch L_M")

    a.c("================= Y role: S3 (attention), S5 (out partial)")
    a("L_Y:")
    a("v_lshlrev_b32 v5, 4, v1")
    YD = 0
    for q in range(EARLY, 4): ckv_group(q)
    stamp(1)
    srd(S_B, 14, 5242880)
    PWY = 1 if opt.get('prewarm', 1) else 0
    if PWY:
        a(f"v_and_b32 v253, 3, v3\nv_lshlrev_b32 v253, 7, v253\ns_lshl_b32 s62, {SR}, 9\ns_add_u32 s62, s62, {CP}")
        a(f"buffer_load_dword v252, v253, {S_WS}, s62 offen nt")
    a(f"s_lshl_b32 s62, {SW}, 5\nv_add_u32 v6, s62, v3\nv_mul_u32_u24 v6, {CKV_STRIDE}, v6\nv_lshl_add_u32 v6, v4, 4, v6")
    a("v_lshrrev_b32 v19, 2, v3\nv_lshl_add_u32 v19, v4, 2, v19")
    a(f"v_mul_u32_u24 v7, {CKV_STRIDE}, v19\nv_and_b32 v8, 3, v3\nv_lshl_add_u32 v7, v8, 3, v7\ns_lshl_b32 s62, {SW}, 8\nv_add_u32 v7, s62, v7\nv_add_u32 v8, {64*CKV_STRIDE}, v7")
    a("v_lshlrev_b32 v22, 4, v0")
    a(f"s_lshl_b32 s62, {SSUB}, 14\ns_add_u32 s66, s62, {QA}\ns_add_u32 s67, s66, 4096\ns_add_u32 s68, s66, 8192\ns_add_u32 s69, s66, 12288")
    a(f"v_lshrrev_b32 v24, 7, v0\nv_mul_u32_u24 v24, {CKV_STRIDE}, v24\nv_and_b32 v25, 127, v0\nv_lshl_add_u32 v24, v25, 3, v24\nv_add_u32 v24, {QS}, v24")
    a(f"v_and_b32 v25, 7, v3\nv_mul_u32_u24 v25, {CKV_STRIDE}, v25\nv_lshl_add_u32 v25, v4, 4, v25\nv_add_u32 v25, {QS}, v25")
    a(f"s_lshl_b32 s62, {SW}, 2\ns_add_u32 s62, s62, {MX}\nv_lshlrev_b32 v26, 4, v3\nv_add_u32 v27, s62, v26\nv_add_u32 v28, {MX}, v26")
    a(f"s_lshl_b32 s62, {SW}, 10\ns_add_u32 s62, s62, {PX}\nv_add_u32 v29, s62, v5\nv_add_u32 v31, {PX}, v5")
    a(f"v_and_b32 v23, 31, v1\nv_lshlrev_b32 v23, 7, v23\ns_lshl_b32 s70, {SSUB}, 12\ns_add_u32 s70, s70, {SENT2}")
    a(f"s_waitcnt vmcnt({PWY})")
    stamp(2)
    for tile in range(2):
        for s in range(16):
            a(f"ds_read_b128 {ar((tile*16+s)*4)}, v6 offset:{tile*16*CKV_STRIDE+64*s}")
    stamp(3)
    if opt.get('sent2', 0):
        poll_begin("L_p2a")
        a(f"buffer_load_dword v100, v23, {S_WS}, s70 offen sc1")
        a("s_waitcnt vmcnt(0)")
        tagcheck("v14", ["v100"])
        poll_end("L_p2a", "v14")
    poll_begin("L_p2")
    for i in range(4):
        a(f"buffer_load_dwordx4 {vr(100+4*i)}, v22, {S_WS}, s{66+i} offen sc1")
    a("s_waitcnt vmcnt(0)")
    tagcheck("v14", [f"v{100+4*i+k}" for i in range(4) for k in (1,3)])
    poll_end("L_p2", "v14")
    stamp(4)
    for i in range(4):
        a(f"v_mov_b32 v{101+4*i}, v{102+4*i}\nds_write_b64 v24, v[{100+4*i}:{101+4*i}] offset:{2*CKV_STRIDE*i}")
    a("s_waitcnt lgkmcnt(0)\ns_barrier")
    for s in range(16):
        a(f"ds_read_b128 {vr(32+4*s)}, v25 offset:{64*s}")
    pv = []
    for t in range(8):
        for j in range(4):
            for u in range(2):
                r = 128+(t*4+j)*4+2*u
                pv.append(f"ds_read_b64_tr_b16 a[{r}:{r+1}], {'v7' if j < 2 else 'v8'} offset:{(32*(j&1)+16*u)*CKV_STRIDE+32*t}")
    for s in range(16):
        if s < 4: a(f"s_waitcnt lgkmcnt({12-4*s})")
        for tile in range(2):
            sidx = s
            mfma(vr(100+4*tile), ar((tile*16+s)*4), vr(32+4*s), s == 0)
            if s >= 3:
                for _ in range(3 if pv else 0):
                    if pv: a(pv.pop(0))
    while pv: a(pv.pop(0))
    stamp(5)
    a("v_max3_f32 v108, v100, v101, v102\nv_max3_f32 v109, v103, v104, v105\nv_max3_f32 v108, v108, v106, v107\nv_max_f32 v108, v108, v109")
    swap16("v_max_f32", ["v108"], ["v109"]); swap32("v_max_f32", ["v108"], ["v109"])
    a("ds_write_b32 v27, v108")
    a("s_waitcnt lgkmcnt(0)\ns_barrier")
    a(f"ds_read_b128 v[108:111], v28\ns_waitcnt lgkmcnt(0)")
    a("v_max3_f32 v108, v108, v109, v110\nv_max_f32 v108, v108, v111")
    for k in range(8): a(f"v_sub_f32 v{100+k}, v{100+k}, v108")
    for k in range(8): a(f"v_exp_f32 v{100+k}, v{100+k}")
    a("v_cvt_pk_bf16_f32 v112, v100, v101\nv_cvt_pk_bf16_f32 v113, v102, v103\nv_cvt_pk_bf16_f32 v114, v104, v105\nv_cvt_pk_bf16_f32 v115, v106, v107")
    a("ds_write_b128 v29, v[112:115]")
    a("v_add_f32 v100, v100, v101\nv_add_f32 v102, v102, v103\nv_add_f32 v104, v104, v105\nv_add_f32 v106, v106, v107\nv_add_f32 v100, v100, v102\nv_add_f32 v104, v104, v106\nv_add_f32 v100, v100, v104")
    swap16("v_add_f32", ["v100"], ["v109"]); swap32("v_add_f32", ["v100"], ["v109"])
    a(f"ds_write_b32 v27, v100 offset:{LX-MX}")
    a("s_waitcnt lgkmcnt(0)\ns_barrier")
    for j in range(4): a(f"ds_read_b128 {vr(32+4*j)}, v31 offset:{1024*j}")
    a(f"ds_read_b128 v[112:115], v28 offset:{LX-MX}")
    def stats_store():
        lab = "L_Y_nostat"
        a(f"s_cmp_eq_u32 {SW}, 0\ns_cbranch_scc0 {lab}")
        a(f"v_mov_b32 v109, {TAG}\nv_mov_b32 v111, {TAG}")
        a(f"s_lshl_b32 s63, {SR}, 7\ns_add_u32 s63, s63, {ST}")
        a("s_mov_b64 exec, 0xff")
        a(f"buffer_store_dwordx4 v[108:111], v26, {S_WS}, s63 offen sc1")
        a(f"s_mov_b64 exec, -1\n{lab}:")
    if STPOS == 0:
        a("s_waitcnt lgkmcnt(0)")
        a("v_add_f32 v112, v112, v113\nv_add_f32 v114, v114, v115\nv_add_f32 v110, v112, v114")
        stats_store()
    for j in range(4):
        if STPOS != 0: a(f"s_waitcnt lgkmcnt({4-j})")
        for t in range(8):
            mfma(vr(120+4*t), vr(32+4*j), ar(128+(t*4+j)*4), j == 0)
    if STPOS != 0:
        a("s_waitcnt lgkmcnt(0)")
        a("v_add_f32 v112, v112, v113\nv_add_f32 v114, v114, v115\nv_add_f32 v110, v112, v114")
    if STPOS == 1: stats_store()
    a("v_and_b32 v30, 1, v4\nv_lshlrev_b32 v30, 18, v30\nv_lshl_add_u32 v30, v3, 4, v30\nv_lshrrev_b32 v21, 1, v4\nv_lshl_add_u32 v30, v21, 8, v30\nv_cmp_eq_u32 vcc, 1, v21")
    a(f"s_lshl_b32 s62, {SSUB}, 19\ns_lshl_b32 s63, {SW}, 14\ns_add_u32 s62, s62, s63\ns_lshl_b32 s63, {SH}, 9\ns_add_u32 s62, s62, s63\ns_add_u32 s62, s62, {OP}")
    for r in range(4):
        o = 160+4*r
        for e in range(4): a(f"v_cndmask_b32 v{120+4*e+r}, v{120+4*e+r}, v{136+4*e+r}, vcc")
        a(f"v_cvt_pk_bf16_f32 v{o}, v{120+r}, v{124+r}\nv_mov_b32 v{o+1}, {TAG}\nv_cvt_pk_bf16_f32 v{o+2}, v{128+r}, v{132+r}\nv_mov_b32 v{o+3}, {TAG}")
        a(f"buffer_store_dwordx4 {vr(o)}, v30, {S_WS}, s62 offen sc1")
        if r < 3: a("s_add_u32 s62, s62, 65536")
    if STPOS == 2: stats_store()
    stamp(6)
    a(f"s_mul_i32 s62, {SR}, 40960\ns_mul_i32 s63, {SW}, {8*1280}\ns_add_u32 s62, s62, s63\ns_mul_i32 s63, {SW}, {8*WO_STRIDE}\ns_mov_b32 s71, s62\ns_mov_b32 s72, s63")
    for j in range(8):
        a(f"s_mov_b32 m0, s63\ns_add_u32 s63, s63, {WO_STRIDE}")
        a(f"buffer_load_dwordx4 v5, {S_B}, s62 offen lds")
        if j < 7: a(f"s_add_u32 s62, s62, 1280")
    a("s_add_u32 s62, s71, 1024\ns_add_u32 s63, s72, 1024\ns_mov_b64 exec, 0xffff")
    for j in range(8):
        a(f"s_mov_b32 m0, s63\ns_add_u32 s63, s63, {WO_STRIDE}")
        a(f"buffer_load_dwordx4 v5, {S_B}, s62 offen lds")
        if j < 7: a(f"s_add_u32 s62, s62, 1280")
    a("s_mov_b64 exec, -1")
    m_coef_loads()
    a(f"v_mul_u32_u24 v7, {WO_STRIDE}, v19\nv_and_b32 v8, 3, v3\nv_lshl_add_u32 v7, v8, 3, v7\ns_mul_i32 s62, {SW}, 320\nv_add_u32 v7, s62, v7")
    a("s_waitcnt vmcnt(0)\ns_barrier")
    for tile in range(10):
        for u in range(2):
            r = 32+4*tile+2*u
            a(f"ds_read_b64_tr_b16 v[{r}:{r+1}], v7 offset:{16*WO_STRIDE*u+32*tile}")
    m_coef_unpack()
    a(f"v_and_b32 v13, 3, v3\nv_lshlrev_b32 v13, 4, v13\nv_lshl_add_u32 v13, v4, 6, v13\ns_lshl_b32 s68, {SR}, 9\ns_add_u32 s68, s68, {CP}\ns_add_u32 s69, s68, {CPB-CP}")
    a(f"s_mul_i32 s62, {SR}, 2560\ns_mul_i32 s63, {SW}, 640\ns_add_u32 s62, s62, s63\ns_add_u32 s67, s62, {OUTP}")
    a("v_lshlrev_b32 v12, 2, v3\nv_lshl_add_u32 v12, v4, 6, v12")
    a("s_waitcnt lgkmcnt(0)")
    stamp(7)
    poll_begin("L_p4", ("s66", "s68", "s69"))
    dual_loads("L_p4", lambda fl: a(f"buffer_load_dwordx4 v[100:103], v13, {S_WS}, s66 offen {fl}\nbuffer_load_dwordx4 v[104:107], v13, {S_WS}, s66 offen offset:256 {fl}"))
    a("s_waitcnt vmcnt(0)")
    tagcheck("v14", ["v101","v103","v105","v107"])
    poll_end("L_p4", "v14")
    stamp(8)
    if opt.get('sent5', 0): sentinel(SENT5)
    a("v_mov_b32 v101, v102\nv_mov_b32 v102, v104\nv_mov_b32 v103, v106\nv_cmp_eq_u32 vcc, 1, v4")
    for tile in range(10):
        mfma(vr(120+4*tile), vr(100), vr(32+4*tile), True)
    for tile in range(10):
        d = 120+4*tile
        a(f"v_add_f32 v{d}, v{d}, v{d+1}\nv_add_f32 v{d+2}, v{d+2}, v{d+3}")
    for tile in range(10):
        d = 120+4*tile
        a(f"v_add_f32 v{d}, v{d}, v{d+2}")
    for k in range(5):
        d = 120+8*k
        a(f"v_cndmask_b32 v{d}, v{d}, v{d+4}, vcc")
    for k in range(5):
        d = 120+8*k
        a(f"v_mov_b32_dpp v{d+1}, v{d} row_shl:1 row_mask:0xf bank_mask:0xf")
    for k in range(5):
        d = 120+8*k
        a(f"v_cvt_pk_bf16_f32 v{d+2}, v{d}, v{d+1}\nv_mov_b32 v{d+3}, {TAG}")
    a("s_mov_b32 exec_lo, 0x55555555\ns_mov_b32 exec_hi, 0")
    for k in range(5):
        d = 120+8*k
        a(f"buffer_store_dwordx2 v[{d+2}:{d+3}], v12, {S_WS}, s67 offen offset:{128*k} sc1")
    a("s_mov_b64 exec, -1")

    a.c("================= M stage")
    a("L_M:")
    a("s_mul_i32 s64, s2, 3\ns_cmp_ge_u32 s64, 640\ns_cbranch_scc1 L_fin")
    a("s_add_u32 s65, s64, 1\ns_min_u32 s65, s65, 639\ns_add_u32 s66, s64, 2\ns_min_u32 s66, s66, 639")
    for k in range(3):
        a(f"s_lshr_b32 s{67+k}, s{64+k}, 1\ns_lshl_b32 s{67+k}, s{67+k}, 3\ns_add_u32 s{67+k}, s{67+k}, {HG}")
    a(f"v_mov_b32 v144, {f2u(C0):#x}\nv_mov_b32 v145, {f2u(C0):#x}")
    for k in range(3): a(f"v_mov_b32 v{146+2*k}, 0\nv_mov_b32 v{147+2*k}, 0")
    a(f"s_cmp_eq_u32 {SW}, 0\ns_cbranch_scc0 L_M_wait")
    a(f"v_lshlrev_b32 v13, 3, v1\ns_mov_b32 s62, {HG}")
    stamp(9)
    poll_begin("L_p6")
    for k in range(5):
        a(f"buffer_load_dwordx2 v[{100+2*k}:{101+2*k}], v13, {S_WS}, s62 offen offset:{512*k} sc1")
    for k in range(3):
        a(f"buffer_load_dwordx2 v[{110+2*k}:{111+2*k}], v18, {S_WS}, s{67+k} offen sc1")
    a("s_waitcnt vmcnt(0)")
    tagcheck("v14", [f"v{101+2*k}" for k in range(8)])
    poll_end("L_p6", "v14")
    stamp(10)
    a("s_mov_b32 s63, 0xffff0000")
    for k in range(5):
        a(f"v_lshlrev_b32 v{120+2*k}, 16, v{100+2*k}\nv_and_b32 v{121+2*k}, s63, v{100+2*k}")
    a("v_readfirstlane_b32 s70, v120")
    for k in range(3):
        a(f"s_bitcmp1_b32 s{64+k}, 0\ns_cselect_b32 s71, 0, 16\nv_lshlrev_b32 v{136+k}, s71, v{110+2*k}\nv_and_b32 v{136+k}, s63, v{136+k}")
    for k in range(120, 130): a(f"v_subrev_f32 v{k}, s70, v{k}")
    a("v_add_f32 v130, v120, v121\nv_mul_f32 v132, v120, v120\nv_fmac_f32 v132, v121, v121")
    for k in range(122, 130): a(f"v_add_f32 v130, v130, v{k}\nv_fmac_f32 v132, v{k}, v{k}")
    wave_allreduce("v_add_f32", ["v130", "v132"], ["v131", "v133"])
    a(f"s_mov_b32 s62, {f2u(1.0/640):#x}\nv_mul_f32 v130, s62, v130\nv_mul_f32 v132, s62, v132")
    a("v_fma_f32 v132, -v130, v130, v132")
    a("v_add_f32 v130, s70, v130")
    a(f"v_add_f32 v133, {f2u(EPS):#x}, v132\nv_rsq_f32 v133, v133")
    a("v_mul_f32 v134, v133, v133\nv_mul_f32 v134, v134, v132")
    a(f"v_add_f32 v134, {f2u(EPS):#x}, v134\nv_rsq_f32 v134, v134\nv_mul_f32 v133, v133, v134")
    for k in range(3):
        a(f"v_sub_f32 v{140+k}, v{136+k}, v130\nv_mul_f32 v{140+k}, v{140+k}, v133")
    a(f"v_mov_b32 v15, {MB}\ns_mov_b64 exec, 1\nds_write_b96 v15, v[140:142]\ns_mov_b64 exec, -1")
    a(f"s_cmp_eq_u32 s2, 0\ns_cbranch_scc0 L_noep")
    a(f"v_mov_b32 v16, {TAG}\ns_mov_b64 exec, 1\nbuffer_store_dword v16, v18, {S_WS}, 0 offen sc1\ns_mov_b64 exec, -1")
    a("L_noep:")
    a("s_waitcnt lgkmcnt(0)")
    a("L_M_wait:")
    a("s_barrier")
    a(f"v_mov_b32 v15, {MB}\nds_read_b96 v[140:142], v15\ns_mov_b32 s62, {f2u(C1):#x}\ns_waitcnt lgkmcnt(0)")
    for k in range(3):
        a(f"v_readfirstlane_b32 s{70+2*k}, v{140+k}")
    for k in range(3):
        t = f"s[{70+2*k}:{71+2*k}]"
        U = lambda i: f"v[{152+2*i}:{153+2*i}]"
        Z = lambda i: f"v[{160+2*i}:{161+2*i}]"
        for i in range(4): a(f"v_pk_fma_f32 {U(i)}, v[{210+2*i}:{211+2*i}], {t}, v[{218+2*i}:{219+2*i}] op_sel_hi:[1,0,1]")
        for i in range(4): a(f"v_pk_mul_f32 {Z(i)}, {U(i)}, {U(i)}")
        for i in range(4): a(f"v_pk_fma_f32 {Z(i)}, {Z(i)}, s[62:63], v[144:145] op_sel_hi:[1,0,1]")
        for i in range(4): a(f"v_pk_mul_f32 {Z(i)}, {Z(i)}, {U(i)}")
        for i in range(4): a(f"v_exp_f32 v{160+2*i}, v{160+2*i}\nv_exp_f32 v{161+2*i}, v{161+2*i}")
        for i in range(4): a(f"v_pk_mul_f32 {U(i)}, {U(i)}, v[{226+2*i}:{227+2*i}]")
        for i in range(4): a(f"v_pk_add_f32 {Z(i)}, {Z(i)}, 1.0 op_sel_hi:[1,0]")
        for i in range(4): a(f"v_rcp_f32 v{160+2*i}, v{160+2*i}\nv_rcp_f32 v{161+2*i}, v{161+2*i}")
        for i in range(4): a(f"v_pk_fma_f32 v[{146+2*k}:{147+2*k}], {U(i)}, {Z(i)}, v[{146+2*k}:{147+2*k}]")
    for k in range(3): a(f"v_add_f32 v{146+2*k}, v{146+2*k}, v{147+2*k}")
    wave_allreduce("v_add_f32", ["v146","v148","v150"], ["v147","v149","v151"])
    a(f"s_lshl_b32 s62, {SW}, 4\ns_add_u32 s62, s62, {MRED}\nv_mov_b32 v15, s62\nv_mov_b32 v147, v148\nv_mov_b32 v148, v150")
    a("s_mov_b64 exec, 1\nds_write_b96 v15, v[146:148]\ns_mov_b64 exec, -1")
    a("s_waitcnt lgkmcnt(0)\ns_barrier")
    a(f"s_cmp_eq_u32 {SW}, 0\ns_cbranch_scc0 L_fin")
    a(f"v_lshlrev_b32 v15, 2, v1\nv_add_u32 v15, {MRED}, v15")
    a("ds_read_b32 v100, v15\nds_read_b32 v101, v15 offset:16\nds_read_b32 v102, v15 offset:32\nds_read_b32 v103, v15 offset:48")
    a("v_cmp_eq_u32 vcc, 1, v1\nv_cndmask_b32 v136, v136, v137, vcc\nv_cmp_eq_u32 vcc, 2, v1\nv_cndmask_b32 v136, v136, v138, vcc")
    srd(S_T, 26, 1280)
    a("v_add_u32 v15, s64, v1\nv_lshlrev_b32 v16, 1, v15")
    a("v_add_f32 v136, v136, v208")
    a("s_waitcnt lgkmcnt(0)")
    a("v_add_f32 v100, v100, v101\nv_add_f32 v102, v102, v103\nv_add_f32 v100, v100, v102\nv_add_f32 v100, v100, v136")
    a("v_cvt_pk_bf16_f32 v100, v100, v100")
    a("v_cmp_gt_u32 vcc, 640, v15\ns_and_b64 exec, vcc, 7")
    a("s_cbranch_execz L_fin")
    a(f"buffer_store_short v100, v16, {S_T}, 0 offen")
    a("L_fin:")
    if opt.get('pin'):
        a(f"s_waitcnt lgkmcnt(0)\ns_add_u32 s76, s76, {opt['pin']}")
        a("L_pin:\ns_memrealtime s[78:79]\ns_waitcnt lgkmcnt(0)\ns_sub_u32 s80, s78, s76\ns_cmp_lt_i32 s80, 0\ns_cbranch_scc1 L_pin")
    if profile:
        stamp(11)
        a("s_mov_b64 exec, -1\ns_waitcnt lgkmcnt(0)")
        a(f"s_lshl_b32 s62, s2, 2\ns_add_u32 s62, s62, {SW}\ns_lshl_b32 s62, s62, 6\ns_add_u32 s62, s62, {TS}")
        a("v_mov_b32 v18, 0\ns_mov_b64 exec, 1")
        for k in range(12):
            a(f"v_mov_b32 v15, s{76+2*k}\nbuffer_store_dword v15, v18, {S_WS}, s62 offen offset:{4*k}")
        a(f"v_mov_b32 v15, s100\nbuffer_store_dword v15, v18, {S_WS}, s62 offen offset:48")
        a(f"s_getreg_b32 s100, hwreg(HW_REG_XCC_ID)\nv_mov_b32 v15, s100\nbuffer_store_dword v15, v18, {S_WS}, s62 offen offset:52")
        a(f"s_getreg_b32 s100, hwreg(HW_REG_HW_ID)\nv_mov_b32 v15, s100\nbuffer_store_dword v15, v18, {S_WS}, s62 offen offset:56")
    a("L_end:")
    a("s_endpgm")
    a("L_code_end:")
    a(f".set CODE_BYTES, L_code_end - {NAME}")
    a('.section .rodata,"a"\n.p2align 6')
    a(f".amdhsa_kernel {NAME}")
    a("  .amdhsa_next_free_vgpr 512\n  .amdhsa_next_free_sgpr 102\n  .amdhsa_accum_offset 256\n  .amdhsa_group_segment_fixed_size 0\n  .amdhsa_kernarg_size 112\n  .amdhsa_user_sgpr_count 2\n  .amdhsa_user_sgpr_kernarg_segment_ptr 1\n  .amdhsa_system_sgpr_workgroup_id_x 1")
    a(".end_amdhsa_kernel")
    n = a.hazard_pass()
    return a.text(), n

LAYOUT = dict(QG=QG, QA=QA, ST=ST, CP=CP, HG=HG, OUTP=OUTP, OP=OP, TS=TS)
if __name__ == "__main__":
    prof = "prof" in sys.argv[2:]
    opt = {}
    for x in sys.argv[2:]:
        if '=' in x:
            k, v = x.split('='); opt[k] = int(v) if v.lstrip('-').isdigit() else v
    txt, n = gen(profile=prof, opt=opt)
    open(sys.argv[1], "w").write(txt)
    print("auto nops:", n, "lines:", txt.count("\n"), LAYOUT)
```

```python
import sys, math, struct
from asmlib import Asm

NAME = "sequential_preLN__compressed_kv_cla__mixer_token_mlp__decode_kernel"
HEADER = open('sequential_preLN__compressed_kv_cla__mixer_token_mlp__decode.s.ref').read().split('; Override')[0]

def f2u(x): return struct.unpack('<I', struct.pack('<f', x))[0]

QG   = 4096
QA   = QG + 131072
ST   = QA + 65536
CP   = ST + 16384
HG   = CP + 65536
SENT2 = HG + 4096
SENT5 = SENT2 + 16384
QGB  = SENT5 + 16384
CPB  = QGB + 131072
OUTP = CPB + 65536
OUTPB = OUTP + 128*2560
XP   = OUTPB + 128*2560
UF   = XP + 8*2560
OP   = 2 << 20
TS   = 4 << 20
assert UF + 8*128 <= OP
WS_SIZE = 5 << 20
CKV_STRIDE = 1056
QS = 135168; PX = 143616; MX = 147712; LX = 147968; MRED = 148224; MB = 148288
WUK = 0; WUV = 32768; OS = 65536; S1RED = 74752; WX = 82944; RRED = 83456
S1RED_C = 135168
LDS_BYTES = 148480
WO_STRIDE = 1312
HB = PX; SB = MB

SCALE = (128 ** -0.5) * math.log2(math.e)
C0 = -2.0 * math.sqrt(2.0 / math.pi) * math.log2(math.e)
C1 = C0 * 0.044715
EPS = 1e-5

S_WS, S_X, S_A, S_B, S_C, S_T = 's[32:35]', 's[36:39]', 's[40:43]', 's[44:47]', 's[48:51]', 's[52:55]'
TAG, SW, SR, SH, SSUB = 's56', 's57', 's58', 's59', 's60'

def gen(profile=False, spin_limit=400000, opt=None):
    opt = opt or {}
    WARM = opt.get('warm', 1)
    STPOS = opt.get('stpos', 1)
    a = Asm()
    NT = " nt" if opt.get('nt', 0) else ""
    SMASK = opt.get('smask', 0xfff)
    def stamp(k):
        if profile and (SMASK >> k) & 1:
            assert k < 12
            a(f"s_memrealtime s[{76+2*k}:{77+2*k}]")
    def srd(dst, ptr, size):
        d = int(dst[2:dst.index(':')])
        a(f"s_mov_b32 s{d}, s{ptr}\ns_mov_b32 s{d+1}, s{ptr+1}\ns_mov_b32 s{d+2}, {size}\ns_mov_b32 s{d+3}, 0x00020000")
    DPPS = ("quad_perm:[1,0,3,2]", "quad_perm:[2,3,0,1]", "row_half_mirror", "row_mirror")
    def row_allreduce(op, vs):
        for m in DPPS:
            for v in vs: a(f"{op}_dpp {v}, {v}, {v} {m} row_mask:0xf bank_mask:0xf")
    def swapred(sw, op, vs, ts):
        for v, t in zip(vs, ts): a(f"v_mov_b32 {t}, {v}")
        for v, t in zip(vs, ts): a(f"{sw} {v}, {t}")
        for v, t in zip(vs, ts): a(f"{op} {v}, {v}, {t}")
    def swap16(op, vs, ts): swapred("v_permlane16_swap_b32", op, vs, ts)
    def swap32(op, vs, ts): swapred("v_permlane32_swap_b32", op, vs, ts)
    def wave_allreduce(op, vs, ts):
        row_allreduce(op, vs); swap16(op, vs, ts); swap32(op, vs, ts)
    MASKED = opt.get('masked', 1)
    def poll_begin(name, dual=None):
        a(f"s_mov_b32 s61, 0")
        a(f"{name}:")
        if dual:
            a(f"s_and_b32 s75, s61, 7\ns_cmp_eq_u32 s75, 7\ns_cselect_b32 {dual[0]}, {dual[2]}, {dual[1]}")
    def poll_end(name, bad):
        a(f"v_cmp_ne_u32 vcc, 0, {bad}")
        a(f"s_add_u32 s61, s61, 1")
        a(f"s_cmp_gt_u32 s61, {spin_limit}")
        a(f"s_cbranch_scc1 {name}_x")
        if MASKED:
            a(f"s_and_b64 exec, exec, vcc")
            a(f"s_cbranch_execnz {name}")
        else:
            a(f"s_cbranch_vccnz {name}")
        a(f"{name}_x:")
        if MASKED: a("s_mov_b64 exec, -1")
        if profile and opt.get('cntfor') == name:
            a("s_mov_b32 s100, s61")
    def tagcheck(bad, tags):
        a(f"v_xor_b32 {bad}, {TAG}, {tags[0]}")
        for t in tags[1:]:
            a(f"v_bitop3_b32 {bad}, {t}, {TAG}, {bad} bitop3:0xbe")
    def mfma(d, A, B, first):
        a(f"v_mfma_f32_16x16x32_bf16 {d}, {A}, {B}, {'0' if first else d}")
    def vr(b, n=4): return f"v[{b}:{b+n-1}]"
    def ar(b, n=4): return f"a[{b}:{b+n-1}]"

    a.lines += [l for l in HEADER.strip().split('\n')]
    a(f"; @launch grid=(256,1,1) block=(256,1,1) lds={LDS_BYTES}")
    a('.amdgcn_target "amdgcn-amd-amdhsa--gfx950"')
    a(f".text\n.globl {NAME}\n.p2align 8\n.type {NAME},@function\n{NAME}:")
    if WARM:
        a("s_getpc_b64 s[40:41]\nv_lshlrev_b32 v5, 7, v0\ns_mov_b32 s42, CODE_BYTES\ns_mov_b32 s43, 0x00020000")
        a("buffer_load_dword v251, v5, s[40:43], 0 offen")
    stamp(0)
    if opt.get('pin'): a("s_memrealtime s[76:77]")
    if profile: a("s_mov_b32 s100, 99")
    a("s_cmp_ge_u32 s2, 256\ns_cbranch_scc1 L_end")
    a("s_load_dwordx16 s[4:19], s[0:1], 0\ns_load_dwordx8 s[20:27], s[0:1], 64\ns_load_dwordx4 s[28:31], s[0:1], 96")
    a("v_and_b32 v1, 63, v0\nv_lshrrev_b32 v2, 6, v0\nv_and_b32 v3, 15, v0\nv_bfe_u32 v4, v0, 4, 2")
    a(f"v_readfirstlane_b32 {SW}, v2")
    a(f"s_and_b32 s61, s2, 7\ns_bfe_u32 s62, s2, 0x40003\ns_lshl_b32 {SR}, s61, 4\ns_add_u32 {SR}, {SR}, s62")
    a(f"s_lshr_b32 {SH}, {SR}, 2\ns_and_b32 {SSUB}, {SR}, 3")
    a("v_mov_b32 v18, 0")
    a("s_waitcnt lgkmcnt(0)")
    srd(S_WS, 30, WS_SIZE)
    a(f"buffer_load_dword v250, v18, {S_WS}, 0 offen")
    srd(S_X, 4, 1280)
    def m_coef_loads():
        a("v_lshlrev_b32 v17, 2, v0")
        for k, p in enumerate((18, 20, 22)):
            srd(S_T, p, 3456)
            for i in range(4):
                a(f"buffer_load_dword v{196+4*k+i}, v17, {S_T}, 0 offen offset:{1024*i}")
        srd(S_T, 24, 2)
        a(f"buffer_load_ushort v208, v18, {S_T}, 0 offen")
    def m_coef_unpack():
        a("s_mov_b32 s63, 0xffff0000")
        for k in range(3):
            for i in range(4):
                s_ = 196+4*k+i; d = 210+8*k+2*i
                a(f"v_lshlrev_b32 v{d}, 16, v{s_}\nv_and_b32 v{d+1}, s63, v{s_}")
        a("v_lshlrev_b32 v208, 16, v208")
    def tail_prefetch(unit=True):
        a(f"v_lshlrev_b32 v245, 3, v0\nbuffer_load_dwordx2 v[246:247], v245, {S_X}, 0 offen")
        if opt.get('gate', 1):
            a(f"s_and_b32 s62, s2, 7\ns_lshl_b32 s62, s62, 7\ns_add_u32 s62, s62, {UF}\nv_lshlrev_b32 v249, 2, v1\nv_and_b32 v249, 127, v249")
            a(f"buffer_load_dword v252, v249, {S_WS}, s62 offen nt")
        if not unit: return
        a(f"v_lshrrev_b32 v248, 3, v1\nv_mul_u32_u24 v248, 2560, v248\nv_and_b32 v249, 7, v1\nv_lshl_add_u32 v248, v249, 4, v248")
        a(f"s_lshr_b32 s74, s2, 3\ns_cmp_eq_u32 {SW}, 1\ns_cselect_b32 s63, 16, 0\ns_add_u32 s74, s74, s63\ns_min_u32 s74, s74, 19")
        a(f"s_and_b32 s62, s2, 7\ns_mul_i32 s62, s62, {16*2560}\ns_lshl_b32 s63, s74, 7\ns_add_u32 s62, s62, s63\ns_add_u32 s101, s62, {OUTP}")
        if opt.get('prewarm', 1):
            a(f"s_add_u32 s62, s101, {8*2560}")
            a(f"buffer_load_dword v252, v248, {S_WS}, s101 offen nt\nbuffer_load_dword v252, v248, {S_WS}, s62 offen nt")
    def sentinel(base):
        lab = f"L_s{base}"
        a(f"s_cmp_eq_u32 {SW}, 0\ns_cbranch_scc0 {lab}")
        a(f"v_mov_b32 v240, {TAG}\nv_mov_b32 v241, {TAG}\nv_mov_b32 v242, {TAG}\nv_mov_b32 v243, {TAG}\nv_lshlrev_b32 v244, 4, v1")
        a(f"s_lshl_b32 s62, {SR}, 7\ns_add_u32 s62, s62, {base}\ns_mov_b64 exec, 0xff")
        a(f"buffer_store_dwordx4 v[240:243], v244, {S_WS}, s62 offen sc1")
        a(f"s_mov_b64 exec, -1\n{lab}:")

    NW = 1 if WARM else 0
    PWX = 1 if opt.get("prewarm", 1) else 0

    a.c("================= S1: q partials, head h1 = 4*xcd + (idx>>3), rows 80*me..80*me+79, me = idx&7")
    a("s_lshr_b32 s72, s2, 6\ns_and_b32 s73, s2, 7\ns_lshl_b32 s73, s73, 2\ns_add_u32 s72, s72, s73")
    a("s_bfe_u32 s73, s2, 0x30003")
    srd(S_A, 8, 5242880)
    a("v_lshlrev_b32 v5, 2, v1")
    for j in range(5): a(f"buffer_load_dword v{32+j}, v5, {S_X}, 0 offen offset:{256*j}")
    a(f"v_lshrrev_b32 v6, 4, v0\ns_mul_i32 s62, s73, 80\nv_add_u32 v7, s62, v6\nv_lshlrev_b32 v7, 1, v7")
    for i in range(5): a(f"buffer_load_ushort v{40+2*i}, v7, {S_X}, 0 offen offset:{32*i}")
    a("v_lshlrev_b32 v8, 4, v3\nv_lshl_add_u32 v8, v6, 13, v8")
    a(f"s_mul_i32 s61, s73, {80*8192}\ns_lshl_b32 s62, s72, 8\ns_add_u32 s61, s61, s62")
    for i in range(5):
        a(f"buffer_load_dwordx4 {vr(60+4*i)}, v8, {S_A}, s61 offen{NT}")
        if i < 4: a(f"s_add_u32 s61, s61, {16*8192}")
    a("v_xor_b32 v9, v3, v4\nv_lshlrev_b32 v9, 4, v9\nv_lshl_add_u32 v9, v4, 13, v9")
    a("v_xor_b32 v10, 64, v9\nv_xor_b32 v11, 128, v9\nv_xor_b32 v12, 192, v9")
    a("s_bitcmp1_b32 s2, 7\ns_cbranch_scc1 L_nouk")
    srd(S_B, 10, 4194304)
    a(f"s_lshl_b32 s66, {SSUB}, 20\ns_lshl_b32 s63, {SH}, 8\ns_add_u32 s66, s66, s63\ns_lshl_b32 s63, {SW}, 18\ns_add_u32 s66, s66, s63")
    a(f"s_lshl_b32 s67, {SW}, 13")
    NUP = opt.get('nup', 4)
    def uk_dma(k):
        a(f"s_mov_b32 m0, s67\ns_add_u32 s67, s67, 1024")
        a(f"buffer_load_dwordx4 v{9+(k&3)}, {S_B}, s66 offen{NT} lds")
        if k < 7: a(f"s_add_u32 s66, s66, 32768")
    for k in range(NUP): uk_dma(k)
    if PWX:
        a(f"v_and_b32 v253, 31, v1\nv_lshlrev_b32 v253, 7, v253\ns_lshl_b32 s62, {SH}, 12\ns_add_u32 s62, s62, {QG}")
        a(f"buffer_load_dword v252, v253, {S_WS}, s62 offen nt")
    a("s_branch L_s1c")
    a("L_nouk:")
    EARLY = opt.get('early', 1)
    def ckv_group(q):
        a(f"s_add_u32 s62, {SSUB}, {q}\ns_and_b32 s62, s62, 3\ns_mul_i32 s63, s62, {8*CKV_STRIDE}\ns_add_u32 s63, s63, s69\ns_lshl_b32 s62, s62, 13\ns_add_u32 s62, s62, s68")
        for j in range(8):
            a(f"s_mov_b32 m0, s63\ns_add_u32 s63, s63, {CKV_STRIDE}")
            a(f"buffer_load_dwordx4 v9, {S_B}, s62 offen lds")
            if j < 7: a(f"s_add_u32 s62, s62, 1024")
    srd(S_B, 6, 4194304)
    a("v_lshlrev_b32 v9, 4, v1")
    a(f"s_lshl_b32 s68, {SH}, 17\ns_lshl_b32 s63, {SW}, 15\ns_add_u32 s68, s68, s63")
    a(f"s_mul_i32 s69, {SW}, {32*CKV_STRIDE}")
    for q in range(EARLY): ckv_group(q)
    a("L_s1c:")
    stamp(1)
    def s1_body(extra, late=()):
        late = list(late)
        a(f"s_waitcnt vmcnt({10+extra})")
        a(f"v_readfirstlane_b32 {TAG}, v250\ns_add_u32 {TAG}, {TAG}, 1")
        a("s_mov_b32 s63, 0xffff0000")
        for j in range(5):
            a(f"v_lshlrev_b32 v{100+2*j}, 16, v{32+j}\nv_and_b32 v{101+2*j}, s63, v{32+j}")
        a("v_readfirstlane_b32 s64, v100")
        for k in range(100, 110): a(f"v_subrev_f32 v{k}, s64, v{k}")
        a("s_mov_b32 s3, s64")
        a("v_add_f32 v110, v100, v101\nv_mul_f32 v112, v100, v100")
        a("v_fmac_f32 v112, v101, v101")
        for k in range(102, 110): a(f"v_add_f32 v110, v110, v{k}\nv_fmac_f32 v112, v{k}, v{k}")
        wave_allreduce("v_add_f32", ["v110", "v112"], ["v111", "v113"])
        a(f"s_mov_b32 s65, {f2u(1.0/640):#x}\nv_mul_f32 v110, s65, v110\nv_mul_f32 v112, s65, v112")
        a(f"v_fma_f32 v112, -v110, v110, v112\nv_add_f32 v112, {f2u(EPS):#x}, v112\nv_rsq_f32 v113, v112")
        a("v_add_f32 v110, s64, v110")
        a(f"s_waitcnt vmcnt({5+extra})")
        for i in range(5):
            r = 40+2*i
            a(f"v_lshlrev_b32 v{r}, 16, v{r}\nv_sub_f32 v{r}, v{r}, v110\nv_mul_f32 v{r}, v{r}, v113")
        for k in range(100, 108): a(f"v_mov_b32 v{k}, 0")
        issued = 0
        for i in range(5):
            a(f"s_waitcnt vmcnt({4-i+extra+issued})")
            w = 60+4*i; l = 40+2*i
            for d in range(4):
                a(f"v_lshlrev_b32 v{108+2*(d&1)}, 16, v{w+d}\nv_and_b32 v{109+2*(d&1)}, s63, v{w+d}")
                a(f"v_pk_fma_f32 v[{100+2*d}:{101+2*d}], v[{108+2*(d&1)}:{109+2*(d&1)}], v[{l}:{l+1}], v[{100+2*d}:{101+2*d}] op_sel_hi:[1,0,1]")
            if late:
                late.pop(0)(); issued += 1
    a("s_bitcmp1_b32 s2, 7\ns_cbranch_scc1 L_s1y")
    s1_body(NUP+PWX, [(lambda k=k: uk_dma(k)) for k in range(NUP, 8)])
    a("s_branch L_s1r")
    a("L_s1y:")
    s1_body(8*EARLY)
    a("L_s1r:")
    stamp(2)
    s1red = S1RED
    a(f"v_lshlrev_b32 v13, 9, v6\nv_lshl_add_u32 v13, v3, 4, v13")
    a(f"v_add_u32 v13, {S1RED_C}, v13")
    a("ds_write_b128 v13, v[100:103]\nds_write_b128 v13, v[104:107] offset:256")
    a(f"v_and_b32 v14, 31, v1\nv_lshrrev_b32 v15, 3, v14\ns_lshl_b32 s62, {SW}, 2\nv_add_u32 v15, s62, v15\nv_lshlrev_b32 v15, 4, v15")
    a("v_bfe_u32 v16, v1, 2, 1\nv_lshl_add_u32 v15, v16, 8, v15\nv_and_b32 v16, 3, v1\nv_lshl_add_u32 v15, v16, 2, v15\nv_lshrrev_b32 v16, 5, v1\nv_lshl_add_u32 v15, v16, 12, v15")
    a(f"v_add_u32 v15, {S1RED_C}, v15")
    a(f"s_lshl_b32 s62, s72, 12\ns_lshl_b32 s63, {SW}, 10\ns_add_u32 s62, s62, s63\ns_lshl_b32 s63, s73, 4\ns_add_u32 s62, s62, s63\ns_add_u32 s62, s62, {QG}\ns_add_u32 s63, s62, {QGB-QG}")
    a("v_lshrrev_b32 v17, 3, v14\nv_lshlrev_b32 v17, 7, v17\nv_bfe_u32 v12, v14, 2, 1\nv_lshl_add_u32 v17, v12, 9, v17\nv_bfe_u32 v12, v14, 1, 1\nv_lshl_add_u32 v17, v12, 3, v17")
    a("s_waitcnt lgkmcnt(0)\ns_barrier")
    for k in range(4): a(f"ds_read2st64_b32 v[{100+2*k}:{101+2*k}], v15 offset0:{4*k} offset1:{4*k+2}")
    a("v_mov_b32 v14, v17")
    a("s_waitcnt lgkmcnt(0)")
    a("v_add_f32 v100, v100, v101\nv_add_f32 v102, v102, v103\nv_add_f32 v104, v104, v105\nv_add_f32 v106, v106, v107")
    a("v_add_f32 v100, v100, v102\nv_add_f32 v104, v104, v106\nv_add_f32 v100, v100, v104")
    swap32("v_add_f32", ["v100"], ["v101"])
    a("v_mov_b32_dpp v101, v100 row_shl:1 row_mask:0xf bank_mask:0xf")
    a(f"v_cvt_pk_bf16_f32 v102, v100, v101\nv_mov_b32 v103, {TAG}")
    a("s_mov_b32 exec_lo, 0x55555555\ns_mov_b32 exec_hi, 0")
    a(f"buffer_store_dwordx2 v[102:103], v14, {S_WS}, s62 offen")
    a("s_bitcmp1_b32 s2, 7\ns_cbranch_scc0 L_Xgo")
    a(f"buffer_store_dwordx2 v[102:103], v14, {S_WS}, s63 offen sc1")
    a("s_mov_b64 exec, -1")
    a("s_branch L_Y")
    a("L_Xgo:")
    a("s_mov_b64 exec, -1")
    a("v_mov_b32 v238, v102\nv_mov_b32 v239, v103\nv_mov_b32 v237, v14\ns_mov_b32 s71, s63")

    a.c("================= X role: S2 (q_abs), S4 (ctx partial), R")
    srd(S_C, 12, 4194304)
    G1E = opt.get('g1early', 1)
    a(f"v_and_b32 v17, 7, v3\nv_lshlrev_b32 v17, 4, v17\nv_lshl_add_u32 v17, v4, 7, v17\ns_lshl_b32 s63, {SH}, 12\ns_add_u32 s63, s63, {QG}\ns_add_u32 s64, s63, {QGB-QG}")
    if G1E:
        for s in range(4):
            r = 148+8*s
            a(f"buffer_load_dwordx4 {vr(r)}, v17, {S_WS}, s63 offen offset:{1024*s} nt")
            a(f"buffer_load_dwordx4 {vr(r+4)}, v17, {S_WS}, s63 offen offset:{1024*s+512} nt")
    a(f"s_lshl_b32 s62, {SW}, 5\nv_add_u32 v13, s62, v3\nv_lshlrev_b32 v13, 8, v13\nv_xor_b32 v14, v3, v4\nv_lshl_add_u32 v13, v14, 4, v13")
    a("v_xor_b32 v14, 64, v13\nv_xor_b32 v15, 128, v13\nv_xor_b32 v16, 192, v13")
    a(f"s_waitcnt vmcnt({9 if G1E else 1})")
    for tile in range(2):
        for s in range(4):
            a(f"ds_read_b128 {vr(116+(tile*4+s)*4)}, v{13+s} offset:{WUK+4096*tile}")
    stamp(3)
    a("v_mov_b32 v13, v17")
    if G1E:
        a("s_waitcnt vmcnt(0)")
        tagcheck("v14", [f"v{148+8*s+k}" for s in range(4) for k in (1,3,5,7)])
        a("s_mov_b32 s61, 0\nv_cmp_ne_u32 vcc, 0, v14\ns_cbranch_vccz L_p1_x")
        if MASKED: a("s_and_b64 exec, exec, vcc")
    def qgb_store():
        a("s_mov_b64 s[78-2:78-1], exec" if False else "s_mov_b64 s[98:99], exec")
        a("s_mov_b32 exec_lo, 0x55555555\ns_mov_b32 exec_hi, 0")
        a(f"buffer_store_dwordx2 v[238:239], v237, {S_WS}, s71 offen sc1")
        a("s_mov_b64 exec, s[98:99]")
    poll_begin("L_p1", ("s62", "s63", "s64"))
    a("s_cmp_eq_u32 s61, 7\ns_cbranch_scc0 L_p1n")
    qgb_store()
    a("L_p1n:")
    LF = opt.get('lflag', 'nt')
    def dual_loads(name, emit):
        a(f"s_cmp_eq_u32 s75, 7\ns_cbranch_scc1 {name}_b")
        emit(LF)
        a(f"s_branch {name}_c\n{name}_b:")
        emit("sc1")
        a(f"{name}_c:")
    def g1_loads(fl):
        for s in range(4):
            r = 148+8*s
            a(f"buffer_load_dwordx4 {vr(r)}, v13, {S_WS}, s62 offen offset:{1024*s} {fl}")
            a(f"buffer_load_dwordx4 {vr(r+4)}, v13, {S_WS}, s62 offen offset:{1024*s+512} {fl}")
    dual_loads("L_p1", g1_loads)
    a("s_waitcnt vmcnt(0)")
    tagcheck("v14", [f"v{148+8*s+k}" for s in range(4) for k in (1,3,5,7)])
    poll_end("L_p1", "v14")
    a("s_cmp_gt_u32 s61, 7\ns_cbranch_scc1 L_p1m")
    qgb_store()
    a("L_p1m:")
    stamp(4)
    if opt.get('sent2', 0): sentinel(SENT2)
    for s in range(4):
        r = 148+8*s
        a(f"v_mov_b32 v{r+1}, v{r+2}\nv_mov_b32 v{r+2}, v{r+4}\nv_mov_b32 v{r+3}, v{r+6}")
    a("s_waitcnt lgkmcnt(0)")
    for s in range(4):
        for tile in range(2):
            mfma(vr(180+4*tile), vr(148+8*s), vr(116+(tile*4+s)*4), s == 0)
    a(f"s_mov_b32 s63, {f2u(SCALE):#x}")
    a("v_lshlrev_b32 v13, 2, v3\nv_lshl_add_u32 v13, v4, 6, v13\nv_cmp_eq_u32 vcc, 1, v4")
    a(f"s_lshl_b32 s62, {SR}, 9\ns_lshl_b32 s64, {SW}, 7\ns_add_u32 s62, s62, s64\ns_add_u32 s62, s62, {QA}")
    a("v_add_f32 v180, v180, v181\nv_add_f32 v184, v184, v185\nv_add_f32 v182, v182, v183\nv_add_f32 v186, v186, v187")
    a("v_add_f32 v180, v180, v182\nv_add_f32 v184, v184, v186")
    swap16("v_add_f32", ["v180", "v184"], ["v181", "v185"])
    a("v_cndmask_b32 v180, v180, v184, vcc\nv_mul_f32 v180, s63, v180")
    a("v_mov_b32_dpp v181, v180 row_shl:1 row_mask:0xf bank_mask:0xf")
    a(f"v_cvt_pk_bf16_f32 v188, v180, v181\nv_mov_b32 v189, {TAG}")
    a("s_mov_b32 exec_lo, 0x55555555\ns_mov_b32 exec_hi, 0")
    a(f"buffer_store_dwordx2 v[188:189], v13, {S_WS}, s62 offen sc1")
    a("s_mov_b64 exec, -1")
    stamp(5)
    a("v_lshrrev_b32 v15, 1, v3\nv_and_b32 v16, 1, v4\nv_lshlrev_b32 v16, 2, v16\nv_xor_b32 v15, v15, v16\nv_lshlrev_b32 v15, 5, v15\nv_and_b32 v16, 1, v0\nv_lshl_add_u32 v15, v16, 4, v15\nv_lshl_add_u32 v15, v4, 13, v15")
    a(f"s_lshl_b32 s62, {SW}, 1\ns_and_b32 s63, s62, 3\ns_lshl_b32 s63, s63, 5\nv_xor_b32 v16, s63, v15\ns_add_u32 s62, s62, 1\ns_and_b32 s63, s62, 3\ns_lshl_b32 s63, s63, 5\nv_xor_b32 v15, s63, v15")
    a(f"s_lshl_b32 s62, {SSUB}, 20\ns_lshl_b32 s63, {SH}, 8\ns_add_u32 s62, s62, s63\ns_lshl_b32 s63, {SW}, 18\ns_add_u32 s62, s62, s63")
    a(f"s_lshl_b32 s63, {SW}, 13\ns_add_u32 s63, s63, {WUV}")
    for k in range(8):
        a(f"s_mov_b32 m0, s63\ns_add_u32 s63, s63, 1024")
        a(f"buffer_load_dwordx4 {'v16' if k < 4 else 'v15'}, {S_C}, s62 offen{NT} lds")
        if k < 7: a("s_add_u32 s62, s62, 32768")
    m_coef_loads()
    tail_prefetch()
    a("s_waitcnt vmcnt(0)\ns_barrier")
    a("v_lshrrev_b32 v19, 2, v3\nv_lshl_add_u32 v19, v4, 2, v19")
    a("v_lshrrev_b32 v20, 2, v3\nv_and_b32 v21, 1, v4\nv_lshl_add_u32 v21, v21, 2, v20")
    a(f"s_lshl_b32 s62, {SW}, 1\nv_xor_b32 v21, s62, v21\nv_lshlrev_b32 v21, 5, v21")
    a("v_lshl_add_u32 v20, v20, 4, v4\nv_lshl_add_u32 v20, v20, 8, v21\nv_and_b32 v21, 3, v3\nv_lshl_add_u32 v20, v21, 3, v20\nv_xor_b32 v21, 32, v20")
    for tt in range(2):
        for j in range(4):
            for u in range(2):
                r = 60+(tt*4+j)*4+2*u; tau = 2*j+u
                a(f"ds_read_b64_tr_b16 v[{r}:{r+1}], {'v20' if tt==0 else 'v21'} offset:{WUV+16384*(tau>>2)+1024*(tau&3)}")
    m_coef_unpack()
    a("v_lshlrev_b32 v22, 4, v0\nv_and_b32 v23, 31, v1\nv_lshlrev_b32 v23, 9, v23")
    a(f"s_lshl_b32 s62, {SR}, 14\ns_add_u32 s66, s62, {OP}\ns_add_u32 s67, s66, 4096\ns_add_u32 s68, s66, 8192\ns_add_u32 s69, s66, 12288")
    a(f"s_lshr_b32 s62, {SH}, 3\ns_lshl_b32 s62, s62, 7\ns_and_b32 s63, {SH}, 7\ns_lshl_b32 s63, s63, 4\ns_add_u32 s62, s62, s63\ns_add_u32 s70, s62, {ST}")
    a(f"v_lshrrev_b32 v24, 5, v0\nv_mul_u32_u24 v24, 288, v24\nv_and_b32 v25, 31, v0\nv_lshl_add_u32 v24, v25, 3, v24\nv_add_u32 v24, {OS}, v24")
    a(f"s_lshl_b32 s62, {SW}, 7\ns_add_u32 s71, s62, {WX}\nv_and_b32 v25, 31, v1\nv_lshlrev_b32 v25, 2, v25\nv_add_u32 v25, s71, v25")
    a(f"v_lshlrev_b32 v27, 4, v4\nv_add_u32 v27, s71, v27")
    a(f"v_mul_u32_u24 v28, 288, v19\nv_and_b32 v29, 3, v3\nv_lshl_add_u32 v28, v29, 3, v28\nv_add_u32 v28, {OS}, v28")
    a(f"s_lshl_b32 s72, {SH}, 11\ns_lshl_b32 s63, {SW}, 9\ns_add_u32 s72, s72, s63\ns_lshl_b32 s63, {SSUB}, 4\ns_add_u32 s72, s72, s63\ns_add_u32 s72, s72, {CP}\ns_add_u32 s73, s72, {CPB-CP}")
    a("v_lshrrev_b32 v30, 2, v3\nv_lshlrev_b32 v30, 6, v30\nv_bfe_u32 v14, v3, 1, 1\nv_lshl_add_u32 v30, v14, 3, v30\nv_lshl_add_u32 v30, v4, 8, v30\nv_cmp_eq_u32 s[8:9], 1, v4")
    stamp(6)
    a("s_mov_b32 exec_hi, 0")
    poll_begin("L_p3a")
    a(f"buffer_load_dwordx4 v[116:119], v23, {S_WS}, s70 offen sc1")
    a("s_waitcnt vmcnt(0)")
    tagcheck("v14", ["v117", "v119"])
    poll_end("L_p3a", "v14")
    for i in range(4):
        a(f"buffer_load_dwordx4 {vr(100+4*i)}, v22, {S_WS}, s{66+i} offen sc1")
    a("v_mov_b32 v120, v116")
    row_allreduce("v_max_f32", ["v120"]); swap16("v_max_f32", ["v120"], ["v121"])
    a("v_sub_f32 v116, v116, v120\nv_exp_f32 v116, v116\nv_mul_f32 v118, v116, v118")
    row_allreduce("v_add_f32", ["v118"]); swap16("v_add_f32", ["v118"], ["v121"])
    a("v_rcp_f32 v118, v118\nv_mul_f32 v116, v116, v118")
    a("s_mov_b32 exec_hi, 0\nds_write_b32 v25, v116\ns_mov_b64 exec, -1")
    a("ds_read_b128 v[120:123], v27\nds_read_b128 v[124:127], v27 offset:64")
    a("s_waitcnt vmcnt(0)")
    tagcheck("v14", [f"v{100+4*i+k}" for i in range(4) for k in (1,3)])
    a("v_cmp_ne_u32 vcc, 0, v14\ns_cbranch_vccz L_p3b_x")
    if MASKED: a("s_and_b64 exec, exec, vcc")
    poll_begin("L_p3b")
    for i in range(4):
        a(f"buffer_load_dwordx4 {vr(100+4*i)}, v22, {S_WS}, s{66+i} offen sc1")
    a("s_waitcnt vmcnt(0)")
    tagcheck("v14", [f"v{100+4*i+k}" for i in range(4) for k in (1,3)])
    poll_end("L_p3b", "v14")
    stamp(7)
    for i in range(4):
        a(f"v_mov_b32 v{101+4*i}, v{102+4*i}\nds_write_b64 v24, v[{100+4*i}:{101+4*i}] offset:{2304*i}")
    a("s_waitcnt lgkmcnt(0)\ns_barrier")
    for t in range(8):
        for u in range(2):
            r = 132+4*t+2*u
            a(f"ds_read_b64_tr_b16 v[{r}:{r+1}], v28 offset:{4608*u+32*t}")
    a("v_cvt_pk_bf16_f32 v128, v120, v121\nv_cvt_pk_bf16_f32 v129, v122, v123\nv_cvt_pk_bf16_f32 v130, v124, v125\nv_cvt_pk_bf16_f32 v131, v126, v127")
    for t in range(8):
        a(f"s_waitcnt lgkmcnt({14-2*t})")
        mfma(vr(164+4*t), vr(132+4*t), vr(128), True)
    for j in range(4):
        d0 = 164+8*j; o = 100+4*j
        a(f"v_cvt_pk_bf16_f32 v{o}, v{d0}, v{d0+1}\nv_cvt_pk_bf16_f32 v{o+1}, v{d0+2}, v{d0+3}\nv_cvt_pk_bf16_f32 v{o+2}, v{d0+4}, v{d0+5}\nv_cvt_pk_bf16_f32 v{o+3}, v{d0+6}, v{d0+7}")
    for j in range(4):
        for tt in range(2):
            mfma(vr(116+4*tt), vr(100+4*j), vr(60+(tt*4+j)*4), j == 0)
    a("v_cndmask_b32 v116, v116, v120, s[8:9]")
    a("v_mov_b32_dpp v117, v116 row_shl:1 row_mask:0xf bank_mask:0xf")
    a(f"v_cvt_pk_bf16_f32 v118, v116, v117\nv_mov_b32 v119, {TAG}")
    a("s_mov_b32 exec_lo, 0x55555555\ns_mov_b32 exec_hi, 0")
    a(f"buffer_store_dwordx2 v[118:119], v30, {S_WS}, s72 offen")
    a(f"buffer_store_dwordx2 v[118:119], v30, {S_WS}, s73 offen sc1")
    a("s_mov_b64 exec, -1")
    stamp(8)
    a(f"s_cmp_eq_u32 {SW}, 0\ns_cbranch_scc1 L_U\ns_cmp_eq_u32 {SW}, 1\ns_cbranch_scc0 L_M\ns_cmp_lt_u32 s2, 32\ns_cbranch_scc1 L_U\ns_branch L_M")

    a.c("================= Y role: S3 (attention), S5 (out partial)")
    a("L_Y:")
    a("v_lshlrev_b32 v5, 4, v1")
    YD = 0
    for q in range(EARLY, 4): ckv_group(q)
    stamp(1)
    srd(S_B, 14, 5242880)
    PWY = 1 if opt.get('prewarm', 1) else 0
    if PWY:
        a(f"v_and_b32 v253, 3, v3\nv_lshlrev_b32 v253, 7, v253\ns_lshl_b32 s62, {SR}, 9\ns_add_u32 s62, s62, {CP}")
        a(f"buffer_load_dword v252, v253, {S_WS}, s62 offen nt")
    a(f"s_lshl_b32 s62, {SW}, 5\nv_add_u32 v6, s62, v3\nv_mul_u32_u24 v6, {CKV_STRIDE}, v6\nv_lshl_add_u32 v6, v4, 4, v6")
    a("v_lshrrev_b32 v19, 2, v3\nv_lshl_add_u32 v19, v4, 2, v19")
    a(f"v_mul_u32_u24 v7, {CKV_STRIDE}, v19\nv_and_b32 v8, 3, v3\nv_lshl_add_u32 v7, v8, 3, v7\ns_lshl_b32 s62, {SW}, 8\nv_add_u32 v7, s62, v7\nv_add_u32 v8, {64*CKV_STRIDE}, v7")
    a("v_lshlrev_b32 v22, 4, v0")
    a(f"s_lshl_b32 s62, {SSUB}, 14\ns_add_u32 s66, s62, {QA}\ns_add_u32 s67, s66, 4096\ns_add_u32 s68, s66, 8192\ns_add_u32 s69, s66, 12288")
    a(f"v_lshrrev_b32 v24, 7, v0\nv_mul_u32_u24 v24, {CKV_STRIDE}, v24\nv_and_b32 v25, 127, v0\nv_lshl_add_u32 v24, v25, 3, v24\nv_add_u32 v24, {QS}, v24")
    a(f"v_and_b32 v25, 7, v3\nv_mul_u32_u24 v25, {CKV_STRIDE}, v25\nv_lshl_add_u32 v25, v4, 4, v25\nv_add_u32 v25, {QS}, v25")
    a(f"s_lshl_b32 s62, {SW}, 2\ns_add_u32 s62, s62, {MX}\nv_lshlrev_b32 v26, 4, v3\nv_add_u32 v27, s62, v26\nv_add_u32 v28, {MX}, v26")
    a(f"s_lshl_b32 s62, {SW}, 10\ns_add_u32 s62, s62, {PX}\nv_add_u32 v29, s62, v5\nv_add_u32 v31, {PX}, v5")
    for k in range(4): a(f"v_mov_b32 v{184+k}, 0x3f803f80")
    a("v_and_b32 v21, 1, v3\nv_cmp_eq_u32 s[8:9], 1, v21\nv_and_b32 v21, 2, v3\nv_cmp_eq_u32 s[10:11], 2, v21")
    a("v_and_b32 v30, 1, v4\nv_lshlrev_b32 v30, 18, v30\nv_lshl_add_u32 v30, v3, 4, v30\nv_lshrrev_b32 v21, 1, v4\nv_lshl_add_u32 v30, v21, 8, v30\nv_cmp_eq_u32 s[12:13], 1, v21")
    a(f"s_lshl_b32 s73, {SSUB}, 19\ns_lshl_b32 s63, {SW}, 14\ns_add_u32 s73, s73, s63\ns_lshl_b32 s63, {SH}, 9\ns_add_u32 s73, s73, s63\ns_add_u32 s73, s73, {OP}")
    a(f"s_lshl_b32 s72, {SR}, 7\ns_add_u32 s72, s72, {ST}")
    a(f"s_waitcnt vmcnt({PWY})")
    stamp(2)
    for tile in range(2):
        for s in range(16):
            a(f"ds_read_b128 {ar((tile*16+s)*4)}, v6 offset:{tile*16*CKV_STRIDE+64*s}")
    stamp(3)
    if opt.get('sent2', 0):
        poll_begin("L_p2a")
        a(f"buffer_load_dword v100, v23, {S_WS}, s70 offen sc1")
        a("s_waitcnt vmcnt(0)")
        tagcheck("v14", ["v100"])
        poll_end("L_p2a", "v14")
    poll_begin("L_p2")
    for i in range(4):
        a(f"buffer_load_dwordx4 {vr(100+4*i)}, v22, {S_WS}, s{66+i} offen sc1")
    a("s_waitcnt vmcnt(0)")
    tagcheck("v14", [f"v{100+4*i+k}" for i in range(4) for k in (1,3)])
    poll_end("L_p2", "v14")
    stamp(4)
    for i in range(4):
        a(f"v_mov_b32 v{101+4*i}, v{102+4*i}\nds_write_b64 v24, v[{100+4*i}:{101+4*i}] offset:{2*CKV_STRIDE*i}")
    a("s_waitcnt lgkmcnt(0)\ns_barrier")
    for s in range(16):
        a(f"ds_read_b128 {vr(32+4*s)}, v25 offset:{64*s}")
    wo_n = [0]
    a(f"s_mul_i32 s71, {SR}, 40960")
    def wo_load():
        i = wo_n[0]; wo_n[0] += 1
        a(f"buffer_load_dwordx4 {vr(192+4*i)}, v22, {S_B}, s71 offen{NT}\ns_add_u32 s71, s71, 4096")
    pv = []
    for t in range(8):
        for j in range(4):
            for u in range(2):
                r = 128+(t*4+j)*4+2*u
                pv.append(f"ds_read_b64_tr_b16 a[{r}:{r+1}], {'v7' if j < 2 else 'v8'} offset:{(32*(j&1)+16*u)*CKV_STRIDE+32*t}")
    for s in range(16):
        if s < 4: a(f"s_waitcnt lgkmcnt({12-4*s})")
        for tile in range(2):
            sidx = s
            mfma(vr(100+4*tile), ar((tile*16+s)*4), vr(32+4*s), s == 0)
            if s >= 3:
                for _ in range(3 if pv else 0):
                    if pv: a(pv.pop(0))
            if tile == 1 and s in (2, 5, 8, 11, 14): wo_load()
    while pv: a(pv.pop(0))
    stamp(5)
    a("v_max3_f32 v108, v100, v101, v102\nv_max3_f32 v109, v103, v104, v105\nv_max3_f32 v108, v108, v106, v107\nv_max_f32 v108, v108, v109")
    swap16("v_max_f32", ["v108"], ["v109"]); swap32("v_max_f32", ["v108"], ["v109"])
    a("ds_write_b32 v27, v108")
    a("s_waitcnt lgkmcnt(0)\ns_barrier")
    a(f"ds_read_b128 v[108:111], v28\ns_waitcnt lgkmcnt(0)")
    a("v_max3_f32 v108, v108, v109, v110\nv_max_f32 v108, v108, v111")
    for k in range(8): a(f"v_sub_f32 v{100+k}, v{100+k}, v108")
    for k in range(8): a(f"v_exp_f32 v{100+k}, v{100+k}")
    a("v_cvt_pk_bf16_f32 v112, v100, v101\nv_cvt_pk_bf16_f32 v113, v102, v103\nv_cvt_pk_bf16_f32 v114, v104, v105\nv_cvt_pk_bf16_f32 v115, v106, v107")
    a("ds_write_b128 v29, v[112:115]")
    a("s_waitcnt lgkmcnt(0)\ns_barrier")
    for j in range(4): a(f"ds_read_b128 {vr(32+4*j)}, v31 offset:{1024*j}")
    for j in range(4):
        a(f"s_waitcnt lgkmcnt({3-j})")
        mfma(vr(188), vr(32+4*j), vr(184), j == 0)
        for t in range(8):
            mfma(vr(120+4*t), vr(32+4*j), ar(128+(t*4+j)*4), j == 0)
            if (j*8+t) in (3, 9, 15, 21, 27): wo_load()
    a(f"s_cmp_eq_u32 {SW}, 0\ns_cbranch_scc0 L_Y_nostat")
    a("v_cndmask_b32 v110, v188, v189, s[8:9]\nv_cndmask_b32 v111, v190, v191, s[8:9]\nv_cndmask_b32 v110, v110, v111, s[10:11]")
    a(f"v_mov_b32 v109, {TAG}\nv_mov_b32 v111, {TAG}")
    a("s_mov_b64 exec, 0x00f0000f")
    a(f"buffer_store_dwordx4 v[108:111], v26, {S_WS}, s72 offen sc1")
    a("s_mov_b64 exec, -1\nL_Y_nostat:")
    for r in range(4):
        o = 160+4*r
        for e in range(4): a(f"v_cndmask_b32 v{120+4*e+r}, v{120+4*e+r}, v{136+4*e+r}, s[12:13]")
        a(f"v_cvt_pk_bf16_f32 v{o}, v{120+r}, v{124+r}\nv_mov_b32 v{o+1}, {TAG}\nv_cvt_pk_bf16_f32 v{o+2}, v{128+r}, v{132+r}\nv_mov_b32 v{o+3}, {TAG}")
        a(f"buffer_store_dwordx4 {vr(o)}, v30, {S_WS}, s73 offen sc1")
        if r < 3: a("s_add_u32 s73, s73, 65536")
    stamp(6)
    assert wo_n[0] == 10
    a("s_mov_b32 s63, 52429")
    for i in range(10):
        a(f"v_add_u32 v9, {256*i}, v0\nv_mul_u32_u24 v10, s63, v9\nv_lshrrev_b32 v10, 22, v10\nv_lshlrev_b32 v10, 5, v10\nv_lshl_add_u32 v{232+i}, v9, 4, v10")
    a(f"v_mul_u32_u24 v7, {WO_STRIDE}, v19\nv_and_b32 v8, 3, v3\nv_lshl_add_u32 v7, v8, 3, v7\ns_mul_i32 s62, {SW}, 320\nv_add_u32 v7, s62, v7")
    a("s_waitcnt vmcnt(4)")
    for i in range(10):
        a(f"ds_write_b128 v{232+i}, {vr(192+4*i)}")
    a("s_waitcnt lgkmcnt(0)\ns_barrier")
    for tile in range(10):
        for u in range(2):
            r = 32+4*tile+2*u
            a(f"ds_read_b64_tr_b16 v[{r}:{r+1}], v7 offset:{16*WO_STRIDE*u+32*tile}")
    m_coef_loads()
    tail_prefetch(False)
    a("s_waitcnt vmcnt(0)")
    m_coef_unpack()
    a(f"v_and_b32 v13, 3, v3\nv_lshlrev_b32 v13, 4, v13\nv_lshl_add_u32 v13, v4, 6, v13\ns_lshl_b32 s68, {SR}, 9\ns_add_u32 s68, s68, {CP}\ns_add_u32 s69, s68, {CPB-CP}")
    a(f"s_mul_i32 s62, {SR}, 2560\ns_mul_i32 s63, {SW}, 640\ns_add_u32 s62, s62, s63\ns_add_u32 s67, s62, {OUTP}")
    a("v_lshlrev_b32 v12, 2, v3\nv_lshl_add_u32 v12, v4, 6, v12")
    a("s_waitcnt lgkmcnt(0)")
    stamp(7)
    poll_begin("L_p4", ("s66", "s68", "s69"))
    dual_loads("L_p4", lambda fl: a(f"buffer_load_dwordx4 v[100:103], v13, {S_WS}, s66 offen {fl}\nbuffer_load_dwordx4 v[104:107], v13, {S_WS}, s66 offen offset:256 {fl}"))
    a("s_waitcnt vmcnt(0)")
    tagcheck("v14", ["v101","v103","v105","v107"])
    poll_end("L_p4", "v14")
    stamp(8)
    if opt.get('sent5', 0): sentinel(SENT5)
    a("v_mov_b32 v101, v102\nv_mov_b32 v102, v104\nv_mov_b32 v103, v106\nv_cmp_eq_u32 vcc, 1, v4")
    for tile in range(10):
        mfma(vr(120+4*tile), vr(100), vr(32+4*tile), True)
    for tile in range(10):
        d = 120+4*tile
        a(f"v_add_f32 v{d}, v{d}, v{d+1}\nv_add_f32 v{d+2}, v{d+2}, v{d+3}")
    for tile in range(10):
        d = 120+4*tile
        a(f"v_add_f32 v{d}, v{d}, v{d+2}")
    for k in range(5):
        d = 120+8*k
        a(f"v_cndmask_b32 v{d}, v{d}, v{d+4}, vcc")
    for k in range(5):
        d = 120+8*k
        a(f"v_mov_b32_dpp v{d+1}, v{d} row_shl:1 row_mask:0xf bank_mask:0xf")
    for k in range(5):
        d = 120+8*k
        a(f"v_cvt_pk_bf16_f32 v{d+2}, v{d}, v{d+1}\nv_mov_b32 v{d+3}, {TAG}")
    a("s_mov_b32 exec_lo, 0x55555555\ns_mov_b32 exec_hi, 0")
    for k in range(5):
        d = 120+8*k
        a(f"buffer_store_dwordx2 v[{d+2}:{d+3}], v12, {S_WS}, s67 offen offset:{128*k}")
    a(f"s_add_u32 s67, s67, {OUTPB-OUTP}")
    for k in range(5):
        d = 120+8*k
        a(f"buffer_store_dwordx2 v[{d+2}:{d+3}], v12, {S_WS}, s67 offen offset:{128*k} sc1")
    a("s_mov_b64 exec, -1")

    a.c("================= U: workgroups with idx < 20, wave 0")
    a("s_branch L_M")
    a("L_U:")
    a(f"s_add_u32 s68, s101, {OUTPB-OUTP}")
    poll_begin("L_p5", ("s66", "s101", "s68"))
    a(f"s_add_u32 s67, s66, {8*2560}")
    dual_loads("L_p5", lambda fl: a(f"buffer_load_dwordx4 v[100:103], v248, {S_WS}, s66 offen {fl}\nbuffer_load_dwordx4 v[104:107], v248, {S_WS}, s67 offen {fl}"))
    a("s_waitcnt vmcnt(0)")
    tagcheck("v14", ["v101", "v103", "v105", "v107"])
    poll_end("L_p5", "v14")
    a("s_mov_b32 s63, 0xffff0000")
    for k, s_ in enumerate((100, 102, 104, 106)):
        a(f"v_lshlrev_b32 v{108+2*k}, 16, v{s_}\nv_and_b32 v{109+2*k}, s63, v{s_}")
    a("v_pk_add_f32 v[108:109], v[108:109], v[112:113]\nv_pk_add_f32 v[110:111], v[110:111], v[114:115]")
    for k in range(4): a(f"v_add_f32_dpp v{108+k}, v{108+k}, v{108+k} row_ror:8 row_mask:0xf bank_mask:0xf")
    vs = [f"v{108+k}" for k in range(4)]; ts = [f"v{112+k}" for k in range(4)]
    swap16("v_add_f32", vs, ts); swap32("v_add_f32", vs, ts)
    a(f"v_cvt_pk_bf16_f32 v100, v108, v109\nv_mov_b32 v101, {TAG}\nv_cvt_pk_bf16_f32 v102, v110, v111\nv_mov_b32 v103, {TAG}")
    a(f"s_and_b32 s62, s2, 7\ns_mul_i32 s62, s62, 2560\ns_lshl_b32 s63, s74, 7\ns_add_u32 s62, s62, s63\ns_add_u32 s62, s62, {XP}")
    a("v_lshlrev_b32 v13, 4, v1\ns_mov_b64 exec, 0xff")
    a(f"buffer_store_dwordx4 v[100:103], v13, {S_WS}, s62 offen sc1")
    if opt.get('gate', 1):
        a(f"s_and_b32 s62, s2, 7\ns_lshl_b32 s62, s62, 7\ns_lshl_b32 s63, s74, 2\ns_add_u32 s62, s62, s63\ns_add_u32 s62, s62, {UF}\ns_mov_b64 exec, 1")
        a(f"buffer_store_dword v101, v18, {S_WS}, s62 offen")
    a("s_mov_b64 exec, -1")

    a.c("================= M stage")
    a("L_M:")
    a("s_mul_i32 s64, s2, 3\ns_cmp_ge_u32 s64, 640\ns_cbranch_scc1 L_fin")
    a(f"v_mov_b32 v144, {f2u(C0):#x}\nv_mov_b32 v145, {f2u(C0):#x}")
    for k in range(3): a(f"v_mov_b32 v{146+2*k}, 0\nv_mov_b32 v{147+2*k}, 0")
    a(f"v_add_u32 v15, s64, v1\nv_min_u32 v15, 639, v15\nv_lshlrev_b32 v15, 2, v15\nv_add_u32 v15, {HB}, v15")
    a("v_mov_b32 v132, 0\nv_mov_b32 v133, 0")
    a(f"s_cmp_eq_u32 {SW}, 3\ns_cbranch_scc1 L_M_wait")
    a(f"v_lshlrev_b32 v13, 4, v0\ns_mov_b32 s66, {XP}\ns_mov_b32 s67, {XP+5120}\ns_mov_b32 s68, {XP+10240}\ns_mov_b32 s69, {XP+15360}")
    a("s_mov_b32 s63, 0xffff0000")
    a("v_lshlrev_b32 v136, 16, v246\nv_and_b32 v137, s63, v246\nv_lshlrev_b32 v138, 16, v247\nv_and_b32 v139, s63, v247")
    a(f"s_cmp_eq_u32 {SW}, 2\ns_cselect_b32 s72, 0, -1\ns_mov_b32 exec_hi, s72")
    stamp(9)
    if opt.get('gate', 1):
        a(f"s_mov_b64 s[98:99], exec\ns_mov_b64 exec, 0xfffff\ns_and_b32 s62, s2, 7\ns_lshl_b32 s62, s62, 7\ns_add_u32 s62, s62, {UF}\nv_lshlrev_b32 v14, 2, v1\nv_mov_b32 v16, v14\ns_mov_b32 s61, 0")
        a("L_g6:")
        a(f"buffer_load_dword v100, v16, {S_WS}, s62 offen nt\ns_waitcnt vmcnt(0)")
        a(f"v_cmp_ne_u32 vcc, {TAG}, v100\ns_add_u32 s61, s61, 1\ns_cmp_gt_u32 s61, {opt.get('gatemax', 24)}\ns_cbranch_scc1 L_g6x\ns_cbranch_vccnz L_g6")
        a("L_g6x:\ns_mov_b64 exec, s[98:99]")
    poll_begin("L_p6")
    for xx in range(8):
        a(f"buffer_load_dwordx4 {vr(100+4*xx)}, v13, {S_WS}, s{66+(xx>>1)} offen offset:{2560*(xx&1)} sc1")
    a("s_waitcnt vmcnt(0)")
    tagcheck("v14", [f"v{100+4*xx+k}" for xx in range(8) for k in (1,3)])
    poll_end("L_p6", "v14")
    a("s_mov_b32 exec_hi, s72")
    stamp(10)
    for xx in range(8):
        b = 100+4*xx
        a(f"v_lshlrev_b32 v140, 16, v{b}\nv_and_b32 v141, s63, v{b}\nv_lshlrev_b32 v142, 16, v{b+2}\nv_and_b32 v143, s63, v{b+2}")
        a("v_pk_add_f32 v[136:137], v[136:137], v[140:141]\nv_pk_add_f32 v[138:139], v[138:139], v[142:143]")
    a("v_cvt_pk_bf16_f32 v140, v136, v137\nv_cvt_pk_bf16_f32 v141, v138, v139")
    a("v_lshlrev_b32 v136, 16, v140\nv_and_b32 v137, s63, v140\nv_lshlrev_b32 v138, 16, v141\nv_and_b32 v139, s63, v141")
    a(f"v_add_u32 v16, {HB}, v13\nds_write_b128 v16, v[136:139]")
    for k in range(4): a(f"v_subrev_f32 v{140+k}, s3, v{136+k}")
    a("v_add_f32 v132, v140, v141\nv_mul_f32 v133, v140, v140\nv_add_f32 v134, v142, v143\nv_fmac_f32 v133, v141, v141\nv_add_f32 v132, v132, v134\nv_fmac_f32 v133, v142, v142\nv_fmac_f32 v133, v143, v143")
    a("s_mov_b64 exec, -1")
    wave_allreduce("v_add_f32", ["v132", "v133"], ["v134", "v135"])
    a(f"s_lshl_b32 s62, {SW}, 3\ns_add_u32 s62, s62, {SB}\nv_mov_b32 v16, s62\ns_mov_b64 exec, 1\nds_write_b64 v16, v[132:133]\ns_mov_b64 exec, -1")
    a(f"s_or_b32 s62, s2, {SW}\ns_cmp_eq_u32 s62, 0\ns_cbranch_scc0 L_noep")
    a(f"v_mov_b32 v16, {TAG}\ns_mov_b64 exec, 1\nbuffer_store_dword v16, v18, {S_WS}, 0 offen sc1\ns_mov_b64 exec, -1")
    a("L_noep:")
    a("s_waitcnt lgkmcnt(0)")
    a("L_M_wait:")
    a("s_barrier")
    a(f"v_mov_b32 v16, {SB}\nds_read_b128 v[120:123], v16\nds_read_b64 v[124:125], v16 offset:16\nds_read_b32 v136, v15\ns_mov_b32 s62, {f2u(1.0/640):#x}\ns_waitcnt lgkmcnt(0)")
    a("v_add_f32 v130, v120, v122\nv_add_f32 v132, v121, v123\nv_add_f32 v130, v130, v124\nv_add_f32 v132, v132, v125")
    a("v_mul_f32 v130, s62, v130\nv_mul_f32 v132, s62, v132")
    a("v_fma_f32 v132, -v130, v130, v132")
    a("v_add_f32 v130, s3, v130")
    a(f"v_add_f32 v133, {f2u(EPS):#x}, v132\nv_rsq_f32 v133, v133")
    a("v_sub_f32 v140, v136, v130")
    a("v_mul_f32 v134, v133, v133\nv_mul_f32 v134, v134, v132")
    a(f"v_add_f32 v134, {f2u(EPS):#x}, v134\nv_rsq_f32 v134, v134\nv_mul_f32 v140, v140, v133\ns_mov_b32 s62, {f2u(C1):#x}\nv_mul_f32 v140, v140, v134")
    for k in range(3):
        a(f"v_readlane_b32 s{70+2*k}, v140, {k}")
    for k in range(3):
        t = f"s[{70+2*k}:{71+2*k}]"
        U = lambda i: f"v[{152+2*i}:{153+2*i}]"
        Z = lambda i: f"v[{160+2*i}:{161+2*i}]"
        for i in range(4): a(f"v_pk_fma_f32 {U(i)}, v[{210+2*i}:{211+2*i}], {t}, v[{218+2*i}:{219+2*i}] op_sel_hi:[1,0,1]")
        for i in range(4): a(f"v_pk_mul_f32 {Z(i)}, {U(i)}, {U(i)}")
        for i in range(4): a(f"v_pk_fma_f32 {Z(i)}, {Z(i)}, s[62:63], v[144:145] op_sel_hi:[1,0,1]")
        for i in range(4): a(f"v_pk_mul_f32 {Z(i)}, {Z(i)}, {U(i)}")
        for i in range(4): a(f"v_exp_f32 v{160+2*i}, v{160+2*i}\nv_exp_f32 v{161+2*i}, v{161+2*i}")
        for i in range(4): a(f"v_pk_mul_f32 {U(i)}, {U(i)}, v[{226+2*i}:{227+2*i}]")
        for i in range(4): a(f"v_pk_add_f32 {Z(i)}, {Z(i)}, 1.0 op_sel_hi:[1,0]")
        for i in range(4): a(f"v_rcp_f32 v{160+2*i}, v{160+2*i}\nv_rcp_f32 v{161+2*i}, v{161+2*i}")
        for i in range(4): a(f"v_pk_fma_f32 v[{146+2*k}:{147+2*k}], {U(i)}, {Z(i)}, v[{146+2*k}:{147+2*k}]")
    for k in range(3): a(f"v_add_f32 v{146+2*k}, v{146+2*k}, v{147+2*k}")
    wave_allreduce("v_add_f32", ["v146","v148","v150"], ["v147","v149","v151"])
    a(f"s_lshl_b32 s62, {SW}, 4\ns_add_u32 s62, s62, {MRED}\nv_mov_b32 v15, s62\nv_mov_b32 v147, v148\nv_mov_b32 v148, v150")
    a("s_mov_b64 exec, 1\nds_write_b96 v15, v[146:148]\ns_mov_b64 exec, -1")
    a("s_waitcnt lgkmcnt(0)\ns_barrier")
    a(f"s_cmp_eq_u32 {SW}, 0\ns_cbranch_scc0 L_fin")
    a(f"v_lshlrev_b32 v15, 2, v1\nv_add_u32 v15, {MRED}, v15")
    a("ds_read_b32 v100, v15\nds_read_b32 v101, v15 offset:16\nds_read_b32 v102, v15 offset:32\nds_read_b32 v103, v15 offset:48")
    srd(S_T, 26, 1280)
    a("v_add_u32 v15, s64, v1\nv_lshlrev_b32 v16, 1, v15")
    a("v_add_f32 v136, v136, v208")
    a("s_waitcnt lgkmcnt(0)")
    a("v_add_f32 v100, v100, v101\nv_add_f32 v102, v102, v103\nv_add_f32 v100, v100, v102\nv_add_f32 v100, v100, v136")
    a("v_cvt_pk_bf16_f32 v100, v100, v100")
    a("v_cmp_gt_u32 vcc, 640, v15\ns_and_b64 exec, vcc, 7")
    a("s_cbranch_execz L_fin")
    a(f"buffer_store_short v100, v16, {S_T}, 0 offen")
    a("L_fin:")
    if opt.get('pin'):
        a(f"s_waitcnt lgkmcnt(0)\ns_add_u32 s76, s76, {opt['pin']}")
        a("L_pin:\ns_memrealtime s[78:79]\ns_waitcnt lgkmcnt(0)\ns_sub_u32 s80, s78, s76\ns_cmp_lt_i32 s80, 0\ns_cbranch_scc1 L_pin")
    if profile:
        stamp(11)
        a("s_mov_b64 exec, -1\ns_waitcnt lgkmcnt(0)")
        a(f"s_lshl_b32 s62, s2, 2\ns_add_u32 s62, s62, {SW}\ns_lshl_b32 s62, s62, 6\ns_add_u32 s62, s62, {TS}")
        a("v_mov_b32 v18, 0\ns_mov_b64 exec, 1")
        for k in range(12):
            a(f"v_mov_b32 v15, s{76+2*k}\nbuffer_store_dword v15, v18, {S_WS}, s62 offen offset:{4*k}")
        a(f"v_mov_b32 v15, s100\nbuffer_store_dword v15, v18, {S_WS}, s62 offen offset:48")
        a(f"s_getreg_b32 s100, hwreg(HW_REG_XCC_ID)\nv_mov_b32 v15, s100\nbuffer_store_dword v15, v18, {S_WS}, s62 offen offset:52")
        a(f"s_getreg_b32 s100, hwreg(HW_REG_HW_ID)\nv_mov_b32 v15, s100\nbuffer_store_dword v15, v18, {S_WS}, s62 offen offset:56")
    a("L_end:")
    a("s_endpgm")
    a("L_code_end:")
    a(f".set CODE_BYTES, L_code_end - {NAME}")
    a('.section .rodata,"a"\n.p2align 6')
    a(f".amdhsa_kernel {NAME}")
    a("  .amdhsa_next_free_vgpr 512\n  .amdhsa_next_free_sgpr 102\n  .amdhsa_accum_offset 256\n  .amdhsa_group_segment_fixed_size 0\n  .amdhsa_kernarg_size 112\n  .amdhsa_user_sgpr_count 2\n  .amdhsa_user_sgpr_kernarg_segment_ptr 1\n  .amdhsa_system_sgpr_workgroup_id_x 1")
    a(".end_amdhsa_kernel")
    n = a.hazard_pass()
    return a.text(), n

LAYOUT = dict(QG=QG, QA=QA, ST=ST, CP=CP, HG=HG, OUTP=OUTP, OP=OP, TS=TS, XP=XP)
if __name__ == "__main__":
    prof = "prof" in sys.argv[2:]
    opt = {}
    for x in sys.argv[2:]:
        if '=' in x:
            k, v = x.split('='); opt[k] = int(v) if v.lstrip('-').isdigit() else v
    txt, n = gen(profile=prof, opt=opt)
    open(sys.argv[1], "w").write(txt)
    print("auto nops:", n, "lines:", txt.count("\n"), LAYOUT)
```

```python
import sys, math, struct
from asmlib import Asm

NAME = "sequential_preLN__compressed_kv_cla__mixer_token_mlp__decode_kernel"
HEADER = open('sequential_preLN__compressed_kv_cla__mixer_token_mlp__decode.s.ref').read().split('; Override')[0]

def f2u(x): return struct.unpack('<I', struct.pack('<f', x))[0]

QG   = 4096
QA   = QG + 131072
ST   = QA + 65536
CP   = ST + 16384
HG   = CP + 65536
SENT2 = HG + 4096
SENT5 = SENT2 + 16384
QGB  = SENT5 + 16384
CPB  = QGB + 131072
OUTP = CPB + 65536
OUTPB = OUTP + 128*2560
XP   = OUTPB + 128*2560
UF   = XP + 8*2560
OP   = 2 << 20
TS   = 4 << 20
assert UF + 8*128 <= OP
WS_SIZE = 5 << 20
CKV_STRIDE = 1056
QS = 135168; PX = 143616; MX = 147712; LX = 147968; MRED = 148224; MB = 148288
WUK = 0; WUV = 32768; OS = 65536; S1RED = 74752; WX = 82944; RRED = 83456
S1RED_C = 135168
LDS_BYTES = 148480
WO_STRIDE = 1312
HB = PX; SB = MB

SCALE = (128 ** -0.5) * math.log2(math.e)
C0 = -2.0 * math.sqrt(2.0 / math.pi) * math.log2(math.e)
C1 = C0 * 0.044715
EPS = 1e-5

S_WS, S_X, S_A, S_B, S_C, S_T = 's[32:35]', 's[36:39]', 's[40:43]', 's[44:47]', 's[48:51]', 's[52:55]'
TAG, SW, SR, SH, SSUB = 's56', 's57', 's58', 's59', 's60'

def gen(profile=False, spin_limit=400000, opt=None):
    opt = opt or {}
    WARM = opt.get('warm', 1)
    STPOS = opt.get('stpos', 1)
    a = Asm()
    NT = " nt" if opt.get('nt', 0) else ""
    LF = opt.get('lflag', 'nt')
    BP = opt.get('bper', 32) - 1
    SMASK = opt.get('smask', 0xfff)
    def stamp(k):
        if profile and (SMASK >> k) & 1:
            assert k < 12
            a(f"s_memrealtime s[{76+2*k}:{77+2*k}]")
    def srd(dst, ptr, size):
        d = int(dst[2:dst.index(':')])
        a(f"s_mov_b32 s{d}, s{ptr}\ns_mov_b32 s{d+1}, s{ptr+1}\ns_mov_b32 s{d+2}, {size}\ns_mov_b32 s{d+3}, 0x00020000")
    DPPS = ("quad_perm:[1,0,3,2]", "quad_perm:[2,3,0,1]", "row_half_mirror", "row_mirror")
    def row_allreduce(op, vs):
        for m in DPPS:
            for v in vs: a(f"{op}_dpp {v}, {v}, {v} {m} row_mask:0xf bank_mask:0xf")
    def swapred(sw, op, vs, ts):
        for v, t in zip(vs, ts): a(f"v_mov_b32 {t}, {v}")
        for v, t in zip(vs, ts): a(f"{sw} {v}, {t}")
        for v, t in zip(vs, ts): a(f"{op} {v}, {v}, {t}")
    def swap16(op, vs, ts): swapred("v_permlane16_swap_b32", op, vs, ts)
    def swap32(op, vs, ts): swapred("v_permlane32_swap_b32", op, vs, ts)
    def wave_allreduce(op, vs, ts):
        row_allreduce(op, vs); swap16(op, vs, ts); swap32(op, vs, ts)
    MASKED = opt.get('masked', 1)
    def poll_begin(name, dual=None):
        a(f"s_mov_b32 s61, 0")
        a(f"{name}:")
        if dual:
            a(f"s_and_b32 s75, s61, {BP}\ns_cmp_eq_u32 s75, {BP}\ns_cselect_b32 {dual[0]}, {dual[2]}, {dual[1]}")
    def poll_end(name, bad):
        a(f"v_cmp_ne_u32 vcc, 0, {bad}")
        a(f"s_add_u32 s61, s61, 1")
        a(f"s_cmp_gt_u32 s61, {spin_limit}")
        a(f"s_cbranch_scc1 {name}_x")
        if MASKED:
            a(f"s_and_b64 exec, exec, vcc")
            a(f"s_cbranch_execnz {name}")
        else:
            a(f"s_cbranch_vccnz {name}")
        a(f"{name}_x:")
        if MASKED: a("s_mov_b64 exec, -1")
        if profile and opt.get('cntfor') == name:
            a("s_mov_b32 s100, s61")
    def tagcheck(bad, tags):
        a(f"v_xor_b32 {bad}, {TAG}, {tags[0]}")
        for t in tags[1:]:
            a(f"v_bitop3_b32 {bad}, {t}, {TAG}, {bad} bitop3:0xbe")
    def mfma(d, A, B, first):
        a(f"v_mfma_f32_16x16x32_bf16 {d}, {A}, {B}, {'0' if first else d}")
    def vr(b, n=4): return f"v[{b}:{b+n-1}]"
    def ar(b, n=4): return f"a[{b}:{b+n-1}]"

    a.lines += [l for l in HEADER.strip().split('\n')]
    a(f"; @launch grid=(256,1,1) block=(256,1,1) lds={LDS_BYTES}")
    a('.amdgcn_target "amdgcn-amd-amdhsa--gfx950"')
    a(f".text\n.globl {NAME}\n.p2align 8\n.type {NAME},@function\n{NAME}:")
    WPOS = opt.get('wpos', 0)
    def warm_load():
        a("s_getpc_b64 s[52:53]\nL_pc:\ns_sub_u32 s52, s52, L_pc-%s\ns_subb_u32 s53, s53, 0\nv_lshlrev_b32 v254, 7, v0\ns_mov_b32 s54, CODE_BYTES\ns_mov_b32 s55, 0x00020000" % NAME)
        a("buffer_load_dword v251, v254, s[52:55], 0 offen")
    if WARM and WPOS == 0: warm_load()
    stamp(0)
    if opt.get('pin'): a("s_memrealtime s[76:77]")
    if profile: a("s_mov_b32 s100, 99")
    a("s_cmp_ge_u32 s2, 256\ns_cbranch_scc1 L_end")
    a("s_load_dwordx16 s[4:19], s[0:1], 0\ns_load_dwordx8 s[20:27], s[0:1], 64\ns_load_dwordx4 s[28:31], s[0:1], 96")
    a("v_and_b32 v1, 63, v0\nv_lshrrev_b32 v2, 6, v0\nv_and_b32 v3, 15, v0\nv_bfe_u32 v4, v0, 4, 2")
    a(f"v_readfirstlane_b32 {SW}, v2")
    a(f"s_and_b32 s61, s2, 7\ns_bfe_u32 s62, s2, 0x40003\ns_lshl_b32 {SR}, s61, 4\ns_add_u32 {SR}, {SR}, s62")
    a(f"s_lshr_b32 {SH}, {SR}, 2\ns_and_b32 {SSUB}, {SR}, 3")
    a("v_mov_b32 v18, 0")
    a("s_waitcnt lgkmcnt(0)")
    srd(S_WS, 30, WS_SIZE)
    a(f"buffer_load_dword v250, v18, {S_WS}, 0 offen")
    srd(S_X, 4, 1280)
    def m_coef_loads():
        a("v_lshlrev_b32 v17, 2, v0")
        for k, p in enumerate((18, 20, 22)):
            srd(S_T, p, 3456)
            for i in range(4):
                a(f"buffer_load_dword v{196+4*k+i}, v17, {S_T}, 0 offen offset:{1024*i}")
        srd(S_T, 24, 2)
        a(f"buffer_load_ushort v208, v18, {S_T}, 0 offen")
    def m_coef_unpack():
        a("s_mov_b32 s63, 0xffff0000")
        for k in range(3):
            for i in range(4):
                s_ = 196+4*k+i; d = 210+8*k+2*i
                a(f"v_lshlrev_b32 v{d}, 16, v{s_}\nv_and_b32 v{d+1}, s63, v{s_}")
        a("v_lshlrev_b32 v208, 16, v208")
    def tail_prefetch(unit=True):
        a(f"v_lshlrev_b32 v245, 3, v0\nbuffer_load_dwordx2 v[246:247], v245, {S_X}, 0 offen")
        if opt.get('gate', 1):
            a(f"s_and_b32 s62, s2, 7\ns_lshl_b32 s62, s62, 7\ns_add_u32 s62, s62, {UF}\nv_lshlrev_b32 v249, 2, v1\nv_and_b32 v249, 127, v249")
            a(f"buffer_load_dword v252, v249, {S_WS}, s62 offen {LF}")
        if not unit: return
        a(f"v_lshrrev_b32 v248, 3, v1\nv_mul_u32_u24 v248, 2560, v248\nv_and_b32 v249, 7, v1\nv_lshl_add_u32 v248, v249, 4, v248")
        a(f"s_lshr_b32 s74, s2, 3\ns_cmp_eq_u32 {SW}, 1\ns_cselect_b32 s63, 16, 0\ns_add_u32 s74, s74, s63\ns_min_u32 s74, s74, 19")
        a(f"s_and_b32 s62, s2, 7\ns_mul_i32 s62, s62, {16*2560}\ns_lshl_b32 s63, s74, 7\ns_add_u32 s62, s62, s63\ns_add_u32 s101, s62, {OUTP}")
        if opt.get('prewarm', 1):
            a(f"s_add_u32 s62, s101, {8*2560}")
            a(f"buffer_load_dword v252, v248, {S_WS}, s101 offen {LF}\nbuffer_load_dword v252, v248, {S_WS}, s62 offen {LF}")
    def sentinel(base):
        lab = f"L_s{base}"
        a(f"s_cmp_eq_u32 {SW}, 0\ns_cbranch_scc0 {lab}")
        a(f"v_mov_b32 v240, {TAG}\nv_mov_b32 v241, {TAG}\nv_mov_b32 v242, {TAG}\nv_mov_b32 v243, {TAG}\nv_lshlrev_b32 v244, 4, v1")
        a(f"s_lshl_b32 s62, {SR}, 7\ns_add_u32 s62, s62, {base}\ns_mov_b64 exec, 0xff")
        a(f"buffer_store_dwordx4 v[240:243], v244, {S_WS}, s62 offen sc1")
        a(f"s_mov_b64 exec, -1\n{lab}:")

    NW = 1 if WARM else 0
    PWX = 1 if opt.get("prewarm", 1) else 0

    a.c("================= S1: q partials, head h1 = 4*xcd + (idx>>3), rows 80*me..80*me+79, me = idx&7")
    a("s_lshr_b32 s72, s2, 6\ns_and_b32 s73, s2, 7\ns_lshl_b32 s73, s73, 2\ns_add_u32 s72, s72, s73")
    a("s_bfe_u32 s73, s2, 0x30003")
    srd(S_A, 8, 5242880)
    a("v_lshlrev_b32 v5, 2, v1")
    for j in range(5): a(f"buffer_load_dword v{32+j}, v5, {S_X}, 0 offen offset:{256*j}")
    a(f"v_lshrrev_b32 v6, 4, v0\ns_mul_i32 s62, s73, 80\nv_add_u32 v7, s62, v6\nv_lshlrev_b32 v7, 1, v7")
    for i in range(5): a(f"buffer_load_ushort v{40+2*i}, v7, {S_X}, 0 offen offset:{32*i}")
    a("v_lshlrev_b32 v8, 4, v3\nv_lshl_add_u32 v8, v6, 13, v8")
    a(f"s_mul_i32 s61, s73, {80*8192}\ns_lshl_b32 s62, s72, 8\ns_add_u32 s61, s61, s62")
    for i in range(5):
        a(f"buffer_load_dwordx4 {vr(60+4*i)}, v8, {S_A}, s61 offen{NT}")
        if i < 4: a(f"s_add_u32 s61, s61, {16*8192}")
    WL = 1 if (WARM and WPOS == 1) else 0
    if WL: warm_load()
    a("v_xor_b32 v9, v3, v4\nv_lshlrev_b32 v9, 4, v9\nv_lshl_add_u32 v9, v4, 13, v9")
    a("v_xor_b32 v10, 64, v9\nv_xor_b32 v11, 128, v9\nv_xor_b32 v12, 192, v9")
    a("s_bitcmp1_b32 s2, 7\ns_cbranch_scc1 L_nouk")
    srd(S_B, 10, 4194304)
    a(f"s_lshl_b32 s66, {SSUB}, 20\ns_lshl_b32 s63, {SH}, 8\ns_add_u32 s66, s66, s63\ns_lshl_b32 s63, {SW}, 18\ns_add_u32 s66, s66, s63")
    a(f"s_lshl_b32 s67, {SW}, 13")
    NUP = opt.get('nup', 8)
    def uk_dma(k):
        a(f"s_mov_b32 m0, s67\ns_add_u32 s67, s67, 1024")
        a(f"buffer_load_dwordx4 v{9+(k&3)}, {S_B}, s66 offen{NT} lds")
        if k < 7: a(f"s_add_u32 s66, s66, 32768")
    for k in range(NUP): uk_dma(k)
    if PWX:
        a(f"v_and_b32 v253, 31, v1\nv_lshlrev_b32 v253, 7, v253\ns_lshl_b32 s62, {SH}, 12\ns_add_u32 s62, s62, {QG}")
        a(f"buffer_load_dword v252, v253, {S_WS}, s62 offen {LF}")
    a("s_branch L_s1c")
    a("L_nouk:")
    EARLY = opt.get('early', 0)
    def ckv_group(q):
        a(f"s_add_u32 s62, {SSUB}, {q}\ns_and_b32 s62, s62, 3\ns_add_u32 s63, s69, {q*8*CKV_STRIDE}\ns_lshl_b32 s62, s62, 13\ns_add_u32 s62, s62, s68")
        for j in range(8):
            a(f"s_mov_b32 m0, s63\ns_add_u32 s63, s63, {CKV_STRIDE}")
            a(f"buffer_load_dwordx4 v9, {S_B}, s62 offen lds")
            if j < 7: a(f"s_add_u32 s62, s62, 1024")
    srd(S_B, 6, 4194304)
    a("v_lshlrev_b32 v9, 4, v1")
    a(f"s_lshl_b32 s68, {SH}, 17\ns_lshl_b32 s63, {SW}, 15\ns_add_u32 s68, s68, s63")
    a(f"s_mul_i32 s69, {SW}, {32*CKV_STRIDE}")
    for q in range(EARLY): ckv_group(q)
    a("L_s1c:")
    stamp(1)
    def s1_body(extra, late=()):
        late = list(late)
        a(f"s_waitcnt vmcnt({10+extra})")
        a(f"v_readfirstlane_b32 {TAG}, v250\ns_add_u32 {TAG}, {TAG}, 1")
        a("s_mov_b32 s63, 0xffff0000")
        for j in range(5):
            a(f"v_lshlrev_b32 v{100+2*j}, 16, v{32+j}\nv_and_b32 v{101+2*j}, s63, v{32+j}")
        a("v_readfirstlane_b32 s64, v100")
        for k in range(100, 110): a(f"v_subrev_f32 v{k}, s64, v{k}")
        a("s_mov_b32 s3, s64")
        a("v_add_f32 v110, v100, v101\nv_mul_f32 v112, v100, v100")
        a("v_fmac_f32 v112, v101, v101")
        for k in range(102, 110): a(f"v_add_f32 v110, v110, v{k}\nv_fmac_f32 v112, v{k}, v{k}")
        wave_allreduce("v_add_f32", ["v110", "v112"], ["v111", "v113"])
        a(f"s_mov_b32 s65, {f2u(1.0/640):#x}\nv_mul_f32 v110, s65, v110\nv_mul_f32 v112, s65, v112")
        a(f"v_fma_f32 v112, -v110, v110, v112\nv_add_f32 v112, {f2u(EPS):#x}, v112\nv_rsq_f32 v113, v112")
        a("v_add_f32 v110, s64, v110")
        a(f"s_waitcnt vmcnt({5+extra})")
        for i in range(5):
            r = 40+2*i
            a(f"v_lshlrev_b32 v{r}, 16, v{r}\nv_sub_f32 v{r}, v{r}, v110\nv_mul_f32 v{r}, v{r}, v113")
        for k in range(100, 108): a(f"v_mov_b32 v{k}, 0")
        issued = 0
        for i in range(5):
            a(f"s_waitcnt vmcnt({4-i+extra+issued})")
            w = 60+4*i; l = 40+2*i
            for d in range(4):
                a(f"v_lshlrev_b32 v{108+2*(d&1)}, 16, v{w+d}\nv_and_b32 v{109+2*(d&1)}, s63, v{w+d}")
                a(f"v_pk_fma_f32 v[{100+2*d}:{101+2*d}], v[{108+2*(d&1)}:{109+2*(d&1)}], v[{l}:{l+1}], v[{100+2*d}:{101+2*d}] op_sel_hi:[1,0,1]")
            if late:
                late.pop(0)(); issued += 1
    a("s_bitcmp1_b32 s2, 7\ns_cbranch_scc1 L_s1y")
    s1_body(NUP+PWX+WL, [(lambda k=k: uk_dma(k)) for k in range(NUP, 8)])
    a("s_branch L_s1r")
    a("L_s1y:")
    s1_body(8*EARLY+WL)
    a("L_s1r:")
    stamp(2)
    s1red = S1RED
    a(f"v_lshlrev_b32 v13, 9, v6\nv_lshl_add_u32 v13, v3, 4, v13")
    a(f"v_add_u32 v13, {S1RED_C}, v13")
    a("ds_write_b128 v13, v[100:103]\nds_write_b128 v13, v[104:107] offset:256")
    a(f"v_and_b32 v14, 31, v1\nv_lshrrev_b32 v15, 3, v14\ns_lshl_b32 s62, {SW}, 2\nv_add_u32 v15, s62, v15\nv_lshlrev_b32 v15, 4, v15")
    a("v_bfe_u32 v16, v1, 2, 1\nv_lshl_add_u32 v15, v16, 8, v15\nv_and_b32 v16, 3, v1\nv_lshl_add_u32 v15, v16, 2, v15\nv_lshrrev_b32 v16, 5, v1\nv_lshl_add_u32 v15, v16, 12, v15")
    a(f"v_add_u32 v15, {S1RED_C}, v15")
    a(f"s_lshl_b32 s62, s72, 12\ns_lshl_b32 s63, {SW}, 10\ns_add_u32 s62, s62, s63\ns_lshl_b32 s63, s73, 4\ns_add_u32 s62, s62, s63\ns_add_u32 s62, s62, {QG}\ns_add_u32 s63, s62, {QGB-QG}")
    a("v_lshrrev_b32 v17, 3, v14\nv_lshlrev_b32 v17, 7, v17\nv_bfe_u32 v12, v14, 2, 1\nv_lshl_add_u32 v17, v12, 9, v17\nv_bfe_u32 v12, v14, 1, 1\nv_lshl_add_u32 v17, v12, 3, v17")
    a("s_waitcnt lgkmcnt(0)\ns_barrier")
    for k in range(4): a(f"ds_read2st64_b32 v[{100+2*k}:{101+2*k}], v15 offset0:{4*k} offset1:{4*k+2}")
    a("v_mov_b32 v14, v17")
    a("s_waitcnt lgkmcnt(0)")
    a("v_add_f32 v100, v100, v101\nv_add_f32 v102, v102, v103\nv_add_f32 v104, v104, v105\nv_add_f32 v106, v106, v107")
    a("v_add_f32 v100, v100, v102\nv_add_f32 v104, v104, v106\nv_add_f32 v100, v100, v104")
    swap32("v_add_f32", ["v100"], ["v101"])
    a("v_mov_b32_dpp v101, v100 row_shl:1 row_mask:0xf bank_mask:0xf")
    a(f"v_cvt_pk_bf16_f32 v102, v100, v101\nv_mov_b32 v103, {TAG}")
    a("s_mov_b32 exec_lo, 0x55555555\ns_mov_b32 exec_hi, 0")
    a(f"buffer_store_dwordx2 v[102:103], v14, {S_WS}, s62 offen")
    a("s_bitcmp1_b32 s2, 7\ns_cbranch_scc0 L_Xgo")
    a(f"buffer_store_dwordx2 v[102:103], v14, {S_WS}, s63 offen sc1")
    a("s_mov_b64 exec, -1")
    a("s_branch L_Y")
    a("L_Xgo:")
    a("s_mov_b64 exec, -1")
    a("v_mov_b32 v238, v102\nv_mov_b32 v239, v103\nv_mov_b32 v237, v14\ns_mov_b32 s71, s63")

    a.c("================= X role: S2 (q_abs), S4 (ctx partial), R")
    srd(S_C, 12, 4194304)
    G1E = opt.get('g1early', 1)
    a(f"v_and_b32 v17, 7, v3\nv_lshlrev_b32 v17, 4, v17\nv_lshl_add_u32 v17, v4, 7, v17\ns_lshl_b32 s63, {SH}, 12\ns_add_u32 s63, s63, {QG}\ns_add_u32 s64, s63, {QGB-QG}")
    if G1E:
        for s in range(4):
            r = 148+8*s
            a(f"buffer_load_dwordx4 {vr(r)}, v17, {S_WS}, s63 offen offset:{1024*s} {LF}")
            a(f"buffer_load_dwordx4 {vr(r+4)}, v17, {S_WS}, s63 offen offset:{1024*s+512} {LF}")
    a(f"s_lshl_b32 s62, {SW}, 5\nv_add_u32 v13, s62, v3\nv_lshlrev_b32 v13, 8, v13\nv_xor_b32 v14, v3, v4\nv_lshl_add_u32 v13, v14, 4, v13")
    a("v_xor_b32 v14, 64, v13\nv_xor_b32 v15, 128, v13\nv_xor_b32 v16, 192, v13")
    a(f"s_waitcnt vmcnt({9 if G1E else 1})")
    for tile in range(2):
        for s in range(4):
            a(f"ds_read_b128 {vr(116+(tile*4+s)*4)}, v{13+s} offset:{WUK+4096*tile}")
    stamp(3)
    a("v_mov_b32 v13, v17")
    if G1E:
        a("s_waitcnt vmcnt(0)")
        tagcheck("v14", [f"v{148+8*s+k}" for s in range(4) for k in (1,3,5,7)])
        a("s_mov_b32 s61, 0\nv_cmp_ne_u32 vcc, 0, v14\ns_cbranch_vccz L_p1_x")
        if MASKED: a("s_and_b64 exec, exec, vcc")
    def qgb_store():
        a("s_mov_b64 s[78-2:78-1], exec" if False else "s_mov_b64 s[98:99], exec")
        a("s_mov_b32 exec_lo, 0x55555555\ns_mov_b32 exec_hi, 0")
        a(f"buffer_store_dwordx2 v[238:239], v237, {S_WS}, s71 offen sc1")
        a("s_mov_b64 exec, s[98:99]")
    poll_begin("L_p1", ("s62", "s63", "s64"))
    a(f"s_cmp_eq_u32 s61, {BP}\ns_cbranch_scc0 L_p1n")
    qgb_store()
    a("L_p1n:")
    def dual_loads(name, emit):
        a(f"s_cmp_eq_u32 s75, {BP}\ns_cbranch_scc1 {name}_b")
        emit(LF)
        a(f"s_branch {name}_c\n{name}_b:")
        emit("sc1")
        a(f"{name}_c:")
    def g1_loads(fl):
        for s in range(4):
            r = 148+8*s
            a(f"buffer_load_dwordx4 {vr(r)}, v13, {S_WS}, s62 offen offset:{1024*s} {fl}")
            a(f"buffer_load_dwordx4 {vr(r+4)}, v13, {S_WS}, s62 offen offset:{1024*s+512} {fl}")
    dual_loads("L_p1", g1_loads)
    a("s_waitcnt vmcnt(0)")
    tagcheck("v14", [f"v{148+8*s+k}" for s in range(4) for k in (1,3,5,7)])
    poll_end("L_p1", "v14")
    a(f"s_cmp_gt_u32 s61, {BP}\ns_cbranch_scc1 L_p1m")
    qgb_store()
    a("L_p1m:")
    stamp(4)
    if opt.get('sent2', 0): sentinel(SENT2)
    for s in range(4):
        r = 148+8*s
        a(f"v_mov_b32 v{r+1}, v{r+2}\nv_mov_b32 v{r+2}, v{r+4}\nv_mov_b32 v{r+3}, v{r+6}")
    a("s_waitcnt lgkmcnt(0)")
    for s in range(4):
        for tile in range(2):
            mfma(vr(180+4*tile), vr(148+8*s), vr(116+(tile*4+s)*4), s == 0)
    a(f"s_mov_b32 s63, {f2u(SCALE):#x}")
    a("v_lshlrev_b32 v13, 2, v3\nv_lshl_add_u32 v13, v4, 6, v13\nv_cmp_eq_u32 vcc, 1, v4")
    a(f"s_lshl_b32 s62, {SR}, 9\ns_lshl_b32 s64, {SW}, 7\ns_add_u32 s62, s62, s64\ns_add_u32 s62, s62, {QA}")
    a("v_add_f32 v180, v180, v181\nv_add_f32 v184, v184, v185\nv_add_f32 v182, v182, v183\nv_add_f32 v186, v186, v187")
    a("v_add_f32 v180, v180, v182\nv_add_f32 v184, v184, v186")
    swap16("v_add_f32", ["v180", "v184"], ["v181", "v185"])
    a("v_cndmask_b32 v180, v180, v184, vcc\nv_mul_f32 v180, s63, v180")
    a("v_mov_b32_dpp v181, v180 row_shl:1 row_mask:0xf bank_mask:0xf")
    a(f"v_cvt_pk_bf16_f32 v188, v180, v181\nv_mov_b32 v189, {TAG}")
    a("s_mov_b32 exec_lo, 0x55555555\ns_mov_b32 exec_hi, 0")
    a(f"buffer_store_dwordx2 v[188:189], v13, {S_WS}, s62 offen sc1")
    a("s_mov_b64 exec, -1")
    stamp(5)
    a("v_lshrrev_b32 v15, 1, v3\nv_and_b32 v16, 1, v4\nv_lshlrev_b32 v16, 2, v16\nv_xor_b32 v15, v15, v16\nv_lshlrev_b32 v15, 5, v15\nv_and_b32 v16, 1, v0\nv_lshl_add_u32 v15, v16, 4, v15\nv_lshl_add_u32 v15, v4, 13, v15")
    a(f"s_lshl_b32 s62, {SW}, 1\ns_and_b32 s63, s62, 3\ns_lshl_b32 s63, s63, 5\nv_xor_b32 v16, s63, v15\ns_add_u32 s62, s62, 1\ns_and_b32 s63, s62, 3\ns_lshl_b32 s63, s63, 5\nv_xor_b32 v15, s63, v15")
    a(f"s_lshl_b32 s62, {SSUB}, 20\ns_lshl_b32 s63, {SH}, 8\ns_add_u32 s62, s62, s63\ns_lshl_b32 s63, {SW}, 18\ns_add_u32 s62, s62, s63")
    a(f"s_lshl_b32 s63, {SW}, 13\ns_add_u32 s63, s63, {WUV}")
    for k in range(8):
        a(f"s_mov_b32 m0, s63\ns_add_u32 s63, s63, 1024")
        a(f"buffer_load_dwordx4 {'v16' if k < 4 else 'v15'}, {S_C}, s62 offen{NT} lds")
        if k < 7: a("s_add_u32 s62, s62, 32768")
    m_coef_loads()
    tail_prefetch()
    a("s_waitcnt vmcnt(0)\ns_barrier")
    a("v_lshrrev_b32 v19, 2, v3\nv_lshl_add_u32 v19, v4, 2, v19")
    a("v_lshrrev_b32 v20, 2, v3\nv_and_b32 v21, 1, v4\nv_lshl_add_u32 v21, v21, 2, v20")
    a(f"s_lshl_b32 s62, {SW}, 1\nv_xor_b32 v21, s62, v21\nv_lshlrev_b32 v21, 5, v21")
    a("v_lshl_add_u32 v20, v20, 4, v4\nv_lshl_add_u32 v20, v20, 8, v21\nv_and_b32 v21, 3, v3\nv_lshl_add_u32 v20, v21, 3, v20\nv_xor_b32 v21, 32, v20")
    for tt in range(2):
        for j in range(4):
            for u in range(2):
                r = 60+(tt*4+j)*4+2*u; tau = 2*j+u
                a(f"ds_read_b64_tr_b16 v[{r}:{r+1}], {'v20' if tt==0 else 'v21'} offset:{WUV+16384*(tau>>2)+1024*(tau&3)}")
    m_coef_unpack()
    a("v_lshlrev_b32 v22, 4, v0\nv_and_b32 v23, 31, v1\nv_lshlrev_b32 v23, 9, v23")
    a(f"s_lshl_b32 s62, {SR}, 14\ns_add_u32 s66, s62, {OP}\ns_add_u32 s67, s66, 4096\ns_add_u32 s68, s66, 8192\ns_add_u32 s69, s66, 12288")
    a(f"s_lshr_b32 s62, {SH}, 3\ns_lshl_b32 s62, s62, 7\ns_and_b32 s63, {SH}, 7\ns_lshl_b32 s63, s63, 4\ns_add_u32 s62, s62, s63\ns_add_u32 s70, s62, {ST}")
    a(f"v_lshrrev_b32 v24, 5, v0\nv_mul_u32_u24 v24, 288, v24\nv_and_b32 v25, 31, v0\nv_lshl_add_u32 v24, v25, 3, v24\nv_add_u32 v24, {OS}, v24")
    a(f"s_lshl_b32 s62, {SW}, 7\ns_add_u32 s71, s62, {WX}\nv_and_b32 v25, 31, v1\nv_lshlrev_b32 v25, 2, v25\nv_add_u32 v25, s71, v25")
    a(f"v_lshlrev_b32 v27, 4, v4\nv_add_u32 v27, s71, v27")
    a(f"v_mul_u32_u24 v28, 288, v19\nv_and_b32 v29, 3, v3\nv_lshl_add_u32 v28, v29, 3, v28\nv_add_u32 v28, {OS}, v28")
    a(f"s_lshl_b32 s72, {SH}, 11\ns_lshl_b32 s63, {SW}, 9\ns_add_u32 s72, s72, s63\ns_lshl_b32 s63, {SSUB}, 4\ns_add_u32 s72, s72, s63\ns_add_u32 s72, s72, {CP}\ns_add_u32 s73, s72, {CPB-CP}")
    a("v_lshrrev_b32 v30, 2, v3\nv_lshlrev_b32 v30, 6, v30\nv_bfe_u32 v14, v3, 1, 1\nv_lshl_add_u32 v30, v14, 3, v30\nv_lshl_add_u32 v30, v4, 8, v30\nv_cmp_eq_u32 s[8:9], 1, v4")
    stamp(6)
    a("s_mov_b32 exec_hi, 0")
    poll_begin("L_p3a")
    a(f"buffer_load_dwordx4 v[116:119], v23, {S_WS}, s70 offen sc1")
    a("s_waitcnt vmcnt(0)")
    tagcheck("v14", ["v117", "v119"])
    poll_end("L_p3a", "v14")
    for i in range(4):
        a(f"buffer_load_dwordx4 {vr(100+4*i)}, v22, {S_WS}, s{66+i} offen sc1")
    a("v_mov_b32 v120, v116")
    row_allreduce("v_max_f32", ["v120"]); swap16("v_max_f32", ["v120"], ["v121"])
    a("v_sub_f32 v116, v116, v120\nv_exp_f32 v116, v116\nv_mul_f32 v118, v116, v118")
    row_allreduce("v_add_f32", ["v118"]); swap16("v_add_f32", ["v118"], ["v121"])
    a("v_rcp_f32 v118, v118\nv_mul_f32 v116, v116, v118")
    a("s_mov_b32 exec_hi, 0\nds_write_b32 v25, v116\ns_mov_b64 exec, -1")
    a("ds_read_b128 v[120:123], v27\nds_read_b128 v[124:127], v27 offset:64")
    a("s_waitcnt vmcnt(0)")
    tagcheck("v14", [f"v{100+4*i+k}" for i in range(4) for k in (1,3)])
    a("v_cmp_ne_u32 vcc, 0, v14\ns_cbranch_vccz L_p3b_x")
    if MASKED: a("s_and_b64 exec, exec, vcc")
    poll_begin("L_p3b")
    for i in range(4):
        a(f"buffer_load_dwordx4 {vr(100+4*i)}, v22, {S_WS}, s{66+i} offen sc1")
    a("s_waitcnt vmcnt(0)")
    tagcheck("v14", [f"v{100+4*i+k}" for i in range(4) for k in (1,3)])
    poll_end("L_p3b", "v14")
    stamp(7)
    for i in range(4):
        a(f"v_mov_b32 v{101+4*i}, v{102+4*i}\nds_write_b64 v24, v[{100+4*i}:{101+4*i}] offset:{2304*i}")
    a("s_waitcnt lgkmcnt(0)\ns_barrier")
    for t in range(8):
        for u in range(2):
            r = 132+4*t+2*u
            a(f"ds_read_b64_tr_b16 v[{r}:{r+1}], v28 offset:{4608*u+32*t}")
    a("v_cvt_pk_bf16_f32 v128, v120, v121\nv_cvt_pk_bf16_f32 v129, v122, v123\nv_cvt_pk_bf16_f32 v130, v124, v125\nv_cvt_pk_bf16_f32 v131, v126, v127")
    for t in range(8):
        a(f"s_waitcnt lgkmcnt({14-2*t})")
        mfma(vr(164+4*t), vr(132+4*t), vr(128), True)
    for j in range(4):
        d0 = 164+8*j; o = 100+4*j
        a(f"v_cvt_pk_bf16_f32 v{o}, v{d0}, v{d0+1}\nv_cvt_pk_bf16_f32 v{o+1}, v{d0+2}, v{d0+3}\nv_cvt_pk_bf16_f32 v{o+2}, v{d0+4}, v{d0+5}\nv_cvt_pk_bf16_f32 v{o+3}, v{d0+6}, v{d0+7}")
    for j in range(4):
        for tt in range(2):
            mfma(vr(116+4*tt), vr(100+4*j), vr(60+(tt*4+j)*4), j == 0)
    a("v_cndmask_b32 v116, v116, v120, s[8:9]")
    a("v_mov_b32_dpp v117, v116 row_shl:1 row_mask:0xf bank_mask:0xf")
    a(f"v_cvt_pk_bf16_f32 v118, v116, v117\nv_mov_b32 v119, {TAG}")
    a("s_mov_b32 exec_lo, 0x55555555\ns_mov_b32 exec_hi, 0")
    a(f"buffer_store_dwordx2 v[118:119], v30, {S_WS}, s72 offen")
    a(f"buffer_store_dwordx2 v[118:119], v30, {S_WS}, s73 offen sc1")
    a("s_mov_b64 exec, -1")
    stamp(8)
    a(f"s_cmp_eq_u32 {SW}, 0\ns_cbranch_scc1 L_U\ns_cmp_eq_u32 {SW}, 1\ns_cbranch_scc0 L_M\ns_cmp_lt_u32 s2, 32\ns_cbranch_scc1 L_U\ns_branch L_M")

    a.c("================= Y role: S3 (attention), S5 (out partial)")
    a("L_Y:")
    a("v_lshlrev_b32 v5, 4, v1")
    YD = 0
    for q in range(EARLY, 4): ckv_group(q)
    stamp(1)
    srd(S_B, 14, 5242880)
    PWY = 1 if opt.get('prewarm', 1) else 0
    if PWY:
        a(f"v_and_b32 v253, 3, v3\nv_lshlrev_b32 v253, 7, v253\ns_lshl_b32 s62, {SR}, 9\ns_add_u32 s62, s62, {CP}")
        a(f"buffer_load_dword v252, v253, {S_WS}, s62 offen {LF}")
    a(f"s_lshl_b32 s62, {SW}, 5\nv_add_u32 v6, s62, v3\nv_mul_u32_u24 v6, {CKV_STRIDE}, v6\nv_lshl_add_u32 v6, v4, 4, v6")
    a("v_lshrrev_b32 v19, 2, v3\nv_lshl_add_u32 v19, v4, 2, v19")
    a(f"v_mul_u32_u24 v7, {CKV_STRIDE}, v19\nv_and_b32 v8, 3, v3\nv_lshl_add_u32 v7, v8, 3, v7\ns_lshl_b32 s62, {SW}, 8\nv_add_u32 v7, s62, v7\nv_add_u32 v8, {64*CKV_STRIDE}, v7")
    a("v_lshlrev_b32 v22, 4, v0")
    a(f"s_lshl_b32 s62, {SSUB}, 14\ns_add_u32 s66, s62, {QA}\ns_add_u32 s67, s66, 4096\ns_add_u32 s68, s66, 8192\ns_add_u32 s69, s66, 12288")
    a(f"v_lshrrev_b32 v24, 7, v0\nv_mul_u32_u24 v24, {CKV_STRIDE}, v24\nv_and_b32 v25, 127, v0\nv_lshl_add_u32 v24, v25, 3, v24\nv_add_u32 v24, {QS}, v24")
    a(f"v_and_b32 v25, 7, v3\nv_mul_u32_u24 v25, {CKV_STRIDE}, v25\nv_lshl_add_u32 v25, v4, 4, v25\nv_add_u32 v25, {QS}, v25")
    a(f"s_lshl_b32 s62, {SW}, 2\ns_add_u32 s62, s62, {MX}\nv_lshlrev_b32 v26, 4, v3\nv_add_u32 v27, s62, v26\nv_add_u32 v28, {MX}, v26")
    a(f"s_lshl_b32 s62, {SW}, 10\ns_add_u32 s62, s62, {PX}\nv_add_u32 v29, s62, v5\nv_add_u32 v31, {PX}, v5")
    for k in range(4): a(f"v_mov_b32 v{184+k}, 0x3f803f80")
    a("v_and_b32 v21, 1, v3\nv_cmp_eq_u32 s[8:9], 1, v21\nv_and_b32 v21, 2, v3\nv_cmp_eq_u32 s[10:11], 2, v21")
    a("v_and_b32 v30, 1, v4\nv_lshlrev_b32 v30, 18, v30\nv_lshl_add_u32 v30, v3, 4, v30\nv_lshrrev_b32 v21, 1, v4\nv_lshl_add_u32 v30, v21, 8, v30\nv_cmp_eq_u32 s[12:13], 1, v21")
    a(f"s_lshl_b32 s73, {SSUB}, 19\ns_lshl_b32 s63, {SW}, 14\ns_add_u32 s73, s73, s63\ns_lshl_b32 s63, {SH}, 9\ns_add_u32 s73, s73, s63\ns_add_u32 s73, s73, {OP}")
    a(f"s_lshl_b32 s72, {SR}, 7\ns_add_u32 s72, s72, {ST}")
    G2E = opt.get('g2early', 1)
    for tile in range(2):
        if tile == 1 and G2E:
            for i in range(4):
                a(f"buffer_load_dwordx4 {vr(100+4*i)}, v22, {S_WS}, s{66+i} offen sc1")
        a(f"s_waitcnt vmcnt({PWY + (16 if tile == 0 else (4 if G2E else 0))})")
        if tile == 1: stamp(2)
        for s in range(16):
            a(f"ds_read_b128 {ar((tile*16+s)*4)}, v6 offset:{tile*16*CKV_STRIDE+64*s}")
    stamp(3)
    if opt.get('sent2', 0):
        poll_begin("L_p2a")
        a(f"buffer_load_dword v100, v23, {S_WS}, s70 offen sc1")
        a("s_waitcnt vmcnt(0)")
        tagcheck("v14", ["v100"])
        poll_end("L_p2a", "v14")
    if G2E:
        a("s_waitcnt vmcnt(0)")
        tagcheck("v14", [f"v{100+4*i+k}" for i in range(4) for k in (1,3)])
        a("v_cmp_ne_u32 vcc, 0, v14\ns_cbranch_vccz L_p2_x")
        if MASKED: a("s_and_b64 exec, exec, vcc")
    poll_begin("L_p2")
    for i in range(4):
        a(f"buffer_load_dwordx4 {vr(100+4*i)}, v22, {S_WS}, s{66+i} offen sc1")
    a("s_waitcnt vmcnt(0)")
    tagcheck("v14", [f"v{100+4*i+k}" for i in range(4) for k in (1,3)])
    poll_end("L_p2", "v14")
    stamp(4)
    for i in range(4):
        a(f"v_mov_b32 v{101+4*i}, v{102+4*i}\nds_write_b64 v24, v[{100+4*i}:{101+4*i}] offset:{2*CKV_STRIDE*i}")
    a("s_waitcnt lgkmcnt(0)\ns_barrier")
    for s in range(16):
        a(f"ds_read_b128 {vr(32+4*s)}, v25 offset:{64*s}")
    wo_n = [0]
    a(f"s_mul_i32 s71, {SR}, 40960")
    def wo_load():
        i = wo_n[0]; wo_n[0] += 1
        a(f"buffer_load_dwordx4 {vr(192+4*i)}, v22, {S_B}, s71 offen{NT}\ns_add_u32 s71, s71, 4096")
    pv = []
    for t in range(8):
        for j in range(4):
            for u in range(2):
                r = 128+(t*4+j)*4+2*u
                pv.append(f"ds_read_b64_tr_b16 a[{r}:{r+1}], {'v7' if j < 2 else 'v8'} offset:{(32*(j&1)+16*u)*CKV_STRIDE+32*t}")
    for s in range(16):
        if s < 4: a(f"s_waitcnt lgkmcnt({12-4*s})")
        for tile in range(2):
            sidx = s
            mfma(vr(100+4*tile), ar((tile*16+s)*4), vr(32+4*s), s == 0)
            if s >= 3:
                for _ in range(3 if pv else 0):
                    if pv: a(pv.pop(0))
            if tile == 1 and s in (2, 5, 8, 11, 14): wo_load()
    while pv: a(pv.pop(0))
    stamp(5)
    a("v_max3_f32 v108, v100, v101, v102\nv_max3_f32 v109, v103, v104, v105\nv_max3_f32 v108, v108, v106, v107\nv_max_f32 v108, v108, v109")
    swap16("v_max_f32", ["v108"], ["v109"]); swap32("v_max_f32", ["v108"], ["v109"])
    a("ds_write_b32 v27, v108")
    a("s_waitcnt lgkmcnt(0)\ns_barrier")
    a(f"ds_read_b128 v[108:111], v28\ns_waitcnt lgkmcnt(0)")
    a("v_max3_f32 v108, v108, v109, v110\nv_max_f32 v108, v108, v111")
    for k in range(8): a(f"v_sub_f32 v{100+k}, v{100+k}, v108")
    for k in range(8): a(f"v_exp_f32 v{100+k}, v{100+k}")
    a("v_cvt_pk_bf16_f32 v112, v100, v101\nv_cvt_pk_bf16_f32 v113, v102, v103\nv_cvt_pk_bf16_f32 v114, v104, v105\nv_cvt_pk_bf16_f32 v115, v106, v107")
    a("ds_write_b128 v29, v[112:115]")
    a("s_waitcnt lgkmcnt(0)\ns_barrier")
    for j in range(4): a(f"ds_read_b128 {vr(32+4*j)}, v31 offset:{1024*j}")
    for j in range(4):
        a(f"s_waitcnt lgkmcnt({3-j})")
        mfma(vr(188), vr(32+4*j), vr(184), j == 0)
        for t in range(8):
            mfma(vr(120+4*t), vr(32+4*j), ar(128+(t*4+j)*4), j == 0)
            if (j*8+t) in (3, 9, 15, 21, 27): wo_load()
    a(f"s_cmp_eq_u32 {SW}, 0\ns_cbranch_scc0 L_Y_nostat")
    a("v_cndmask_b32 v110, v188, v189, s[8:9]\nv_cndmask_b32 v111, v190, v191, s[8:9]\nv_cndmask_b32 v110, v110, v111, s[10:11]")
    a(f"v_mov_b32 v109, {TAG}\nv_mov_b32 v111, {TAG}")
    a("s_mov_b64 exec, 0x00f0000f")
    a(f"buffer_store_dwordx4 v[108:111], v26, {S_WS}, s72 offen sc1")
    a("s_mov_b64 exec, -1\nL_Y_nostat:")
    for r in range(4):
        o = 160+4*r
        for e in range(4): a(f"v_cndmask_b32 v{120+4*e+r}, v{120+4*e+r}, v{136+4*e+r}, s[12:13]")
        a(f"v_cvt_pk_bf16_f32 v{o}, v{120+r}, v{124+r}\nv_mov_b32 v{o+1}, {TAG}\nv_cvt_pk_bf16_f32 v{o+2}, v{128+r}, v{132+r}\nv_mov_b32 v{o+3}, {TAG}")
        a(f"buffer_store_dwordx4 {vr(o)}, v30, {S_WS}, s73 offen sc1")
        if r < 3: a("s_add_u32 s73, s73, 65536")
    stamp(6)
    assert wo_n[0] == 10
    a("s_mov_b32 s63, 52429")
    for i in range(10):
        a(f"v_add_u32 v9, {256*i}, v0\nv_mul_u32_u24 v10, s63, v9\nv_lshrrev_b32 v10, 22, v10\nv_lshlrev_b32 v10, 5, v10\nv_lshl_add_u32 v{232+i}, v9, 4, v10")
    a(f"v_mul_u32_u24 v7, {WO_STRIDE}, v19\nv_and_b32 v8, 3, v3\nv_lshl_add_u32 v7, v8, 3, v7\ns_mul_i32 s62, {SW}, 320\nv_add_u32 v7, s62, v7")
    a("s_waitcnt vmcnt(4)")
    for i in range(10):
        a(f"ds_write_b128 v{232+i}, {vr(192+4*i)}")
    a("s_waitcnt lgkmcnt(0)\ns_barrier")
    for tile in range(10):
        for u in range(2):
            r = 32+4*tile+2*u
            a(f"ds_read_b64_tr_b16 v[{r}:{r+1}], v7 offset:{16*WO_STRIDE*u+32*tile}")
    m_coef_loads()
    tail_prefetch(False)
    a("s_waitcnt vmcnt(0)")
    m_coef_unpack()
    a(f"v_and_b32 v13, 3, v3\nv_lshlrev_b32 v13, 4, v13\nv_lshl_add_u32 v13, v4, 6, v13\ns_lshl_b32 s68, {SR}, 9\ns_add_u32 s68, s68, {CP}\ns_add_u32 s69, s68, {CPB-CP}")
    a(f"s_mul_i32 s62, {SR}, 2560\ns_mul_i32 s63, {SW}, 640\ns_add_u32 s62, s62, s63\ns_add_u32 s67, s62, {OUTP}")
    a("v_lshlrev_b32 v12, 2, v3\nv_lshl_add_u32 v12, v4, 6, v12")
    a("s_waitcnt lgkmcnt(0)")
    stamp(7)
    poll_begin("L_p4", ("s66", "s68", "s69"))
    dual_loads("L_p4", lambda fl: a(f"buffer_load_dwordx4 v[100:103], v13, {S_WS}, s66 offen {fl}\nbuffer_load_dwordx4 v[104:107], v13, {S_WS}, s66 offen offset:256 {fl}"))
    a("s_waitcnt vmcnt(0)")
    tagcheck("v14", ["v101","v103","v105","v107"])
    poll_end("L_p4", "v14")
    stamp(8)
    if opt.get('sent5', 0): sentinel(SENT5)
    a("v_mov_b32 v101, v102\nv_mov_b32 v102, v104\nv_mov_b32 v103, v106\nv_cmp_eq_u32 vcc, 1, v4")
    for tile in range(10):
        mfma(vr(120+4*tile), vr(100), vr(32+4*tile), True)
    for tile in range(10):
        d = 120+4*tile
        a(f"v_pk_add_f32 v[{d}:{d+1}], v[{d}:{d+1}], v[{d+2}:{d+3}]")
    for k in range(5):
        d = 120+8*k
        a(f"v_cndmask_b32 v{d}, v{d}, v{d+4}, vcc\nv_cndmask_b32 v{d+1}, v{d+1}, v{d+5}, vcc")
    for k in range(5):
        d = 120+8*k
        a(f"v_add_f32 v{d}, v{d}, v{d+1}")
    for k in range(5):
        d = 120+8*k
        a(f"v_mov_b32_dpp v{d+1}, v{d} row_shl:1 row_mask:0xf bank_mask:0xf")
    for k in range(5):
        d = 120+8*k
        a(f"v_cvt_pk_bf16_f32 v{d+2}, v{d}, v{d+1}\nv_mov_b32 v{d+3}, {TAG}")
    a("s_mov_b32 exec_lo, 0x55555555\ns_mov_b32 exec_hi, 0")
    for k in range(5):
        d = 120+8*k
        a(f"buffer_store_dwordx2 v[{d+2}:{d+3}], v12, {S_WS}, s67 offen offset:{128*k}")
    a(f"s_add_u32 s67, s67, {OUTPB-OUTP}")
    for k in range(5):
        d = 120+8*k
        a(f"buffer_store_dwordx2 v[{d+2}:{d+3}], v12, {S_WS}, s67 offen offset:{128*k} sc1")
    a("s_mov_b64 exec, -1")

    a.c("================= U: workgroups with idx < 20, wave 0")
    a("s_branch L_M")
    a("L_U:")
    a(f"s_add_u32 s68, s101, {OUTPB-OUTP}")
    poll_begin("L_p5", ("s66", "s101", "s68"))
    a(f"s_add_u32 s67, s66, {8*2560}")
    dual_loads("L_p5", lambda fl: a(f"buffer_load_dwordx4 v[100:103], v248, {S_WS}, s66 offen {fl}\nbuffer_load_dwordx4 v[104:107], v248, {S_WS}, s67 offen {fl}"))
    a("s_waitcnt vmcnt(0)")
    tagcheck("v14", ["v101", "v103", "v105", "v107"])
    poll_end("L_p5", "v14")
    a("s_mov_b32 s63, 0xffff0000")
    for k, s_ in enumerate((100, 102, 104, 106)):
        a(f"v_lshlrev_b32 v{108+2*k}, 16, v{s_}\nv_and_b32 v{109+2*k}, s63, v{s_}")
    a("v_pk_add_f32 v[108:109], v[108:109], v[112:113]\nv_pk_add_f32 v[110:111], v[110:111], v[114:115]")
    for k in range(4): a(f"v_add_f32_dpp v{108+k}, v{108+k}, v{108+k} row_ror:8 row_mask:0xf bank_mask:0xf")
    vs = [f"v{108+k}" for k in range(4)]; ts = [f"v{112+k}" for k in range(4)]
    swap16("v_add_f32", vs, ts); swap32("v_add_f32", vs, ts)
    a(f"v_cvt_pk_bf16_f32 v100, v108, v109\nv_mov_b32 v101, {TAG}\nv_cvt_pk_bf16_f32 v102, v110, v111\nv_mov_b32 v103, {TAG}")
    a(f"s_and_b32 s62, s2, 7\ns_mul_i32 s62, s62, 2560\ns_lshl_b32 s63, s74, 7\ns_add_u32 s62, s62, s63\ns_add_u32 s62, s62, {XP}")
    a("v_lshlrev_b32 v13, 4, v1\ns_mov_b64 exec, 0xff")
    a(f"buffer_store_dwordx4 v[100:103], v13, {S_WS}, s62 offen sc1")
    if opt.get('gate', 1):
        a(f"s_and_b32 s62, s2, 7\ns_lshl_b32 s62, s62, 7\ns_lshl_b32 s63, s74, 2\ns_add_u32 s62, s62, s63\ns_add_u32 s62, s62, {UF}\ns_mov_b64 exec, 1")
        a(f"buffer_store_dword v101, v18, {S_WS}, s62 offen")
    a("s_mov_b64 exec, -1")

    a.c("================= M stage")
    a("L_M:")
    a("s_mul_i32 s64, s2, 3\ns_cmp_ge_u32 s64, 640\ns_cbranch_scc1 L_fin")
    a(f"v_mov_b32 v144, {f2u(C0):#x}\nv_mov_b32 v145, {f2u(C0):#x}")
    for k in range(3): a(f"v_mov_b32 v{146+2*k}, 0\nv_mov_b32 v{147+2*k}, 0")
    a(f"v_add_u32 v15, s64, v1\nv_min_u32 v15, 639, v15\nv_lshlrev_b32 v15, 2, v15\nv_add_u32 v15, {HB}, v15")
    a("v_mov_b32 v132, 0\nv_mov_b32 v133, 0")
    a(f"s_cmp_eq_u32 {SW}, 3\ns_cbranch_scc1 L_M_wait")
    a(f"v_lshlrev_b32 v13, 4, v0\ns_mov_b32 s66, {XP}\ns_mov_b32 s67, {XP+5120}\ns_mov_b32 s68, {XP+10240}\ns_mov_b32 s69, {XP+15360}")
    a("s_mov_b32 s63, 0xffff0000")
    a("v_lshlrev_b32 v136, 16, v246\nv_and_b32 v137, s63, v246\nv_lshlrev_b32 v138, 16, v247\nv_and_b32 v139, s63, v247")
    a(f"s_cmp_eq_u32 {SW}, 2\ns_cselect_b32 s72, 0, -1\ns_mov_b32 exec_hi, s72")
    stamp(9)
    if opt.get('gate', 1):
        a(f"s_mov_b64 s[98:99], exec\ns_mov_b64 exec, 0xfffff\ns_and_b32 s62, s2, 7\ns_lshl_b32 s62, s62, 7\ns_add_u32 s62, s62, {UF}\nv_lshlrev_b32 v14, 2, v1\nv_mov_b32 v16, v14\ns_mov_b32 s61, 0")
        a("L_g6:")
        a(f"buffer_load_dword v100, v16, {S_WS}, s62 offen {LF}\ns_waitcnt vmcnt(0)")
        a(f"v_cmp_ne_u32 vcc, {TAG}, v100\ns_add_u32 s61, s61, 1\ns_cmp_gt_u32 s61, {opt.get('gatemax', 64)}\ns_cbranch_scc1 L_g6x\ns_cbranch_vccnz L_g6")
        a("L_g6x:\ns_mov_b64 exec, s[98:99]")
    poll_begin("L_p6")
    for xx in range(8):
        a(f"buffer_load_dwordx4 {vr(100+4*xx)}, v13, {S_WS}, s{66+(xx>>1)} offen offset:{2560*(xx&1)} sc1")
    a("s_waitcnt vmcnt(0)")
    tagcheck("v14", [f"v{100+4*xx+k}" for xx in range(8) for k in (1,3)])
    poll_end("L_p6", "v14")
    a("s_mov_b32 exec_hi, s72")
    stamp(10)
    for xx in range(8):
        b = 100+4*xx
        a(f"v_lshlrev_b32 v140, 16, v{b}\nv_and_b32 v141, s63, v{b}\nv_lshlrev_b32 v142, 16, v{b+2}\nv_and_b32 v143, s63, v{b+2}")
        a("v_pk_add_f32 v[136:137], v[136:137], v[140:141]\nv_pk_add_f32 v[138:139], v[138:139], v[142:143]")
    a("v_cvt_pk_bf16_f32 v140, v136, v137\nv_cvt_pk_bf16_f32 v141, v138, v139")
    a("v_lshlrev_b32 v136, 16, v140\nv_and_b32 v137, s63, v140\nv_lshlrev_b32 v138, 16, v141\nv_and_b32 v139, s63, v141")
    a(f"v_add_u32 v16, {HB}, v13\nds_write_b128 v16, v[136:139]")
    for k in range(4): a(f"v_subrev_f32 v{140+k}, s3, v{136+k}")
    a("v_add_f32 v132, v140, v141\nv_mul_f32 v133, v140, v140\nv_add_f32 v134, v142, v143\nv_fmac_f32 v133, v141, v141\nv_add_f32 v132, v132, v134\nv_fmac_f32 v133, v142, v142\nv_fmac_f32 v133, v143, v143")
    a("s_mov_b64 exec, -1")
    wave_allreduce("v_add_f32", ["v132", "v133"], ["v134", "v135"])
    a(f"s_lshl_b32 s62, {SW}, 3\ns_add_u32 s62, s62, {SB}\nv_mov_b32 v16, s62\ns_mov_b64 exec, 1\nds_write_b64 v16, v[132:133]\ns_mov_b64 exec, -1")
    a(f"s_or_b32 s62, s2, {SW}\ns_cmp_eq_u32 s62, 0\ns_cbranch_scc0 L_noep")
    a(f"v_mov_b32 v16, {TAG}\ns_mov_b64 exec, 1\nbuffer_store_dword v16, v18, {S_WS}, 0 offen sc1\ns_mov_b64 exec, -1")
    a("L_noep:")
    a("s_waitcnt lgkmcnt(0)")
    a("L_M_wait:")
    a("s_barrier")
    a(f"v_mov_b32 v16, {SB}\nds_read_b128 v[120:123], v16\nds_read_b64 v[124:125], v16 offset:16\nds_read_b32 v136, v15\ns_mov_b32 s62, {f2u(1.0/640):#x}\ns_waitcnt lgkmcnt(0)")
    a("v_add_f32 v130, v120, v122\nv_add_f32 v132, v121, v123\nv_add_f32 v130, v130, v124\nv_add_f32 v132, v132, v125")
    a("v_mul_f32 v130, s62, v130\nv_mul_f32 v132, s62, v132")
    a("v_fma_f32 v132, -v130, v130, v132")
    a("v_add_f32 v130, s3, v130")
    a(f"v_add_f32 v133, {f2u(EPS):#x}, v132\nv_rsq_f32 v133, v133")
    a("v_sub_f32 v140, v136, v130")
    a("v_mul_f32 v134, v133, v133\nv_mul_f32 v134, v134, v132")
    a(f"v_add_f32 v134, {f2u(EPS):#x}, v134\nv_rsq_f32 v134, v134\nv_mul_f32 v140, v140, v133\ns_mov_b32 s62, {f2u(C1):#x}\nv_mul_f32 v140, v140, v134")
    for k in range(3):
        a(f"v_readlane_b32 s{70+2*k}, v140, {k}")
    for k in range(3):
        t = f"s[{70+2*k}:{71+2*k}]"
        U = lambda i: f"v[{152+2*i}:{153+2*i}]"
        Z = lambda i: f"v[{160+2*i}:{161+2*i}]"
        for i in range(4): a(f"v_pk_fma_f32 {U(i)}, v[{210+2*i}:{211+2*i}], {t}, v[{218+2*i}:{219+2*i}] op_sel_hi:[1,0,1]")
        for i in range(4): a(f"v_pk_mul_f32 {Z(i)}, {U(i)}, {U(i)}")
        for i in range(4): a(f"v_pk_fma_f32 {Z(i)}, {Z(i)}, s[62:63], v[144:145] op_sel_hi:[1,0,1]")
        for i in range(4): a(f"v_pk_mul_f32 {Z(i)}, {Z(i)}, {U(i)}")
        for i in range(4): a(f"v_exp_f32 v{160+2*i}, v{160+2*i}\nv_exp_f32 v{161+2*i}, v{161+2*i}")
        for i in range(4): a(f"v_pk_mul_f32 {U(i)}, {U(i)}, v[{226+2*i}:{227+2*i}]")
        for i in range(4): a(f"v_pk_add_f32 {Z(i)}, {Z(i)}, 1.0 op_sel_hi:[1,0]")
        for i in range(4): a(f"v_rcp_f32 v{160+2*i}, v{160+2*i}\nv_rcp_f32 v{161+2*i}, v{161+2*i}")
        for i in range(4): a(f"v_pk_fma_f32 v[{146+2*k}:{147+2*k}], {U(i)}, {Z(i)}, v[{146+2*k}:{147+2*k}]")
    for k in range(3): a(f"v_add_f32 v{146+2*k}, v{146+2*k}, v{147+2*k}")
    wave_allreduce("v_add_f32", ["v146","v148","v150"], ["v147","v149","v151"])
    a(f"s_lshl_b32 s62, {SW}, 4\ns_add_u32 s62, s62, {MRED}\nv_mov_b32 v15, s62\nv_mov_b32 v147, v148\nv_mov_b32 v148, v150")
    a("s_mov_b64 exec, 1\nds_write_b96 v15, v[146:148]\ns_mov_b64 exec, -1")
    a("s_waitcnt lgkmcnt(0)\ns_barrier")
    a(f"s_cmp_eq_u32 {SW}, 0\ns_cbranch_scc0 L_fin")
    a(f"v_lshlrev_b32 v15, 2, v1\nv_add_u32 v15, {MRED}, v15")
    a("ds_read_b32 v100, v15\nds_read_b32 v101, v15 offset:16\nds_read_b32 v102, v15 offset:32\nds_read_b32 v103, v15 offset:48")
    srd(S_T, 26, 1280)
    a("v_add_u32 v15, s64, v1\nv_lshlrev_b32 v16, 1, v15")
    a("v_add_f32 v136, v136, v208")
    a("s_waitcnt lgkmcnt(0)")
    a("v_add_f32 v100, v100, v101\nv_add_f32 v102, v102, v103\nv_add_f32 v100, v100, v102\nv_add_f32 v100, v100, v136")
    a("v_cvt_pk_bf16_f32 v100, v100, v100")
    a("v_cmp_gt_u32 vcc, 640, v15\ns_and_b64 exec, vcc, 7")
    a("s_cbranch_execz L_fin")
    a(f"buffer_store_short v100, v16, {S_T}, 0 offen")
    a("L_fin:")
    if opt.get('pin'):
        a(f"s_waitcnt lgkmcnt(0)\ns_add_u32 s76, s76, {opt['pin']}")
        a("L_pin:\ns_memrealtime s[78:79]\ns_waitcnt lgkmcnt(0)\ns_sub_u32 s80, s78, s76\ns_cmp_lt_i32 s80, 0\ns_cbranch_scc1 L_pin")
    if profile:
        stamp(11)
        a("s_mov_b64 exec, -1\ns_waitcnt lgkmcnt(0)")
        a(f"s_lshl_b32 s62, s2, 2\ns_add_u32 s62, s62, {SW}\ns_lshl_b32 s62, s62, 6\ns_add_u32 s62, s62, {TS}")
        a("v_mov_b32 v18, 0\ns_mov_b64 exec, 1")
        for k in range(12):
            a(f"v_mov_b32 v15, s{76+2*k}\nbuffer_store_dword v15, v18, {S_WS}, s62 offen offset:{4*k}")
        a(f"v_mov_b32 v15, s100\nbuffer_store_dword v15, v18, {S_WS}, s62 offen offset:48")
        a(f"s_getreg_b32 s100, hwreg(HW_REG_XCC_ID)\nv_mov_b32 v15, s100\nbuffer_store_dword v15, v18, {S_WS}, s62 offen offset:52")
        a(f"s_getreg_b32 s100, hwreg(HW_REG_HW_ID)\nv_mov_b32 v15, s100\nbuffer_store_dword v15, v18, {S_WS}, s62 offen offset:56")
    a("L_end:")
    a("s_endpgm")
    a("L_code_end:")
    a(f".set CODE_BYTES, L_code_end - {NAME}")
    a('.section .rodata,"a"\n.p2align 6')
    a(f".amdhsa_kernel {NAME}")
    a("  .amdhsa_next_free_vgpr 512\n  .amdhsa_next_free_sgpr 102\n  .amdhsa_accum_offset 256\n  .amdhsa_group_segment_fixed_size 0\n  .amdhsa_kernarg_size 112\n  .amdhsa_user_sgpr_count 2\n  .amdhsa_user_sgpr_kernarg_segment_ptr 1\n  .amdhsa_system_sgpr_workgroup_id_x 1")
    a(".end_amdhsa_kernel")
    n = a.hazard_pass()
    return a.text(), n

LAYOUT = dict(QG=QG, QA=QA, ST=ST, CP=CP, HG=HG, OUTP=OUTP, OP=OP, TS=TS, XP=XP)
if __name__ == "__main__":
    prof = "prof" in sys.argv[2:]
    opt = {}
    for x in sys.argv[2:]:
        if '=' in x:
            k, v = x.split('='); opt[k] = int(v) if v.lstrip('-').isdigit() else v
    txt, n = gen(profile=prof, opt=opt)
    open(sys.argv[1], "w").write(txt)
    print("auto nops:", n, "lines:", txt.count("\n"), LAYOUT)
```

```python
import sys, math, struct
from asmlib import Asm

NAME = "sequential_preLN__compressed_kv_cla__mixer_token_mlp__decode_kernel"
HEADER = open('sequential_preLN__compressed_kv_cla__mixer_token_mlp__decode.s.ref').read().split('; Override')[0]

def f2u(x): return struct.unpack('<I', struct.pack('<f', x))[0]

QG   = 4096
QA   = QG + 131072
ST   = QA + 65536
CP   = ST + 16384
HG   = CP + 65536
SENT2 = HG + 4096
SENT5 = SENT2 + 16384
QGB  = SENT5 + 16384
CPB  = QGB + 131072
OUTP = CPB + 65536
OUTPB = OUTP + 128*2560
XP   = OUTPB + 128*2560
UF   = XP + 8*2560
OP   = 2 << 20
TS   = 4 << 20
assert UF + 8*128 <= OP
WS_SIZE = 5 << 20
CKV_STRIDE = 1056
QS = 135168; PX = 143616; MX = 147712; LX = 147968; MRED = 148224; MB = 148288
WUK = 0; WUV = 32768; OS = 65536; S1RED = 74752; WX = 82944; RRED = 83456
S1RED_C = 135168
LDS_BYTES = 148480
WO_STRIDE = 1312
HB = PX; SB = MB

SCALE = (128 ** -0.5) * math.log2(math.e)
C0 = -2.0 * math.sqrt(2.0 / math.pi) * math.log2(math.e)
C1 = C0 * 0.044715
EPS = 1e-5

S_WS, S_X, S_A, S_B, S_C, S_T = 's[32:35]', 's[36:39]', 's[40:43]', 's[44:47]', 's[48:51]', 's[52:55]'
TAG, SW, SR, SH, SSUB = 's56', 's57', 's58', 's59', 's60'

def gen(profile=False, spin_limit=400000, opt=None):
    opt = opt or {}
    WARM = opt.get('warm', 1)
    STPOS = opt.get('stpos', 1)
    a = Asm()
    NT = " nt" if opt.get('nt', 0) else ""
    LF = opt.get('lflag', 'nt')
    BP = opt.get('bper', 32) - 1
    SMASK = opt.get('smask', 0xfff)
    def stamp(k):
        if profile and (SMASK >> k) & 1:
            assert k < 12
            a(f"s_memrealtime s[{76+2*k}:{77+2*k}]")
    def srd(dst, ptr, size):
        d = int(dst[2:dst.index(':')])
        a(f"s_mov_b32 s{d}, s{ptr}\ns_mov_b32 s{d+1}, s{ptr+1}\ns_mov_b32 s{d+2}, {size}\ns_mov_b32 s{d+3}, 0x00020000")
    DPPS = ("quad_perm:[1,0,3,2]", "quad_perm:[2,3,0,1]", "row_half_mirror", "row_mirror")
    def row_allreduce(op, vs):
        for m in DPPS:
            for v in vs: a(f"{op}_dpp {v}, {v}, {v} {m} row_mask:0xf bank_mask:0xf")
    def swapred(sw, op, vs, ts):
        for v, t in zip(vs, ts): a(f"v_mov_b32 {t}, {v}")
        for v, t in zip(vs, ts): a(f"{sw} {v}, {t}")
        for v, t in zip(vs, ts): a(f"{op} {v}, {v}, {t}")
    def swap16(op, vs, ts): swapred("v_permlane16_swap_b32", op, vs, ts)
    def swap32(op, vs, ts): swapred("v_permlane32_swap_b32", op, vs, ts)
    def wave_allreduce(op, vs, ts):
        row_allreduce(op, vs); swap16(op, vs, ts); swap32(op, vs, ts)
    MASKED = opt.get('masked', 1)
    def poll_begin(name, dual=None):
        a(f"s_mov_b32 s61, 0")
        a(f"{name}:")
        if dual:
            a(f"s_and_b32 s75, s61, {BP}\ns_cmp_eq_u32 s75, {BP}\ns_cselect_b32 {dual[0]}, {dual[2]}, {dual[1]}")
    def poll_end(name, bad):
        a(f"v_cmp_ne_u32 vcc, 0, {bad}")
        a(f"s_add_u32 s61, s61, 1")
        a(f"s_cmp_gt_u32 s61, {spin_limit}")
        a(f"s_cbranch_scc1 {name}_x")
        if MASKED:
            a(f"s_and_b64 exec, exec, vcc")
            a(f"s_cbranch_execnz {name}")
        else:
            a(f"s_cbranch_vccnz {name}")
        a(f"{name}_x:")
        if MASKED: a("s_mov_b64 exec, -1")
        if profile and opt.get('cntfor') == name:
            a("s_mov_b32 s100, s61")
    def tagcheck(bad, tags):
        a(f"v_xor_b32 {bad}, {TAG}, {tags[0]}")
        for t in tags[1:]:
            a(f"v_bitop3_b32 {bad}, {t}, {TAG}, {bad} bitop3:0xbe")
    def mfma(d, A, B, first):
        a(f"v_mfma_f32_16x16x32_bf16 {d}, {A}, {B}, {'0' if first else d}")
    def vr(b, n=4): return f"v[{b}:{b+n-1}]"
    def ar(b, n=4): return f"a[{b}:{b+n-1}]"

    a.lines += [l for l in HEADER.strip().split('\n')]
    a(f"; @launch grid=(256,1,1) block=(256,1,1) lds={LDS_BYTES}")
    a('.amdgcn_target "amdgcn-amd-amdhsa--gfx950"')
    a(f".text\n.globl {NAME}\n.p2align 8\n.type {NAME},@function\n{NAME}:")
    WPOS = opt.get('wpos', 0)
    def warm_load():
        a("s_getpc_b64 s[52:53]\nL_pc:\ns_sub_u32 s52, s52, L_pc-%s\ns_subb_u32 s53, s53, 0\nv_lshlrev_b32 v254, 7, v0\ns_mov_b32 s54, CODE_BYTES\ns_mov_b32 s55, 0x00020000" % NAME)
        a("buffer_load_dword v251, v254, s[52:55], 0 offen")
    if WARM and WPOS == 0: warm_load()
    stamp(0)
    if opt.get('pin'): a("s_memrealtime s[76:77]")
    if profile: a("s_mov_b32 s100, 99")
    a("s_cmp_ge_u32 s2, 256\ns_cbranch_scc1 L_end")
    a("s_load_dwordx16 s[4:19], s[0:1], 0\ns_load_dwordx8 s[20:27], s[0:1], 64\ns_load_dwordx4 s[28:31], s[0:1], 96")
    a("v_and_b32 v1, 63, v0\nv_lshrrev_b32 v2, 6, v0\nv_and_b32 v3, 15, v0\nv_bfe_u32 v4, v0, 4, 2")
    a(f"v_readfirstlane_b32 {SW}, v2")
    a(f"s_and_b32 s61, s2, 7\ns_bfe_u32 s62, s2, 0x40003\ns_lshl_b32 {SR}, s61, 4\ns_add_u32 {SR}, {SR}, s62")
    a(f"s_lshr_b32 {SH}, {SR}, 2\ns_and_b32 {SSUB}, {SR}, 3")
    a("v_mov_b32 v18, 0")
    a("s_waitcnt lgkmcnt(0)")
    srd(S_WS, 30, WS_SIZE)
    a(f"buffer_load_dword v250, v18, {S_WS}, 0 offen")
    srd(S_X, 4, 1280)
    def m_coef_loads():
        a("v_lshlrev_b32 v17, 2, v0")
        for k, p in enumerate((18, 20, 22)):
            srd(S_T, p, 3456)
            for i in range(4):
                a(f"buffer_load_dword v{196+4*k+i}, v17, {S_T}, 0 offen offset:{1024*i}")
        srd(S_T, 24, 2)
        a(f"buffer_load_ushort v208, v18, {S_T}, 0 offen")
    def m_coef_unpack():
        a("s_mov_b32 s63, 0xffff0000")
        for k in range(3):
            for i in range(4):
                s_ = 196+4*k+i; d = 210+8*k+2*i
                a(f"v_lshlrev_b32 v{d}, 16, v{s_}\nv_and_b32 v{d+1}, s63, v{s_}")
        a("v_lshlrev_b32 v208, 16, v208")
    def tail_prefetch(unit=True):
        a(f"v_lshlrev_b32 v245, 3, v0\nbuffer_load_dwordx2 v[246:247], v245, {S_X}, 0 offen")
        if opt.get('gate', 1):
            a(f"s_and_b32 s62, s2, 7\ns_lshl_b32 s62, s62, 7\ns_add_u32 s62, s62, {UF}\nv_lshlrev_b32 v249, 2, v1\nv_and_b32 v249, 127, v249")
            a(f"buffer_load_dword v252, v249, {S_WS}, s62 offen {LF}")
        if not unit: return
        a(f"v_lshrrev_b32 v248, 3, v1\nv_mul_u32_u24 v248, 2560, v248\nv_and_b32 v249, 7, v1\nv_lshl_add_u32 v248, v249, 4, v248")
        a(f"s_lshr_b32 s74, s2, 3\ns_cmp_eq_u32 {SW}, 1\ns_cselect_b32 s63, 16, 0\ns_add_u32 s74, s74, s63\ns_min_u32 s74, s74, 19")
        a(f"s_and_b32 s62, s2, 7\ns_mul_i32 s62, s62, {16*2560}\ns_lshl_b32 s63, s74, 7\ns_add_u32 s62, s62, s63\ns_add_u32 s101, s62, {OUTP}")
        if opt.get('prewarm', 1):
            a(f"s_add_u32 s62, s101, {8*2560}")
            a(f"buffer_load_dword v252, v248, {S_WS}, s101 offen {LF}\nbuffer_load_dword v252, v248, {S_WS}, s62 offen {LF}")
    def sentinel(base):
        lab = f"L_s{base}"
        a(f"s_cmp_eq_u32 {SW}, 0\ns_cbranch_scc0 {lab}")
        a(f"v_mov_b32 v240, {TAG}\nv_mov_b32 v241, {TAG}\nv_mov_b32 v242, {TAG}\nv_mov_b32 v243, {TAG}\nv_lshlrev_b32 v244, 4, v1")
        a(f"s_lshl_b32 s62, {SR}, 7\ns_add_u32 s62, s62, {base}\ns_mov_b64 exec, 0xff")
        a(f"buffer_store_dwordx4 v[240:243], v244, {S_WS}, s62 offen sc1")
        a(f"s_mov_b64 exec, -1\n{lab}:")

    NW = 1 if WARM else 0
    PWX = 1 if opt.get("prewarm", 1) else 0

    a.c("================= S1: q partials, head h1 = 4*xcd + (idx>>3), rows 80*me..80*me+79, me = idx&7")
    a("s_lshr_b32 s72, s2, 6\ns_and_b32 s73, s2, 7\ns_lshl_b32 s73, s73, 2\ns_add_u32 s72, s72, s73")
    a("s_bfe_u32 s73, s2, 0x30003")
    srd(S_A, 8, 5242880)
    a("v_lshlrev_b32 v5, 2, v1")
    for j in range(5): a(f"buffer_load_dword v{32+j}, v5, {S_X}, 0 offen offset:{256*j}")
    a(f"v_lshrrev_b32 v6, 4, v0\ns_mul_i32 s62, s73, 80\nv_add_u32 v7, s62, v6\nv_lshlrev_b32 v7, 1, v7")
    for i in range(5): a(f"buffer_load_ushort v{40+2*i}, v7, {S_X}, 0 offen offset:{32*i}")
    a("v_lshlrev_b32 v8, 4, v3\nv_lshl_add_u32 v8, v6, 13, v8")
    a(f"s_mul_i32 s61, s73, {80*8192}\ns_lshl_b32 s62, s72, 8\ns_add_u32 s61, s61, s62")
    for i in range(5):
        a(f"buffer_load_dwordx4 {vr(60+4*i)}, v8, {S_A}, s61 offen{NT}")
        if i < 4: a(f"s_add_u32 s61, s61, {16*8192}")
    WL = 1 if (WARM and WPOS == 1) else 0
    if WL: warm_load()
    a("v_xor_b32 v9, v3, v4\nv_lshlrev_b32 v9, 4, v9\nv_lshl_add_u32 v9, v4, 13, v9")
    a("v_xor_b32 v10, 64, v9\nv_xor_b32 v11, 128, v9\nv_xor_b32 v12, 192, v9")
    a("s_bitcmp1_b32 s2, 7\ns_cbranch_scc1 L_nouk")
    srd(S_B, 10, 4194304)
    a(f"s_lshl_b32 s66, {SSUB}, 20\ns_lshl_b32 s63, {SH}, 8\ns_add_u32 s66, s66, s63\ns_lshl_b32 s63, {SW}, 18\ns_add_u32 s66, s66, s63")
    a(f"s_lshl_b32 s67, {SW}, 13")
    NUP = opt.get('nup', 8)
    def uk_dma(k):
        a(f"s_mov_b32 m0, s67\ns_add_u32 s67, s67, 1024")
        a(f"buffer_load_dwordx4 v{9+(k&3)}, {S_B}, s66 offen{NT} lds")
        if k < 7: a(f"s_add_u32 s66, s66, 32768")
    for k in range(NUP): uk_dma(k)
    if PWX:
        a(f"v_and_b32 v253, 31, v1\nv_lshlrev_b32 v253, 7, v253\ns_lshl_b32 s62, {SH}, 12\ns_add_u32 s62, s62, {QG}")
        a(f"buffer_load_dword v252, v253, {S_WS}, s62 offen {LF}")
    a("s_branch L_s1c")
    a("L_nouk:")
    EARLY = opt.get('early', 0)
    def ckv_group(q):
        a(f"s_add_u32 s62, {SSUB}, {q}\ns_and_b32 s62, s62, 3\ns_add_u32 s63, s69, {q*8*CKV_STRIDE}\ns_lshl_b32 s62, s62, 13\ns_add_u32 s62, s62, s68")
        for j in range(8):
            a(f"s_mov_b32 m0, s63\ns_add_u32 s63, s63, {CKV_STRIDE}")
            a(f"buffer_load_dwordx4 v9, {S_B}, s62 offen lds")
            if j < 7: a(f"s_add_u32 s62, s62, 1024")
    srd(S_B, 6, 4194304)
    a("v_lshlrev_b32 v9, 4, v1")
    a(f"s_lshl_b32 s68, {SH}, 17\ns_lshl_b32 s63, {SW}, 15\ns_add_u32 s68, s68, s63")
    a(f"s_mul_i32 s69, {SW}, {32*CKV_STRIDE}")
    for q in range(EARLY): ckv_group(q)
    a("L_s1c:")
    stamp(1)
    def s1_body(extra, late=()):
        late = list(late)
        a(f"s_waitcnt vmcnt({10+extra})")
        a(f"v_readfirstlane_b32 {TAG}, v250\ns_add_u32 {TAG}, {TAG}, 1")
        a("s_mov_b32 s63, 0xffff0000")
        for j in range(5):
            a(f"v_lshlrev_b32 v{100+2*j}, 16, v{32+j}\nv_and_b32 v{101+2*j}, s63, v{32+j}")
        a("v_readfirstlane_b32 s64, v100")
        for k in range(100, 110): a(f"v_subrev_f32 v{k}, s64, v{k}")
        a("s_mov_b32 s3, s64")
        a("v_add_f32 v110, v100, v101\nv_mul_f32 v112, v100, v100")
        a("v_fmac_f32 v112, v101, v101")
        for k in range(102, 110): a(f"v_add_f32 v110, v110, v{k}\nv_fmac_f32 v112, v{k}, v{k}")
        wave_allreduce("v_add_f32", ["v110", "v112"], ["v111", "v113"])
        a(f"s_mov_b32 s65, {f2u(1.0/640):#x}\nv_mul_f32 v110, s65, v110\nv_mul_f32 v112, s65, v112")
        a(f"v_fma_f32 v112, -v110, v110, v112\nv_add_f32 v112, {f2u(EPS):#x}, v112\nv_rsq_f32 v113, v112")
        a("v_add_f32 v110, s64, v110")
        a(f"s_waitcnt vmcnt({5+extra})")
        for i in range(5):
            r = 40+2*i
            a(f"v_lshlrev_b32 v{r}, 16, v{r}\nv_sub_f32 v{r}, v{r}, v110\nv_mul_f32 v{r}, v{r}, v113")
        for k in range(100, 108): a(f"v_mov_b32 v{k}, 0")
        issued = 0
        for i in range(5):
            a(f"s_waitcnt vmcnt({4-i+extra+issued})")
            w = 60+4*i; l = 40+2*i
            for d in range(4):
                a(f"v_lshlrev_b32 v{108+2*(d&1)}, 16, v{w+d}\nv_and_b32 v{109+2*(d&1)}, s63, v{w+d}")
                a(f"v_pk_fma_f32 v[{100+2*d}:{101+2*d}], v[{108+2*(d&1)}:{109+2*(d&1)}], v[{l}:{l+1}], v[{100+2*d}:{101+2*d}] op_sel_hi:[1,0,1]")
            if late:
                late.pop(0)(); issued += 1
    a("s_bitcmp1_b32 s2, 7\ns_cbranch_scc1 L_s1y")
    s1_body(NUP+PWX+WL, [(lambda k=k: uk_dma(k)) for k in range(NUP, 8)])
    a("s_branch L_s1r")
    a("L_s1y:")
    s1_body(8*EARLY+WL)
    a("L_s1r:")
    stamp(2)
    s1red = S1RED
    a(f"v_lshlrev_b32 v13, 9, v6\nv_lshl_add_u32 v13, v3, 4, v13")
    a(f"v_add_u32 v13, {S1RED_C}, v13")
    a("ds_write_b128 v13, v[100:103]\nds_write_b128 v13, v[104:107] offset:256")
    a(f"v_and_b32 v14, 31, v1\nv_lshrrev_b32 v15, 3, v14\ns_lshl_b32 s62, {SW}, 2\nv_add_u32 v15, s62, v15\nv_lshlrev_b32 v15, 4, v15")
    a("v_bfe_u32 v16, v1, 2, 1\nv_lshl_add_u32 v15, v16, 8, v15\nv_and_b32 v16, 3, v1\nv_lshl_add_u32 v15, v16, 2, v15\nv_lshrrev_b32 v16, 5, v1\nv_lshl_add_u32 v15, v16, 12, v15")
    a(f"v_add_u32 v15, {S1RED_C}, v15")
    a(f"s_lshl_b32 s62, s72, 12\ns_lshl_b32 s63, {SW}, 10\ns_add_u32 s62, s62, s63\ns_lshl_b32 s63, s73, 4\ns_add_u32 s62, s62, s63\ns_add_u32 s62, s62, {QG}\ns_add_u32 s63, s62, {QGB-QG}")
    a("v_lshrrev_b32 v17, 3, v14\nv_lshlrev_b32 v17, 7, v17\nv_bfe_u32 v12, v14, 2, 1\nv_lshl_add_u32 v17, v12, 9, v17\nv_bfe_u32 v12, v14, 1, 1\nv_lshl_add_u32 v17, v12, 3, v17")
    a("s_waitcnt lgkmcnt(0)\ns_barrier")
    for k in range(4): a(f"ds_read2st64_b32 v[{100+2*k}:{101+2*k}], v15 offset0:{4*k} offset1:{4*k+2}")
    a("v_mov_b32 v14, v17")
    a("s_waitcnt lgkmcnt(0)")
    a("v_add_f32 v100, v100, v101\nv_add_f32 v102, v102, v103\nv_add_f32 v104, v104, v105\nv_add_f32 v106, v106, v107")
    a("v_add_f32 v100, v100, v102\nv_add_f32 v104, v104, v106\nv_add_f32 v100, v100, v104")
    swap32("v_add_f32", ["v100"], ["v101"])
    a("v_mov_b32_dpp v101, v100 row_shl:1 row_mask:0xf bank_mask:0xf")
    a(f"v_cvt_pk_bf16_f32 v102, v100, v101\nv_mov_b32 v103, {TAG}")
    a("s_mov_b32 exec_lo, 0x55555555\ns_mov_b32 exec_hi, 0")
    a(f"buffer_store_dwordx2 v[102:103], v14, {S_WS}, s62 offen")
    a("s_bitcmp1_b32 s2, 7\ns_cbranch_scc0 L_Xgo")
    a(f"buffer_store_dwordx2 v[102:103], v14, {S_WS}, s63 offen sc1")
    a("s_mov_b64 exec, -1")
    a("s_branch L_Y")
    a("L_Xgo:")
    a("s_mov_b64 exec, -1")
    a("v_mov_b32 v238, v102\nv_mov_b32 v239, v103\nv_mov_b32 v237, v14\ns_mov_b32 s71, s63")

    a.c("================= X role: S2 (q_abs), S4 (ctx partial), R")
    srd(S_C, 12, 4194304)
    G1E = opt.get('g1early', 1)
    a(f"v_and_b32 v17, 7, v3\nv_lshlrev_b32 v17, 4, v17\nv_lshl_add_u32 v17, v4, 7, v17\ns_lshl_b32 s63, {SH}, 12\ns_add_u32 s63, s63, {QG}\ns_add_u32 s64, s63, {QGB-QG}")
    if G1E:
        for s in range(4):
            r = 148+8*s
            a(f"buffer_load_dwordx4 {vr(r)}, v17, {S_WS}, s63 offen offset:{1024*s} {LF}")
            a(f"buffer_load_dwordx4 {vr(r+4)}, v17, {S_WS}, s63 offen offset:{1024*s+512} {LF}")
    a(f"s_lshl_b32 s62, {SW}, 5\nv_add_u32 v13, s62, v3\nv_lshlrev_b32 v13, 8, v13\nv_xor_b32 v14, v3, v4\nv_lshl_add_u32 v13, v14, 4, v13")
    a("v_xor_b32 v14, 64, v13\nv_xor_b32 v15, 128, v13\nv_xor_b32 v16, 192, v13")
    a(f"s_waitcnt vmcnt({9 if G1E else 1})")
    for tile in range(2):
        for s in range(4):
            a(f"ds_read_b128 {vr(116+(tile*4+s)*4)}, v{13+s} offset:{WUK+4096*tile}")
    stamp(3)
    a("v_mov_b32 v13, v17")
    if G1E:
        a("s_waitcnt vmcnt(0)")
        tagcheck("v14", [f"v{148+8*s+k}" for s in range(4) for k in (1,3,5,7)])
        a("s_mov_b32 s61, 0\nv_cmp_ne_u32 vcc, 0, v14\ns_cbranch_vccz L_p1_x")
        if MASKED: a("s_and_b64 exec, exec, vcc")
    def qgb_store():
        a("s_mov_b64 s[78-2:78-1], exec" if False else "s_mov_b64 s[98:99], exec")
        a("s_mov_b32 exec_lo, 0x55555555\ns_mov_b32 exec_hi, 0")
        a(f"buffer_store_dwordx2 v[238:239], v237, {S_WS}, s71 offen sc1")
        a("s_mov_b64 exec, s[98:99]")
    poll_begin("L_p1", ("s62", "s63", "s64"))
    a(f"s_cmp_eq_u32 s61, {BP}\ns_cbranch_scc0 L_p1n")
    qgb_store()
    a("L_p1n:")
    def dual_loads(name, emit):
        a(f"s_cmp_eq_u32 s75, {BP}\ns_cbranch_scc1 {name}_b")
        emit(LF)
        a(f"s_branch {name}_c\n{name}_b:")
        emit("sc1")
        a(f"{name}_c:")
    def g1_loads(fl):
        for s in range(4):
            r = 148+8*s
            a(f"buffer_load_dwordx4 {vr(r)}, v13, {S_WS}, s62 offen offset:{1024*s} {fl}")
            a(f"buffer_load_dwordx4 {vr(r+4)}, v13, {S_WS}, s62 offen offset:{1024*s+512} {fl}")
    dual_loads("L_p1", g1_loads)
    a("s_waitcnt vmcnt(0)")
    tagcheck("v14", [f"v{148+8*s+k}" for s in range(4) for k in (1,3,5,7)])
    poll_end("L_p1", "v14")
    a(f"s_cmp_gt_u32 s61, {BP}\ns_cbranch_scc1 L_p1m")
    qgb_store()
    a("L_p1m:")
    stamp(4)
    if opt.get('sent2', 0): sentinel(SENT2)
    for s in range(4):
        r = 148+8*s
        a(f"v_mov_b32 v{r+1}, v{r+2}\nv_mov_b32 v{r+2}, v{r+4}\nv_mov_b32 v{r+3}, v{r+6}")
    a("s_waitcnt lgkmcnt(0)")
    for s in range(4):
        for tile in range(2):
            mfma(vr(180+4*tile), vr(148+8*s), vr(116+(tile*4+s)*4), s == 0)
    a(f"s_mov_b32 s63, {f2u(SCALE):#x}")
    a("v_lshlrev_b32 v13, 2, v3\nv_lshl_add_u32 v13, v4, 6, v13\nv_cmp_eq_u32 vcc, 1, v4")
    a(f"s_lshl_b32 s62, {SR}, 9\ns_lshl_b32 s64, {SW}, 7\ns_add_u32 s62, s62, s64\ns_add_u32 s62, s62, {QA}")
    a("v_add_f32 v180, v180, v181\nv_add_f32 v184, v184, v185\nv_add_f32 v182, v182, v183\nv_add_f32 v186, v186, v187")
    a("v_add_f32 v180, v180, v182\nv_add_f32 v184, v184, v186")
    swap16("v_add_f32", ["v180", "v184"], ["v181", "v185"])
    a("v_cndmask_b32 v180, v180, v184, vcc\nv_mul_f32 v180, s63, v180")
    a("v_mov_b32_dpp v181, v180 row_shl:1 row_mask:0xf bank_mask:0xf")
    a(f"v_cvt_pk_bf16_f32 v188, v180, v181\nv_mov_b32 v189, {TAG}")
    a("s_mov_b32 exec_lo, 0x55555555\ns_mov_b32 exec_hi, 0")
    a(f"buffer_store_dwordx2 v[188:189], v13, {S_WS}, s62 offen sc1")
    a("s_mov_b64 exec, -1")
    stamp(5)
    a("v_lshrrev_b32 v15, 1, v3\nv_and_b32 v16, 1, v4\nv_lshlrev_b32 v16, 2, v16\nv_xor_b32 v15, v15, v16\nv_lshlrev_b32 v15, 5, v15\nv_and_b32 v16, 1, v0\nv_lshl_add_u32 v15, v16, 4, v15\nv_lshl_add_u32 v15, v4, 13, v15")
    a(f"s_lshl_b32 s62, {SW}, 1\ns_and_b32 s63, s62, 3\ns_lshl_b32 s63, s63, 5\nv_xor_b32 v16, s63, v15\ns_add_u32 s62, s62, 1\ns_and_b32 s63, s62, 3\ns_lshl_b32 s63, s63, 5\nv_xor_b32 v15, s63, v15")
    a(f"s_lshl_b32 s62, {SSUB}, 20\ns_lshl_b32 s63, {SH}, 8\ns_add_u32 s62, s62, s63\ns_lshl_b32 s63, {SW}, 18\ns_add_u32 s62, s62, s63")
    a(f"s_lshl_b32 s63, {SW}, 13\ns_add_u32 s63, s63, {WUV}")
    for k in range(8):
        a(f"s_mov_b32 m0, s63\ns_add_u32 s63, s63, 1024")
        a(f"buffer_load_dwordx4 {'v16' if k < 4 else 'v15'}, {S_C}, s62 offen{NT} lds")
        if k < 7: a("s_add_u32 s62, s62, 32768")
    m_coef_loads()
    tail_prefetch()
    a("s_waitcnt vmcnt(0)\ns_barrier")
    a("v_lshrrev_b32 v19, 2, v3\nv_lshl_add_u32 v19, v4, 2, v19")
    a("v_lshrrev_b32 v20, 2, v3\nv_and_b32 v21, 1, v4\nv_lshl_add_u32 v21, v21, 2, v20")
    a(f"s_lshl_b32 s62, {SW}, 1\nv_xor_b32 v21, s62, v21\nv_lshlrev_b32 v21, 5, v21")
    a("v_lshl_add_u32 v20, v20, 4, v4\nv_lshl_add_u32 v20, v20, 8, v21\nv_and_b32 v21, 3, v3\nv_lshl_add_u32 v20, v21, 3, v20\nv_xor_b32 v21, 32, v20")
    for tt in range(2):
        for j in range(4):
            for u in range(2):
                r = 60+(tt*4+j)*4+2*u; tau = 2*j+u
                a(f"ds_read_b64_tr_b16 v[{r}:{r+1}], {'v20' if tt==0 else 'v21'} offset:{WUV+16384*(tau>>2)+1024*(tau&3)}")
    m_coef_unpack()
    a("v_lshlrev_b32 v22, 4, v0\nv_and_b32 v23, 31, v1\nv_lshlrev_b32 v23, 9, v23")
    a(f"s_lshl_b32 s62, {SR}, 14\ns_add_u32 s66, s62, {OP}\ns_add_u32 s67, s66, 4096\ns_add_u32 s68, s66, 8192\ns_add_u32 s69, s66, 12288")
    a(f"s_lshr_b32 s62, {SH}, 3\ns_lshl_b32 s62, s62, 7\ns_and_b32 s63, {SH}, 7\ns_lshl_b32 s63, s63, 4\ns_add_u32 s62, s62, s63\ns_add_u32 s70, s62, {ST}")
    a(f"v_lshrrev_b32 v24, 5, v0\nv_mul_u32_u24 v24, 288, v24\nv_and_b32 v25, 31, v0\nv_lshl_add_u32 v24, v25, 3, v24\nv_add_u32 v24, {OS}, v24")
    a(f"s_lshl_b32 s62, {SW}, 7\ns_add_u32 s71, s62, {WX}\nv_and_b32 v25, 31, v1\nv_lshlrev_b32 v25, 2, v25\nv_add_u32 v25, s71, v25")
    a(f"v_lshlrev_b32 v27, 4, v4\nv_add_u32 v27, s71, v27")
    a(f"v_mul_u32_u24 v28, 288, v19\nv_and_b32 v29, 3, v3\nv_lshl_add_u32 v28, v29, 3, v28\nv_add_u32 v28, {OS}, v28")
    a(f"s_lshl_b32 s72, {SH}, 11\ns_lshl_b32 s63, {SW}, 9\ns_add_u32 s72, s72, s63\ns_lshl_b32 s63, {SSUB}, 4\ns_add_u32 s72, s72, s63\ns_add_u32 s72, s72, {CP}\ns_add_u32 s73, s72, {CPB-CP}")
    a("v_lshrrev_b32 v30, 2, v3\nv_lshlrev_b32 v30, 6, v30\nv_bfe_u32 v14, v3, 1, 1\nv_lshl_add_u32 v30, v14, 3, v30\nv_lshl_add_u32 v30, v4, 8, v30\nv_cmp_eq_u32 s[8:9], 1, v4")
    stamp(6)
    a("s_mov_b32 exec_hi, 0")
    poll_begin("L_p3a")
    a(f"buffer_load_dwordx4 v[116:119], v23, {S_WS}, s70 offen sc1")
    a("s_waitcnt vmcnt(0)")
    tagcheck("v14", ["v117", "v119"])
    poll_end("L_p3a", "v14")
    for i in range(4):
        a(f"buffer_load_dwordx4 {vr(100+4*i)}, v22, {S_WS}, s{66+i} offen sc1")
    a("v_mov_b32 v120, v116")
    row_allreduce("v_max_f32", ["v120"]); swap16("v_max_f32", ["v120"], ["v121"])
    a("v_sub_f32 v116, v116, v120\nv_exp_f32 v116, v116\nv_mul_f32 v118, v116, v118")
    row_allreduce("v_add_f32", ["v118"]); swap16("v_add_f32", ["v118"], ["v121"])
    a("v_rcp_f32 v118, v118\nv_mul_f32 v116, v116, v118")
    a("s_mov_b32 exec_hi, 0\nds_write_b32 v25, v116\ns_mov_b64 exec, -1")
    a("ds_read_b128 v[120:123], v27\nds_read_b128 v[124:127], v27 offset:64")
    a("s_waitcnt vmcnt(0)")
    tagcheck("v14", [f"v{100+4*i+k}" for i in range(4) for k in (1,3)])
    a("v_cmp_ne_u32 vcc, 0, v14\ns_cbranch_vccz L_p3b_x")
    if MASKED: a("s_and_b64 exec, exec, vcc")
    poll_begin("L_p3b")
    for i in range(4):
        a(f"buffer_load_dwordx4 {vr(100+4*i)}, v22, {S_WS}, s{66+i} offen sc1")
    a("s_waitcnt vmcnt(0)")
    tagcheck("v14", [f"v{100+4*i+k}" for i in range(4) for k in (1,3)])
    poll_end("L_p3b", "v14")
    stamp(7)
    for i in range(4):
        a(f"v_mov_b32 v{101+4*i}, v{102+4*i}\nds_write_b64 v24, v[{100+4*i}:{101+4*i}] offset:{2304*i}")
    a("s_waitcnt lgkmcnt(0)\ns_barrier")
    for t in range(8):
        for u in range(2):
            r = 132+4*t+2*u
            a(f"ds_read_b64_tr_b16 v[{r}:{r+1}], v28 offset:{4608*u+32*t}")
    a("v_cvt_pk_bf16_f32 v128, v120, v121\nv_cvt_pk_bf16_f32 v129, v122, v123\nv_cvt_pk_bf16_f32 v130, v124, v125\nv_cvt_pk_bf16_f32 v131, v126, v127")
    for t in range(8):
        a(f"s_waitcnt lgkmcnt({14-2*t})")
        mfma(vr(164+4*t), vr(132+4*t), vr(128), True)
    for j in range(4):
        d0 = 164+8*j; o = 100+4*j
        a(f"v_cvt_pk_bf16_f32 v{o}, v{d0}, v{d0+1}\nv_cvt_pk_bf16_f32 v{o+1}, v{d0+2}, v{d0+3}\nv_cvt_pk_bf16_f32 v{o+2}, v{d0+4}, v{d0+5}\nv_cvt_pk_bf16_f32 v{o+3}, v{d0+6}, v{d0+7}")
    for j in range(4):
        for tt in range(2):
            mfma(vr(116+4*tt), vr(100+4*j), vr(60+(tt*4+j)*4), j == 0)
    a("v_cndmask_b32 v116, v116, v120, s[8:9]")
    a("v_mov_b32_dpp v117, v116 row_shl:1 row_mask:0xf bank_mask:0xf")
    a(f"v_cvt_pk_bf16_f32 v118, v116, v117\nv_mov_b32 v119, {TAG}")
    a("s_mov_b32 exec_lo, 0x55555555\ns_mov_b32 exec_hi, 0")
    a(f"buffer_store_dwordx2 v[118:119], v30, {S_WS}, s72 offen")
    a(f"buffer_store_dwordx2 v[118:119], v30, {S_WS}, s73 offen sc1")
    a("s_mov_b64 exec, -1")
    stamp(8)
    a(f"s_cmp_eq_u32 {SW}, 0\ns_cbranch_scc1 L_U\ns_cmp_eq_u32 {SW}, 1\ns_cbranch_scc0 L_M\ns_cmp_lt_u32 s2, 32\ns_cbranch_scc1 L_U\ns_branch L_M")

    a.c("================= Y role: S3 (attention), S5 (out partial)")
    a("L_Y:")
    a("v_lshlrev_b32 v5, 4, v1")
    YD = 0
    for q in range(EARLY, 4): ckv_group(q)
    stamp(1)
    srd(S_B, 14, 5242880)
    PWY = 1 if opt.get('prewarm', 1) else 0
    if PWY:
        a(f"v_and_b32 v253, 3, v3\nv_lshlrev_b32 v253, 7, v253\ns_lshl_b32 s62, {SR}, 9\ns_add_u32 s62, s62, {CP}")
        a(f"buffer_load_dword v252, v253, {S_WS}, s62 offen {LF}")
    a(f"s_lshl_b32 s62, {SW}, 5\nv_add_u32 v6, s62, v3\nv_mul_u32_u24 v6, {CKV_STRIDE}, v6\nv_lshl_add_u32 v6, v4, 4, v6")
    a("v_lshrrev_b32 v19, 2, v3\nv_lshl_add_u32 v19, v4, 2, v19")
    a(f"v_mul_u32_u24 v7, {CKV_STRIDE}, v19\nv_and_b32 v8, 3, v3\nv_lshl_add_u32 v7, v8, 3, v7\ns_lshl_b32 s62, {SW}, 8\nv_add_u32 v7, s62, v7\nv_add_u32 v8, {64*CKV_STRIDE}, v7")
    a("v_lshlrev_b32 v22, 4, v0")
    a(f"s_lshl_b32 s62, {SSUB}, 14\ns_add_u32 s66, s62, {QA}\ns_add_u32 s67, s66, 4096\ns_add_u32 s68, s66, 8192\ns_add_u32 s69, s66, 12288")
    a(f"v_lshrrev_b32 v24, 7, v0\nv_mul_u32_u24 v24, {CKV_STRIDE}, v24\nv_and_b32 v25, 127, v0\nv_lshl_add_u32 v24, v25, 3, v24\nv_add_u32 v24, {QS}, v24")
    a(f"v_and_b32 v25, 7, v3\nv_mul_u32_u24 v25, {CKV_STRIDE}, v25\nv_lshl_add_u32 v25, v4, 4, v25\nv_add_u32 v25, {QS}, v25")
    a(f"s_lshl_b32 s62, {SW}, 2\ns_add_u32 s62, s62, {MX}\nv_lshlrev_b32 v26, 4, v3\nv_add_u32 v27, s62, v26\nv_add_u32 v28, {MX}, v26")
    a(f"s_lshl_b32 s62, {SW}, 10\ns_add_u32 s62, s62, {PX}\nv_add_u32 v29, s62, v5\nv_add_u32 v31, {PX}, v5")
    for k in range(4): a(f"v_mov_b32 v{184+k}, 0x3f803f80")
    a("v_and_b32 v21, 1, v3\nv_cmp_eq_u32 s[8:9], 1, v21\nv_and_b32 v21, 2, v3\nv_cmp_eq_u32 s[10:11], 2, v21")
    a("v_and_b32 v30, 1, v4\nv_lshlrev_b32 v30, 18, v30\nv_lshl_add_u32 v30, v3, 4, v30\nv_lshrrev_b32 v21, 1, v4\nv_lshl_add_u32 v30, v21, 8, v30\nv_cmp_eq_u32 s[12:13], 1, v21")
    a(f"s_lshl_b32 s73, {SSUB}, 19\ns_lshl_b32 s63, {SW}, 14\ns_add_u32 s73, s73, s63\ns_lshl_b32 s63, {SH}, 9\ns_add_u32 s73, s73, s63\ns_add_u32 s73, s73, {OP}")
    a(f"s_lshl_b32 s72, {SR}, 7\ns_add_u32 s72, s72, {ST}")
    G2E = opt.get('g2early', 1)
    for tile in range(2):
        if tile == 1 and G2E:
            for i in range(4):
                a(f"buffer_load_dwordx4 {vr(100+4*i)}, v22, {S_WS}, s{66+i} offen sc1")
        a(f"s_waitcnt vmcnt({PWY + (16 if tile == 0 else (4 if G2E else 0))})")
        if tile == 1: stamp(2)
        for s in range(16):
            a(f"ds_read_b128 {ar((tile*16+s)*4)}, v6 offset:{tile*16*CKV_STRIDE+64*s}")
    stamp(3)
    if opt.get('sent2', 0):
        poll_begin("L_p2a")
        a(f"buffer_load_dword v100, v23, {S_WS}, s70 offen sc1")
        a("s_waitcnt vmcnt(0)")
        tagcheck("v14", ["v100"])
        poll_end("L_p2a", "v14")
    if G2E:
        a("s_waitcnt vmcnt(0)")
        tagcheck("v14", [f"v{100+4*i+k}" for i in range(4) for k in (1,3)])
        a("v_cmp_ne_u32 vcc, 0, v14\ns_cbranch_vccz L_p2_x")
        if MASKED: a("s_and_b64 exec, exec, vcc")
    poll_begin("L_p2")
    for i in range(4):
        a(f"buffer_load_dwordx4 {vr(100+4*i)}, v22, {S_WS}, s{66+i} offen sc1")
    a("s_waitcnt vmcnt(0)")
    tagcheck("v14", [f"v{100+4*i+k}" for i in range(4) for k in (1,3)])
    poll_end("L_p2", "v14")
    stamp(4)
    for i in range(4):
        a(f"v_mov_b32 v{101+4*i}, v{102+4*i}\nds_write_b64 v24, v[{100+4*i}:{101+4*i}] offset:{2*CKV_STRIDE*i}")
    a("s_waitcnt lgkmcnt(0)\ns_barrier")
    for s in range(16):
        a(f"ds_read_b128 {vr(32+4*s)}, v25 offset:{64*s}")
    wo_n = [0]
    a(f"s_mul_i32 s71, {SR}, 40960")
    def wo_load():
        i = wo_n[0]; wo_n[0] += 1
        a(f"buffer_load_dwordx4 {vr(192+4*i)}, v22, {S_B}, s71 offen{NT}\ns_add_u32 s71, s71, 4096")
    pv = []
    for t in range(8):
        for j in range(4):
            for u in range(2):
                r = 128+(t*4+j)*4+2*u
                pv.append(f"ds_read_b64_tr_b16 a[{r}:{r+1}], {'v7' if j < 2 else 'v8'} offset:{(32*(j&1)+16*u)*CKV_STRIDE+32*t}")
    for s in range(16):
        if s < 4: a(f"s_waitcnt lgkmcnt({12-4*s})")
        for tile in range(2):
            sidx = s
            mfma(vr(100+4*tile), ar((tile*16+s)*4), vr(32+4*s), s == 0)
            if s >= 3:
                for _ in range(3 if pv else 0):
                    if pv: a(pv.pop(0))
            if tile == 1 and s in (2, 5, 8, 11, 14): wo_load()
    while pv: a(pv.pop(0))
    stamp(5)
    a("v_max3_f32 v108, v100, v101, v102\nv_max3_f32 v109, v103, v104, v105\nv_max3_f32 v108, v108, v106, v107\nv_max_f32 v108, v108, v109")
    swap16("v_max_f32", ["v108"], ["v109"]); swap32("v_max_f32", ["v108"], ["v109"])
    a("ds_write_b32 v27, v108")
    a("s_waitcnt lgkmcnt(0)\ns_barrier")
    a(f"ds_read_b128 v[108:111], v28\ns_waitcnt lgkmcnt(0)")
    a("v_max3_f32 v108, v108, v109, v110\nv_max_f32 v108, v108, v111")
    for k in range(8): a(f"v_sub_f32 v{100+k}, v{100+k}, v108")
    for k in range(8): a(f"v_exp_f32 v{100+k}, v{100+k}")
    a("v_cvt_pk_bf16_f32 v112, v100, v101\nv_cvt_pk_bf16_f32 v113, v102, v103\nv_cvt_pk_bf16_f32 v114, v104, v105\nv_cvt_pk_bf16_f32 v115, v106, v107")
    a("ds_write_b128 v29, v[112:115]")
    a("s_waitcnt lgkmcnt(0)\ns_barrier")
    for j in range(4): a(f"ds_read_b128 {vr(32+4*j)}, v31 offset:{1024*j}")
    for j in range(4):
        a(f"s_waitcnt lgkmcnt({3-j})")
        mfma(vr(188), vr(32+4*j), vr(184), j == 0)
        for t in range(8):
            mfma(vr(120+4*t), vr(32+4*j), ar(128+(t*4+j)*4), j == 0)
            if (j*8+t) in (3, 9, 15, 21, 27): wo_load()
    a(f"s_cmp_eq_u32 {SW}, 0\ns_cbranch_scc0 L_Y_nostat")
    a("v_cndmask_b32 v110, v188, v189, s[8:9]\nv_cndmask_b32 v111, v190, v191, s[8:9]\nv_cndmask_b32 v110, v110, v111, s[10:11]")
    a(f"v_mov_b32 v109, {TAG}\nv_mov_b32 v111, {TAG}")
    a("s_mov_b64 exec, 0x00f0000f")
    a(f"buffer_store_dwordx4 v[108:111], v26, {S_WS}, s72 offen sc1")
    a("s_mov_b64 exec, -1\nL_Y_nostat:")
    for r in range(4):
        o = 160+4*r
        for e in range(4): a(f"v_cndmask_b32 v{120+4*e+r}, v{120+4*e+r}, v{136+4*e+r}, s[12:13]")
        a(f"v_cvt_pk_bf16_f32 v{o}, v{120+r}, v{124+r}\nv_mov_b32 v{o+1}, {TAG}\nv_cvt_pk_bf16_f32 v{o+2}, v{128+r}, v{132+r}\nv_mov_b32 v{o+3}, {TAG}")
        a(f"buffer_store_dwordx4 {vr(o)}, v30, {S_WS}, s73 offen sc1")
        if r < 3: a("s_add_u32 s73, s73, 65536")
    stamp(6)
    assert wo_n[0] == 10
    a("s_mov_b32 s63, 52429")
    for i in range(10):
        a(f"v_add_u32 v9, {256*i}, v0\nv_mul_u32_u24 v10, s63, v9\nv_lshrrev_b32 v10, 22, v10\nv_lshlrev_b32 v10, 5, v10\nv_lshl_add_u32 v{232+i}, v9, 4, v10")
    a(f"v_mul_u32_u24 v7, {WO_STRIDE}, v19\nv_and_b32 v8, 3, v3\nv_lshl_add_u32 v7, v8, 3, v7\ns_mul_i32 s62, {SW}, 320\nv_add_u32 v7, s62, v7")
    a("s_waitcnt vmcnt(4)")
    for i in range(10):
        a(f"ds_write_b128 v{232+i}, {vr(192+4*i)}")
    a("s_waitcnt lgkmcnt(0)\ns_barrier")
    for tile in range(10):
        for u in range(2):
            r = 32+4*tile+2*u
            a(f"ds_read_b64_tr_b16 v[{r}:{r+1}], v7 offset:{16*WO_STRIDE*u+32*tile}")
    m_coef_loads()
    tail_prefetch(False)
    a("s_waitcnt vmcnt(0)")
    m_coef_unpack()
    a(f"v_and_b32 v13, 3, v3\nv_lshlrev_b32 v13, 4, v13\nv_lshl_add_u32 v13, v4, 6, v13\ns_lshl_b32 s68, {SR}, 9\ns_add_u32 s68, s68, {CP}\ns_add_u32 s69, s68, {CPB-CP}")
    a(f"s_mul_i32 s62, {SR}, 2560\ns_mul_i32 s63, {SW}, 640\ns_add_u32 s62, s62, s63\ns_add_u32 s67, s62, {OUTP}")
    a("v_lshlrev_b32 v12, 2, v3\nv_lshl_add_u32 v12, v4, 6, v12")
    a("s_waitcnt lgkmcnt(0)")
    stamp(7)
    poll_begin("L_p4", ("s66", "s68", "s69"))
    dual_loads("L_p4", lambda fl: a(f"buffer_load_dwordx4 v[100:103], v13, {S_WS}, s66 offen {fl}\nbuffer_load_dwordx4 v[104:107], v13, {S_WS}, s66 offen offset:256 {fl}"))
    a("s_waitcnt vmcnt(0)")
    tagcheck("v14", ["v101","v103","v105","v107"])
    poll_end("L_p4", "v14")
    stamp(8)
    if opt.get('sent5', 0): sentinel(SENT5)
    a("v_mov_b32 v101, v102\nv_mov_b32 v102, v104\nv_mov_b32 v103, v106\nv_cmp_eq_u32 vcc, 1, v4")
    for tile in range(10):
        mfma(vr(120+4*tile), vr(100), vr(32+4*tile), True)
    for tile in range(10):
        d = 120+4*tile
        a(f"v_pk_add_f32 v[{d}:{d+1}], v[{d}:{d+1}], v[{d+2}:{d+3}]")
    for k in range(5):
        d = 120+8*k
        a(f"v_cndmask_b32 v{d}, v{d}, v{d+4}, vcc\nv_cndmask_b32 v{d+1}, v{d+1}, v{d+5}, vcc")
    for k in range(5):
        d = 120+8*k
        a(f"v_add_f32 v{d}, v{d}, v{d+1}")
    for k in range(5):
        d = 120+8*k
        a(f"v_mov_b32_dpp v{d+1}, v{d} row_shl:1 row_mask:0xf bank_mask:0xf")
    for k in range(5):
        d = 120+8*k
        a(f"v_cvt_pk_bf16_f32 v{d+2}, v{d}, v{d+1}\nv_mov_b32 v{d+3}, {TAG}")
    a("s_mov_b32 exec_lo, 0x55555555\ns_mov_b32 exec_hi, 0")
    for k in range(5):
        d = 120+8*k
        a(f"buffer_store_dwordx2 v[{d+2}:{d+3}], v12, {S_WS}, s67 offen offset:{128*k}")
    a(f"s_add_u32 s67, s67, {OUTPB-OUTP}")
    for k in range(5):
        d = 120+8*k
        a(f"buffer_store_dwordx2 v[{d+2}:{d+3}], v12, {S_WS}, s67 offen offset:{128*k} sc1")
    a("s_mov_b64 exec, -1")

    a.c("================= U: workgroups with idx < 20, wave 0")
    a("s_branch L_M")
    a("L_U:")
    a(f"s_add_u32 s68, s101, {OUTPB-OUTP}")
    poll_begin("L_p5", ("s66", "s101", "s68"))
    a(f"s_add_u32 s67, s66, {8*2560}")
    dual_loads("L_p5", lambda fl: a(f"buffer_load_dwordx4 v[100:103], v248, {S_WS}, s66 offen {fl}\nbuffer_load_dwordx4 v[104:107], v248, {S_WS}, s67 offen {fl}"))
    a("s_waitcnt vmcnt(0)")
    tagcheck("v14", ["v101", "v103", "v105", "v107"])
    poll_end("L_p5", "v14")
    a("s_mov_b32 s63, 0xffff0000")
    for k, s_ in enumerate((100, 102, 104, 106)):
        a(f"v_lshlrev_b32 v{108+2*k}, 16, v{s_}\nv_and_b32 v{109+2*k}, s63, v{s_}")
    a("v_pk_add_f32 v[108:109], v[108:109], v[112:113]\nv_pk_add_f32 v[110:111], v[110:111], v[114:115]")
    for k in range(4): a(f"v_add_f32_dpp v{108+k}, v{108+k}, v{108+k} row_ror:8 row_mask:0xf bank_mask:0xf")
    vs = [f"v{108+k}" for k in range(4)]; ts = [f"v{112+k}" for k in range(4)]
    swap16("v_add_f32", vs, ts); swap32("v_add_f32", vs, ts)
    a(f"v_cvt_pk_bf16_f32 v100, v108, v109\nv_mov_b32 v101, {TAG}\nv_cvt_pk_bf16_f32 v102, v110, v111\nv_mov_b32 v103, {TAG}")
    a(f"s_and_b32 s62, s2, 7\ns_mul_i32 s62, s62, 2560\ns_lshl_b32 s63, s74, 7\ns_add_u32 s62, s62, s63\ns_add_u32 s62, s62, {XP}")
    a("v_lshlrev_b32 v13, 4, v1\ns_mov_b64 exec, 0xff")
    a(f"buffer_store_dwordx4 v[100:103], v13, {S_WS}, s62 offen sc1")
    if opt.get('gate', 1):
        a(f"s_and_b32 s62, s2, 7\ns_lshl_b32 s62, s62, 7\ns_lshl_b32 s63, s74, 2\ns_add_u32 s62, s62, s63\ns_add_u32 s62, s62, {UF}\ns_mov_b64 exec, 1")
        a(f"buffer_store_dword v101, v18, {S_WS}, s62 offen")
    a("s_mov_b64 exec, -1")

    a.c("================= M stage")
    a("L_M:")
    a("s_mul_i32 s64, s2, 3\ns_cmp_ge_u32 s64, 640\ns_cbranch_scc1 L_fin")
    a(f"v_mov_b32 v144, {f2u(C0):#x}\nv_mov_b32 v145, {f2u(C0):#x}")
    for k in range(3): a(f"v_mov_b32 v{146+2*k}, 0\nv_mov_b32 v{147+2*k}, 0")
    a(f"v_add_u32 v15, s64, v1\nv_min_u32 v15, 639, v15\nv_lshlrev_b32 v15, 2, v15\nv_add_u32 v15, {HB}, v15")
    a("v_mov_b32 v132, 0\nv_mov_b32 v133, 0")
    a(f"s_cmp_eq_u32 {SW}, 3\ns_cbranch_scc1 L_M_wait")
    a(f"v_lshlrev_b32 v13, 4, v0\ns_mov_b32 s66, {XP}\ns_mov_b32 s67, {XP+5120}\ns_mov_b32 s68, {XP+10240}\ns_mov_b32 s69, {XP+15360}")
    a("s_mov_b32 s63, 0xffff0000")
    a("v_lshlrev_b32 v136, 16, v246\nv_and_b32 v137, s63, v246\nv_lshlrev_b32 v138, 16, v247\nv_and_b32 v139, s63, v247")
    a(f"s_cmp_eq_u32 {SW}, 2\ns_cselect_b32 s72, 0, -1\ns_mov_b32 exec_hi, s72")
    stamp(9)
    if opt.get('gate', 1):
        a(f"s_mov_b64 s[98:99], exec\ns_mov_b64 exec, 0xfffff\ns_and_b32 s62, s2, 7\ns_lshl_b32 s62, s62, 7\ns_add_u32 s62, s62, {UF}\nv_lshlrev_b32 v14, 2, v1\nv_mov_b32 v16, v14\ns_mov_b32 s61, 0")
        a("L_g6:")
        a(f"buffer_load_dword v100, v16, {S_WS}, s62 offen {LF}\ns_waitcnt vmcnt(0)")
        a(f"v_cmp_ne_u32 vcc, {TAG}, v100\ns_add_u32 s61, s61, 1\ns_cmp_gt_u32 s61, {opt.get('gatemax', 64)}\ns_cbranch_scc1 L_g6x\ns_cbranch_vccnz L_g6")
        a("L_g6x:\ns_mov_b64 exec, s[98:99]")
    poll_begin("L_p6")
    for xx in range(8):
        a(f"buffer_load_dwordx4 {vr(100+4*xx)}, v13, {S_WS}, s{66+(xx>>1)} offen offset:{2560*(xx&1)} sc1")
    a("s_waitcnt vmcnt(0)")
    tagcheck("v14", [f"v{100+4*xx+k}" for xx in range(8) for k in (1,3)])
    poll_end("L_p6", "v14")
    a("s_mov_b32 exec_hi, s72")
    stamp(10)
    for xx in range(8):
        b = 100+4*xx
        a(f"v_lshlrev_b32 v140, 16, v{b}\nv_and_b32 v141, s63, v{b}\nv_lshlrev_b32 v142, 16, v{b+2}\nv_and_b32 v143, s63, v{b+2}")
        a("v_pk_add_f32 v[136:137], v[136:137], v[140:141]\nv_pk_add_f32 v[138:139], v[138:139], v[142:143]")
    a("v_cvt_pk_bf16_f32 v140, v136, v137\nv_cvt_pk_bf16_f32 v141, v138, v139")
    a("v_lshlrev_b32 v136, 16, v140\nv_and_b32 v137, s63, v140\nv_lshlrev_b32 v138, 16, v141\nv_and_b32 v139, s63, v141")
    a(f"v_add_u32 v16, {HB}, v13\nds_write_b128 v16, v[136:139]")
    for k in range(4): a(f"v_subrev_f32 v{140+k}, s3, v{136+k}")
    a("v_add_f32 v132, v140, v141\nv_mul_f32 v133, v140, v140\nv_add_f32 v134, v142, v143\nv_fmac_f32 v133, v141, v141\nv_add_f32 v132, v132, v134\nv_fmac_f32 v133, v142, v142\nv_fmac_f32 v133, v143, v143")
    a("s_mov_b64 exec, -1")
    wave_allreduce("v_add_f32", ["v132", "v133"], ["v134", "v135"])
    a(f"s_lshl_b32 s62, {SW}, 3\ns_add_u32 s62, s62, {SB}\nv_mov_b32 v16, s62\ns_mov_b64 exec, 1\nds_write_b64 v16, v[132:133]\ns_mov_b64 exec, -1")
    a(f"s_or_b32 s62, s2, {SW}\ns_cmp_eq_u32 s62, 0\ns_cbranch_scc0 L_noep")
    a(f"v_mov_b32 v16, {TAG}\ns_mov_b64 exec, 1\nbuffer_store_dword v16, v18, {S_WS}, 0 offen sc1\ns_mov_b64 exec, -1")
    a("L_noep:")
    a("s_waitcnt lgkmcnt(0)")
    a("L_M_wait:")
    a("s_barrier")
    a(f"v_mov_b32 v16, {SB}\nds_read_b128 v[120:123], v16\nds_read_b64 v[124:125], v16 offset:16\nds_read_b32 v136, v15\ns_mov_b32 s62, {f2u(1.0/640):#x}\ns_waitcnt lgkmcnt(0)")
    a("v_add_f32 v130, v120, v122\nv_add_f32 v132, v121, v123\nv_add_f32 v130, v130, v124\nv_add_f32 v132, v132, v125")
    a("v_mul_f32 v130, s62, v130\nv_mul_f32 v132, s62, v132")
    a("v_fma_f32 v132, -v130, v130, v132")
    a("v_add_f32 v130, s3, v130")
    a(f"v_add_f32 v133, {f2u(EPS):#x}, v132\nv_rsq_f32 v133, v133")
    a("v_sub_f32 v140, v136, v130")
    a("v_mul_f32 v134, v133, v133\nv_mul_f32 v134, v134, v132")
    a(f"v_add_f32 v134, {f2u(EPS):#x}, v134\nv_rsq_f32 v134, v134\nv_mul_f32 v140, v140, v133\ns_mov_b32 s62, {f2u(C1):#x}\nv_mul_f32 v140, v140, v134")
    for k in range(3):
        a(f"v_readlane_b32 s{70+2*k}, v140, {k}")
    for k in range(3):
        t = f"s[{70+2*k}:{71+2*k}]"
        U = lambda i: f"v[{152+2*i}:{153+2*i}]"
        Z = lambda i: f"v[{160+2*i}:{161+2*i}]"
        for i in range(4): a(f"v_pk_fma_f32 {U(i)}, v[{210+2*i}:{211+2*i}], {t}, v[{218+2*i}:{219+2*i}] op_sel_hi:[1,0,1]")
        for i in range(4): a(f"v_pk_mul_f32 {Z(i)}, {U(i)}, {U(i)}")
        for i in range(4): a(f"v_pk_fma_f32 {Z(i)}, {Z(i)}, s[62:63], v[144:145] op_sel_hi:[1,0,1]")
        for i in range(4): a(f"v_pk_mul_f32 {Z(i)}, {Z(i)}, {U(i)}")
        for i in range(4): a(f"v_exp_f32 v{160+2*i}, v{160+2*i}\nv_exp_f32 v{161+2*i}, v{161+2*i}")
        for i in range(4): a(f"v_pk_mul_f32 {U(i)}, {U(i)}, v[{226+2*i}:{227+2*i}]")
        for i in range(4): a(f"v_pk_add_f32 {Z(i)}, {Z(i)}, 1.0 op_sel_hi:[1,0]")
        for i in range(4): a(f"v_rcp_f32 v{160+2*i}, v{160+2*i}\nv_rcp_f32 v{161+2*i}, v{161+2*i}")
        for i in range(4): a(f"v_pk_fma_f32 v[{146+2*k}:{147+2*k}], {U(i)}, {Z(i)}, v[{146+2*k}:{147+2*k}]")
    for k in range(3): a(f"v_add_f32 v{146+2*k}, v{146+2*k}, v{147+2*k}")
    wave_allreduce("v_add_f32", ["v146","v148","v150"], ["v147","v149","v151"])
    a(f"s_lshl_b32 s62, {SW}, 4\ns_add_u32 s62, s62, {MRED}\nv_mov_b32 v15, s62\nv_mov_b32 v147, v148\nv_mov_b32 v148, v150")
    a("s_mov_b64 exec, 1\nds_write_b96 v15, v[146:148]\ns_mov_b64 exec, -1")
    a("s_waitcnt lgkmcnt(0)\ns_barrier")
    a(f"s_cmp_eq_u32 {SW}, 0\ns_cbranch_scc0 L_fin")
    a(f"v_lshlrev_b32 v15, 2, v1\nv_add_u32 v15, {MRED}, v15")
    a("ds_read_b32 v100, v15\nds_read_b32 v101, v15 offset:16\nds_read_b32 v102, v15 offset:32\nds_read_b32 v103, v15 offset:48")
    srd(S_T, 26, 1280)
    a("v_add_u32 v15, s64, v1\nv_lshlrev_b32 v16, 1, v15")
    a("v_add_f32 v136, v136, v208")
    a("s_waitcnt lgkmcnt(0)")
    a("v_add_f32 v100, v100, v101\nv_add_f32 v102, v102, v103\nv_add_f32 v100, v100, v102\nv_add_f32 v100, v100, v136")
    a("v_cvt_pk_bf16_f32 v100, v100, v100")
    a("v_cmp_gt_u32 vcc, 640, v15\ns_and_b64 exec, vcc, 7")
    a("s_cbranch_execz L_fin")
    a(f"buffer_store_short v100, v16, {S_T}, 0 offen")
    a("L_fin:")
    if opt.get('pin'):
        a(f"s_waitcnt lgkmcnt(0)\ns_add_u32 s76, s76, {opt['pin']}")
        a("L_pin:\ns_memrealtime s[78:79]\ns_waitcnt lgkmcnt(0)\ns_sub_u32 s80, s78, s76\ns_cmp_lt_i32 s80, 0\ns_cbranch_scc1 L_pin")
    if profile and opt.get('dbgout'):
        stamp(11)
        a("s_mov_b64 exec, -1\ns_waitcnt lgkmcnt(0)")
        srd(S_T, 28, 256)
        a(f"s_cmp_eq_u32 {SW}, 0\ns_cbranch_scc0 L_end")
        a("v_mov_b32 v18, 0\ns_mov_b64 exec, 1")
        a(f"s_not_b32 s62, s76\nv_mov_b32 v15, s62\nbuffer_atomic_umax v15, v18, {S_T}, 0 offen")
        a(f"v_mov_b32 v15, s98\nbuffer_atomic_umax v15, v18, {S_T}, 0 offen offset:44")
        a("s_bitcmp1_b32 s2, 7\ns_cbranch_scc1 L_dy")
        for k in range(1, 9):
            a(f"v_mov_b32 v15, s{76+2*k}\nbuffer_atomic_umax v15, v18, {S_T}, 0 offen offset:{4*k}")
        a(f"v_mov_b32 v15, s{76+2*10}\nbuffer_atomic_umax v15, v18, {S_T}, 0 offen offset:40")
        a(f"v_mov_b32 v15, s{76+2*9}\nbuffer_atomic_umax v15, v18, {S_T}, 0 offen offset:36")
        a("s_branch L_end\nL_dy:")
        for j, k in enumerate((2, 4, 6, 8)):
            a(f"v_mov_b32 v15, s{76+2*k}\nbuffer_atomic_umax v15, v18, {S_T}, 0 offen offset:{48+4*j}")
    elif profile:
        stamp(11)
        a("s_mov_b64 exec, -1\ns_waitcnt lgkmcnt(0)")
        a(f"s_lshl_b32 s62, s2, 2\ns_add_u32 s62, s62, {SW}\ns_lshl_b32 s62, s62, 6\ns_add_u32 s62, s62, {TS}")
        a("v_mov_b32 v18, 0\ns_mov_b64 exec, 1")
        for k in range(12):
            a(f"v_mov_b32 v15, s{76+2*k}\nbuffer_store_dword v15, v18, {S_WS}, s62 offen offset:{4*k}")
        a(f"v_mov_b32 v15, s100\nbuffer_store_dword v15, v18, {S_WS}, s62 offen offset:48")
        a(f"s_getreg_b32 s100, hwreg(HW_REG_XCC_ID)\nv_mov_b32 v15, s100\nbuffer_store_dword v15, v18, {S_WS}, s62 offen offset:52")
        a(f"s_getreg_b32 s100, hwreg(HW_REG_HW_ID)\nv_mov_b32 v15, s100\nbuffer_store_dword v15, v18, {S_WS}, s62 offen offset:56")
    a("L_end:")
    a("s_endpgm")
    a("L_code_end:")
    a(f".set CODE_BYTES, L_code_end - {NAME}")
    a('.section .rodata,"a"\n.p2align 6')
    a(f".amdhsa_kernel {NAME}")
    a("  .amdhsa_next_free_vgpr 512\n  .amdhsa_next_free_sgpr 102\n  .amdhsa_accum_offset 256\n  .amdhsa_group_segment_fixed_size 0\n  .amdhsa_kernarg_size 112\n  .amdhsa_user_sgpr_count 2\n  .amdhsa_user_sgpr_kernarg_segment_ptr 1\n  .amdhsa_system_sgpr_workgroup_id_x 1")
    a(".end_amdhsa_kernel")
    n = a.hazard_pass()
    return a.text(), n

LAYOUT = dict(QG=QG, QA=QA, ST=ST, CP=CP, HG=HG, OUTP=OUTP, OP=OP, TS=TS, XP=XP)
if __name__ == "__main__":
    prof = "prof" in sys.argv[2:]
    opt = {}
    for x in sys.argv[2:]:
        if '=' in x:
            k, v = x.split('='); opt[k] = int(v) if v.lstrip('-').isdigit() else v
    txt, n = gen(profile=prof, opt=opt)
    open(sys.argv[1], "w").write(txt)
    print("auto nops:", n, "lines:", txt.count("\n"), LAYOUT)
```

```python
import sys, math, struct
from asmlib import Asm

NAME = "sequential_preLN__compressed_kv_cla__mixer_token_mlp__decode_kernel"
HEADER = open('sequential_preLN__compressed_kv_cla__mixer_token_mlp__decode.s.ref').read().split('; Override')[0]

def f2u(x): return struct.unpack('<I', struct.pack('<f', x))[0]

QG   = 4096
QA   = QG + 131072
ST   = QA + 65536
CP   = ST + 16384
HG   = CP + 65536
SENT2 = HG + 4096
SENT5 = SENT2 + 16384
QGB  = SENT5 + 16384
CPB  = QGB + 131072
OUTP = CPB + 65536
OUTPB = OUTP + 128*2560
XP   = OUTPB + 128*2560
UF   = XP + 8*2560
YF   = UF + 1024
OP   = (2 << 20) + 4096
TS   = (4 << 20) + 65536
assert YF + 8*128 <= OP
WS_SIZE = 5 << 20
CKV_STRIDE = 1056
QS = 135168; PX = 143616; MX = 147712; LX = 147968; MRED = 148224; MB = 148288
WUK = 0; WUV = 32768; OS = 65536; S1RED = 74752; WX = 82944; RRED = 83456
S1RED_C = 135168
LDS_BYTES = 148480
WO_STRIDE = 1312
HB = PX; SB = MB

SCALE = (128 ** -0.5) * math.log2(math.e)
C0 = -2.0 * math.sqrt(2.0 / math.pi) * math.log2(math.e)
C1 = C0 * 0.044715
EPS = 1e-5

S_WS, S_X, S_A, S_B, S_C, S_T = 's[32:35]', 's[36:39]', 's[40:43]', 's[44:47]', 's[48:51]', 's[52:55]'
TAG, SW, SR, SH, SSUB = 's56', 's57', 's58', 's59', 's60'

def gen(profile=False, spin_limit=400000, opt=None):
    opt = opt or {}
    WARM = opt.get('warm', 1)
    STPOS = opt.get('stpos', 1)
    a = Asm()
    NT = " nt" if opt.get('nt', 1) else ""
    LF = opt.get('lflag', 'nt')
    BP = opt.get('bper', 32) - 1
    SMASK = opt.get('smask', 0xfff)
    def stamp(k):
        if profile and (SMASK >> k) & 1:
            assert k < 12
            a(f"s_memrealtime s[{76+2*k}:{77+2*k}]")
    def srd(dst, ptr, size):
        d = int(dst[2:dst.index(':')])
        a(f"s_mov_b32 s{d}, s{ptr}\ns_mov_b32 s{d+1}, s{ptr+1}\ns_mov_b32 s{d+2}, {size}\ns_mov_b32 s{d+3}, 0x00020000")
    DPPS = ("quad_perm:[1,0,3,2]", "quad_perm:[2,3,0,1]", "row_half_mirror", "row_mirror")
    def row_allreduce(op, vs):
        for m in DPPS:
            for v in vs: a(f"{op}_dpp {v}, {v}, {v} {m} row_mask:0xf bank_mask:0xf")
    def swapred(sw, op, vs, ts):
        for v, t in zip(vs, ts): a(f"v_mov_b32 {t}, {v}")
        for v, t in zip(vs, ts): a(f"{sw} {v}, {t}")
        for v, t in zip(vs, ts): a(f"{op} {v}, {v}, {t}")
    def swap16(op, vs, ts): swapred("v_permlane16_swap_b32", op, vs, ts)
    def swap32(op, vs, ts): swapred("v_permlane32_swap_b32", op, vs, ts)
    def wave_allreduce(op, vs, ts):
        row_allreduce(op, vs); swap16(op, vs, ts); swap32(op, vs, ts)
    MASKED = opt.get('masked', 1)
    def poll_begin(name, dual=None):
        a(f"s_mov_b32 s61, 0")
        a(f"{name}:")
        if dual:
            a(f"s_and_b32 s75, s61, {BP}\ns_cmp_eq_u32 s75, {BP}\ns_cselect_b32 {dual[0]}, {dual[2]}, {dual[1]}")
    def poll_end(name, bad):
        a(f"v_cmp_ne_u32 vcc, 0, {bad}")
        a(f"s_add_u32 s61, s61, 1")
        a(f"s_cmp_gt_u32 s61, {spin_limit}")
        a(f"s_cbranch_scc1 {name}_x")
        if MASKED:
            a(f"s_and_b64 exec, exec, vcc")
            a(f"s_cbranch_execnz {name}")
        else:
            a(f"s_cbranch_vccnz {name}")
        a(f"{name}_x:")
        if MASKED: a("s_mov_b64 exec, -1")
        if profile and opt.get('cntfor') == name:
            a("s_mov_b32 s100, s61")
    def tagcheck(bad, tags):
        a(f"v_xor_b32 {bad}, {TAG}, {tags[0]}")
        for t in tags[1:]:
            a(f"v_bitop3_b32 {bad}, {t}, {TAG}, {bad} bitop3:0xbe")
    def mfma(d, A, B, first):
        a(f"v_mfma_f32_16x16x32_bf16 {d}, {A}, {B}, {'0' if first else d}")
    def vr(b, n=4): return f"v[{b}:{b+n-1}]"
    def ar(b, n=4): return f"a[{b}:{b+n-1}]"

    a.lines += [l for l in HEADER.strip().split('\n')]
    a(f"; @launch grid=(256,1,1) block=(256,1,1) lds={LDS_BYTES}")
    a('.amdgcn_target "amdgcn-amd-amdhsa--gfx950"')
    a(f".text\n.globl {NAME}\n.p2align 8\n.type {NAME},@function\n{NAME}:")
    WPOS = opt.get('wpos', 0)
    def warm_load():
        a("s_getpc_b64 s[52:53]\nL_pc:\ns_sub_u32 s52, s52, L_pc-%s\ns_subb_u32 s53, s53, 0\nv_lshlrev_b32 v254, 7, v0\ns_mov_b32 s54, CODE_BYTES\ns_mov_b32 s55, 0x00020000" % NAME)
        a("buffer_load_dword v251, v254, s[52:55], 0 offen")
    if WARM and WPOS == 0: warm_load()
    stamp(0)
    if opt.get('pin'): a("s_memrealtime s[76:77]")
    if profile: a("s_mov_b32 s100, 99")
    a("s_cmp_ge_u32 s2, 256\ns_cbranch_scc1 L_end")
    a("s_load_dwordx16 s[4:19], s[0:1], 0\ns_load_dwordx8 s[20:27], s[0:1], 64\ns_load_dwordx4 s[28:31], s[0:1], 96")
    a("v_and_b32 v1, 63, v0\nv_lshrrev_b32 v2, 6, v0\nv_and_b32 v3, 15, v0\nv_bfe_u32 v4, v0, 4, 2")
    a(f"v_readfirstlane_b32 {SW}, v2")
    a(f"s_and_b32 s61, s2, 7\ns_bfe_u32 s62, s2, 0x40003\ns_lshl_b32 {SR}, s61, 4\ns_add_u32 {SR}, {SR}, s62")
    a(f"s_lshr_b32 {SH}, {SR}, 2\ns_and_b32 {SSUB}, {SR}, 3")
    a("v_mov_b32 v18, 0")
    a("s_waitcnt lgkmcnt(0)")
    srd(S_WS, 30, WS_SIZE)
    a(f"buffer_load_dword v250, v18, {S_WS}, 0 offen")
    if opt.get('tlbw', 0):
        a(f"s_mov_b32 s62, {2<<20}\ns_mov_b32 s63, {(4<<20)+8192}")
        a(f"buffer_load_dword v255, v18, {S_WS}, s62 offen\nbuffer_load_dword v255, v18, {S_WS}, s63 offen")
    srd(S_X, 4, 1280)
    def m_coef_loads():
        a("v_lshlrev_b32 v17, 2, v0")
        for k, p in enumerate((18, 20, 22)):
            srd(S_T, p, 3456)
            for i in range(4):
                a(f"buffer_load_dword v{196+4*k+i}, v17, {S_T}, 0 offen offset:{1024*i}")
        srd(S_T, 24, 2)
        a(f"buffer_load_ushort v208, v18, {S_T}, 0 offen")
    def m_coef_unpack():
        a("s_mov_b32 s63, 0xffff0000")
        for k in range(3):
            for i in range(4):
                s_ = 196+4*k+i; d = 210+8*k+2*i
                a(f"v_lshlrev_b32 v{d}, 16, v{s_}\nv_and_b32 v{d+1}, s63, v{s_}")
        a("v_lshlrev_b32 v208, 16, v208")
    def tail_prefetch(unit=True):
        a(f"v_lshlrev_b32 v245, 3, v0\nbuffer_load_dwordx2 v[246:247], v245, {S_X}, 0 offen")
        if opt.get('gate', 1):
            a(f"s_and_b32 s62, s2, 7\ns_lshl_b32 s62, s62, 7\ns_add_u32 s62, s62, {UF}\nv_lshlrev_b32 v249, 2, v1\nv_and_b32 v249, 127, v249")
            a(f"buffer_load_dword v252, v249, {S_WS}, s62 offen {LF}")
        if not unit: return
        a(f"v_lshrrev_b32 v248, 3, v1\nv_mul_u32_u24 v248, 2560, v248\nv_and_b32 v249, 7, v1\nv_lshl_add_u32 v248, v249, 4, v248")
        a(f"s_lshr_b32 s74, s2, 3\ns_cmp_eq_u32 {SW}, 1\ns_cselect_b32 s63, 16, 0\ns_add_u32 s74, s74, s63\ns_min_u32 s74, s74, 19")
        a(f"s_and_b32 s62, s2, 7\ns_mul_i32 s62, s62, {16*2560}\ns_lshl_b32 s63, s74, 7\ns_add_u32 s62, s62, s63\ns_add_u32 s101, s62, {OUTP}")
        a(f"s_and_b32 s62, s2, 7\ns_mul_i32 s63, s62, 2560\ns_lshl_b32 s65, s74, 7\ns_add_u32 s63, s63, s65\ns_add_u32 s63, s63, {XP}\nv_lshlrev_b32 v243, 4, v1\nv_add_u32 v243, s63, v243")
        a(f"s_lshl_b32 s62, s62, 7\ns_lshl_b32 s63, s74, 2\ns_add_u32 s62, s62, s63\ns_add_u32 s62, s62, {UF}\nv_mov_b32 v244, s62")
        if opt.get('prewarm', 1):
            a(f"s_add_u32 s62, s101, {8*2560}")
            a(f"buffer_load_dword v252, v248, {S_WS}, s101 offen {LF}\nbuffer_load_dword v252, v248, {S_WS}, s62 offen {LF}")
    def sentinel(base):
        lab = f"L_s{base}"
        a(f"s_cmp_eq_u32 {SW}, 0\ns_cbranch_scc0 {lab}")
        a(f"v_mov_b32 v240, {TAG}\nv_mov_b32 v241, {TAG}\nv_mov_b32 v242, {TAG}\nv_mov_b32 v243, {TAG}\nv_lshlrev_b32 v244, 4, v1")
        a(f"s_lshl_b32 s62, {SR}, 7\ns_add_u32 s62, s62, {base}\ns_mov_b64 exec, 0xff")
        a(f"buffer_store_dwordx4 v[240:243], v244, {S_WS}, s62 offen sc1")
        a(f"s_mov_b64 exec, -1\n{lab}:")

    NW = 1 if WARM else 0
    PWX = 1 if opt.get("prewarm", 1) else 0

    a.c("================= S1: q partials, head h1 = 4*xcd + (idx>>3), rows 80*me..80*me+79, me = idx&7")
    a("s_lshr_b32 s72, s2, 6\ns_and_b32 s73, s2, 7\ns_lshl_b32 s73, s73, 2\ns_add_u32 s72, s72, s73")
    a("s_bfe_u32 s73, s2, 0x30003")
    srd(S_A, 8, 5242880)
    a("v_lshlrev_b32 v5, 2, v1")
    for j in range(5): a(f"buffer_load_dword v{32+j}, v5, {S_X}, 0 offen offset:{256*j}")
    a(f"v_lshrrev_b32 v6, 4, v0\ns_mul_i32 s62, s73, 80\nv_add_u32 v7, s62, v6\nv_lshlrev_b32 v7, 1, v7")
    for i in range(5): a(f"buffer_load_ushort v{40+2*i}, v7, {S_X}, 0 offen offset:{32*i}")
    a("v_lshlrev_b32 v8, 4, v3\nv_lshl_add_u32 v8, v6, 13, v8")
    a(f"s_mul_i32 s61, s73, {80*8192}\ns_lshl_b32 s62, s72, 8\ns_add_u32 s61, s61, s62")
    for i in range(5):
        a(f"buffer_load_dwordx4 {vr(60+4*i)}, v8, {S_A}, s61 offen{NT}")
        if i < 4: a(f"s_add_u32 s61, s61, {16*8192}")
    WL = 1 if (WARM and WPOS == 1) else 0
    if WL: warm_load()
    a("v_xor_b32 v9, v3, v4\nv_lshlrev_b32 v9, 4, v9\nv_lshl_add_u32 v9, v4, 13, v9")
    a("v_xor_b32 v10, 64, v9\nv_xor_b32 v11, 128, v9\nv_xor_b32 v12, 192, v9")
    a("s_bitcmp1_b32 s2, 7\ns_cbranch_scc1 L_nouk")
    srd(S_B, 10, 4194304)
    a(f"s_lshl_b32 s66, {SSUB}, 20\ns_lshl_b32 s63, {SH}, 8\ns_add_u32 s66, s66, s63\ns_lshl_b32 s63, {SW}, 18\ns_add_u32 s66, s66, s63")
    a(f"s_lshl_b32 s67, {SW}, 13")
    NUP = opt.get('nup', 8)
    def uk_dma(k):
        a(f"s_mov_b32 m0, s67\ns_add_u32 s67, s67, 1024")
        a(f"buffer_load_dwordx4 v{9+(k&3)}, {S_B}, s66 offen{NT} lds")
        if k < 7: a(f"s_add_u32 s66, s66, 32768")
    for k in range(NUP): uk_dma(k)
    if PWX:
        a(f"v_and_b32 v253, 31, v1\nv_lshlrev_b32 v253, 7, v253\ns_lshl_b32 s62, {SH}, 12\ns_add_u32 s62, s62, {QG}")
        a(f"buffer_load_dword v252, v253, {S_WS}, s62 offen {LF}")
    a("s_branch L_s1c")
    a("L_nouk:")
    EARLY = opt.get('early', 0)
    ER = opt.get('erows', 0)
    def ckv_group(q, j0=0, j1=8):
        a(f"s_add_u32 s62, {SSUB}, {q}\ns_and_b32 s62, s62, 3\ns_add_u32 s63, s69, {(q*8+j0)*CKV_STRIDE}\ns_lshl_b32 s62, s62, 13\ns_add_u32 s62, s62, s68")
        if j0: a(f"s_add_u32 s62, s62, {1024*j0}")
        for j in range(j0, j1):
            a(f"s_mov_b32 m0, s63\ns_add_u32 s63, s63, {CKV_STRIDE}")
            a(f"buffer_load_dwordx4 v9, {S_B}, s62 offen{' nt' if opt.get('ntc', 0) == 2 or (opt.get('ntc', 0) == 1 and q == 0) else ''} lds")
            if j < j1-1: a(f"s_add_u32 s62, s62, 1024")
    srd(S_B, 6, 4194304)
    a("v_lshlrev_b32 v9, 4, v1")
    a(f"s_lshl_b32 s68, {SH}, 17\ns_lshl_b32 s63, {SW}, 15\ns_add_u32 s68, s68, s63")
    a(f"s_mul_i32 s69, {SW}, {32*CKV_STRIDE}")
    for q in range(EARLY): ckv_group(q)
    if ER: ckv_group(0, 0, ER)
    a("L_s1c:")
    a(f"v_lshlrev_b32 v241, 9, v6\nv_lshl_add_u32 v241, v3, 4, v241\nv_add_u32 v241, {S1RED_C}, v241")
    a(f"v_and_b32 v14, 31, v1\nv_lshrrev_b32 v242, 3, v14\ns_lshl_b32 s62, {SW}, 2\nv_add_u32 v242, s62, v242\nv_lshlrev_b32 v242, 4, v242")
    a("v_bfe_u32 v16, v1, 2, 1\nv_lshl_add_u32 v242, v16, 8, v242\nv_and_b32 v16, 3, v1\nv_lshl_add_u32 v242, v16, 2, v242\nv_lshrrev_b32 v16, 5, v1\nv_lshl_add_u32 v242, v16, 12, v242")
    a(f"v_add_u32 v242, {S1RED_C}, v242")
    a(f"s_lshl_b32 s70, s72, 12\ns_lshl_b32 s63, {SW}, 10\ns_add_u32 s70, s70, s63\ns_lshl_b32 s63, s73, 4\ns_add_u32 s70, s70, s63\ns_add_u32 s70, s70, {QG}\ns_add_u32 s71, s70, {QGB-QG}")
    a("v_lshrrev_b32 v237, 3, v14\nv_lshlrev_b32 v237, 7, v237\nv_bfe_u32 v16, v14, 2, 1\nv_lshl_add_u32 v237, v16, 9, v237\nv_bfe_u32 v16, v14, 1, 1\nv_lshl_add_u32 v237, v16, 3, v237")
    stamp(1)
    def s1_body(extra, late=()):
        late = list(late)
        a(f"s_waitcnt vmcnt({10+extra})")
        a(f"v_readfirstlane_b32 {TAG}, v250\ns_add_u32 {TAG}, {TAG}, 1")
        a("s_mov_b32 s63, 0xffff0000")
        for j in range(5):
            a(f"v_lshlrev_b32 v{100+2*j}, 16, v{32+j}\nv_and_b32 v{101+2*j}, s63, v{32+j}")
        a("v_readfirstlane_b32 s64, v100")
        for k in range(100, 110): a(f"v_subrev_f32 v{k}, s64, v{k}")
        a("s_mov_b32 s3, s64")
        a("v_add_f32 v110, v100, v101\nv_mul_f32 v112, v100, v100")
        a("v_fmac_f32 v112, v101, v101")
        for k in range(102, 110): a(f"v_add_f32 v110, v110, v{k}\nv_fmac_f32 v112, v{k}, v{k}")
        wave_allreduce("v_add_f32", ["v110", "v112"], ["v111", "v113"])
        a(f"s_mov_b32 s65, {f2u(1.0/640):#x}\nv_mul_f32 v110, s65, v110\nv_mul_f32 v112, s65, v112")
        a(f"v_fma_f32 v112, -v110, v110, v112\nv_add_f32 v112, {f2u(EPS):#x}, v112\nv_rsq_f32 v113, v112")
        a("v_add_f32 v110, s64, v110")
        a(f"s_waitcnt vmcnt({5+extra})")
        for i in range(5):
            r = 40+2*i
            a(f"v_lshlrev_b32 v{r}, 16, v{r}\nv_sub_f32 v{r}, v{r}, v110\nv_mul_f32 v{r}, v{r}, v113")
        for k in range(100, 108): a(f"v_mov_b32 v{k}, 0")
        issued = 0
        for i in range(5):
            a(f"s_waitcnt vmcnt({4-i+extra+issued})")
            w = 60+4*i; l = 40+2*i
            for d in range(4):
                a(f"v_lshlrev_b32 v{108+2*(d&1)}, 16, v{w+d}\nv_and_b32 v{109+2*(d&1)}, s63, v{w+d}")
                a(f"v_pk_fma_f32 v[{100+2*d}:{101+2*d}], v[{108+2*(d&1)}:{109+2*(d&1)}], v[{l}:{l+1}], v[{100+2*d}:{101+2*d}] op_sel_hi:[1,0,1]")
            if late:
                late.pop(0)(); issued += 1
    a("s_bitcmp1_b32 s2, 7\ns_cbranch_scc1 L_s1y")
    s1_body(NUP+PWX+WL, [(lambda k=k: uk_dma(k)) for k in range(NUP, 8)])
    a("s_branch L_s1r")
    a("L_s1y:")
    s1_body(8*EARLY+WL+ER)
    a("L_s1r:")
    stamp(2)
    MID = opt.get('mid', 0)
    a("ds_write_b128 v241, v[100:103]\nds_write_b128 v241, v[104:107] offset:256")
    if MID:
        a("s_bitcmp1_b32 s2, 7\ns_cbranch_scc0 L_nomid")
        ckv_group(0)
        a("L_nomid:")
    a("s_waitcnt lgkmcnt(0)\ns_barrier")
    for k in range(4): a(f"ds_read2st64_b32 v[{100+2*k}:{101+2*k}], v242 offset0:{4*k} offset1:{4*k+2}")
    a("s_waitcnt lgkmcnt(0)")
    a("v_add_f32 v100, v100, v101\nv_add_f32 v102, v102, v103\nv_add_f32 v104, v104, v105\nv_add_f32 v106, v106, v107")
    a("v_add_f32 v100, v100, v102\nv_add_f32 v104, v104, v106\nv_add_f32 v100, v100, v104")
    swap32("v_add_f32", ["v100"], ["v101"])
    a("v_mov_b32_dpp v101, v100 row_shl:1 row_mask:0xf bank_mask:0xf")
    a(f"v_cvt_pk_bf16_f32 v238, v100, v101\nv_mov_b32 v239, {TAG}")
    a("s_mov_b32 exec_lo, 0x55555555\ns_mov_b32 exec_hi, 0")
    a(f"buffer_store_dwordx2 v[238:239], v237, {S_WS}, s70 offen")
    a("s_bitcmp1_b32 s2, 7\ns_cbranch_scc0 L_Xgo")
    a(f"buffer_store_dwordx2 v[238:239], v237, {S_WS}, s71 offen sc1")
    a("s_mov_b64 exec, -1")
    a("s_branch L_Y")
    a("L_Xgo:")
    a("s_mov_b64 exec, -1")

    a.c("================= X role: S2 (q_abs), S4 (ctx partial), R")
    srd(S_C, 12, 4194304)
    G1E = opt.get('g1early', 1)
    a(f"v_and_b32 v17, 7, v3\nv_lshlrev_b32 v17, 4, v17\nv_lshl_add_u32 v17, v4, 7, v17\ns_lshl_b32 s63, {SH}, 12\ns_add_u32 s63, s63, {QG}\ns_add_u32 s64, s63, {QGB-QG}")
    if G1E:
        for s in range(4):
            r = 148+8*s
            a(f"buffer_load_dwordx4 {vr(r)}, v17, {S_WS}, s63 offen offset:{1024*s} {LF}")
            a(f"buffer_load_dwordx4 {vr(r+4)}, v17, {S_WS}, s63 offen offset:{1024*s+512} {LF}")
    a(f"s_lshl_b32 s62, {SW}, 5\nv_add_u32 v13, s62, v3\nv_lshlrev_b32 v13, 8, v13\nv_xor_b32 v14, v3, v4\nv_lshl_add_u32 v13, v14, 4, v13")
    a("v_xor_b32 v14, 64, v13\nv_xor_b32 v15, 128, v13\nv_xor_b32 v16, 192, v13")
    a(f"s_waitcnt vmcnt({9 if G1E else 1})")
    for tile in range(2):
        for s in range(4):
            a(f"ds_read_b128 {vr(116+(tile*4+s)*4)}, v{13+s} offset:{WUK+4096*tile}")
    stamp(3)
    a("v_mov_b32 v13, v17")
    if G1E:
        a("s_waitcnt vmcnt(0)")
        tagcheck("v14", [f"v{148+8*s+k}" for s in range(4) for k in (1,3,5,7)])
        a("s_mov_b32 s61, 0\nv_cmp_ne_u32 vcc, 0, v14\ns_cbranch_vccz L_p1_x")
        if MASKED: a("s_and_b64 exec, exec, vcc")
    def qgb_store():
        a("s_mov_b64 s[78-2:78-1], exec" if False else "s_mov_b64 s[98:99], exec")
        a("s_mov_b32 exec_lo, 0x55555555\ns_mov_b32 exec_hi, 0")
        a(f"buffer_store_dwordx2 v[238:239], v237, {S_WS}, s71 offen sc1")
        a("s_mov_b64 exec, s[98:99]")
    poll_begin("L_p1", ("s62", "s63", "s64"))
    a(f"s_cmp_eq_u32 s61, {BP}\ns_cbranch_scc0 L_p1n")
    qgb_store()
    a("L_p1n:")
    def dual_loads(name, emit):
        a(f"s_cmp_eq_u32 s75, {BP}\ns_cbranch_scc1 {name}_b")
        emit(LF)
        a(f"s_branch {name}_c\n{name}_b:")
        emit("sc1")
        a(f"{name}_c:")
    def g1_loads(fl):
        for s in range(4):
            r = 148+8*s
            a(f"buffer_load_dwordx4 {vr(r)}, v13, {S_WS}, s62 offen offset:{1024*s} {fl}")
            a(f"buffer_load_dwordx4 {vr(r+4)}, v13, {S_WS}, s62 offen offset:{1024*s+512} {fl}")
    dual_loads("L_p1", g1_loads)
    a("s_waitcnt vmcnt(0)")
    tagcheck("v14", [f"v{148+8*s+k}" for s in range(4) for k in (1,3,5,7)])
    poll_end("L_p1", "v14")
    a(f"s_cmp_gt_u32 s61, {BP}\ns_cbranch_scc1 L_p1m")
    qgb_store()
    a("L_p1m:")
    stamp(4)
    if opt.get('sent2', 0): sentinel(SENT2)
    for s in range(4):
        r = 148+8*s
        a(f"v_mov_b32 v{r+1}, v{r+2}\nv_mov_b32 v{r+2}, v{r+4}\nv_mov_b32 v{r+3}, v{r+6}")
    a("s_waitcnt lgkmcnt(0)")
    for s in range(4):
        for tile in range(2):
            mfma(vr(180+4*tile), vr(148+8*s), vr(116+(tile*4+s)*4), s == 0)
    a(f"s_mov_b32 s63, {f2u(SCALE):#x}")
    a("v_lshlrev_b32 v13, 2, v3\nv_lshl_add_u32 v13, v4, 6, v13\nv_cmp_eq_u32 vcc, 1, v4")
    a(f"s_lshl_b32 s62, {SR}, 9\ns_lshl_b32 s64, {SW}, 7\ns_add_u32 s62, s62, s64\ns_add_u32 s62, s62, {QA}")
    a("v_add_f32 v180, v180, v181\nv_add_f32 v184, v184, v185\nv_add_f32 v182, v182, v183\nv_add_f32 v186, v186, v187")
    a("v_add_f32 v180, v180, v182\nv_add_f32 v184, v184, v186")
    swap16("v_add_f32", ["v180", "v184"], ["v181", "v185"])
    a("v_cndmask_b32 v180, v180, v184, vcc\nv_mul_f32 v180, s63, v180")
    a("v_mov_b32_dpp v181, v180 row_shl:1 row_mask:0xf bank_mask:0xf")
    a(f"v_cvt_pk_bf16_f32 v188, v180, v181\nv_mov_b32 v189, {TAG}")
    a("s_mov_b32 exec_lo, 0x55555555\ns_mov_b32 exec_hi, 0")
    a(f"buffer_store_dwordx2 v[188:189], v13, {S_WS}, s62 offen sc1")
    a("s_mov_b64 exec, -1")
    stamp(5)
    a("v_lshrrev_b32 v15, 1, v3\nv_and_b32 v16, 1, v4\nv_lshlrev_b32 v16, 2, v16\nv_xor_b32 v15, v15, v16\nv_lshlrev_b32 v15, 5, v15\nv_and_b32 v16, 1, v0\nv_lshl_add_u32 v15, v16, 4, v15\nv_lshl_add_u32 v15, v4, 13, v15")
    a(f"s_lshl_b32 s62, {SW}, 1\ns_and_b32 s63, s62, 3\ns_lshl_b32 s63, s63, 5\nv_xor_b32 v16, s63, v15\ns_add_u32 s62, s62, 1\ns_and_b32 s63, s62, 3\ns_lshl_b32 s63, s63, 5\nv_xor_b32 v15, s63, v15")
    a(f"s_lshl_b32 s62, {SSUB}, 20\ns_lshl_b32 s63, {SH}, 8\ns_add_u32 s62, s62, s63\ns_lshl_b32 s63, {SW}, 18\ns_add_u32 s62, s62, s63")
    a(f"s_lshl_b32 s63, {SW}, 13\ns_add_u32 s63, s63, {WUV}")
    for k in range(8):
        a(f"s_mov_b32 m0, s63\ns_add_u32 s63, s63, 1024")
        a(f"buffer_load_dwordx4 {'v16' if k < 4 else 'v15'}, {S_C}, s62 offen{NT} lds")
        if k < 7: a("s_add_u32 s62, s62, 32768")
    m_coef_loads()
    tail_prefetch()
    a("s_waitcnt vmcnt(0)\ns_barrier")
    a("v_lshrrev_b32 v19, 2, v3\nv_lshl_add_u32 v19, v4, 2, v19")
    a("v_lshrrev_b32 v20, 2, v3\nv_and_b32 v21, 1, v4\nv_lshl_add_u32 v21, v21, 2, v20")
    a(f"s_lshl_b32 s62, {SW}, 1\nv_xor_b32 v21, s62, v21\nv_lshlrev_b32 v21, 5, v21")
    a("v_lshl_add_u32 v20, v20, 4, v4\nv_lshl_add_u32 v20, v20, 8, v21\nv_and_b32 v21, 3, v3\nv_lshl_add_u32 v20, v21, 3, v20\nv_xor_b32 v21, 32, v20")
    for tt in range(2):
        for j in range(4):
            for u in range(2):
                r = 60+(tt*4+j)*4+2*u; tau = 2*j+u
                a(f"ds_read_b64_tr_b16 v[{r}:{r+1}], {'v20' if tt==0 else 'v21'} offset:{WUV+16384*(tau>>2)+1024*(tau&3)}")
    m_coef_unpack()
    a("v_lshlrev_b32 v22, 4, v0\nv_and_b32 v23, 31, v1\nv_lshlrev_b32 v23, 9, v23")
    a(f"s_lshl_b32 s62, {SR}, 14\ns_add_u32 s66, s62, {OP}\ns_add_u32 s67, s66, 4096\ns_add_u32 s68, s66, 8192\ns_add_u32 s69, s66, 12288")
    a(f"s_lshr_b32 s62, {SH}, 3\ns_lshl_b32 s62, s62, 7\ns_and_b32 s63, {SH}, 7\ns_lshl_b32 s63, s63, 4\ns_add_u32 s62, s62, s63\ns_add_u32 s70, s62, {ST}")
    a(f"v_lshrrev_b32 v24, 5, v0\nv_mul_u32_u24 v24, 288, v24\nv_and_b32 v25, 31, v0\nv_lshl_add_u32 v24, v25, 3, v24\nv_add_u32 v24, {OS}, v24")
    a(f"s_lshl_b32 s62, {SW}, 7\ns_add_u32 s71, s62, {WX}\nv_and_b32 v25, 31, v1\nv_lshlrev_b32 v25, 2, v25\nv_add_u32 v25, s71, v25")
    a(f"v_lshlrev_b32 v27, 4, v4\nv_add_u32 v27, s71, v27")
    a(f"v_mul_u32_u24 v28, 288, v19\nv_and_b32 v29, 3, v3\nv_lshl_add_u32 v28, v29, 3, v28\nv_add_u32 v28, {OS}, v28")
    a(f"s_lshl_b32 s72, {SH}, 11\ns_lshl_b32 s63, {SW}, 9\ns_add_u32 s72, s72, s63\ns_lshl_b32 s63, {SSUB}, 4\ns_add_u32 s72, s72, s63\ns_add_u32 s72, s72, {CP}\ns_add_u32 s73, s72, {CPB-CP}")
    a("v_lshrrev_b32 v30, 2, v3\nv_lshlrev_b32 v30, 6, v30\nv_bfe_u32 v14, v3, 1, 1\nv_lshl_add_u32 v30, v14, 3, v30\nv_lshl_add_u32 v30, v4, 8, v30\nv_cmp_eq_u32 s[8:9], 1, v4")
    stamp(6)
    if opt.get('gate3', 0):
        a(f"s_and_b32 s62, s2, 7\ns_lshl_b32 s62, s62, 7\ns_add_u32 s62, s62, {YF}\nv_lshlrev_b32 v16, 2, v1\ns_mov_b64 exec, 0xffff\ns_mov_b32 s61, 0")
        a("L_g3:")
        a(f"buffer_load_dword v100, v16, {S_WS}, s62 offen {LF}\ns_waitcnt vmcnt(0)")
        a(f"v_cmp_ne_u32 vcc, {TAG}, v100\ns_add_u32 s61, s61, 1\ns_cmp_gt_u32 s61, 64\ns_cbranch_scc1 L_g3x\ns_cbranch_vccnz L_g3")
        a("L_g3x:\ns_mov_b64 exec, -1")
    a("s_mov_b32 exec_hi, 0")
    poll_begin("L_p3a")
    a(f"buffer_load_dwordx4 v[116:119], v23, {S_WS}, s70 offen sc1")
    a("s_waitcnt vmcnt(0)")
    tagcheck("v14", ["v117", "v119"])
    poll_end("L_p3a", "v14")
    for i in range(4):
        a(f"buffer_load_dwordx4 {vr(100+4*i)}, v22, {S_WS}, s{66+i} offen sc1")
    a("v_mov_b32 v120, v116")
    row_allreduce("v_max_f32", ["v120"]); swap16("v_max_f32", ["v120"], ["v121"])
    a("v_sub_f32 v116, v116, v120\nv_exp_f32 v116, v116\nv_mul_f32 v118, v116, v118")
    row_allreduce("v_add_f32", ["v118"]); swap16("v_add_f32", ["v118"], ["v121"])
    a("v_rcp_f32 v118, v118\nv_mul_f32 v116, v116, v118")
    a("s_mov_b32 exec_hi, 0\nds_write_b32 v25, v116\ns_mov_b64 exec, -1")
    a("ds_read_b128 v[120:123], v27\nds_read_b128 v[124:127], v27 offset:64")
    a("s_waitcnt vmcnt(0)")
    tagcheck("v14", [f"v{100+4*i+k}" for i in range(4) for k in (1,3)])
    a("v_cmp_ne_u32 vcc, 0, v14\ns_cbranch_vccz L_p3b_x")
    if MASKED: a("s_and_b64 exec, exec, vcc")
    poll_begin("L_p3b")
    for i in range(4):
        a(f"buffer_load_dwordx4 {vr(100+4*i)}, v22, {S_WS}, s{66+i} offen sc1")
    a("s_waitcnt vmcnt(0)")
    tagcheck("v14", [f"v{100+4*i+k}" for i in range(4) for k in (1,3)])
    poll_end("L_p3b", "v14")
    stamp(7)
    for i in range(4):
        a(f"v_mov_b32 v{101+4*i}, v{102+4*i}\nds_write_b64 v24, v[{100+4*i}:{101+4*i}] offset:{2304*i}")
    a("s_waitcnt lgkmcnt(0)\ns_barrier")
    for t in range(8):
        for u in range(2):
            r = 132+4*t+2*u
            a(f"ds_read_b64_tr_b16 v[{r}:{r+1}], v28 offset:{4608*u+32*t}")
    a("v_cvt_pk_bf16_f32 v128, v120, v121\nv_cvt_pk_bf16_f32 v129, v122, v123\nv_cvt_pk_bf16_f32 v130, v124, v125\nv_cvt_pk_bf16_f32 v131, v126, v127")
    for t in range(8):
        a(f"s_waitcnt lgkmcnt({14-2*t})")
        mfma(vr(164+4*t), vr(132+4*t), vr(128), True)
    for j in range(4):
        d0 = 164+8*j; o = 100+4*j
        a(f"v_cvt_pk_bf16_f32 v{o}, v{d0}, v{d0+1}\nv_cvt_pk_bf16_f32 v{o+1}, v{d0+2}, v{d0+3}\nv_cvt_pk_bf16_f32 v{o+2}, v{d0+4}, v{d0+5}\nv_cvt_pk_bf16_f32 v{o+3}, v{d0+6}, v{d0+7}")
    for j in range(4):
        for tt in range(2):
            mfma(vr(116+4*tt), vr(100+4*j), vr(60+(tt*4+j)*4), j == 0)
    a("v_cndmask_b32 v116, v116, v120, s[8:9]")
    a("v_mov_b32_dpp v117, v116 row_shl:1 row_mask:0xf bank_mask:0xf")
    a(f"v_cvt_pk_bf16_f32 v118, v116, v117\nv_mov_b32 v119, {TAG}")
    a("s_mov_b32 exec_lo, 0x55555555\ns_mov_b32 exec_hi, 0")
    a(f"buffer_store_dwordx2 v[118:119], v30, {S_WS}, s72 offen")
    a(f"buffer_store_dwordx2 v[118:119], v30, {S_WS}, s73 offen sc1")
    a("s_mov_b64 exec, -1")
    stamp(8)
    a(f"s_cmp_eq_u32 {SW}, 0\ns_cbranch_scc1 L_U\ns_cmp_eq_u32 {SW}, 1\ns_cbranch_scc0 L_M\ns_cmp_lt_u32 s2, 32\ns_cbranch_scc1 L_U\ns_branch L_M")

    a.c("================= Y role: S3 (attention), S5 (out partial)")
    a("L_Y:")
    a("v_lshlrev_b32 v5, 4, v1")
    YD = 0
    for q in range(max(EARLY, MID), 4): ckv_group(q, ER if q == 0 else 0, 8)
    stamp(1)
    srd(S_B, 14, 5242880)
    PWY = 1 if opt.get('prewarm', 1) else 0
    if PWY:
        a(f"v_and_b32 v253, 3, v3\nv_lshlrev_b32 v253, 7, v253\ns_lshl_b32 s62, {SR}, 9\ns_add_u32 s62, s62, {CP}")
        a(f"buffer_load_dword v252, v253, {S_WS}, s62 offen {LF}")
    a(f"s_lshl_b32 s62, {SW}, 5\nv_add_u32 v6, s62, v3\nv_mul_u32_u24 v6, {CKV_STRIDE}, v6\nv_lshl_add_u32 v6, v4, 4, v6")
    a("v_lshrrev_b32 v19, 2, v3\nv_lshl_add_u32 v19, v4, 2, v19")
    a(f"v_mul_u32_u24 v7, {CKV_STRIDE}, v19\nv_and_b32 v8, 3, v3\nv_lshl_add_u32 v7, v8, 3, v7\ns_lshl_b32 s62, {SW}, 8\nv_add_u32 v7, s62, v7\nv_add_u32 v8, {64*CKV_STRIDE}, v7")
    a("v_lshlrev_b32 v22, 4, v0")
    a(f"s_lshl_b32 s62, {SSUB}, 14\ns_add_u32 s66, s62, {QA}\ns_add_u32 s67, s66, 4096\ns_add_u32 s68, s66, 8192\ns_add_u32 s69, s66, 12288")
    a(f"v_lshrrev_b32 v24, 7, v0\nv_mul_u32_u24 v24, {CKV_STRIDE}, v24\nv_and_b32 v25, 127, v0\nv_lshl_add_u32 v24, v25, 3, v24\nv_add_u32 v24, {QS}, v24")
    a(f"v_and_b32 v25, 7, v3\nv_mul_u32_u24 v25, {CKV_STRIDE}, v25\nv_lshl_add_u32 v25, v4, 4, v25\nv_add_u32 v25, {QS}, v25")
    a(f"s_lshl_b32 s62, {SW}, 2\ns_add_u32 s62, s62, {MX}\nv_lshlrev_b32 v26, 4, v3\nv_add_u32 v27, s62, v26\nv_add_u32 v28, {MX}, v26")
    a(f"s_lshl_b32 s62, {SW}, 10\ns_add_u32 s62, s62, {PX}\nv_add_u32 v29, s62, v5\nv_add_u32 v31, {PX}, v5")
    for k in range(4): a(f"v_mov_b32 v{184+k}, 0x3f803f80")
    a(f"s_and_b32 s62, s2, 7\ns_lshl_b32 s62, s62, 7\ns_bfe_u32 s63, s2, 0x40003\ns_lshl_b32 s63, s63, 2\ns_add_u32 s62, s62, s63\ns_add_u32 s62, s62, {YF}\nv_mov_b32 v183, s62")
    a("v_and_b32 v21, 1, v3\nv_cmp_eq_u32 s[8:9], 1, v21\nv_and_b32 v21, 2, v3\nv_cmp_eq_u32 s[10:11], 2, v21")
    a("v_and_b32 v30, 1, v4\nv_lshlrev_b32 v30, 18, v30\nv_lshl_add_u32 v30, v3, 4, v30\nv_lshrrev_b32 v21, 1, v4\nv_lshl_add_u32 v30, v21, 8, v30\nv_cmp_eq_u32 s[12:13], 1, v21")
    a(f"s_lshl_b32 s73, {SSUB}, 19\ns_lshl_b32 s63, {SW}, 14\ns_add_u32 s73, s73, s63\ns_lshl_b32 s63, {SH}, 9\ns_add_u32 s73, s73, s63\ns_add_u32 s73, s73, {OP}")
    a(f"s_lshl_b32 s72, {SR}, 7\ns_add_u32 s72, s72, {ST}")
    G2E = opt.get('g2early', 1)
    for tile in range(2):
        if tile == 1 and G2E:
            for i in range(4):
                a(f"buffer_load_dwordx4 {vr(100+4*i)}, v22, {S_WS}, s{66+i} offen sc1")
        a(f"s_waitcnt vmcnt({PWY + (16 if tile == 0 else (4 if G2E else 0))})")
        if tile == 1: stamp(2)
        for s in range(16):
            a(f"ds_read_b128 {ar((tile*16+s)*4)}, v6 offset:{tile*16*CKV_STRIDE+64*s}")
    stamp(3)
    if opt.get('sent2', 0):
        poll_begin("L_p2a")
        a(f"buffer_load_dword v100, v23, {S_WS}, s70 offen sc1")
        a("s_waitcnt vmcnt(0)")
        tagcheck("v14", ["v100"])
        poll_end("L_p2a", "v14")
    if G2E:
        a("s_waitcnt vmcnt(0)")
        tagcheck("v14", [f"v{100+4*i+k}" for i in range(4) for k in (1,3)])
        a("v_cmp_ne_u32 vcc, 0, v14\ns_cbranch_vccz L_p2_x")
        if MASKED: a("s_and_b64 exec, exec, vcc")
    poll_begin("L_p2")
    for i in range(4):
        a(f"buffer_load_dwordx4 {vr(100+4*i)}, v22, {S_WS}, s{66+i} offen sc1")
    a("s_waitcnt vmcnt(0)")
    tagcheck("v14", [f"v{100+4*i+k}" for i in range(4) for k in (1,3)])
    poll_end("L_p2", "v14")
    stamp(4)
    for i in range(4):
        a(f"v_mov_b32 v{101+4*i}, v{102+4*i}\nds_write_b64 v24, v[{100+4*i}:{101+4*i}] offset:{2*CKV_STRIDE*i}")
    a("s_waitcnt lgkmcnt(0)\ns_barrier")
    for s in range(16):
        a(f"ds_read_b128 {vr(32+4*s)}, v25 offset:{64*s}")
    wo_n = [0]
    a(f"s_mul_i32 s71, {SR}, 40960")
    def wo_load():
        i = wo_n[0]; wo_n[0] += 1
        a(f"buffer_load_dwordx4 {vr(192+4*i)}, v22, {S_B}, s71 offen{NT}\ns_add_u32 s71, s71, 4096")
    pv = []
    for t in range(8):
        for j in range(4):
            for u in range(2):
                r = 128+(t*4+j)*4+2*u
                pv.append(f"ds_read_b64_tr_b16 a[{r}:{r+1}], {'v7' if j < 2 else 'v8'} offset:{(32*(j&1)+16*u)*CKV_STRIDE+32*t}")
    for s in range(16):
        if s < 4: a(f"s_waitcnt lgkmcnt({12-4*s})")
        for tile in range(2):
            sidx = s
            mfma(vr(100+4*tile), ar((tile*16+s)*4), vr(32+4*s), s == 0)
            if s >= 3:
                for _ in range(3 if pv else 0):
                    if pv: a(pv.pop(0))
            if tile == 1 and s in (2, 5, 8, 11, 14): wo_load()
    while pv: a(pv.pop(0))
    stamp(5)
    a("v_max3_f32 v108, v100, v101, v102\nv_max3_f32 v109, v103, v104, v105\nv_max3_f32 v108, v108, v106, v107\nv_max_f32 v108, v108, v109")
    swap16("v_max_f32", ["v108"], ["v109"]); swap32("v_max_f32", ["v108"], ["v109"])
    a("ds_write_b32 v27, v108")
    a("s_waitcnt lgkmcnt(0)\ns_barrier")
    a(f"ds_read_b128 v[108:111], v28\ns_waitcnt lgkmcnt(0)")
    a("v_max3_f32 v108, v108, v109, v110\nv_max_f32 v108, v108, v111")
    for k in range(8): a(f"v_sub_f32 v{100+k}, v{100+k}, v108")
    for k in range(8): a(f"v_exp_f32 v{100+k}, v{100+k}")
    a("v_cvt_pk_bf16_f32 v112, v100, v101\nv_cvt_pk_bf16_f32 v113, v102, v103\nv_cvt_pk_bf16_f32 v114, v104, v105\nv_cvt_pk_bf16_f32 v115, v106, v107")
    a("ds_write_b128 v29, v[112:115]")
    a("s_waitcnt lgkmcnt(0)\ns_barrier")
    G3G = opt.get('gate3', 0)
    if G3G:
        a(f"s_cmp_eq_u32 {SW}, 0\ns_cbranch_scc0 L_nh3\nv_mov_b32 v21, {TAG}\ns_mov_b64 exec, 1")
        a(f"buffer_store_dword v21, v183, {S_WS}, 0 offen\ns_mov_b64 exec, -1\nL_nh3:")
    for j in range(4): a(f"ds_read_b128 {vr(32+4*j)}, v31 offset:{1024*j}")
    for j in range(4):
        a(f"s_waitcnt lgkmcnt({3-j})")
        mfma(vr(188), vr(32+4*j), vr(184), j == 0)
        for t in range(8):
            mfma(vr(120+4*t), vr(32+4*j), ar(128+(t*4+j)*4), j == 0)
            if (j*8+t) in (3, 9, 15, 21, 27): wo_load()
    STA = opt.get('stafter', 0)
    def stats_store():
        a(f"s_cmp_eq_u32 {SW}, 0\ns_cbranch_scc0 L_Y_nostat")
        a("v_cndmask_b32 v110, v188, v189, s[8:9]\nv_cndmask_b32 v111, v190, v191, s[8:9]\nv_cndmask_b32 v110, v110, v111, s[10:11]")
        a(f"v_mov_b32 v109, {TAG}\nv_mov_b32 v111, {TAG}")
        a("s_mov_b64 exec, 0x00f0000f")
        a(f"buffer_store_dwordx4 v[108:111], v26, {S_WS}, s72 offen sc1")
        a("s_mov_b64 exec, -1\nL_Y_nostat:")
    for r in range(4):
        if r == STA: stats_store()
        o = 160+4*r
        for e in range(4): a(f"v_cndmask_b32 v{120+4*e+r}, v{120+4*e+r}, v{136+4*e+r}, s[12:13]")
        a(f"v_cvt_pk_bf16_f32 v{o}, v{120+r}, v{124+r}\nv_mov_b32 v{o+1}, {TAG}\nv_cvt_pk_bf16_f32 v{o+2}, v{128+r}, v{132+r}\nv_mov_b32 v{o+3}, {TAG}")
        a(f"buffer_store_dwordx4 {vr(o)}, v30, {S_WS}, s73 offen sc1")
        if r < 3: a("s_add_u32 s73, s73, 65536")
    if STA == 4: stats_store()
    stamp(6)
    assert wo_n[0] == 10
    a("s_mov_b32 s63, 52429")
    for i in range(10):
        a(f"v_add_u32 v9, {256*i}, v0\nv_mul_u32_u24 v10, s63, v9\nv_lshrrev_b32 v10, 22, v10\nv_lshlrev_b32 v10, 5, v10\nv_lshl_add_u32 v{232+i}, v9, 4, v10")
    a(f"v_mul_u32_u24 v7, {WO_STRIDE}, v19\nv_and_b32 v8, 3, v3\nv_lshl_add_u32 v7, v8, 3, v7\ns_mul_i32 s62, {SW}, 320\nv_add_u32 v7, s62, v7")
    a("s_waitcnt vmcnt(4)")
    for i in range(10):
        a(f"ds_write_b128 v{232+i}, {vr(192+4*i)}")
    a("s_waitcnt lgkmcnt(0)\ns_barrier")
    for tile in range(10):
        for u in range(2):
            r = 32+4*tile+2*u
            a(f"ds_read_b64_tr_b16 v[{r}:{r+1}], v7 offset:{16*WO_STRIDE*u+32*tile}")
    m_coef_loads()
    tail_prefetch(False)
    a("s_waitcnt vmcnt(0)")
    m_coef_unpack()
    a(f"v_and_b32 v13, 3, v3\nv_lshlrev_b32 v13, 4, v13\nv_lshl_add_u32 v13, v4, 6, v13\ns_lshl_b32 s68, {SR}, 9\ns_add_u32 s68, s68, {CP}\ns_add_u32 s69, s68, {CPB-CP}")
    a(f"s_mul_i32 s62, {SR}, 2560\ns_mul_i32 s63, {SW}, 640\ns_add_u32 s62, s62, s63\ns_add_u32 s67, s62, {OUTP}")
    a("v_lshlrev_b32 v12, 2, v3\nv_lshl_add_u32 v12, v4, 6, v12")
    a("s_waitcnt lgkmcnt(0)")
    stamp(7)
    poll_begin("L_p4", ("s66", "s68", "s69"))
    dual_loads("L_p4", lambda fl: a(f"buffer_load_dwordx4 v[100:103], v13, {S_WS}, s66 offen {fl}\nbuffer_load_dwordx4 v[104:107], v13, {S_WS}, s66 offen offset:256 {fl}"))
    a("s_waitcnt vmcnt(0)")
    tagcheck("v14", ["v101","v103","v105","v107"])
    poll_end("L_p4", "v14")
    stamp(8)
    if opt.get('sent5', 0): sentinel(SENT5)
    a("v_mov_b32 v101, v102\nv_mov_b32 v102, v104\nv_mov_b32 v103, v106\nv_cmp_eq_u32 vcc, 1, v4")
    for tile in range(10):
        mfma(vr(120+4*tile), vr(100), vr(32+4*tile), True)
    for tile in range(10):
        d = 120+4*tile
        a(f"v_pk_add_f32 v[{d}:{d+1}], v[{d}:{d+1}], v[{d+2}:{d+3}]")
    for k in range(5):
        d = 120+8*k
        a(f"v_cndmask_b32 v{d}, v{d}, v{d+4}, vcc\nv_cndmask_b32 v{d+1}, v{d+1}, v{d+5}, vcc")
    for k in range(5):
        d = 120+8*k
        a(f"v_add_f32 v{d}, v{d}, v{d+1}")
    for k in range(5):
        d = 120+8*k
        a(f"v_mov_b32_dpp v{d+1}, v{d} row_shl:1 row_mask:0xf bank_mask:0xf")
    for k in range(5):
        d = 120+8*k
        a(f"v_cvt_pk_bf16_f32 v{d+2}, v{d}, v{d+1}\nv_mov_b32 v{d+3}, {TAG}")
    a("s_mov_b32 exec_lo, 0x55555555\ns_mov_b32 exec_hi, 0")
    for k in range(5):
        d = 120+8*k
        a(f"buffer_store_dwordx2 v[{d+2}:{d+3}], v12, {S_WS}, s67 offen offset:{128*k}")
    a(f"s_add_u32 s67, s67, {OUTPB-OUTP}")
    for k in range(5):
        d = 120+8*k
        a(f"buffer_store_dwordx2 v[{d+2}:{d+3}], v12, {S_WS}, s67 offen offset:{128*k} sc1")
    a("s_mov_b64 exec, -1")

    a.c("================= U: workgroups with idx < 20, wave 0")
    a("s_branch L_M")
    a("L_U:")
    a(f"s_add_u32 s68, s101, {OUTPB-OUTP}")
    poll_begin("L_p5", ("s66", "s101", "s68"))
    a(f"s_add_u32 s67, s66, {8*2560}")
    dual_loads("L_p5", lambda fl: a(f"buffer_load_dwordx4 v[100:103], v248, {S_WS}, s66 offen {fl}\nbuffer_load_dwordx4 v[104:107], v248, {S_WS}, s67 offen {fl}"))
    a("s_waitcnt vmcnt(0)")
    tagcheck("v14", ["v101", "v103", "v105", "v107"])
    poll_end("L_p5", "v14")
    a("s_mov_b32 s63, 0xffff0000")
    for k, s_ in enumerate((100, 102, 104, 106)):
        a(f"v_lshlrev_b32 v{108+2*k}, 16, v{s_}\nv_and_b32 v{109+2*k}, s63, v{s_}")
    a("v_pk_add_f32 v[108:109], v[108:109], v[112:113]\nv_pk_add_f32 v[110:111], v[110:111], v[114:115]")
    for k in range(4): a(f"v_add_f32_dpp v{108+k}, v{108+k}, v{108+k} row_ror:8 row_mask:0xf bank_mask:0xf")
    vs = [f"v{108+k}" for k in range(4)]; ts = [f"v{112+k}" for k in range(4)]
    swap16("v_add_f32", vs, ts); swap32("v_add_f32", vs, ts)
    a(f"v_cvt_pk_bf16_f32 v100, v108, v109\nv_mov_b32 v101, {TAG}\nv_cvt_pk_bf16_f32 v102, v110, v111\nv_mov_b32 v103, {TAG}")
    a("s_mov_b64 exec, 0xff")
    a(f"buffer_store_dwordx4 v[100:103], v243, {S_WS}, 0 offen sc1")
    if opt.get('gate', 1):
        a("s_mov_b64 exec, 1")
        a(f"buffer_store_dword v101, v244, {S_WS}, 0 offen")
    a("s_mov_b64 exec, -1")

    a.c("================= M stage")
    a("L_M:")
    a("s_mul_i32 s64, s2, 3\ns_cmp_ge_u32 s64, 640\ns_cbranch_scc1 L_fin")
    a(f"v_mov_b32 v144, {f2u(C0):#x}\nv_mov_b32 v145, {f2u(C0):#x}")
    for k in range(3): a(f"v_mov_b32 v{146+2*k}, 0\nv_mov_b32 v{147+2*k}, 0")
    a(f"v_add_u32 v15, s64, v1\nv_min_u32 v15, 639, v15\nv_lshlrev_b32 v15, 2, v15\nv_add_u32 v15, {HB}, v15")
    a("v_mov_b32 v132, 0\nv_mov_b32 v133, 0")
    a(f"s_cmp_eq_u32 {SW}, 3\ns_cbranch_scc1 L_M_wait")
    a(f"v_lshlrev_b32 v13, 4, v0\ns_mov_b32 s66, {XP}\ns_mov_b32 s67, {XP+5120}\ns_mov_b32 s68, {XP+10240}\ns_mov_b32 s69, {XP+15360}")
    a("s_mov_b32 s63, 0xffff0000")
    a("v_lshlrev_b32 v136, 16, v246\nv_and_b32 v137, s63, v246\nv_lshlrev_b32 v138, 16, v247\nv_and_b32 v139, s63, v247")
    a(f"v_add_u32 v17, {HB}, v13\ns_lshl_b32 s62, {SW}, 3\ns_add_u32 s62, s62, {SB}\nv_mov_b32 v19, s62")
    a(f"s_cmp_eq_u32 {SW}, 2\ns_cselect_b32 s72, 0, -1\ns_mov_b32 exec_hi, s72")
    stamp(9)
    if opt.get('gate', 1):
        a(f"s_mov_b64 s[98:99], exec\ns_mov_b64 exec, 0xfffff\ns_and_b32 s62, s2, 7\ns_lshl_b32 s62, s62, 7\ns_add_u32 s62, s62, {UF}\nv_lshlrev_b32 v14, 2, v1\nv_mov_b32 v16, v14\ns_mov_b32 s61, 0")
        a("L_g6:")
        a(f"buffer_load_dword v100, v16, {S_WS}, s62 offen {LF}\ns_waitcnt vmcnt(0)")
        a(f"v_cmp_ne_u32 vcc, {TAG}, v100\ns_add_u32 s61, s61, 1\ns_cmp_gt_u32 s61, {opt.get('gatemax', 64)}\ns_cbranch_scc1 L_g6x\ns_cbranch_vccnz L_g6")
        a("L_g6x:\ns_mov_b64 exec, s[98:99]")
    poll_begin("L_p6")
    for xx in range(8):
        a(f"buffer_load_dwordx4 {vr(100+4*xx)}, v13, {S_WS}, s{66+(xx>>1)} offen offset:{2560*(xx&1)} sc1")
    a("s_waitcnt vmcnt(0)")
    tagcheck("v14", [f"v{100+4*xx+k}" for xx in range(8) for k in (1,3)])
    poll_end("L_p6", "v14")
    a("s_mov_b32 exec_hi, s72")
    stamp(10)
    for xx in range(8):
        b = 100+4*xx
        a(f"v_lshlrev_b32 v140, 16, v{b}\nv_and_b32 v141, s63, v{b}\nv_lshlrev_b32 v142, 16, v{b+2}\nv_and_b32 v143, s63, v{b+2}")
        a("v_pk_add_f32 v[136:137], v[136:137], v[140:141]\nv_pk_add_f32 v[138:139], v[138:139], v[142:143]")
    a("v_cvt_pk_bf16_f32 v140, v136, v137\nv_cvt_pk_bf16_f32 v141, v138, v139")
    a("v_lshlrev_b32 v136, 16, v140\nv_and_b32 v137, s63, v140\nv_lshlrev_b32 v138, 16, v141\nv_and_b32 v139, s63, v141")
    a("ds_write_b128 v17, v[136:139]")
    for k in range(4): a(f"v_subrev_f32 v{140+k}, s3, v{136+k}")
    a("v_add_f32 v132, v140, v141\nv_mul_f32 v133, v140, v140\nv_add_f32 v134, v142, v143\nv_fmac_f32 v133, v141, v141\nv_add_f32 v132, v132, v134\nv_fmac_f32 v133, v142, v142\nv_fmac_f32 v133, v143, v143")
    a("s_mov_b64 exec, -1")
    wave_allreduce("v_add_f32", ["v132", "v133"], ["v134", "v135"])
    a("s_mov_b64 exec, 1\nds_write_b64 v19, v[132:133]\ns_mov_b64 exec, -1")
    a(f"s_or_b32 s62, s2, {SW}\ns_cmp_eq_u32 s62, 0\ns_cbranch_scc0 L_noep")
    a(f"v_mov_b32 v16, {TAG}\ns_mov_b64 exec, 1\nbuffer_store_dword v16, v18, {S_WS}, 0 offen sc1\ns_mov_b64 exec, -1")
    a("L_noep:")
    a("s_waitcnt lgkmcnt(0)")
    a("L_M_wait:")
    a("s_barrier")
    a(f"v_mov_b32 v16, {SB}\nds_read_b128 v[120:123], v16\nds_read_b64 v[124:125], v16 offset:16\nds_read_b32 v136, v15\ns_mov_b32 s62, {f2u(1.0/640):#x}\ns_waitcnt lgkmcnt(0)")
    a("v_add_f32 v130, v120, v122\nv_add_f32 v132, v121, v123\nv_add_f32 v130, v130, v124\nv_add_f32 v132, v132, v125")
    a("v_mul_f32 v130, s62, v130\nv_mul_f32 v132, s62, v132")
    a("v_fma_f32 v132, -v130, v130, v132")
    a("v_add_f32 v130, s3, v130")
    a(f"v_add_f32 v133, {f2u(EPS):#x}, v132\nv_rsq_f32 v133, v133")
    a("v_sub_f32 v140, v136, v130")
    a("v_mul_f32 v134, v133, v133\nv_mul_f32 v134, v134, v132")
    a(f"v_add_f32 v134, {f2u(EPS):#x}, v134\nv_rsq_f32 v134, v134\nv_mul_f32 v140, v140, v133\ns_mov_b32 s62, {f2u(C1):#x}\nv_mul_f32 v140, v140, v134")
    for k in range(3):
        a(f"v_readlane_b32 s{70+2*k}, v140, {k}")
    for k in range(3):
        t = f"s[{70+2*k}:{71+2*k}]"
        U = lambda i: f"v[{152+2*i}:{153+2*i}]"
        Z = lambda i: f"v[{160+2*i}:{161+2*i}]"
        for i in range(4): a(f"v_pk_fma_f32 {U(i)}, v[{210+2*i}:{211+2*i}], {t}, v[{218+2*i}:{219+2*i}] op_sel_hi:[1,0,1]")
        for i in range(4): a(f"v_pk_mul_f32 {Z(i)}, {U(i)}, {U(i)}")
        for i in range(4): a(f"v_pk_fma_f32 {Z(i)}, {Z(i)}, s[62:63], v[144:145] op_sel_hi:[1,0,1]")
        for i in range(4): a(f"v_pk_mul_f32 {Z(i)}, {Z(i)}, {U(i)}")
        for i in range(4): a(f"v_exp_f32 v{160+2*i}, v{160+2*i}\nv_exp_f32 v{161+2*i}, v{161+2*i}")
        for i in range(4): a(f"v_pk_mul_f32 {U(i)}, {U(i)}, v[{226+2*i}:{227+2*i}]")
        for i in range(4): a(f"v_pk_add_f32 {Z(i)}, {Z(i)}, 1.0 op_sel_hi:[1,0]")
        for i in range(4): a(f"v_rcp_f32 v{160+2*i}, v{160+2*i}\nv_rcp_f32 v{161+2*i}, v{161+2*i}")
        for i in range(4): a(f"v_pk_fma_f32 v[{146+2*k}:{147+2*k}], {U(i)}, {Z(i)}, v[{146+2*k}:{147+2*k}]")
    for k in range(3): a(f"v_add_f32 v{146+2*k}, v{146+2*k}, v{147+2*k}")
    wave_allreduce("v_add_f32", ["v146","v148","v150"], ["v147","v149","v151"])
    a(f"s_lshl_b32 s62, {SW}, 4\ns_add_u32 s62, s62, {MRED}\nv_mov_b32 v15, s62\nv_mov_b32 v147, v148\nv_mov_b32 v148, v150")
    a("s_mov_b64 exec, 1\nds_write_b96 v15, v[146:148]\ns_mov_b64 exec, -1")
    a("s_waitcnt lgkmcnt(0)\ns_barrier")
    a(f"s_cmp_eq_u32 {SW}, 0\ns_cbranch_scc0 L_fin")
    a(f"v_lshlrev_b32 v15, 2, v1\nv_add_u32 v15, {MRED}, v15")
    a("ds_read_b32 v100, v15\nds_read_b32 v101, v15 offset:16\nds_read_b32 v102, v15 offset:32\nds_read_b32 v103, v15 offset:48")
    srd(S_T, 26, 1280)
    a("v_add_u32 v15, s64, v1\nv_lshlrev_b32 v16, 1, v15")
    a("v_add_f32 v136, v136, v208")
    a("s_waitcnt lgkmcnt(0)")
    a("v_add_f32 v100, v100, v101\nv_add_f32 v102, v102, v103\nv_add_f32 v100, v100, v102\nv_add_f32 v100, v100, v136")
    a("v_cvt_pk_bf16_f32 v100, v100, v100")
    a("v_cmp_gt_u32 vcc, 640, v15\ns_and_b64 exec, vcc, 7")
    a("s_cbranch_execz L_fin")
    a(f"buffer_store_short v100, v16, {S_T}, 0 offen")
    a("L_fin:")
    if opt.get('pin'):
        a(f"s_waitcnt lgkmcnt(0)\ns_add_u32 s76, s76, {opt['pin']}")
        a("L_pin:\ns_memrealtime s[78:79]\ns_waitcnt lgkmcnt(0)\ns_sub_u32 s80, s78, s76\ns_cmp_lt_i32 s80, 0\ns_cbranch_scc1 L_pin")
    if profile and opt.get('dbgout'):
        stamp(11)
        a("s_mov_b64 exec, -1\ns_waitcnt lgkmcnt(0)")
        srd(S_T, 28, 256)
        a(f"s_cmp_eq_u32 {SW}, 0\ns_cbranch_scc0 L_end")
        a("v_mov_b32 v18, 0\ns_mov_b64 exec, 1")
        a(f"s_not_b32 s62, s76\nv_mov_b32 v15, s62\nbuffer_atomic_umax v15, v18, {S_T}, 0 offen")
        a(f"v_mov_b32 v15, s98\nbuffer_atomic_umax v15, v18, {S_T}, 0 offen offset:44")
        a("s_bitcmp1_b32 s2, 7\ns_cbranch_scc1 L_dy")
        for k in range(1, 9):
            a(f"v_mov_b32 v15, s{76+2*k}\nbuffer_atomic_umax v15, v18, {S_T}, 0 offen offset:{4*k}")
        a(f"v_mov_b32 v15, s{76+2*10}\nbuffer_atomic_umax v15, v18, {S_T}, 0 offen offset:40")
        a(f"v_mov_b32 v15, s{76+2*9}\nbuffer_atomic_umax v15, v18, {S_T}, 0 offen offset:36")
        a("s_branch L_end\nL_dy:")
        for j, k in enumerate((2, 4, 6, 8)):
            a(f"v_mov_b32 v15, s{76+2*k}\nbuffer_atomic_umax v15, v18, {S_T}, 0 offen offset:{48+4*j}")
    elif profile:
        stamp(11)
        a("s_mov_b64 exec, -1\ns_waitcnt lgkmcnt(0)")
        a(f"s_lshl_b32 s62, s2, 2\ns_add_u32 s62, s62, {SW}\ns_lshl_b32 s62, s62, 6\ns_add_u32 s62, s62, {TS}")
        a("v_mov_b32 v18, 0\ns_mov_b64 exec, 1")
        for k in range(12):
            a(f"v_mov_b32 v15, s{76+2*k}\nbuffer_store_dword v15, v18, {S_WS}, s62 offen offset:{4*k}")
        a(f"v_mov_b32 v15, s100\nbuffer_store_dword v15, v18, {S_WS}, s62 offen offset:48")
        a(f"s_getreg_b32 s100, hwreg(HW_REG_XCC_ID)\nv_mov_b32 v15, s100\nbuffer_store_dword v15, v18, {S_WS}, s62 offen offset:52")
        a(f"s_getreg_b32 s100, hwreg(HW_REG_HW_ID)\nv_mov_b32 v15, s100\nbuffer_store_dword v15, v18, {S_WS}, s62 offen offset:56")
    a("L_end:")
    a("s_endpgm")
    a("L_code_end:")
    a(f".set CODE_BYTES, L_code_end - {NAME}")
    a('.section .rodata,"a"\n.p2align 6')
    a(f".amdhsa_kernel {NAME}")
    a("  .amdhsa_next_free_vgpr 512\n  .amdhsa_next_free_sgpr 102\n  .amdhsa_accum_offset 256\n  .amdhsa_group_segment_fixed_size 0\n  .amdhsa_kernarg_size 112\n  .amdhsa_user_sgpr_count 2\n  .amdhsa_user_sgpr_kernarg_segment_ptr 1\n  .amdhsa_system_sgpr_workgroup_id_x 1")
    a(".end_amdhsa_kernel")
    n = a.hazard_pass()
    return a.text(), n

LAYOUT = dict(QG=QG, QA=QA, ST=ST, CP=CP, HG=HG, OUTP=OUTP, OP=OP, TS=TS, XP=XP)
if __name__ == "__main__":
    prof = "prof" in sys.argv[2:]
    opt = {}
    for x in sys.argv[2:]:
        if '=' in x:
            k, v = x.split('='); opt[k] = int(v) if v.lstrip('-').isdigit() else v
    txt, n = gen(profile=prof, opt=opt)
    open(sys.argv[1], "w").write(txt)
    print("auto nops:", n, "lines:", txt.count("\n"), LAYOUT)
```

```python
import sys, math, struct
from asmlib import Asm

NAME = "sequential_preLN__compressed_kv_cla__mixer_token_mlp__decode_kernel"
HEADER = open('sequential_preLN__compressed_kv_cla__mixer_token_mlp__decode.s.ref').read().split('; Override')[0]

def f2u(x): return struct.unpack('<I', struct.pack('<f', x))[0]

QG   = 4096
QA   = QG + 131072
ST   = QA + 65536
CP   = ST + 16384
HG   = CP + 65536
SENT2 = HG + 4096
SENT5 = SENT2 + 16384
QGB  = SENT5 + 16384
CPB  = QGB + 131072
OUTP = CPB + 65536
OUTPB = OUTP + 128*2560
XP   = OUTPB + 128*2560
UF   = XP + 8*2560
YF   = UF + 1024
OP   = (2 << 20) + 4096
TS   = (4 << 20) + 65536
assert YF + 8*128 <= OP
WS_SIZE = 5 << 20
CKV_STRIDE = 1056
QS = 135168; PX = 143616; MX = 147712; LX = 147968; MRED = 148224; MB = 148288
WUK = 0; WUV = 32768; OS = 65536; S1RED = 74752; WX = 82944; RRED = 83456
S1RED_C = 135168
LDS_BYTES = 148480
WO_STRIDE = 1312
GS = 65536
HB = PX; SB = MB; RR = PX + 2560

SCALE = (128 ** -0.5) * math.log2(math.e)
C0 = -2.0 * math.sqrt(2.0 / math.pi) * math.log2(math.e)
C1 = C0 * 0.044715
EPS = 1e-5

S_WS, S_X, S_A, S_B, S_C, S_T = 's[32:35]', 's[36:39]', 's[40:43]', 's[44:47]', 's[48:51]', 's[52:55]'
TAG, SW, SR, SH, SSUB = 's56', 's57', 's58', 's59', 's60'

def gen(profile=False, spin_limit=400000, opt=None):
    opt = opt or {}
    WARM = opt.get('warm', 1)
    STPOS = opt.get('stpos', 1)
    a = Asm()
    NT = " nt" if opt.get('nt', 1) else ""
    LF = opt.get('lflag', 'nt')
    BP = opt.get('bper', 32) - 1
    SMASK = opt.get('smask', 0xfff)
    def stamp(k):
        if profile and (SMASK >> k) & 1:
            assert k < 12
            a(f"s_memrealtime s[{76+2*k}:{77+2*k}]")
    def srd(dst, ptr, size):
        d = int(dst[2:dst.index(':')])
        a(f"s_mov_b32 s{d}, s{ptr}\ns_mov_b32 s{d+1}, s{ptr+1}\ns_mov_b32 s{d+2}, {size}\ns_mov_b32 s{d+3}, 0x00020000")
    DPPS = ("quad_perm:[1,0,3,2]", "quad_perm:[2,3,0,1]", "row_half_mirror", "row_mirror")
    def row_allreduce(op, vs):
        for m in DPPS:
            for v in vs: a(f"{op}_dpp {v}, {v}, {v} {m} row_mask:0xf bank_mask:0xf")
    def swapred(sw, op, vs, ts):
        for v, t in zip(vs, ts): a(f"v_mov_b32 {t}, {v}")
        for v, t in zip(vs, ts): a(f"{sw} {v}, {t}")
        for v, t in zip(vs, ts): a(f"{op} {v}, {v}, {t}")
    def swap16(op, vs, ts): swapred("v_permlane16_swap_b32", op, vs, ts)
    def swap32(op, vs, ts): swapred("v_permlane32_swap_b32", op, vs, ts)
    def wave_allreduce(op, vs, ts):
        row_allreduce(op, vs); swap16(op, vs, ts); swap32(op, vs, ts)
    MASKED = opt.get('masked', 1)
    def poll_begin(name, dual=None):
        a(f"s_mov_b32 s61, 0")
        a(f"{name}:")
        if dual:
            a(f"s_and_b32 s75, s61, {BP}\ns_cmp_eq_u32 s75, {BP}\ns_cselect_b32 {dual[0]}, {dual[2]}, {dual[1]}")
    def poll_end(name, bad):
        a(f"v_cmp_ne_u32 vcc, 0, {bad}")
        a(f"s_add_u32 s61, s61, 1")
        a(f"s_cmp_gt_u32 s61, {spin_limit}")
        a(f"s_cbranch_scc1 {name}_x")
        if MASKED:
            a(f"s_and_b64 exec, exec, vcc")
            a(f"s_cbranch_execnz {name}")
        else:
            a(f"s_cbranch_vccnz {name}")
        a(f"{name}_x:")
        if MASKED: a("s_mov_b64 exec, -1")
        if profile and opt.get('cntfor') == name:
            a("s_mov_b32 s100, s61")
    def tagcheck(bad, tags):
        a(f"v_xor_b32 {bad}, {TAG}, {tags[0]}")
        for t in tags[1:]:
            a(f"v_bitop3_b32 {bad}, {t}, {TAG}, {bad} bitop3:0xbe")
    def mfma(d, A, B, first):
        a(f"v_mfma_f32_16x16x32_bf16 {d}, {A}, {B}, {'0' if first else d}")
    def vr(b, n=4): return f"v[{b}:{b+n-1}]"
    def ar(b, n=4): return f"a[{b}:{b+n-1}]"

    a.lines += [l for l in HEADER.strip().split('\n')]
    a(f"; @launch grid=(256,1,1) block=(256,1,1) lds={LDS_BYTES}")
    a('.amdgcn_target "amdgcn-amd-amdhsa--gfx950"')
    a(f".text\n.globl {NAME}\n.p2align 8\n.type {NAME},@function\n{NAME}:")
    WPOS = opt.get('wpos', 0)
    def warm_load():
        a("s_getpc_b64 s[52:53]\nL_pc:\ns_sub_u32 s52, s52, L_pc-%s\ns_subb_u32 s53, s53, 0\nv_lshlrev_b32 v254, 7, v0\ns_mov_b32 s54, CODE_BYTES\ns_mov_b32 s55, 0x00020000" % NAME)
        a("buffer_load_dword v251, v254, s[52:55], 0 offen")
    if WARM and WPOS == 0: warm_load()
    stamp(0)
    if opt.get('pin'): a("s_memrealtime s[76:77]")
    if profile: a("s_mov_b32 s100, 99")
    a("s_cmp_ge_u32 s2, 256\ns_cbranch_scc1 L_end")
    a("s_load_dwordx16 s[4:19], s[0:1], 0\ns_load_dwordx8 s[20:27], s[0:1], 64\ns_load_dwordx4 s[28:31], s[0:1], 96")
    a("v_and_b32 v1, 63, v0\nv_lshrrev_b32 v2, 6, v0\nv_and_b32 v3, 15, v0\nv_bfe_u32 v4, v0, 4, 2")
    a(f"v_readfirstlane_b32 {SW}, v2")
    a(f"s_and_b32 s61, s2, 7\ns_bfe_u32 s62, s2, 0x40003\ns_lshl_b32 {SR}, s61, 4\ns_add_u32 {SR}, {SR}, s62")
    a(f"s_lshr_b32 {SH}, {SR}, 2\ns_and_b32 {SSUB}, {SR}, 3")
    a("v_mov_b32 v18, 0")
    for k in range(240, 245): a(f"v_mov_b32 v{k}, 0")
    a("s_waitcnt lgkmcnt(0)")
    srd(S_WS, 30, WS_SIZE)
    a(f"buffer_load_dword v250, v18, {S_WS}, 0 offen")
    if opt.get('tlbw', 0):
        a(f"s_mov_b32 s62, {2<<20}\ns_mov_b32 s63, {(4<<20)+8192}")
        a(f"buffer_load_dword v255, v18, {S_WS}, s62 offen\nbuffer_load_dword v255, v18, {S_WS}, s63 offen")
    srd(S_X, 4, 1280)
    def m_coef_loads():
        a("v_lshlrev_b32 v17, 2, v0")
        for k, p in enumerate((18, 20, 22)):
            srd(S_T, p, 3456)
            for i in range(4):
                a(f"buffer_load_dword v{196+4*k+i}, v17, {S_T}, 0 offen offset:{1024*i}")
        srd(S_T, 24, 2)
        a(f"buffer_load_ushort v208, v18, {S_T}, 0 offen")
    def m_coef_unpack():
        a("s_mov_b32 s63, 0xffff0000")
        for k in range(3):
            for i in range(4):
                s_ = 196+4*k+i; d = 210+8*k+2*i
                a(f"v_lshlrev_b32 v{d}, 16, v{s_}\nv_and_b32 v{d+1}, s63, v{s_}")
        a("v_lshlrev_b32 v208, 16, v208")
    def tail_prefetch():
        a(f"v_lshlrev_b32 v245, 3, v0\nbuffer_load_dwordx2 v[246:247], v245, {S_X}, 0 offen")
        if opt.get('gate', 1):
            a(f"s_and_b32 s62, s2, 7\ns_lshl_b32 s62, s62, 7\ns_add_u32 s62, s62, {UF}\nv_lshlrev_b32 v249, 2, v1\nv_and_b32 v249, 127, v249")
            a(f"buffer_load_dword v252, v249, {S_WS}, s62 offen {LF}")
    def wo_slice_dma(su="s74", lds0=0):
        a(f"v_lshrrev_b32 v9, 2, v1\nv_mul_u32_u24 v9, 1280, v9\nv_bfe_u32 v10, v1, 4, 1\nv_lshlrev_b32 v10, 1, v10\nv_and_b32 v11, 3, v1\nv_xor_b32 v10, v10, v11\nv_lshl_add_u32 v9, v10, 4, v9")
        a(f"s_and_b32 s62, s2, 7\ns_lshl_b32 s62, s62, 2\ns_add_u32 s62, s62, {SW}\ns_mul_i32 s62, s62, {128*1280}\ns_lshl_b32 s63, {su}, 6\ns_add_u32 s62, s62, s63\ns_lshl_b32 s63, {SW}, 13\ns_add_u32 s63, s63, {lds0}")
        for k in range(8):
            a(f"s_mov_b32 m0, s63\ns_add_u32 s63, s63, 1024")
            a(f"buffer_load_dwordx4 v9, {S_B}, s62 offen lds")
            if k < 7: a(f"s_add_u32 s62, s62, {16*1280}")
    def wo_slice_frags(lds0=0, a0=0):
        a(f"v_lshrrev_b32 v9, 2, v3\nv_lshl_add_u32 v9, v4, 2, v9\nv_lshlrev_b32 v9, 6, v9\nv_and_b32 v10, 1, v4\nv_lshl_add_u32 v9, v10, 5, v9\nv_and_b32 v10, 3, v3\nv_lshl_add_u32 v9, v10, 3, v9\ns_lshl_b32 s62, {SW}, 13\nv_add_u32 v9, s62, v9\nv_xor_b32 v10, 32, v9")
        for tt in range(2):
            for dq in range(4):
                for uu in range(2):
                    r = a0+(tt*4+dq)*4+2*uu
                    a(f"ds_read_b64_tr_b16 a[{r}:{r+1}], {'v9' if tt == 0 else 'v10'} offset:{lds0+2048*dq+1024*uu}")
    def s5_addresses():
        if opt.get('g4dense', 1):
            a("v_lshlrev_b32 v240, 4, v1")
            a(f"v_lshrrev_b32 v236, 5, v1\nv_lshlrev_b32 v236, 8, v236\nv_bfe_u32 v235, v1, 2, 2\nv_lshl_add_u32 v236, v235, 6, v236\nv_and_b32 v235, 3, v1\nv_lshl_add_u32 v236, v235, 4, v236\nv_bfe_u32 v235, v1, 4, 1\nv_lshl_add_u32 v236, v235, 3, v236")
            a(f"s_lshl_b32 s62, {SW}, 10\ns_add_u32 s62, s62, {GS}\nv_add_u32 v236, s62, v236")
            a(f"v_and_b32 v235, 3, v3\nv_lshlrev_b32 v235, 4, v235\nv_lshl_add_u32 v235, v4, 6, v235\nv_add_u32 v235, s62, v235")
        else:
            a(f"v_and_b32 v240, 3, v3\nv_lshlrev_b32 v240, 4, v240\nv_lshl_add_u32 v240, v4, 6, v240")
        a(f"s_and_b32 s62, s2, 7\ns_lshl_b32 s63, s62, 2\ns_add_u32 s63, s63, {SW}\ns_lshl_b32 s63, s63, 11\ns_add_u32 s101, s63, {CP}")
        a(f"s_mul_i32 s63, s62, 2560\ns_lshl_b32 s65, s74, 7\ns_add_u32 s63, s63, s65\ns_add_u32 s63, s63, {XP}\nv_lshlrev_b32 v243, 2, v1\nv_add_u32 v243, s63, v243")
        a(f"s_lshl_b32 s62, s62, 7\ns_lshl_b32 s63, s74, 2\ns_add_u32 s62, s62, s63\ns_add_u32 s62, s62, {UF}\nv_mov_b32 v244, s62")
        a(f"v_lshlrev_b32 v241, 2, v1\nv_add_u32 v242, {RR}, v241\ns_lshl_b32 s62, {SW}, 7\nv_add_u32 v241, s62, v242")
        if opt.get('prewarm', 1):
            a(f"v_lshlrev_b32 v253, 7, v3\nbuffer_load_dword v252, v253, {S_WS}, s101 offen {LF}")
    def sentinel(base):
        lab = f"L_s{base}"
        a(f"s_cmp_eq_u32 {SW}, 0\ns_cbranch_scc0 {lab}")
        a(f"v_mov_b32 v240, {TAG}\nv_mov_b32 v241, {TAG}\nv_mov_b32 v242, {TAG}\nv_mov_b32 v243, {TAG}\nv_lshlrev_b32 v244, 4, v1")
        a(f"s_lshl_b32 s62, {SR}, 7\ns_add_u32 s62, s62, {base}\ns_mov_b64 exec, 0xff")
        a(f"buffer_store_dwordx4 v[240:243], v244, {S_WS}, s62 offen sc1")
        a(f"s_mov_b64 exec, -1\n{lab}:")

    NW = 1 if WARM else 0
    PWX = 1 if opt.get("prewarm", 1) else 0

    a.c("================= S1: q partials, head h1 = 4*xcd + (idx>>3), rows 80*me..80*me+79, me = idx&7")
    a("s_lshr_b32 s72, s2, 6\ns_and_b32 s73, s2, 7\ns_lshl_b32 s73, s73, 2\ns_add_u32 s72, s72, s73")
    a("s_bfe_u32 s73, s2, 0x30003")
    srd(S_A, 8, 5242880)
    a("v_lshlrev_b32 v5, 2, v1")
    for j in range(5): a(f"buffer_load_dword v{32+j}, v5, {S_X}, 0 offen offset:{256*j}")
    a(f"v_lshrrev_b32 v6, 4, v0\ns_mul_i32 s62, s73, 80\nv_add_u32 v7, s62, v6\nv_lshlrev_b32 v7, 1, v7")
    for i in range(5): a(f"buffer_load_ushort v{40+2*i}, v7, {S_X}, 0 offen offset:{32*i}")
    a("v_lshlrev_b32 v8, 4, v3\nv_lshl_add_u32 v8, v6, 13, v8")
    a(f"s_mul_i32 s61, s73, {80*8192}\ns_lshl_b32 s62, s72, 8\ns_add_u32 s61, s61, s62")
    for i in range(5):
        a(f"buffer_load_dwordx4 {vr(60+4*i)}, v8, {S_A}, s61 offen{NT}")
        if i < 4: a(f"s_add_u32 s61, s61, {16*8192}")
    WL = 1 if (WARM and WPOS == 1) else 0
    if WL: warm_load()
    a("v_xor_b32 v9, v3, v4\nv_lshlrev_b32 v9, 4, v9\nv_lshl_add_u32 v9, v4, 13, v9")
    a("v_xor_b32 v10, 64, v9\nv_xor_b32 v11, 128, v9\nv_xor_b32 v12, 192, v9")
    a("s_bitcmp1_b32 s2, 7\ns_cbranch_scc1 L_nouk")
    srd(S_B, 10, 4194304)
    a(f"s_lshl_b32 s66, {SSUB}, 20\ns_lshl_b32 s63, {SH}, 8\ns_add_u32 s66, s66, s63\ns_lshl_b32 s63, {SW}, 18\ns_add_u32 s66, s66, s63")
    a(f"s_lshl_b32 s67, {SW}, 13")
    NUP = opt.get('nup', 8)
    def uk_dma(k):
        a(f"s_mov_b32 m0, s67\ns_add_u32 s67, s67, 1024")
        a(f"buffer_load_dwordx4 v{9+(k&3)}, {S_B}, s66 offen{NT} lds")
        if k < 7: a(f"s_add_u32 s66, s66, 32768")
    for k in range(NUP): uk_dma(k)
    if PWX:
        a(f"v_and_b32 v253, 31, v1\nv_lshlrev_b32 v253, 7, v253\ns_lshl_b32 s62, {SH}, 12\ns_add_u32 s62, s62, {QG}")
        a(f"buffer_load_dword v252, v253, {S_WS}, s62 offen {LF}")
    a("s_branch L_s1c")
    a("L_nouk:")
    EARLY = opt.get('early', 0)
    ER = opt.get('erows', 0)
    def ckv_group(q, j0=0, j1=8):
        a(f"s_add_u32 s62, {SSUB}, {q}\ns_and_b32 s62, s62, 3\ns_add_u32 s63, s69, {(q*8+j0)*CKV_STRIDE}\ns_lshl_b32 s62, s62, 13\ns_add_u32 s62, s62, s68")
        if j0: a(f"s_add_u32 s62, s62, {1024*j0}")
        for j in range(j0, j1):
            a(f"s_mov_b32 m0, s63\ns_add_u32 s63, s63, {CKV_STRIDE}")
            a(f"buffer_load_dwordx4 v9, {S_B}, s62 offen{' nt' if opt.get('ntc', 0) == 2 or (opt.get('ntc', 0) == 1 and q == 0) else ''} lds")
            if j < j1-1: a(f"s_add_u32 s62, s62, 1024")
    srd(S_B, 6, 4194304)
    a("v_lshlrev_b32 v9, 4, v1")
    a(f"s_lshl_b32 s68, {SH}, 17\ns_lshl_b32 s63, {SW}, 15\ns_add_u32 s68, s68, s63")
    a(f"s_mul_i32 s69, {SW}, {32*CKV_STRIDE}")
    for q in range(EARLY): ckv_group(q)
    if ER: ckv_group(0, 0, ER)
    a("L_s1c:")
    a(f"v_lshlrev_b32 v241, 9, v6\nv_lshl_add_u32 v241, v3, 4, v241\nv_add_u32 v241, {S1RED_C}, v241")
    a(f"v_and_b32 v14, 31, v1\nv_lshrrev_b32 v242, 3, v14\ns_lshl_b32 s62, {SW}, 2\nv_add_u32 v242, s62, v242\nv_lshlrev_b32 v242, 4, v242")
    a("v_bfe_u32 v16, v1, 2, 1\nv_lshl_add_u32 v242, v16, 8, v242\nv_and_b32 v16, 3, v1\nv_lshl_add_u32 v242, v16, 2, v242\nv_lshrrev_b32 v16, 5, v1\nv_lshl_add_u32 v242, v16, 12, v242")
    a(f"v_add_u32 v242, {S1RED_C}, v242")
    a(f"s_lshl_b32 s70, s72, 12\ns_lshl_b32 s63, {SW}, 10\ns_add_u32 s70, s70, s63\ns_lshl_b32 s63, s73, 4\ns_add_u32 s70, s70, s63\ns_add_u32 s70, s70, {QG}\ns_add_u32 s71, s70, {QGB-QG}")
    a("v_lshrrev_b32 v237, 3, v14\nv_lshlrev_b32 v237, 7, v237\nv_bfe_u32 v16, v14, 2, 1\nv_lshl_add_u32 v237, v16, 9, v237\nv_bfe_u32 v16, v14, 1, 1\nv_lshl_add_u32 v237, v16, 3, v237")
    stamp(1)
    def s1_body(extra, late=()):
        late = list(late)
        a(f"s_waitcnt vmcnt({10+extra})")
        a(f"v_readfirstlane_b32 {TAG}, v250\ns_add_u32 {TAG}, {TAG}, 1")
        a("s_mov_b32 s63, 0xffff0000")
        for j in range(5):
            a(f"v_lshlrev_b32 v{100+2*j}, 16, v{32+j}\nv_and_b32 v{101+2*j}, s63, v{32+j}")
        a("v_readfirstlane_b32 s64, v100")
        for k in range(100, 110): a(f"v_subrev_f32 v{k}, s64, v{k}")
        a("s_mov_b32 s3, s64")
        a("v_add_f32 v110, v100, v101\nv_mul_f32 v112, v100, v100")
        a("v_fmac_f32 v112, v101, v101")
        for k in range(102, 110): a(f"v_add_f32 v110, v110, v{k}\nv_fmac_f32 v112, v{k}, v{k}")
        wave_allreduce("v_add_f32", ["v110", "v112"], ["v111", "v113"])
        a(f"s_mov_b32 s65, {f2u(1.0/640):#x}\nv_mul_f32 v110, s65, v110\nv_mul_f32 v112, s65, v112")
        a(f"v_fma_f32 v112, -v110, v110, v112\nv_add_f32 v112, {f2u(EPS):#x}, v112\nv_rsq_f32 v113, v112")
        a("v_add_f32 v110, s64, v110")
        a(f"s_waitcnt vmcnt({5+extra})")
        for i in range(5):
            r = 40+2*i
            a(f"v_lshlrev_b32 v{r}, 16, v{r}\nv_sub_f32 v{r}, v{r}, v110\nv_mul_f32 v{r}, v{r}, v113")
        for k in range(100, 108): a(f"v_mov_b32 v{k}, 0")
        issued = 0
        for i in range(5):
            a(f"s_waitcnt vmcnt({4-i+extra+issued})")
            w = 60+4*i; l = 40+2*i
            for d in range(4):
                a(f"v_lshlrev_b32 v{108+2*(d&1)}, 16, v{w+d}\nv_and_b32 v{109+2*(d&1)}, s63, v{w+d}")
                a(f"v_pk_fma_f32 v[{100+2*d}:{101+2*d}], v[{108+2*(d&1)}:{109+2*(d&1)}], v[{l}:{l+1}], v[{100+2*d}:{101+2*d}] op_sel_hi:[1,0,1]")
            if late:
                late.pop(0)(); issued += 1
    a("s_bitcmp1_b32 s2, 7\ns_cbranch_scc1 L_s1y")
    s1_body(NUP+PWX+WL, [(lambda k=k: uk_dma(k)) for k in range(NUP, 8)])
    a("s_branch L_s1r")
    a("L_s1y:")
    s1_body(8*EARLY+WL+ER)
    a("L_s1r:")
    stamp(2)
    MID = opt.get('mid', 0)
    a("ds_write_b128 v241, v[100:103]\nds_write_b128 v241, v[104:107] offset:256")
    if MID:
        a("s_bitcmp1_b32 s2, 7\ns_cbranch_scc0 L_nomid")
        ckv_group(0)
        a("L_nomid:")
    a("s_waitcnt lgkmcnt(0)\ns_barrier")
    for k in range(4): a(f"ds_read2st64_b32 v[{100+2*k}:{101+2*k}], v242 offset0:{4*k} offset1:{4*k+2}")
    a("s_waitcnt lgkmcnt(0)")
    a("v_add_f32 v100, v100, v101\nv_add_f32 v102, v102, v103\nv_add_f32 v104, v104, v105\nv_add_f32 v106, v106, v107")
    a("v_add_f32 v100, v100, v102\nv_add_f32 v104, v104, v106\nv_add_f32 v100, v100, v104")
    swap32("v_add_f32", ["v100"], ["v101"])
    a("v_mov_b32_dpp v101, v100 row_shl:1 row_mask:0xf bank_mask:0xf")
    a(f"v_cvt_pk_bf16_f32 v238, v100, v101\nv_mov_b32 v239, {TAG}")
    a("s_mov_b32 exec_lo, 0x55555555\ns_mov_b32 exec_hi, 0")
    a(f"buffer_store_dwordx2 v[238:239], v237, {S_WS}, s70 offen")
    a("s_bitcmp1_b32 s2, 7\ns_cbranch_scc0 L_Xgo")
    a(f"buffer_store_dwordx2 v[238:239], v237, {S_WS}, s71 offen sc1")
    a("s_mov_b64 exec, -1")
    a("s_branch L_Y")
    a("L_Xgo:")
    a("s_mov_b64 exec, -1")

    a.c("================= X role: S2 (q_abs), S4 (ctx partial), R")
    srd(S_C, 12, 4194304)
    G1E = opt.get('g1early', 1)
    a(f"v_and_b32 v17, 7, v3\nv_lshlrev_b32 v17, 4, v17\nv_lshl_add_u32 v17, v4, 7, v17\ns_lshl_b32 s63, {SH}, 12\ns_add_u32 s63, s63, {QG}\ns_add_u32 s64, s63, {QGB-QG}")
    if G1E:
        for s in range(4):
            r = 148+8*s
            a(f"buffer_load_dwordx4 {vr(r)}, v17, {S_WS}, s63 offen offset:{1024*s} {LF}")
            a(f"buffer_load_dwordx4 {vr(r+4)}, v17, {S_WS}, s63 offen offset:{1024*s+512} {LF}")
    a(f"s_lshl_b32 s62, {SW}, 5\nv_add_u32 v13, s62, v3\nv_lshlrev_b32 v13, 8, v13\nv_xor_b32 v14, v3, v4\nv_lshl_add_u32 v13, v14, 4, v13")
    a("v_xor_b32 v14, 64, v13\nv_xor_b32 v15, 128, v13\nv_xor_b32 v16, 192, v13")
    a(f"s_waitcnt vmcnt({9 if G1E else 1})")
    for tile in range(2):
        for s in range(4):
            a(f"ds_read_b128 {vr(116+(tile*4+s)*4)}, v{13+s} offset:{WUK+4096*tile}")
    stamp(3)
    a("v_mov_b32 v13, v17")
    if G1E:
        a("s_waitcnt vmcnt(0)")
        tagcheck("v14", [f"v{148+8*s+k}" for s in range(4) for k in (1,3,5,7)])
        a("s_mov_b32 s61, 0\nv_cmp_ne_u32 vcc, 0, v14\ns_cbranch_vccz L_p1_x")
        if MASKED: a("s_and_b64 exec, exec, vcc")
    def qgb_store():
        a("s_mov_b64 s[78-2:78-1], exec" if False else "s_mov_b64 s[98:99], exec")
        a("s_mov_b32 exec_lo, 0x55555555\ns_mov_b32 exec_hi, 0")
        a(f"buffer_store_dwordx2 v[238:239], v237, {S_WS}, s71 offen sc1")
        a("s_mov_b64 exec, s[98:99]")
    poll_begin("L_p1", ("s62", "s63", "s64"))
    a(f"s_cmp_eq_u32 s61, {BP}\ns_cbranch_scc0 L_p1n")
    qgb_store()
    a("L_p1n:")
    def dual_loads(name, emit):
        a(f"s_cmp_eq_u32 s75, {BP}\ns_cbranch_scc1 {name}_b")
        emit(LF)
        a(f"s_branch {name}_c\n{name}_b:")
        emit("sc1")
        a(f"{name}_c:")
    def g1_loads(fl):
        for s in range(4):
            r = 148+8*s
            a(f"buffer_load_dwordx4 {vr(r)}, v13, {S_WS}, s62 offen offset:{1024*s} {fl}")
            a(f"buffer_load_dwordx4 {vr(r+4)}, v13, {S_WS}, s62 offen offset:{1024*s+512} {fl}")
    dual_loads("L_p1", g1_loads)
    a("s_waitcnt vmcnt(0)")
    tagcheck("v14", [f"v{148+8*s+k}" for s in range(4) for k in (1,3,5,7)])
    poll_end("L_p1", "v14")
    a(f"s_cmp_gt_u32 s61, {BP}\ns_cbranch_scc1 L_p1m")
    qgb_store()
    a("L_p1m:")
    stamp(4)
    if opt.get('sent2', 0): sentinel(SENT2)
    for s in range(4):
        r = 148+8*s
        a(f"v_mov_b32 v{r+1}, v{r+2}\nv_mov_b32 v{r+2}, v{r+4}\nv_mov_b32 v{r+3}, v{r+6}")
    a("s_waitcnt lgkmcnt(0)")
    for s in range(4):
        for tile in range(2):
            mfma(vr(180+4*tile), vr(148+8*s), vr(116+(tile*4+s)*4), s == 0)
    a(f"s_mov_b32 s63, {f2u(SCALE):#x}")
    a("v_lshlrev_b32 v13, 2, v3\nv_lshl_add_u32 v13, v4, 6, v13\nv_cmp_eq_u32 vcc, 1, v4")
    a(f"s_lshl_b32 s62, {SR}, 9\ns_lshl_b32 s64, {SW}, 7\ns_add_u32 s62, s62, s64\ns_add_u32 s62, s62, {QA}")
    a("v_add_f32 v180, v180, v181\nv_add_f32 v184, v184, v185\nv_add_f32 v182, v182, v183\nv_add_f32 v186, v186, v187")
    a("v_add_f32 v180, v180, v182\nv_add_f32 v184, v184, v186")
    swap16("v_add_f32", ["v180", "v184"], ["v181", "v185"])
    a("v_cndmask_b32 v180, v180, v184, vcc\nv_mul_f32 v180, s63, v180")
    a("v_mov_b32_dpp v181, v180 row_shl:1 row_mask:0xf bank_mask:0xf")
    a(f"v_cvt_pk_bf16_f32 v188, v180, v181\nv_mov_b32 v189, {TAG}")
    a("s_mov_b32 exec_lo, 0x55555555\ns_mov_b32 exec_hi, 0")
    a(f"buffer_store_dwordx2 v[188:189], v13, {S_WS}, s62 offen sc1")
    a("s_mov_b64 exec, -1")
    stamp(5)
    a("v_lshrrev_b32 v15, 1, v3\nv_and_b32 v16, 1, v4\nv_lshlrev_b32 v16, 2, v16\nv_xor_b32 v15, v15, v16\nv_lshlrev_b32 v15, 5, v15\nv_and_b32 v16, 1, v0\nv_lshl_add_u32 v15, v16, 4, v15\nv_lshl_add_u32 v15, v4, 13, v15")
    a(f"s_lshl_b32 s62, {SW}, 1\ns_and_b32 s63, s62, 3\ns_lshl_b32 s63, s63, 5\nv_xor_b32 v16, s63, v15\ns_add_u32 s62, s62, 1\ns_and_b32 s63, s62, 3\ns_lshl_b32 s63, s63, 5\nv_xor_b32 v15, s63, v15")
    a(f"s_lshl_b32 s62, {SSUB}, 20\ns_lshl_b32 s63, {SH}, 8\ns_add_u32 s62, s62, s63\ns_lshl_b32 s63, {SW}, 18\ns_add_u32 s62, s62, s63")
    a(f"s_lshl_b32 s63, {SW}, 13\ns_add_u32 s63, s63, {WUV}")
    for k in range(8):
        a(f"s_mov_b32 m0, s63\ns_add_u32 s63, s63, 1024")
        a(f"buffer_load_dwordx4 {'v16' if k < 4 else 'v15'}, {S_C}, s62 offen{NT} lds")
        if k < 7: a("s_add_u32 s62, s62, 32768")
    m_coef_loads()
    tail_prefetch()
    a("s_waitcnt vmcnt(0)\ns_barrier")
    a("v_lshrrev_b32 v19, 2, v3\nv_lshl_add_u32 v19, v4, 2, v19")
    a("v_lshrrev_b32 v20, 2, v3\nv_and_b32 v21, 1, v4\nv_lshl_add_u32 v21, v21, 2, v20")
    a(f"s_lshl_b32 s62, {SW}, 1\nv_xor_b32 v21, s62, v21\nv_lshlrev_b32 v21, 5, v21")
    a("v_lshl_add_u32 v20, v20, 4, v4\nv_lshl_add_u32 v20, v20, 8, v21\nv_and_b32 v21, 3, v3\nv_lshl_add_u32 v20, v21, 3, v20\nv_xor_b32 v21, 32, v20")
    for tt in range(2):
        for j in range(4):
            for u in range(2):
                r = 60+(tt*4+j)*4+2*u; tau = 2*j+u
                a(f"ds_read_b64_tr_b16 v[{r}:{r+1}], {'v20' if tt==0 else 'v21'} offset:{WUV+16384*(tau>>2)+1024*(tau&3)}")
    m_coef_unpack()
    a("v_lshlrev_b32 v22, 4, v0\nv_and_b32 v23, 31, v1\nv_lshlrev_b32 v23, 9, v23")
    a(f"s_lshl_b32 s62, {SR}, 14\ns_add_u32 s66, s62, {OP}\ns_add_u32 s67, s66, 4096\ns_add_u32 s68, s66, 8192\ns_add_u32 s69, s66, 12288")
    a(f"s_lshr_b32 s62, {SH}, 3\ns_lshl_b32 s62, s62, 7\ns_and_b32 s63, {SH}, 7\ns_lshl_b32 s63, s63, 4\ns_add_u32 s62, s62, s63\ns_add_u32 s70, s62, {ST}")
    a(f"v_lshrrev_b32 v24, 5, v0\nv_mul_u32_u24 v24, 288, v24\nv_and_b32 v25, 31, v0\nv_lshl_add_u32 v24, v25, 3, v24\nv_add_u32 v24, {OS}, v24")
    a(f"s_lshl_b32 s62, {SW}, 7\ns_add_u32 s71, s62, {WX}\nv_and_b32 v25, 31, v1\nv_lshlrev_b32 v25, 2, v25\nv_add_u32 v25, s71, v25")
    a(f"v_lshlrev_b32 v27, 4, v4\nv_add_u32 v27, s71, v27")
    a(f"v_mul_u32_u24 v28, 288, v19\nv_and_b32 v29, 3, v3\nv_lshl_add_u32 v28, v29, 3, v28\nv_add_u32 v28, {OS}, v28")
    a(f"s_lshl_b32 s72, {SH}, 11\ns_lshl_b32 s63, {SW}, 9\ns_add_u32 s72, s72, s63\ns_lshl_b32 s63, {SSUB}, 4\ns_add_u32 s72, s72, s63\ns_add_u32 s72, s72, {CP}\ns_add_u32 s73, s72, {CPB-CP}")
    a("v_lshrrev_b32 v30, 2, v3\nv_lshlrev_b32 v30, 6, v30\nv_bfe_u32 v14, v3, 1, 1\nv_lshl_add_u32 v30, v14, 3, v30\nv_lshl_add_u32 v30, v4, 8, v30\nv_cmp_eq_u32 s[8:9], 1, v4")
    stamp(6)
    if opt.get('gate3', 0):
        a(f"s_and_b32 s62, s2, 7\ns_lshl_b32 s62, s62, 7\ns_add_u32 s62, s62, {YF}\nv_lshlrev_b32 v16, 2, v1\ns_mov_b64 exec, 0xffff\ns_mov_b32 s61, 0")
        a("L_g3:")
        a(f"buffer_load_dword v100, v16, {S_WS}, s62 offen {LF}\ns_waitcnt vmcnt(0)")
        a(f"v_cmp_ne_u32 vcc, {TAG}, v100\ns_add_u32 s61, s61, 1\ns_cmp_gt_u32 s61, 64\ns_cbranch_scc1 L_g3x\ns_cbranch_vccnz L_g3")
        a("L_g3x:\ns_mov_b64 exec, -1")
    a("s_mov_b32 exec_hi, 0")
    poll_begin("L_p3a")
    a(f"buffer_load_dwordx4 v[116:119], v23, {S_WS}, s70 offen sc1")
    a("s_waitcnt vmcnt(0)")
    tagcheck("v14", ["v117", "v119"])
    poll_end("L_p3a", "v14")
    for i in range(4):
        a(f"buffer_load_dwordx4 {vr(100+4*i)}, v22, {S_WS}, s{66+i} offen sc1")
    a("v_mov_b32 v120, v116")
    row_allreduce("v_max_f32", ["v120"]); swap16("v_max_f32", ["v120"], ["v121"])
    a("v_sub_f32 v116, v116, v120\nv_exp_f32 v116, v116\nv_mul_f32 v118, v116, v118")
    row_allreduce("v_add_f32", ["v118"]); swap16("v_add_f32", ["v118"], ["v121"])
    a("v_rcp_f32 v118, v118\nv_mul_f32 v116, v116, v118")
    a("s_mov_b32 exec_hi, 0\nds_write_b32 v25, v116\ns_mov_b64 exec, -1")
    a("ds_read_b128 v[120:123], v27\nds_read_b128 v[124:127], v27 offset:64")
    a("s_waitcnt vmcnt(0)")
    tagcheck("v14", [f"v{100+4*i+k}" for i in range(4) for k in (1,3)])
    a("v_cmp_ne_u32 vcc, 0, v14\ns_cbranch_vccz L_p3b_x")
    if MASKED: a("s_and_b64 exec, exec, vcc")
    poll_begin("L_p3b")
    for i in range(4):
        a(f"buffer_load_dwordx4 {vr(100+4*i)}, v22, {S_WS}, s{66+i} offen sc1")
    a("s_waitcnt vmcnt(0)")
    tagcheck("v14", [f"v{100+4*i+k}" for i in range(4) for k in (1,3)])
    poll_end("L_p3b", "v14")
    stamp(7)
    for i in range(4):
        a(f"v_mov_b32 v{101+4*i}, v{102+4*i}\nds_write_b64 v24, v[{100+4*i}:{101+4*i}] offset:{2304*i}")
    a("s_waitcnt lgkmcnt(0)\ns_barrier")
    for t in range(8):
        for u in range(2):
            r = 132+4*t+2*u
            a(f"ds_read_b64_tr_b16 v[{r}:{r+1}], v28 offset:{4608*u+32*t}")
    a("v_cvt_pk_bf16_f32 v128, v120, v121\nv_cvt_pk_bf16_f32 v129, v122, v123\nv_cvt_pk_bf16_f32 v130, v124, v125\nv_cvt_pk_bf16_f32 v131, v126, v127")
    for t in range(8):
        a(f"s_waitcnt lgkmcnt({14-2*t})")
        mfma(vr(164+4*t), vr(132+4*t), vr(128), True)
    for j in range(4):
        d0 = 164+8*j; o = 100+4*j
        a(f"v_cvt_pk_bf16_f32 v{o}, v{d0}, v{d0+1}\nv_cvt_pk_bf16_f32 v{o+1}, v{d0+2}, v{d0+3}\nv_cvt_pk_bf16_f32 v{o+2}, v{d0+4}, v{d0+5}\nv_cvt_pk_bf16_f32 v{o+3}, v{d0+6}, v{d0+7}")
    for j in range(4):
        for tt in range(2):
            mfma(vr(116+4*tt), vr(100+4*j), vr(60+(tt*4+j)*4), j == 0)
    a("v_cndmask_b32 v116, v116, v120, s[8:9]")
    a("v_mov_b32_dpp v117, v116 row_shl:1 row_mask:0xf bank_mask:0xf")
    a(f"v_cvt_pk_bf16_f32 v118, v116, v117\nv_mov_b32 v119, {TAG}")
    a("s_mov_b32 exec_lo, 0x55555555\ns_mov_b32 exec_hi, 0")
    a(f"buffer_store_dwordx2 v[118:119], v30, {S_WS}, s72 offen")
    a(f"buffer_store_dwordx2 v[118:119], v30, {S_WS}, s73 offen sc1")
    a("s_mov_b64 exec, -1")
    stamp(8)
    a("s_branch L_M")

    a.c("================= Y role: S3 (attention), S5 (out partial)")
    a("L_Y:")
    a("v_lshlrev_b32 v5, 4, v1")
    YD = 0
    for q in range(max(EARLY, MID), 4): ckv_group(q, ER if q == 0 else 0, 8)
    stamp(1)
    srd(S_B, 14, 5242880)
    PWY = 0
    a(f"s_lshl_b32 s62, {SW}, 5\nv_add_u32 v6, s62, v3\nv_mul_u32_u24 v6, {CKV_STRIDE}, v6\nv_lshl_add_u32 v6, v4, 4, v6")
    a("v_lshrrev_b32 v19, 2, v3\nv_lshl_add_u32 v19, v4, 2, v19")
    a(f"v_mul_u32_u24 v7, {CKV_STRIDE}, v19\nv_and_b32 v8, 3, v3\nv_lshl_add_u32 v7, v8, 3, v7\ns_lshl_b32 s62, {SW}, 8\nv_add_u32 v7, s62, v7\nv_add_u32 v8, {64*CKV_STRIDE}, v7")
    a("v_lshlrev_b32 v22, 4, v0")
    a(f"s_lshl_b32 s62, {SSUB}, 14\ns_add_u32 s66, s62, {QA}\ns_add_u32 s67, s66, 4096\ns_add_u32 s68, s66, 8192\ns_add_u32 s69, s66, 12288")
    a(f"v_lshrrev_b32 v24, 7, v0\nv_mul_u32_u24 v24, {CKV_STRIDE}, v24\nv_and_b32 v25, 127, v0\nv_lshl_add_u32 v24, v25, 3, v24\nv_add_u32 v24, {QS}, v24")
    a(f"v_and_b32 v25, 7, v3\nv_mul_u32_u24 v25, {CKV_STRIDE}, v25\nv_lshl_add_u32 v25, v4, 4, v25\nv_add_u32 v25, {QS}, v25")
    a(f"s_lshl_b32 s62, {SW}, 2\ns_add_u32 s62, s62, {MX}\nv_lshlrev_b32 v26, 4, v3\nv_add_u32 v27, s62, v26\nv_add_u32 v28, {MX}, v26")
    a(f"s_lshl_b32 s62, {SW}, 10\ns_add_u32 s62, s62, {PX}\nv_add_u32 v29, s62, v5\nv_add_u32 v31, {PX}, v5")
    for k in range(4): a(f"v_mov_b32 v{184+k}, 0x3f803f80")
    a(f"s_and_b32 s62, s2, 7\ns_lshl_b32 s62, s62, 7\ns_bfe_u32 s63, s2, 0x40003\ns_lshl_b32 s63, s63, 2\ns_add_u32 s62, s62, s63\ns_add_u32 s62, s62, {YF}\nv_mov_b32 v183, s62")
    a("v_and_b32 v21, 1, v3\nv_cmp_eq_u32 s[8:9], 1, v21\nv_and_b32 v21, 2, v3\nv_cmp_eq_u32 s[10:11], 2, v21")
    a("v_and_b32 v30, 1, v4\nv_lshlrev_b32 v30, 18, v30\nv_lshl_add_u32 v30, v3, 4, v30\nv_lshrrev_b32 v21, 1, v4\nv_lshl_add_u32 v30, v21, 8, v30\nv_cmp_eq_u32 s[12:13], 1, v21")
    a(f"s_lshl_b32 s73, {SSUB}, 19\ns_lshl_b32 s63, {SW}, 14\ns_add_u32 s73, s73, s63\ns_lshl_b32 s63, {SH}, 9\ns_add_u32 s73, s73, s63\ns_add_u32 s73, s73, {OP}")
    a(f"s_lshl_b32 s72, {SR}, 7\ns_add_u32 s72, s72, {ST}")
    G2E = opt.get('g2early', 1)
    for tile in range(2):
        if tile == 1 and G2E:
            for i in range(4):
                a(f"buffer_load_dwordx4 {vr(100+4*i)}, v22, {S_WS}, s{66+i} offen sc1")
        a(f"s_waitcnt vmcnt({PWY + (16 if tile == 0 else (4 if G2E else 0))})")
        if tile == 1: stamp(2)
        for s in range(16):
            a(f"ds_read_b128 {ar((tile*16+s)*4)}, v6 offset:{tile*16*CKV_STRIDE+64*s}")
    stamp(3)
    if opt.get('sent2', 0):
        poll_begin("L_p2a")
        a(f"buffer_load_dword v100, v23, {S_WS}, s70 offen sc1")
        a("s_waitcnt vmcnt(0)")
        tagcheck("v14", ["v100"])
        poll_end("L_p2a", "v14")
    if G2E:
        a("s_waitcnt vmcnt(0)")
        tagcheck("v14", [f"v{100+4*i+k}" for i in range(4) for k in (1,3)])
        a("v_cmp_ne_u32 vcc, 0, v14\ns_cbranch_vccz L_p2_x")
        if MASKED: a("s_and_b64 exec, exec, vcc")
    poll_begin("L_p2")
    for i in range(4):
        a(f"buffer_load_dwordx4 {vr(100+4*i)}, v22, {S_WS}, s{66+i} offen sc1")
    a("s_waitcnt vmcnt(0)")
    tagcheck("v14", [f"v{100+4*i+k}" for i in range(4) for k in (1,3)])
    poll_end("L_p2", "v14")
    stamp(4)
    for i in range(4):
        a(f"v_mov_b32 v{101+4*i}, v{102+4*i}\nds_write_b64 v24, v[{100+4*i}:{101+4*i}] offset:{2*CKV_STRIDE*i}")
    a("s_waitcnt lgkmcnt(0)\ns_barrier")
    for s in range(16):
        a(f"ds_read_b128 {vr(32+4*s)}, v25 offset:{64*s}")
    wo_n = [0]
    a(f"s_mul_i32 s71, {SR}, 40960")
    def wo_load():
        i = wo_n[0]; wo_n[0] += 1
        a(f"buffer_load_dwordx4 {vr(192+4*i)}, v22, {S_B}, s71 offen\ns_add_u32 s71, s71, 4096")
    pv = []
    for t in range(8):
        for j in range(4):
            for u in range(2):
                r = 128+(t*4+j)*4+2*u
                pv.append(f"ds_read_b64_tr_b16 a[{r}:{r+1}], {'v7' if j < 2 else 'v8'} offset:{(32*(j&1)+16*u)*CKV_STRIDE+32*t}")
    for s in range(16):
        if s < 4: a(f"s_waitcnt lgkmcnt({12-4*s})")
        for tile in range(2):
            sidx = s
            mfma(vr(100+4*tile), ar((tile*16+s)*4), vr(32+4*s), s == 0)
            if s >= 3:
                for _ in range(3 if pv else 0):
                    if pv: a(pv.pop(0))
            if tile == 1 and s in (2, 5, 8, 11, 14): wo_load()
    while pv: a(pv.pop(0))
    stamp(5)
    a("v_max3_f32 v108, v100, v101, v102\nv_max3_f32 v109, v103, v104, v105\nv_max3_f32 v108, v108, v106, v107\nv_max_f32 v108, v108, v109")
    swap16("v_max_f32", ["v108"], ["v109"]); swap32("v_max_f32", ["v108"], ["v109"])
    a("ds_write_b32 v27, v108")
    a("s_waitcnt lgkmcnt(0)\ns_barrier")
    a(f"ds_read_b128 v[108:111], v28\ns_waitcnt lgkmcnt(0)")
    a("v_max3_f32 v108, v108, v109, v110\nv_max_f32 v108, v108, v111")
    for k in range(8): a(f"v_sub_f32 v{100+k}, v{100+k}, v108")
    for k in range(8): a(f"v_exp_f32 v{100+k}, v{100+k}")
    a("v_cvt_pk_bf16_f32 v112, v100, v101\nv_cvt_pk_bf16_f32 v113, v102, v103\nv_cvt_pk_bf16_f32 v114, v104, v105\nv_cvt_pk_bf16_f32 v115, v106, v107")
    a("ds_write_b128 v29, v[112:115]")
    a("s_waitcnt lgkmcnt(0)\ns_barrier")
    G3G = opt.get('gate3', 0)
    if G3G:
        a(f"s_cmp_eq_u32 {SW}, 0\ns_cbranch_scc0 L_nh3\nv_mov_b32 v21, {TAG}\ns_mov_b64 exec, 1")
        a(f"buffer_store_dword v21, v183, {S_WS}, 0 offen\ns_mov_b64 exec, -1\nL_nh3:")
    for j in range(4): a(f"ds_read_b128 {vr(32+4*j)}, v31 offset:{1024*j}")
    for j in range(4):
        a(f"s_waitcnt lgkmcnt({3-j})")
        mfma(vr(188), vr(32+4*j), vr(184), j == 0)
        for t in range(8):
            mfma(vr(120+4*t), vr(32+4*j), ar(128+(t*4+j)*4), j == 0)
            if (j*8+t) in (3, 9, 15, 21, 27): wo_load()
    STA = opt.get('stafter', 0)
    def stats_store():
        a(f"s_cmp_eq_u32 {SW}, 0\ns_cbranch_scc0 L_Y_nostat")
        a("v_cndmask_b32 v110, v188, v189, s[8:9]\nv_cndmask_b32 v111, v190, v191, s[8:9]\nv_cndmask_b32 v110, v110, v111, s[10:11]")
        a(f"v_mov_b32 v109, {TAG}\nv_mov_b32 v111, {TAG}")
        a("s_mov_b64 exec, 0x00f0000f")
        a(f"buffer_store_dwordx4 v[108:111], v26, {S_WS}, s72 offen sc1")
        a("s_mov_b64 exec, -1\nL_Y_nostat:")
    for r in range(4):
        if r == STA: stats_store()
        o = 160+4*r
        for e in range(4): a(f"v_cndmask_b32 v{120+4*e+r}, v{120+4*e+r}, v{136+4*e+r}, s[12:13]")
        a(f"v_cvt_pk_bf16_f32 v{o}, v{120+r}, v{124+r}\nv_mov_b32 v{o+1}, {TAG}\nv_cvt_pk_bf16_f32 v{o+2}, v{128+r}, v{132+r}\nv_mov_b32 v{o+3}, {TAG}")
        a(f"buffer_store_dwordx4 {vr(o)}, v30, {S_WS}, s73 offen sc1")
        if r < 3: a("s_add_u32 s73, s73, 65536")
    if STA == 4: stats_store()
    stamp(6)
    a("s_bfe_u32 s74, s2, 0x40003\ns_add_u32 s65, s74, 16")
    a("s_waitcnt vmcnt(4)")
    wo_slice_dma("s74", 0)
    a("s_cmp_lt_u32 s74, 4\ns_cbranch_scc0 L_Y_one")
    wo_slice_dma("s65", 32768)
    a("L_Y_one:")
    m_coef_loads()
    tail_prefetch()
    s5_addresses()
    a("s_waitcnt vmcnt(0)")
    wo_slice_frags(0, 0)
    a("s_cmp_lt_u32 s74, 4\ns_cbranch_scc0 L_Y_one2")
    wo_slice_frags(32768, 32)
    a("L_Y_one2:")
    m_coef_unpack()
    stamp(7)
    a.c("================= S5: out[32u..32u+31] over the 4 heads of this XCD group (wave = head)")
    a(f"s_add_u32 s68, s101, {CPB-CP}")
    a("s_waitcnt lgkmcnt(0)")
    poll_begin("L_p4", ("s66", "s101", "s68"))
    G4D = opt.get('g4dense', 1)
    def g4_loads(fl):
        if G4D:
            a(f"buffer_load_dwordx4 v[140:143], v240, {S_WS}, s66 offen {fl}\nbuffer_load_dwordx4 v[144:147], v240, {S_WS}, s66 offen offset:1024 {fl}")
        else:
            for dq in range(4):
                a(f"buffer_load_dwordx4 {vr(100+8*dq)}, v240, {S_WS}, s66 offen offset:{512*dq} {fl}")
                a(f"buffer_load_dwordx4 {vr(104+8*dq)}, v240, {S_WS}, s66 offen offset:{512*dq+256} {fl}")
    dual_loads("L_p4", g4_loads)
    a("s_waitcnt vmcnt(0)")
    tagcheck("v14", ["v141", "v143", "v145", "v147"] if G4D else [f"v{100+8*dq+k}" for dq in range(4) for k in (1,3,5,7)])
    poll_end("L_p4", "v14")
    stamp(8)
    if G4D:
        a("v_mov_b32 v141, v142\nv_mov_b32 v145, v146")
        a("ds_write_b64 v236, v[140:141]\nds_write_b64 v236, v[144:145] offset:512")
        for dq in range(4): a(f"ds_read_b128 {vr(100+8*dq)}, v235 offset:{256*dq}")
        a("s_waitcnt lgkmcnt(0)")
    else:
        for dq in range(4):
            r = 100+8*dq
            a(f"v_mov_b32 v{r+1}, v{r+2}\nv_mov_b32 v{r+2}, v{r+4}\nv_mov_b32 v{r+3}, v{r+6}")
    a("v_cmp_eq_u32 vcc, 1, v4")
    def unit_mm(a0, d0, lds_off):
        for dq in range(4):
            for tt in range(2):
                mfma(vr(d0+4*tt), vr(100+8*dq), ar(a0+(tt*4+dq)*4), dq == 0)
        a(f"v_pk_add_f32 v[{d0}:{d0+1}], v[{d0}:{d0+1}], v[{d0+2}:{d0+3}]\nv_pk_add_f32 v[{d0+4}:{d0+5}], v[{d0+4}:{d0+5}], v[{d0+6}:{d0+7}]")
        a(f"v_add_f32 v{d0}, v{d0}, v{d0+1}\nv_add_f32 v{d0+4}, v{d0+4}, v{d0+5}")
        a(f"v_cndmask_b32 v{d0}, v{d0}, v{d0+4}, vcc")
        a(f"s_mov_b32 exec_hi, 0\nds_write_b32 v241, v{d0} offset:{lds_off}\ns_mov_b64 exec, -1")
    unit_mm(0, 156, 0)
    a("s_cmp_lt_u32 s74, 4\ns_cbranch_scc0 L_Y_one3")
    unit_mm(32, 148, 512)
    a("L_Y_one3:")
    a("s_waitcnt lgkmcnt(0)\ns_barrier")
    a(f"s_cmp_eq_u32 {SW}, 0\ns_cbranch_scc1 L_Y_pub\ns_cmp_eq_u32 {SW}, 1\ns_cbranch_scc0 L_M\ns_cmp_lt_u32 s74, 4\ns_cbranch_scc0 L_M")
    a(f"v_add_u32 v242, 512, v242\nv_add_u32 v243, {16*128}, v243\nv_add_u32 v244, 64, v244")
    a("L_Y_pub:")
    a("ds_read_b32 v136, v242\nds_read_b32 v137, v242 offset:128\nds_read_b32 v138, v242 offset:256\nds_read_b32 v139, v242 offset:384")
    a("s_waitcnt lgkmcnt(0)")
    a("v_pk_add_f32 v[136:137], v[136:137], v[138:139]\nv_add_f32 v136, v136, v137")
    a("v_mov_b32_dpp v137, v136 row_shl:1 row_mask:0xf bank_mask:0xf")
    a(f"v_cvt_pk_bf16_f32 v138, v136, v137\nv_mov_b32 v139, {TAG}")
    a("s_mov_b32 exec_lo, 0x55555555\ns_mov_b32 exec_hi, 0")
    a(f"buffer_store_dwordx2 v[138:139], v243, {S_WS}, 0 offen sc1")
    if opt.get('gate', 1):
        a("s_mov_b64 exec, 1")
        a(f"buffer_store_dword v139, v244, {S_WS}, 0 offen")
    a("s_mov_b64 exec, -1")

    a.c("================= M stage")
    a("L_M:")
    a("s_mul_i32 s64, s2, 3\ns_cmp_ge_u32 s64, 640\ns_cbranch_scc1 L_fin")
    a(f"v_mov_b32 v144, {f2u(C0):#x}\nv_mov_b32 v145, {f2u(C0):#x}")
    for k in range(3): a(f"v_mov_b32 v{146+2*k}, 0\nv_mov_b32 v{147+2*k}, 0")
    a(f"v_add_u32 v15, s64, v1\nv_min_u32 v15, 639, v15\nv_lshlrev_b32 v15, 2, v15\nv_add_u32 v15, {HB}, v15")
    a("v_mov_b32 v132, 0\nv_mov_b32 v133, 0")
    a(f"s_cmp_eq_u32 {SW}, 3\ns_cbranch_scc1 L_M_wait")
    a(f"v_lshlrev_b32 v13, 4, v0\ns_mov_b32 s66, {XP}\ns_mov_b32 s67, {XP+5120}\ns_mov_b32 s68, {XP+10240}\ns_mov_b32 s69, {XP+15360}")
    a("s_mov_b32 s63, 0xffff0000")
    a("v_lshlrev_b32 v136, 16, v246\nv_and_b32 v137, s63, v246\nv_lshlrev_b32 v138, 16, v247\nv_and_b32 v139, s63, v247")
    a(f"v_add_u32 v17, {HB}, v13\ns_lshl_b32 s62, {SW}, 3\ns_add_u32 s62, s62, {SB}\nv_mov_b32 v19, s62")
    a(f"s_cmp_eq_u32 {SW}, 2\ns_cselect_b32 s72, 0, -1\ns_mov_b32 exec_hi, s72")
    stamp(9)
    if opt.get('gate', 1):
        a(f"s_mov_b64 s[98:99], exec\ns_mov_b64 exec, 0xfffff\ns_and_b32 s62, s2, 7\ns_lshl_b32 s62, s62, 7\ns_add_u32 s62, s62, {UF}\nv_lshlrev_b32 v14, 2, v1\nv_mov_b32 v16, v14\ns_mov_b32 s61, 0")
        a("L_g6:")
        a(f"buffer_load_dword v100, v16, {S_WS}, s62 offen {LF}\ns_waitcnt vmcnt(0)")
        a(f"v_cmp_ne_u32 vcc, {TAG}, v100\ns_add_u32 s61, s61, 1\ns_cmp_gt_u32 s61, {opt.get('gatemax', 64)}\ns_cbranch_scc1 L_g6x\ns_cbranch_vccnz L_g6")
        a("L_g6x:\ns_mov_b64 exec, s[98:99]")
    poll_begin("L_p6")
    for xx in range(8):
        a(f"buffer_load_dwordx4 {vr(100+4*xx)}, v13, {S_WS}, s{66+(xx>>1)} offen offset:{2560*(xx&1)} sc1")
    a("s_waitcnt vmcnt(0)")
    tagcheck("v14", [f"v{100+4*xx+k}" for xx in range(8) for k in (1,3)])
    poll_end("L_p6", "v14")
    a("s_mov_b32 exec_hi, s72")
    stamp(10)
    for xx in range(8):
        b = 100+4*xx
        a(f"v_lshlrev_b32 v140, 16, v{b}\nv_and_b32 v141, s63, v{b}\nv_lshlrev_b32 v142, 16, v{b+2}\nv_and_b32 v143, s63, v{b+2}")
        a("v_pk_add_f32 v[136:137], v[136:137], v[140:141]\nv_pk_add_f32 v[138:139], v[138:139], v[142:143]")
    a("v_cvt_pk_bf16_f32 v140, v136, v137\nv_cvt_pk_bf16_f32 v141, v138, v139")
    a("v_lshlrev_b32 v136, 16, v140\nv_and_b32 v137, s63, v140\nv_lshlrev_b32 v138, 16, v141\nv_and_b32 v139, s63, v141")
    a("ds_write_b128 v17, v[136:139]")
    for k in range(4): a(f"v_subrev_f32 v{140+k}, s3, v{136+k}")
    a("v_add_f32 v132, v140, v141\nv_mul_f32 v133, v140, v140\nv_add_f32 v134, v142, v143\nv_fmac_f32 v133, v141, v141\nv_add_f32 v132, v132, v134\nv_fmac_f32 v133, v142, v142\nv_fmac_f32 v133, v143, v143")
    a("s_mov_b64 exec, -1")
    wave_allreduce("v_add_f32", ["v132", "v133"], ["v134", "v135"])
    a("s_mov_b64 exec, 1\nds_write_b64 v19, v[132:133]\ns_mov_b64 exec, -1")
    a(f"s_or_b32 s62, s2, {SW}\ns_cmp_eq_u32 s62, 0\ns_cbranch_scc0 L_noep")
    a(f"v_mov_b32 v16, {TAG}\ns_mov_b64 exec, 1\nbuffer_store_dword v16, v18, {S_WS}, 0 offen sc1\ns_mov_b64 exec, -1")
    a("L_noep:")
    a("s_waitcnt lgkmcnt(0)")
    a("L_M_wait:")
    a("s_barrier")
    a(f"v_mov_b32 v16, {SB}\nds_read_b128 v[120:123], v16\nds_read_b64 v[124:125], v16 offset:16\nds_read_b32 v136, v15\ns_mov_b32 s62, {f2u(1.0/640):#x}\ns_waitcnt lgkmcnt(0)")
    a("v_add_f32 v130, v120, v122\nv_add_f32 v132, v121, v123\nv_add_f32 v130, v130, v124\nv_add_f32 v132, v132, v125")
    a("v_mul_f32 v130, s62, v130\nv_mul_f32 v132, s62, v132")
    a("v_fma_f32 v132, -v130, v130, v132")
    a("v_add_f32 v130, s3, v130")
    a(f"v_add_f32 v133, {f2u(EPS):#x}, v132\nv_rsq_f32 v133, v133")
    a("v_sub_f32 v140, v136, v130")
    a("v_mul_f32 v134, v133, v133\nv_mul_f32 v134, v134, v132")
    a(f"v_add_f32 v134, {f2u(EPS):#x}, v134\nv_rsq_f32 v134, v134\nv_mul_f32 v140, v140, v133\ns_mov_b32 s62, {f2u(C1):#x}\nv_mul_f32 v140, v140, v134")
    for k in range(3):
        a(f"v_readlane_b32 s{70+2*k}, v140, {k}")
    for k in range(3):
        t = f"s[{70+2*k}:{71+2*k}]"
        U = lambda i: f"v[{152+2*i}:{153+2*i}]"
        Z = lambda i: f"v[{160+2*i}:{161+2*i}]"
        for i in range(4): a(f"v_pk_fma_f32 {U(i)}, v[{210+2*i}:{211+2*i}], {t}, v[{218+2*i}:{219+2*i}] op_sel_hi:[1,0,1]")
        for i in range(4): a(f"v_pk_mul_f32 {Z(i)}, {U(i)}, {U(i)}")
        for i in range(4): a(f"v_pk_fma_f32 {Z(i)}, {Z(i)}, s[62:63], v[144:145] op_sel_hi:[1,0,1]")
        for i in range(4): a(f"v_pk_mul_f32 {Z(i)}, {Z(i)}, {U(i)}")
        for i in range(4): a(f"v_exp_f32 v{160+2*i}, v{160+2*i}\nv_exp_f32 v{161+2*i}, v{161+2*i}")
        for i in range(4): a(f"v_pk_mul_f32 {U(i)}, {U(i)}, v[{226+2*i}:{227+2*i}]")
        for i in range(4): a(f"v_pk_add_f32 {Z(i)}, {Z(i)}, 1.0 op_sel_hi:[1,0]")
        for i in range(4): a(f"v_rcp_f32 v{160+2*i}, v{160+2*i}\nv_rcp_f32 v{161+2*i}, v{161+2*i}")
        for i in range(4): a(f"v_pk_fma_f32 v[{146+2*k}:{147+2*k}], {U(i)}, {Z(i)}, v[{146+2*k}:{147+2*k}]")
    for k in range(3): a(f"v_add_f32 v{146+2*k}, v{146+2*k}, v{147+2*k}")
    wave_allreduce("v_add_f32", ["v146","v148","v150"], ["v147","v149","v151"])
    a(f"s_lshl_b32 s62, {SW}, 4\ns_add_u32 s62, s62, {MRED}\nv_mov_b32 v15, s62\nv_mov_b32 v147, v148\nv_mov_b32 v148, v150")
    a("s_mov_b64 exec, 1\nds_write_b96 v15, v[146:148]\ns_mov_b64 exec, -1")
    a("s_waitcnt lgkmcnt(0)\ns_barrier")
    a(f"s_cmp_eq_u32 {SW}, 0\ns_cbranch_scc0 L_fin")
    a(f"v_lshlrev_b32 v15, 2, v1\nv_add_u32 v15, {MRED}, v15")
    a("ds_read_b32 v100, v15\nds_read_b32 v101, v15 offset:16\nds_read_b32 v102, v15 offset:32\nds_read_b32 v103, v15 offset:48")
    srd(S_T, 26, 1280)
    a("v_add_u32 v15, s64, v1\nv_lshlrev_b32 v16, 1, v15")
    a("v_add_f32 v136, v136, v208")
    a("s_waitcnt lgkmcnt(0)")
    a("v_add_f32 v100, v100, v101\nv_add_f32 v102, v102, v103\nv_add_f32 v100, v100, v102\nv_add_f32 v100, v100, v136")
    a("v_cvt_pk_bf16_f32 v100, v100, v100")
    a("v_cmp_gt_u32 vcc, 640, v15\ns_and_b64 exec, vcc, 7")
    a("s_cbranch_execz L_fin")
    a(f"buffer_store_short v100, v16, {S_T}, 0 offen")
    a("L_fin:")
    if opt.get('pin'):
        a(f"s_waitcnt lgkmcnt(0)\ns_add_u32 s76, s76, {opt['pin']}")
        a("L_pin:\ns_memrealtime s[78:79]\ns_waitcnt lgkmcnt(0)\ns_sub_u32 s80, s78, s76\ns_cmp_lt_i32 s80, 0\ns_cbranch_scc1 L_pin")
    if profile and opt.get('dbgout'):
        stamp(11)
        a("s_mov_b64 exec, -1\ns_waitcnt lgkmcnt(0)")
        srd(S_T, 28, 256)
        a(f"s_cmp_eq_u32 {SW}, 0\ns_cbranch_scc0 L_end")
        a("v_mov_b32 v18, 0\ns_mov_b64 exec, 1")
        a(f"s_not_b32 s62, s76\nv_mov_b32 v15, s62\nbuffer_atomic_umax v15, v18, {S_T}, 0 offen")
        a(f"v_mov_b32 v15, s98\nbuffer_atomic_umax v15, v18, {S_T}, 0 offen offset:44")
        a("s_bitcmp1_b32 s2, 7\ns_cbranch_scc1 L_dy")
        for k in range(1, 9):
            a(f"v_mov_b32 v15, s{76+2*k}\nbuffer_atomic_umax v15, v18, {S_T}, 0 offen offset:{4*k}")
        a(f"v_mov_b32 v15, s{76+2*10}\nbuffer_atomic_umax v15, v18, {S_T}, 0 offen offset:40")
        a(f"v_mov_b32 v15, s{76+2*9}\nbuffer_atomic_umax v15, v18, {S_T}, 0 offen offset:36")
        a("s_branch L_end\nL_dy:")
        for j, k in enumerate((2, 4, 6, 8)):
            a(f"v_mov_b32 v15, s{76+2*k}\nbuffer_atomic_umax v15, v18, {S_T}, 0 offen offset:{48+4*j}")
    elif profile:
        stamp(11)
        a("s_mov_b64 exec, -1\ns_waitcnt lgkmcnt(0)")
        a(f"s_lshl_b32 s62, s2, 2\ns_add_u32 s62, s62, {SW}\ns_lshl_b32 s62, s62, 6\ns_add_u32 s62, s62, {TS}")
        a("v_mov_b32 v18, 0\ns_mov_b64 exec, 1")
        for k in range(12):
            a(f"v_mov_b32 v15, s{76+2*k}\nbuffer_store_dword v15, v18, {S_WS}, s62 offen offset:{4*k}")
        a(f"v_mov_b32 v15, s100\nbuffer_store_dword v15, v18, {S_WS}, s62 offen offset:48")
        a(f"s_getreg_b32 s100, hwreg(HW_REG_XCC_ID)\nv_mov_b32 v15, s100\nbuffer_store_dword v15, v18, {S_WS}, s62 offen offset:52")
        a(f"s_getreg_b32 s100, hwreg(HW_REG_HW_ID)\nv_mov_b32 v15, s100\nbuffer_store_dword v15, v18, {S_WS}, s62 offen offset:56")
    a("L_end:")
    a("s_endpgm")
    a("L_code_end:")
    a(f".set CODE_BYTES, L_code_end - {NAME}")
    a('.section .rodata,"a"\n.p2align 6')
    a(f".amdhsa_kernel {NAME}")
    a("  .amdhsa_next_free_vgpr 512\n  .amdhsa_next_free_sgpr 102\n  .amdhsa_accum_offset 256\n  .amdhsa_group_segment_fixed_size 0\n  .amdhsa_kernarg_size 112\n  .amdhsa_user_sgpr_count 2\n  .amdhsa_user_sgpr_kernarg_segment_ptr 1\n  .amdhsa_system_sgpr_workgroup_id_x 1")
    a(".end_amdhsa_kernel")
    n = a.hazard_pass()
    return a.text(), n

LAYOUT = dict(QG=QG, QA=QA, ST=ST, CP=CP, HG=HG, OUTP=OUTP, OP=OP, TS=TS, XP=XP)
if __name__ == "__main__":
    prof = "prof" in sys.argv[2:]
    opt = {}
    for x in sys.argv[2:]:
        if '=' in x:
            k, v = x.split('='); opt[k] = int(v) if v.lstrip('-').isdigit() else v
    txt, n = gen(profile=prof, opt=opt)
    open(sys.argv[1], "w").write(txt)
    print("auto nops:", n, "lines:", txt.count("\n"), LAYOUT)
```

```python
import sys, math, struct
from asmlib import Asm

NAME = "sequential_preLN__compressed_kv_cla__mixer_token_mlp__decode_kernel"
HEADER = open('sequential_preLN__compressed_kv_cla__mixer_token_mlp__decode.s.ref').read().split('; Override')[0]

def f2u(x): return struct.unpack('<I', struct.pack('<f', x))[0]

QG   = 4096
QA   = QG + 131072
ST   = QA + 65536
CP   = ST + 16384
HG   = CP + 65536
SENT2 = HG + 4096
SENT5 = SENT2 + 16384
QGB  = SENT5 + 16384
CPB  = QGB + 131072
OUTP = CPB + 65536
OUTPB = OUTP + 128*2560
XP   = OUTPB + 128*2560
UF   = XP + 8*2560
YF   = UF + 1024
OP   = (2 << 20) + 4096
TS   = (4 << 20) + 65536
assert YF + 8*128 <= OP
WS_SIZE = 5 << 20
CKV_STRIDE = 1056
QS = 135168; PX = 143616; MX = 147712; LX = 147968; MRED = 148224; MB = 148288
WUK = 0; WUV = 32768; OS = 65536; S1RED = 74752; WX = 82944; RRED = 83456
S1RED_C = 148480
LDS_BYTES = 156672
WO_STRIDE = 1312
GS = 65536
HB = PX; SB = MB; RR = PX + 2560

SCALE = (128 ** -0.5) * math.log2(math.e)
C0 = -2.0 * math.sqrt(2.0 / math.pi) * math.log2(math.e)
C1 = C0 * 0.044715
EPS = 1e-5

S_WS, S_X, S_A, S_B, S_C, S_T = 's[32:35]', 's[36:39]', 's[40:43]', 's[44:47]', 's[48:51]', 's[52:55]'
TAG, SW, SR, SH, SSUB = 's56', 's57', 's58', 's59', 's60'

def gen(profile=False, spin_limit=400000, opt=None):
    opt = opt or {}
    WARM = opt.get('warm', 1)
    STPOS = opt.get('stpos', 1)
    a = Asm()
    NT = " nt" if opt.get('nt', 1) else ""
    LF = opt.get('lflag', 'nt')
    BP = opt.get('bper', 32) - 1
    SMASK = opt.get('smask', 0xfff)
    def stamp(k):
        if profile and (SMASK >> k) & 1:
            assert k < 12
            a(f"s_memrealtime s[{76+2*k}:{77+2*k}]")
    def srd(dst, ptr, size):
        d = int(dst[2:dst.index(':')])
        a(f"s_mov_b32 s{d}, s{ptr}\ns_mov_b32 s{d+1}, s{ptr+1}\ns_mov_b32 s{d+2}, {size}\ns_mov_b32 s{d+3}, 0x00020000")
    DPPS = ("quad_perm:[1,0,3,2]", "quad_perm:[2,3,0,1]", "row_half_mirror", "row_mirror")
    def row_allreduce(op, vs):
        for m in DPPS:
            for v in vs: a(f"{op}_dpp {v}, {v}, {v} {m} row_mask:0xf bank_mask:0xf")
    def swapred(sw, op, vs, ts):
        for v, t in zip(vs, ts): a(f"v_mov_b32 {t}, {v}")
        for v, t in zip(vs, ts): a(f"{sw} {v}, {t}")
        for v, t in zip(vs, ts): a(f"{op} {v}, {v}, {t}")
    def swap16(op, vs, ts): swapred("v_permlane16_swap_b32", op, vs, ts)
    def swap32(op, vs, ts): swapred("v_permlane32_swap_b32", op, vs, ts)
    def wave_allreduce(op, vs, ts):
        row_allreduce(op, vs); swap16(op, vs, ts); swap32(op, vs, ts)
    MASKED = opt.get('masked', 1)
    def poll_begin(name, dual=None):
        a(f"s_mov_b32 s61, 0")
        a(f"{name}:")
        if dual:
            a(f"s_and_b32 s75, s61, {BP}\ns_cmp_eq_u32 s75, {BP}\ns_cselect_b32 {dual[0]}, {dual[2]}, {dual[1]}")
    def poll_end(name, bad):
        a(f"v_cmp_ne_u32 vcc, 0, {bad}")
        a(f"s_add_u32 s61, s61, 1")
        a(f"s_cmp_gt_u32 s61, {spin_limit}")
        a(f"s_cbranch_scc1 {name}_x")
        if MASKED:
            a(f"s_and_b64 exec, exec, vcc")
            a(f"s_cbranch_execnz {name}")
        else:
            a(f"s_cbranch_vccnz {name}")
        a(f"{name}_x:")
        if MASKED: a("s_mov_b64 exec, -1")
        if profile and opt.get('cntfor') == name:
            a("s_mov_b32 s100, s61")
    def tagcheck(bad, tags):
        a(f"v_xor_b32 {bad}, {TAG}, {tags[0]}")
        for t in tags[1:]:
            a(f"v_bitop3_b32 {bad}, {t}, {TAG}, {bad} bitop3:0xbe")
    def mfma(d, A, B, first):
        a(f"v_mfma_f32_16x16x32_bf16 {d}, {A}, {B}, {'0' if first else d}")
    def vr(b, n=4): return f"v[{b}:{b+n-1}]"
    def ar(b, n=4): return f"a[{b}:{b+n-1}]"

    a.lines += [l for l in HEADER.strip().split('\n')]
    a(f"; @launch grid=(256,1,1) block=(256,1,1) lds={LDS_BYTES}")
    a('.amdgcn_target "amdgcn-amd-amdhsa--gfx950"')
    for l in """
One persistent launch, 256 workgroups (one per CU).  Absorbed MLA decode + token mixer, all stages chained through d_ws:
  S1 (all)  q partials      = LN(x) . w_q              rows split 8 ways per head
  S2 (X)    q_abs[h, c]     = q[h] . w_uk[c, h]        (scale and log2(e) folded in)
  S3 (Y)    scores, running max / sum and P.c_kv for 128 keys x 8 heads (MFMA)
  S4 (X)    combine the 32 key splits (true max), ctx partial = ctx_lat . w_uv
  S5 (Y)    out partial for 32 columns over the 4 heads of the workgroup id class (id & 7)
  M  (all)  h = x + out, LN(LN(h)), token MLP for 3 columns per workgroup
X = ids 0..127, Y = ids 128..255.  Hand-offs are 8-byte granules {payload, tag}; tag = (word 0 of d_ws at entry) + 1,
word 0 is set to the tag at the end.  Hand-offs inside one id class are written twice: a plain store (seen quickly when the
class shares an L2) and a write-through copy that consumers probe every 32nd poll, so no placement is assumed.
""".strip().split("\n"): a.c(l)
    a(f".text\n.globl {NAME}\n.p2align 8\n.type {NAME},@function\n{NAME}:")
    WPOS = opt.get('wpos', 0)
    def warm_load():
        a("s_getpc_b64 s[52:53]\nL_pc:\ns_sub_u32 s52, s52, L_pc-%s\ns_subb_u32 s53, s53, 0\nv_lshlrev_b32 v254, 7, v0\ns_mov_b32 s54, CODE_BYTES\ns_mov_b32 s55, 0x00020000" % NAME)
        a("buffer_load_dword v251, v254, s[52:55], 0 offen")
    if WARM and WPOS == 0: warm_load()
    stamp(0)
    if opt.get('pin'): a("s_memrealtime s[76:77]")
    if profile: a("s_mov_b32 s100, 99")
    a("s_cmp_ge_u32 s2, 256\ns_cbranch_scc1 L_end")
    a("s_load_dwordx16 s[4:19], s[0:1], 0\ns_load_dwordx8 s[20:27], s[0:1], 64\ns_load_dwordx4 s[28:31], s[0:1], 96")
    a("v_and_b32 v1, 63, v0\nv_lshrrev_b32 v2, 6, v0\nv_and_b32 v3, 15, v0\nv_bfe_u32 v4, v0, 4, 2")
    a(f"v_readfirstlane_b32 {SW}, v2")
    a(f"s_and_b32 s61, s2, 7\ns_bfe_u32 s62, s2, 0x40003\ns_lshl_b32 {SR}, s61, 4\ns_add_u32 {SR}, {SR}, s62")
    a(f"s_lshr_b32 {SH}, {SR}, 2\ns_and_b32 {SSUB}, {SR}, 3")
    a("v_mov_b32 v18, 0")
    for k in range(240, 245): a(f"v_mov_b32 v{k}, 0")
    a("s_waitcnt lgkmcnt(0)")
    srd(S_WS, 30, WS_SIZE)
    a(f"buffer_load_dword v250, v18, {S_WS}, 0 offen")
    if opt.get('tlbw', 0):
        a(f"s_mov_b32 s62, {2<<20}\ns_mov_b32 s63, {(4<<20)+8192}")
        a(f"buffer_load_dword v255, v18, {S_WS}, s62 offen\nbuffer_load_dword v255, v18, {S_WS}, s63 offen")
    srd(S_X, 4, 1280)
    def m_coef_loads():
        a("v_lshlrev_b32 v17, 2, v0")
        for k, p in enumerate((18, 20, 22)):
            srd(S_T, p, 3456)
            for i in range(4):
                a(f"buffer_load_dword v{196+4*k+i}, v17, {S_T}, 0 offen offset:{1024*i}")
        srd(S_T, 24, 2)
        a(f"buffer_load_ushort v208, v18, {S_T}, 0 offen")
    def m_coef_unpack():
        a("s_mov_b32 s63, 0xffff0000")
        for k in range(3):
            for i in range(4):
                s_ = 196+4*k+i; d = 210+8*k+2*i
                a(f"v_lshlrev_b32 v{d}, 16, v{s_}\nv_and_b32 v{d+1}, s63, v{s_}")
        a("v_lshlrev_b32 v208, 16, v208")
    def tail_prefetch():
        a(f"v_lshlrev_b32 v245, 3, v0\nbuffer_load_dwordx2 v[246:247], v245, {S_X}, 0 offen")
        if opt.get('gate', 1):
            a(f"s_and_b32 s62, s2, 7\ns_lshl_b32 s62, s62, 7\ns_add_u32 s62, s62, {UF}\nv_lshlrev_b32 v249, 2, v1\nv_and_b32 v249, 127, v249")
            a(f"buffer_load_dword v252, v249, {S_WS}, s62 offen {LF}")
    def wo_slice_dma(su="s74", lds0=0):
        a(f"v_lshrrev_b32 v9, 2, v1\nv_mul_u32_u24 v9, 1280, v9\nv_bfe_u32 v10, v1, 4, 1\nv_lshlrev_b32 v10, 1, v10\nv_and_b32 v11, 3, v1\nv_xor_b32 v10, v10, v11\nv_lshl_add_u32 v9, v10, 4, v9")
        a(f"s_and_b32 s62, s2, 7\ns_lshl_b32 s62, s62, 2\ns_add_u32 s62, s62, {SW}\ns_mul_i32 s62, s62, {128*1280}\ns_lshl_b32 s63, {su}, 6\ns_add_u32 s62, s62, s63\ns_lshl_b32 s63, {SW}, 13\ns_add_u32 s63, s63, {lds0}")
        for k in range(8):
            a(f"s_mov_b32 m0, s63\ns_add_u32 s63, s63, 1024")
            a(f"buffer_load_dwordx4 v9, {S_B}, s62 offen lds")
            if k < 7: a(f"s_add_u32 s62, s62, {16*1280}")
    def wo_slice_frags(lds0=0, a0=0):
        a(f"v_lshrrev_b32 v9, 2, v3\nv_lshl_add_u32 v9, v4, 2, v9\nv_lshlrev_b32 v9, 6, v9\nv_and_b32 v10, 1, v4\nv_lshl_add_u32 v9, v10, 5, v9\nv_and_b32 v10, 3, v3\nv_lshl_add_u32 v9, v10, 3, v9\ns_lshl_b32 s62, {SW}, 13\nv_add_u32 v9, s62, v9\nv_xor_b32 v10, 32, v9")
        for tt in range(2):
            for dq in range(4):
                for uu in range(2):
                    r = a0+(tt*4+dq)*4+2*uu
                    a(f"ds_read_b64_tr_b16 a[{r}:{r+1}], {'v9' if tt == 0 else 'v10'} offset:{lds0+2048*dq+1024*uu}")
    def s5_addresses():
        if opt.get('g4dense', 1):
            a("v_lshlrev_b32 v240, 4, v1")
            a(f"v_lshrrev_b32 v236, 5, v1\nv_lshlrev_b32 v236, 8, v236\nv_bfe_u32 v235, v1, 2, 2\nv_lshl_add_u32 v236, v235, 6, v236\nv_and_b32 v235, 3, v1\nv_lshl_add_u32 v236, v235, 4, v236\nv_bfe_u32 v235, v1, 4, 1\nv_lshl_add_u32 v236, v235, 3, v236")
            a(f"s_lshl_b32 s62, {SW}, 10\ns_add_u32 s62, s62, {GS}\nv_add_u32 v236, s62, v236")
            a(f"v_and_b32 v235, 3, v3\nv_lshlrev_b32 v235, 4, v235\nv_lshl_add_u32 v235, v4, 6, v235\nv_add_u32 v235, s62, v235")
        else:
            a(f"v_and_b32 v240, 3, v3\nv_lshlrev_b32 v240, 4, v240\nv_lshl_add_u32 v240, v4, 6, v240")
        a(f"s_and_b32 s62, s2, 7\ns_lshl_b32 s63, s62, 2\ns_add_u32 s63, s63, {SW}\ns_lshl_b32 s63, s63, 11\ns_add_u32 s101, s63, {CP}")
        a(f"s_mul_i32 s63, s62, 2560\ns_lshl_b32 s65, s74, 7\ns_add_u32 s63, s63, s65\ns_add_u32 s63, s63, {XP}\nv_lshlrev_b32 v243, 2, v1\nv_add_u32 v243, s63, v243")
        a(f"s_lshl_b32 s62, s62, 7\ns_lshl_b32 s63, s74, 2\ns_add_u32 s62, s62, s63\ns_add_u32 s62, s62, {UF}\nv_mov_b32 v244, s62")
        a(f"v_lshlrev_b32 v241, 2, v1\nv_add_u32 v242, {RR}, v241\ns_lshl_b32 s62, {SW}, 7\nv_add_u32 v241, s62, v242")
        if opt.get('prewarm', 1):
            a(f"v_lshlrev_b32 v253, 7, v3\nbuffer_load_dword v252, v253, {S_WS}, s101 offen {LF}")
    def sentinel(base):
        lab = f"L_s{base}"
        a(f"s_cmp_eq_u32 {SW}, 0\ns_cbranch_scc0 {lab}")
        a(f"v_mov_b32 v240, {TAG}\nv_mov_b32 v241, {TAG}\nv_mov_b32 v242, {TAG}\nv_mov_b32 v243, {TAG}\nv_lshlrev_b32 v244, 4, v1")
        a(f"s_lshl_b32 s62, {SR}, 7\ns_add_u32 s62, s62, {base}\ns_mov_b64 exec, 0xff")
        a(f"buffer_store_dwordx4 v[240:243], v244, {S_WS}, s62 offen sc1")
        a(f"s_mov_b64 exec, -1\n{lab}:")

    NW = 1 if WARM else 0
    PWX = 1 if opt.get("prewarm", 1) else 0

    a.c("================= S1: q partials, head h1 = 4*xcd + (idx>>3), rows 80*me..80*me+79, me = idx&7")
    a("s_lshr_b32 s72, s2, 6\ns_and_b32 s73, s2, 7\ns_lshl_b32 s73, s73, 2\ns_add_u32 s72, s72, s73")
    a("s_bfe_u32 s73, s2, 0x30003")
    srd(S_A, 8, 5242880)
    a("v_lshlrev_b32 v5, 2, v1")
    for j in range(5): a(f"buffer_load_dword v{32+j}, v5, {S_X}, 0 offen offset:{256*j}")
    a(f"v_lshrrev_b32 v6, 4, v0\ns_mul_i32 s62, s73, 80\nv_add_u32 v7, s62, v6\nv_lshlrev_b32 v7, 1, v7")
    for i in range(5): a(f"buffer_load_ushort v{40+2*i}, v7, {S_X}, 0 offen offset:{32*i}")
    a("v_lshlrev_b32 v8, 4, v3\nv_lshl_add_u32 v8, v6, 13, v8")
    a(f"s_mul_i32 s61, s73, {80*8192}\ns_lshl_b32 s62, s72, 8\ns_add_u32 s61, s61, s62")
    for i in range(5):
        a(f"buffer_load_dwordx4 {vr(60+4*i)}, v8, {S_A}, s61 offen{NT}")
        if i < 4: a(f"s_add_u32 s61, s61, {16*8192}")
    WL = 1 if (WARM and WPOS == 1) else 0
    if WL: warm_load()
    a("v_xor_b32 v9, v3, v4\nv_lshlrev_b32 v9, 4, v9\nv_lshl_add_u32 v9, v4, 13, v9")
    a("v_xor_b32 v10, 64, v9\nv_xor_b32 v11, 128, v9\nv_xor_b32 v12, 192, v9")
    a("s_bitcmp1_b32 s2, 7\ns_cbranch_scc1 L_nouk")
    srd(S_B, 10, 4194304)
    a(f"s_lshl_b32 s66, {SSUB}, 20\ns_lshl_b32 s63, {SH}, 8\ns_add_u32 s66, s66, s63\ns_lshl_b32 s63, {SW}, 18\ns_add_u32 s66, s66, s63")
    a(f"s_lshl_b32 s67, {SW}, 13")
    NUP = opt.get('nup', 8)
    def uk_dma(k):
        a(f"s_mov_b32 m0, s67\ns_add_u32 s67, s67, 1024")
        a(f"buffer_load_dwordx4 v{9+(k&3)}, {S_B}, s66 offen{NT} lds")
        if k < 7: a(f"s_add_u32 s66, s66, 32768")
    for k in range(NUP): uk_dma(k)
    if PWX:
        a(f"v_and_b32 v253, 31, v1\nv_lshlrev_b32 v253, 7, v253\ns_lshl_b32 s62, {SH}, 12\ns_add_u32 s62, s62, {QG}")
        a(f"buffer_load_dword v252, v253, {S_WS}, s62 offen {LF}")
    a("s_branch L_s1c")
    a("L_nouk:")
    EARLY = opt.get('early', 0)
    ER = opt.get('erows', 0)
    def ckv_group(q, j0=0, j1=8):
        a(f"s_add_u32 s62, {SSUB}, {q}\ns_and_b32 s62, s62, 3\ns_add_u32 s63, s69, {(q*8+j0)*CKV_STRIDE}\ns_lshl_b32 s62, s62, 13\ns_add_u32 s62, s62, s68")
        if j0: a(f"s_add_u32 s62, s62, {1024*j0}")
        for j in range(j0, j1):
            a(f"s_mov_b32 m0, s63\ns_add_u32 s63, s63, {CKV_STRIDE}")
            a(f"buffer_load_dwordx4 v9, {S_B}, s62 offen{' nt' if opt.get('ntc', 0) == 2 or (opt.get('ntc', 0) == 1 and q == 0) else ''} lds")
            if j < j1-1: a(f"s_add_u32 s62, s62, 1024")
    srd(S_B, 6, 4194304)
    a("v_lshlrev_b32 v9, 4, v1")
    a(f"s_lshl_b32 s68, {SH}, 17\ns_lshl_b32 s63, {SW}, 15\ns_add_u32 s68, s68, s63")
    a(f"s_mul_i32 s69, {SW}, {32*CKV_STRIDE}")
    for q in range(EARLY): ckv_group(q)
    if ER: ckv_group(0, 0, ER)
    a("L_s1c:")
    a(f"v_lshlrev_b32 v241, 9, v6\nv_lshl_add_u32 v241, v3, 4, v241\nv_add_u32 v241, {S1RED_C}, v241")
    a(f"v_and_b32 v14, 31, v1\nv_lshrrev_b32 v242, 3, v14\ns_lshl_b32 s62, {SW}, 2\nv_add_u32 v242, s62, v242\nv_lshlrev_b32 v242, 4, v242")
    a("v_bfe_u32 v16, v1, 2, 1\nv_lshl_add_u32 v242, v16, 8, v242\nv_and_b32 v16, 3, v1\nv_lshl_add_u32 v242, v16, 2, v242\nv_lshrrev_b32 v16, 5, v1\nv_lshl_add_u32 v242, v16, 12, v242")
    a(f"v_add_u32 v242, {S1RED_C}, v242")
    a(f"s_lshl_b32 s70, s72, 12\ns_lshl_b32 s63, {SW}, 10\ns_add_u32 s70, s70, s63\ns_lshl_b32 s63, s73, 4\ns_add_u32 s70, s70, s63\ns_add_u32 s70, s70, {QG}\ns_add_u32 s71, s70, {QGB-QG}")
    a("v_lshrrev_b32 v237, 3, v14\nv_lshlrev_b32 v237, 7, v237\nv_bfe_u32 v16, v14, 2, 1\nv_lshl_add_u32 v237, v16, 9, v237\nv_bfe_u32 v16, v14, 1, 1\nv_lshl_add_u32 v237, v16, 3, v237")
    stamp(1)
    def s1_body(extra, late=()):
        late = list(late)
        a(f"s_waitcnt vmcnt({10+extra})")
        a(f"v_readfirstlane_b32 {TAG}, v250\ns_add_u32 {TAG}, {TAG}, 1")
        a("s_mov_b32 s63, 0xffff0000")
        for j in range(5):
            a(f"v_lshlrev_b32 v{100+2*j}, 16, v{32+j}\nv_and_b32 v{101+2*j}, s63, v{32+j}")
        a("v_readfirstlane_b32 s64, v100")
        for k in range(100, 110): a(f"v_subrev_f32 v{k}, s64, v{k}")
        a("s_mov_b32 s3, s64")
        a("v_add_f32 v110, v100, v101\nv_mul_f32 v112, v100, v100")
        a("v_fmac_f32 v112, v101, v101")
        for k in range(102, 110): a(f"v_add_f32 v110, v110, v{k}\nv_fmac_f32 v112, v{k}, v{k}")
        wave_allreduce("v_add_f32", ["v110", "v112"], ["v111", "v113"])
        a(f"s_mov_b32 s65, {f2u(1.0/640):#x}\nv_mul_f32 v110, s65, v110\nv_mul_f32 v112, s65, v112")
        a(f"v_fma_f32 v112, -v110, v110, v112\nv_add_f32 v112, {f2u(EPS):#x}, v112\nv_rsq_f32 v113, v112")
        a("v_add_f32 v110, s64, v110")
        a(f"s_waitcnt vmcnt({5+extra})")
        for i in range(5):
            r = 40+2*i
            a(f"v_lshlrev_b32 v{r}, 16, v{r}\nv_sub_f32 v{r}, v{r}, v110\nv_mul_f32 v{r}, v{r}, v113")
        for k in range(100, 108): a(f"v_mov_b32 v{k}, 0")
        issued = 0
        for i in range(5):
            a(f"s_waitcnt vmcnt({4-i+extra+issued})")
            w = 60+4*i; l = 40+2*i
            for d in range(4):
                a(f"v_lshlrev_b32 v{108+2*(d&1)}, 16, v{w+d}\nv_and_b32 v{109+2*(d&1)}, s63, v{w+d}")
                a(f"v_pk_fma_f32 v[{100+2*d}:{101+2*d}], v[{108+2*(d&1)}:{109+2*(d&1)}], v[{l}:{l+1}], v[{100+2*d}:{101+2*d}] op_sel_hi:[1,0,1]")
            if late:
                late.pop(0)(); issued += 1
    a("s_bitcmp1_b32 s2, 7\ns_cbranch_scc1 L_s1y")
    s1_body(NUP+PWX+WL, [(lambda k=k: uk_dma(k)) for k in range(NUP, 8)])
    a("s_branch L_s1r")
    a("L_s1y:")
    s1_body(8*EARLY+WL+ER)
    a("L_s1r:")
    stamp(2)
    MID = opt.get('mid', 0)
    a("ds_write_b128 v241, v[100:103]\nds_write_b128 v241, v[104:107] offset:256")
    if MID:
        a("s_bitcmp1_b32 s2, 7\ns_cbranch_scc0 L_nomid")
        ckv_group(0)
        a("L_nomid:")
    a("s_waitcnt lgkmcnt(0)\ns_barrier")
    for k in range(4): a(f"ds_read2st64_b32 v[{100+2*k}:{101+2*k}], v242 offset0:{4*k} offset1:{4*k+2}")
    a("s_waitcnt lgkmcnt(0)")
    a("v_add_f32 v100, v100, v101\nv_add_f32 v102, v102, v103\nv_add_f32 v104, v104, v105\nv_add_f32 v106, v106, v107")
    a("v_add_f32 v100, v100, v102\nv_add_f32 v104, v104, v106\nv_add_f32 v100, v100, v104")
    swap32("v_add_f32", ["v100"], ["v101"])
    a("v_mov_b32_dpp v101, v100 row_shl:1 row_mask:0xf bank_mask:0xf")
    a(f"v_cvt_pk_bf16_f32 v238, v100, v101\nv_mov_b32 v239, {TAG}")
    a("s_mov_b32 exec_lo, 0x55555555\ns_mov_b32 exec_hi, 0")
    a(f"buffer_store_dwordx2 v[238:239], v237, {S_WS}, s70 offen")
    a("s_bitcmp1_b32 s2, 7\ns_cbranch_scc0 L_Xgo")
    a(f"buffer_store_dwordx2 v[238:239], v237, {S_WS}, s71 offen sc1")
    a("s_mov_b64 exec, -1")
    a("s_branch L_Y")
    a("L_Xgo:")
    a("s_mov_b64 exec, -1")

    a.c("================= X role: S2 (q_abs), S4 (ctx partial), R")
    srd(S_C, 12, 4194304)
    G1E = opt.get('g1early', 1)
    a(f"v_and_b32 v17, 7, v3\nv_lshlrev_b32 v17, 4, v17\nv_lshl_add_u32 v17, v4, 7, v17\ns_lshl_b32 s63, {SH}, 12\ns_add_u32 s63, s63, {QG}\ns_add_u32 s64, s63, {QGB-QG}")
    if G1E:
        a(f"s_waitcnt vmcnt({1+opt.get('g1k', 2)})")
        for s in range(4):
            r = 148+8*s
            a(f"buffer_load_dwordx4 {vr(r)}, v17, {S_WS}, s63 offen offset:{1024*s} {LF}")
            a(f"buffer_load_dwordx4 {vr(r+4)}, v17, {S_WS}, s63 offen offset:{1024*s+512} {LF}")
    a(f"s_lshl_b32 s62, {SW}, 5\nv_add_u32 v13, s62, v3\nv_lshlrev_b32 v13, 8, v13\nv_xor_b32 v14, v3, v4\nv_lshl_add_u32 v13, v14, 4, v13")
    a("v_xor_b32 v14, 64, v13\nv_xor_b32 v15, 128, v13\nv_xor_b32 v16, 192, v13")
    a(f"s_waitcnt vmcnt({9 if G1E else 1})")
    for tile in range(2):
        for s in range(4):
            a(f"ds_read_b128 {vr(116+(tile*4+s)*4)}, v{13+s} offset:{WUK+4096*tile}")
    stamp(3)
    a("v_mov_b32 v13, v17")
    if G1E:
        a("s_waitcnt vmcnt(0)")
        tagcheck("v14", [f"v{148+8*s+k}" for s in range(4) for k in (1,3,5,7)])
        a("s_mov_b32 s61, 0\nv_cmp_ne_u32 vcc, 0, v14\ns_cbranch_vccz L_p1_x")
        if MASKED: a("s_and_b64 exec, exec, vcc")
    def qgb_store():
        a("s_mov_b64 s[78-2:78-1], exec" if False else "s_mov_b64 s[98:99], exec")
        a("s_mov_b32 exec_lo, 0x55555555\ns_mov_b32 exec_hi, 0")
        a(f"buffer_store_dwordx2 v[238:239], v237, {S_WS}, s71 offen sc1")
        a("s_mov_b64 exec, s[98:99]")
    poll_begin("L_p1", ("s62", "s63", "s64"))
    a(f"s_cmp_eq_u32 s61, {BP}\ns_cbranch_scc0 L_p1n")
    qgb_store()
    a("L_p1n:")
    def dual_loads(name, emit):
        a(f"s_cmp_eq_u32 s75, {BP}\ns_cbranch_scc1 {name}_b")
        emit(LF)
        a(f"s_branch {name}_c\n{name}_b:")
        emit("sc1")
        a(f"{name}_c:")
    def g1_loads(fl):
        for s in range(4):
            r = 148+8*s
            a(f"buffer_load_dwordx4 {vr(r)}, v13, {S_WS}, s62 offen offset:{1024*s} {fl}")
            a(f"buffer_load_dwordx4 {vr(r+4)}, v13, {S_WS}, s62 offen offset:{1024*s+512} {fl}")
    dual_loads("L_p1", g1_loads)
    a("s_waitcnt vmcnt(0)")
    tagcheck("v14", [f"v{148+8*s+k}" for s in range(4) for k in (1,3,5,7)])
    poll_end("L_p1", "v14")
    a(f"s_cmp_gt_u32 s61, {BP}\ns_cbranch_scc1 L_p1m")
    qgb_store()
    a("L_p1m:")
    stamp(4)
    if opt.get('sent2', 0): sentinel(SENT2)
    for s in range(4):
        r = 148+8*s
        a(f"v_mov_b32 v{r+1}, v{r+2}\nv_mov_b32 v{r+2}, v{r+4}\nv_mov_b32 v{r+3}, v{r+6}")
    a("s_waitcnt lgkmcnt(0)")
    for s in range(4):
        for tile in range(2):
            mfma(vr(180+4*tile), vr(148+8*s), vr(116+(tile*4+s)*4), s == 0)
    a(f"s_mov_b32 s63, {f2u(SCALE):#x}")
    a("v_lshlrev_b32 v13, 2, v3\nv_lshl_add_u32 v13, v4, 6, v13\nv_cmp_eq_u32 vcc, 1, v4")
    a(f"s_lshl_b32 s62, {SR}, 9\ns_lshl_b32 s64, {SW}, 7\ns_add_u32 s62, s62, s64\ns_add_u32 s62, s62, {QA}")
    a("v_add_f32 v180, v180, v181\nv_add_f32 v184, v184, v185\nv_add_f32 v182, v182, v183\nv_add_f32 v186, v186, v187")
    a("v_add_f32 v180, v180, v182\nv_add_f32 v184, v184, v186")
    swap16("v_add_f32", ["v180", "v184"], ["v181", "v185"])
    a("v_cndmask_b32 v180, v180, v184, vcc\nv_mul_f32 v180, s63, v180")
    a("v_mov_b32_dpp v181, v180 row_shl:1 row_mask:0xf bank_mask:0xf")
    a(f"v_cvt_pk_bf16_f32 v188, v180, v181\nv_mov_b32 v189, {TAG}")
    a("s_mov_b32 exec_lo, 0x55555555\ns_mov_b32 exec_hi, 0")
    a(f"buffer_store_dwordx2 v[188:189], v13, {S_WS}, s62 offen sc1")
    a("s_mov_b64 exec, -1")
    stamp(5)
    a("v_lshrrev_b32 v15, 1, v3\nv_and_b32 v16, 1, v4\nv_lshlrev_b32 v16, 2, v16\nv_xor_b32 v15, v15, v16\nv_lshlrev_b32 v15, 5, v15\nv_and_b32 v16, 1, v0\nv_lshl_add_u32 v15, v16, 4, v15\nv_lshl_add_u32 v15, v4, 13, v15")
    a(f"s_lshl_b32 s62, {SW}, 1\ns_and_b32 s63, s62, 3\ns_lshl_b32 s63, s63, 5\nv_xor_b32 v16, s63, v15\ns_add_u32 s62, s62, 1\ns_and_b32 s63, s62, 3\ns_lshl_b32 s63, s63, 5\nv_xor_b32 v15, s63, v15")
    a(f"s_lshl_b32 s62, {SSUB}, 20\ns_lshl_b32 s63, {SH}, 8\ns_add_u32 s62, s62, s63\ns_lshl_b32 s63, {SW}, 18\ns_add_u32 s62, s62, s63")
    a(f"s_lshl_b32 s63, {SW}, 13\ns_add_u32 s63, s63, {WUV}")
    for k in range(8):
        a(f"s_mov_b32 m0, s63\ns_add_u32 s63, s63, 1024")
        a(f"buffer_load_dwordx4 {'v16' if k < 4 else 'v15'}, {S_C}, s62 offen{NT} lds")
        if k < 7: a("s_add_u32 s62, s62, 32768")
    m_coef_loads()
    tail_prefetch()
    a("s_waitcnt vmcnt(0)\ns_barrier")
    a("v_lshrrev_b32 v19, 2, v3\nv_lshl_add_u32 v19, v4, 2, v19")
    a("v_lshrrev_b32 v20, 2, v3\nv_and_b32 v21, 1, v4\nv_lshl_add_u32 v21, v21, 2, v20")
    a(f"s_lshl_b32 s62, {SW}, 1\nv_xor_b32 v21, s62, v21\nv_lshlrev_b32 v21, 5, v21")
    a("v_lshl_add_u32 v20, v20, 4, v4\nv_lshl_add_u32 v20, v20, 8, v21\nv_and_b32 v21, 3, v3\nv_lshl_add_u32 v20, v21, 3, v20\nv_xor_b32 v21, 32, v20")
    for tt in range(2):
        for j in range(4):
            for u in range(2):
                r = 60+(tt*4+j)*4+2*u; tau = 2*j+u
                a(f"ds_read_b64_tr_b16 v[{r}:{r+1}], {'v20' if tt==0 else 'v21'} offset:{WUV+16384*(tau>>2)+1024*(tau&3)}")
    m_coef_unpack()
    a("v_lshlrev_b32 v22, 4, v0\nv_and_b32 v23, 31, v1\nv_lshlrev_b32 v23, 9, v23")
    a(f"s_lshl_b32 s62, {SR}, 14\ns_add_u32 s66, s62, {OP}\ns_add_u32 s67, s66, 4096\ns_add_u32 s68, s66, 8192\ns_add_u32 s69, s66, 12288")
    a(f"s_lshr_b32 s62, {SH}, 3\ns_lshl_b32 s62, s62, 7\ns_and_b32 s63, {SH}, 7\ns_lshl_b32 s63, s63, 4\ns_add_u32 s62, s62, s63\ns_add_u32 s70, s62, {ST}")
    a(f"v_lshrrev_b32 v24, 5, v0\nv_mul_u32_u24 v24, 288, v24\nv_and_b32 v25, 31, v0\nv_lshl_add_u32 v24, v25, 3, v24\nv_add_u32 v24, {OS}, v24")
    a(f"s_lshl_b32 s62, {SW}, 7\ns_add_u32 s71, s62, {WX}\nv_and_b32 v25, 31, v1\nv_lshlrev_b32 v25, 2, v25\nv_add_u32 v25, s71, v25")
    a(f"v_lshlrev_b32 v27, 4, v4\nv_add_u32 v27, s71, v27")
    a(f"v_mul_u32_u24 v28, 288, v19\nv_and_b32 v29, 3, v3\nv_lshl_add_u32 v28, v29, 3, v28\nv_add_u32 v28, {OS}, v28")
    a(f"s_lshl_b32 s72, {SH}, 11\ns_lshl_b32 s63, {SW}, 9\ns_add_u32 s72, s72, s63\ns_lshl_b32 s63, {SSUB}, 4\ns_add_u32 s72, s72, s63\ns_add_u32 s72, s72, {CP}\ns_add_u32 s73, s72, {CPB-CP}")
    a("v_lshrrev_b32 v30, 2, v3\nv_lshlrev_b32 v30, 6, v30\nv_bfe_u32 v14, v3, 1, 1\nv_lshl_add_u32 v30, v14, 3, v30\nv_lshl_add_u32 v30, v4, 8, v30\nv_cmp_eq_u32 s[8:9], 1, v4")
    stamp(6)
    if opt.get('gate3', 0):
        a(f"s_and_b32 s62, s2, 7\ns_lshl_b32 s62, s62, 7\ns_add_u32 s62, s62, {YF}\nv_lshlrev_b32 v16, 2, v1\ns_mov_b64 exec, 0xffff\ns_mov_b32 s61, 0")
        a("L_g3:")
        a(f"buffer_load_dword v100, v16, {S_WS}, s62 offen {LF}\ns_waitcnt vmcnt(0)")
        a(f"v_cmp_ne_u32 vcc, {TAG}, v100\ns_add_u32 s61, s61, 1\ns_cmp_gt_u32 s61, 64\ns_cbranch_scc1 L_g3x\ns_cbranch_vccnz L_g3")
        a("L_g3x:\ns_mov_b64 exec, -1")
    a("s_mov_b32 exec_hi, 0")
    poll_begin("L_p3a")
    a(f"buffer_load_dwordx4 v[116:119], v23, {S_WS}, s70 offen sc1")
    a("s_waitcnt vmcnt(0)")
    tagcheck("v14", ["v117", "v119"])
    poll_end("L_p3a", "v14")
    if opt.get('dbg3'): stamp(10)
    for i in range(4):
        a(f"buffer_load_dwordx4 {vr(100+4*i)}, v22, {S_WS}, s{66+i} offen sc1")
    a("v_mov_b32 v120, v116")
    row_allreduce("v_max_f32", ["v120"]); swap16("v_max_f32", ["v120"], ["v121"])
    a("v_sub_f32 v116, v116, v120\nv_exp_f32 v116, v116\nv_mul_f32 v118, v116, v118")
    row_allreduce("v_add_f32", ["v118"]); swap16("v_add_f32", ["v118"], ["v121"])
    a("v_rcp_f32 v118, v118\nv_mul_f32 v116, v116, v118")
    a("s_mov_b32 exec_hi, 0\nds_write_b32 v25, v116\ns_mov_b64 exec, -1")
    a("ds_read_b128 v[120:123], v27\nds_read_b128 v[124:127], v27 offset:64")
    a("s_waitcnt vmcnt(0)")
    tagcheck("v14", [f"v{100+4*i+k}" for i in range(4) for k in (1,3)])
    a("v_cmp_ne_u32 vcc, 0, v14\ns_cbranch_vccz L_p3b_x")
    if MASKED: a("s_and_b64 exec, exec, vcc")
    poll_begin("L_p3b")
    for i in range(4):
        a(f"buffer_load_dwordx4 {vr(100+4*i)}, v22, {S_WS}, s{66+i} offen sc1")
    a("s_waitcnt vmcnt(0)")
    tagcheck("v14", [f"v{100+4*i+k}" for i in range(4) for k in (1,3)])
    poll_end("L_p3b", "v14")
    stamp(7)
    for i in range(4):
        a(f"v_mov_b32 v{101+4*i}, v{102+4*i}\nds_write_b64 v24, v[{100+4*i}:{101+4*i}] offset:{2304*i}")
    a("s_waitcnt lgkmcnt(0)\ns_barrier")
    for t in range(8):
        for u in range(2):
            r = 132+4*t+2*u
            a(f"ds_read_b64_tr_b16 v[{r}:{r+1}], v28 offset:{4608*u+32*t}")
    a("v_cvt_pk_bf16_f32 v128, v120, v121\nv_cvt_pk_bf16_f32 v129, v122, v123\nv_cvt_pk_bf16_f32 v130, v124, v125\nv_cvt_pk_bf16_f32 v131, v126, v127")
    for t in range(8):
        a(f"s_waitcnt lgkmcnt({14-2*t})")
        mfma(vr(164+4*t), vr(132+4*t), vr(128), True)
    for j in range(4):
        d0 = 164+8*j; o = 100+4*j
        a(f"v_cvt_pk_bf16_f32 v{o}, v{d0}, v{d0+1}\nv_cvt_pk_bf16_f32 v{o+1}, v{d0+2}, v{d0+3}\nv_cvt_pk_bf16_f32 v{o+2}, v{d0+4}, v{d0+5}\nv_cvt_pk_bf16_f32 v{o+3}, v{d0+6}, v{d0+7}")
    for j in range(4):
        for tt in range(2):
            mfma(vr(116+4*tt), vr(100+4*j), vr(60+(tt*4+j)*4), j == 0)
    a("v_cndmask_b32 v116, v116, v120, s[8:9]")
    a("v_mov_b32_dpp v117, v116 row_shl:1 row_mask:0xf bank_mask:0xf")
    a(f"v_cvt_pk_bf16_f32 v118, v116, v117\nv_mov_b32 v119, {TAG}")
    a("s_mov_b32 exec_lo, 0x55555555\ns_mov_b32 exec_hi, 0")
    a(f"buffer_store_dwordx2 v[118:119], v30, {S_WS}, s72 offen")
    a(f"buffer_store_dwordx2 v[118:119], v30, {S_WS}, s73 offen sc1")
    a("s_mov_b64 exec, -1")
    stamp(8)
    a("s_branch L_M")

    a.c("================= Y role: S3 (attention), S5 (out partial)")
    a("L_Y:")
    a("v_lshlrev_b32 v5, 4, v1")
    YD = 0
    for q in range(max(EARLY, MID), 4): ckv_group(q, ER if q == 0 else 0, 8)
    stamp(1)
    srd(S_B, 14, 5242880)
    a("s_bfe_u32 s74, s2, 0x40003")
    YPRE = opt.get('ypre', 0)
    PWY = 0
    if YPRE:
        m_coef_loads()
        tail_prefetch()
        s5_addresses()
        PWY = 13 + 1 + (1 if opt.get('gate', 1) else 0) + (1 if opt.get('prewarm', 1) else 0)
    a(f"s_lshl_b32 s62, {SW}, 5\nv_add_u32 v6, s62, v3\nv_mul_u32_u24 v6, {CKV_STRIDE}, v6\nv_lshl_add_u32 v6, v4, 4, v6")
    a("v_lshrrev_b32 v19, 2, v3\nv_lshl_add_u32 v19, v4, 2, v19")
    a(f"v_mul_u32_u24 v7, {CKV_STRIDE}, v19\nv_and_b32 v8, 3, v3\nv_lshl_add_u32 v7, v8, 3, v7\ns_lshl_b32 s62, {SW}, 8\nv_add_u32 v7, s62, v7\nv_add_u32 v8, {64*CKV_STRIDE}, v7")
    a("v_lshlrev_b32 v22, 4, v0")
    a(f"s_lshl_b32 s62, {SSUB}, 14\ns_add_u32 s66, s62, {QA}\ns_add_u32 s67, s66, 4096\ns_add_u32 s68, s66, 8192\ns_add_u32 s69, s66, 12288")
    a(f"v_lshrrev_b32 v24, 7, v0\nv_mul_u32_u24 v24, {CKV_STRIDE}, v24\nv_and_b32 v25, 127, v0\nv_lshl_add_u32 v24, v25, 3, v24\nv_add_u32 v24, {QS}, v24")
    a(f"v_and_b32 v25, 7, v3\nv_mul_u32_u24 v25, {CKV_STRIDE}, v25\nv_lshl_add_u32 v25, v4, 4, v25\nv_add_u32 v25, {QS}, v25")
    a(f"s_lshl_b32 s62, {SW}, 2\ns_add_u32 s62, s62, {MX}\nv_lshlrev_b32 v26, 4, v3\nv_add_u32 v27, s62, v26\nv_add_u32 v28, {MX}, v26")
    a(f"s_lshl_b32 s62, {SW}, 10\ns_add_u32 s62, s62, {PX}\nv_add_u32 v29, s62, v5\nv_add_u32 v31, {PX}, v5")
    for k in range(4): a(f"v_mov_b32 v{184+k}, 0x3f803f80")
    a(f"s_and_b32 s62, s2, 7\ns_lshl_b32 s62, s62, 7\ns_bfe_u32 s63, s2, 0x40003\ns_lshl_b32 s63, s63, 2\ns_add_u32 s62, s62, s63\ns_add_u32 s62, s62, {YF}\nv_mov_b32 v183, s62")
    a("v_and_b32 v21, 1, v3\nv_cmp_eq_u32 s[8:9], 1, v21\nv_and_b32 v21, 2, v3\nv_cmp_eq_u32 s[10:11], 2, v21")
    OSPLIT = opt.get('osplit', 1)
    if OSPLIT:
        a("v_and_b32 v30, 1, v4\nv_lshlrev_b32 v30, 18, v30\nv_lshl_add_u32 v30, v3, 4, v30\nv_lshrrev_b32 v21, 1, v4\nv_lshl_add_u32 v30, v21, 17, v30\nv_cmp_eq_u32 s[12:13], 1, v21")
    else:
        a("v_and_b32 v30, 1, v4\nv_lshlrev_b32 v30, 18, v30\nv_lshl_add_u32 v30, v3, 4, v30\nv_lshrrev_b32 v21, 1, v4\nv_lshl_add_u32 v30, v21, 8, v30\nv_cmp_eq_u32 s[12:13], 1, v21")
    a(f"s_lshl_b32 s73, {SSUB}, 19\ns_lshl_b32 s63, {SW}, 14\ns_add_u32 s73, s73, s63\ns_lshl_b32 s63, {SH}, 9\ns_add_u32 s73, s73, s63\ns_add_u32 s73, s73, {OP}")
    a(f"s_lshl_b32 s72, {SR}, 7\ns_add_u32 s72, s72, {ST}")
    G2E = opt.get('g2early', 1)
    for tile in range(2):
        if tile == 1 and G2E:
            for i in range(4):
                a(f"buffer_load_dwordx4 {vr(100+4*i)}, v22, {S_WS}, s{66+i} offen sc1")
        a(f"s_waitcnt vmcnt({PWY + (16 if tile == 0 else (4 if G2E else 0))})")
        if tile == 1: stamp(2)
        for s in range(16):
            a(f"ds_read_b128 {ar((tile*16+s)*4)}, v6 offset:{tile*16*CKV_STRIDE+64*s}")
    stamp(3)
    if opt.get('sent2', 0):
        poll_begin("L_p2a")
        a(f"buffer_load_dword v100, v23, {S_WS}, s70 offen sc1")
        a("s_waitcnt vmcnt(0)")
        tagcheck("v14", ["v100"])
        poll_end("L_p2a", "v14")
    if G2E:
        a("s_waitcnt vmcnt(0)")
        tagcheck("v14", [f"v{100+4*i+k}" for i in range(4) for k in (1,3)])
        a("v_cmp_ne_u32 vcc, 0, v14\ns_cbranch_vccz L_p2_x")
        if MASKED: a("s_and_b64 exec, exec, vcc")
    poll_begin("L_p2")
    for i in range(4):
        a(f"buffer_load_dwordx4 {vr(100+4*i)}, v22, {S_WS}, s{66+i} offen sc1")
    a("s_waitcnt vmcnt(0)")
    tagcheck("v14", [f"v{100+4*i+k}" for i in range(4) for k in (1,3)])
    poll_end("L_p2", "v14")
    stamp(4)
    for i in range(4):
        a(f"v_mov_b32 v{101+4*i}, v{102+4*i}\nds_write_b64 v24, v[{100+4*i}:{101+4*i}] offset:{2*CKV_STRIDE*i}")
    a("s_waitcnt lgkmcnt(0)\ns_barrier")
    for s in range(16):
        a(f"ds_read_b128 {vr(32+4*s)}, v25 offset:{64*s}")
    wo_n = [0]
    a(f"s_mul_i32 s71, {SR}, 40960")
    def wo_load():
        i = wo_n[0]; wo_n[0] += 1
        a(f"buffer_load_dwordx4 {vr(192)}, v22, {S_B}, s71 offen\ns_add_u32 s71, s71, 4096")
    pv = []
    for t in range(8):
        for j in range(4):
            for u in range(2):
                r = 128+(t*4+j)*4+2*u
                pv.append(f"ds_read_b64_tr_b16 a[{r}:{r+1}], {'v7' if j < 2 else 'v8'} offset:{(32*(j&1)+16*u)*CKV_STRIDE+32*t}")
    for s in range(16):
        if s < 4: a(f"s_waitcnt lgkmcnt({12-4*s})")
        for tile in range(2):
            sidx = s
            mfma(vr(100+4*tile), ar((tile*16+s)*4), vr(32+4*s), s == 0)
            if s >= 3:
                for _ in range(3 if pv else 0):
                    if pv: a(pv.pop(0))
            if tile == 1 and s in (2, 5, 8, 11, 14): wo_load()
    while pv: a(pv.pop(0))
    stamp(5)
    a("v_max3_f32 v108, v100, v101, v102\nv_max3_f32 v109, v103, v104, v105\nv_max3_f32 v108, v108, v106, v107\nv_max_f32 v108, v108, v109")
    swap16("v_max_f32", ["v108"], ["v109"]); swap32("v_max_f32", ["v108"], ["v109"])
    a("ds_write_b32 v27, v108")
    a("s_waitcnt lgkmcnt(0)\ns_barrier")
    a(f"ds_read_b128 v[108:111], v28\ns_waitcnt lgkmcnt(0)")
    a("v_max3_f32 v108, v108, v109, v110\nv_max_f32 v108, v108, v111")
    for k in range(8): a(f"v_sub_f32 v{100+k}, v{100+k}, v108")
    for k in range(8): a(f"v_exp_f32 v{100+k}, v{100+k}")
    a("v_cvt_pk_bf16_f32 v112, v100, v101\nv_cvt_pk_bf16_f32 v113, v102, v103\nv_cvt_pk_bf16_f32 v114, v104, v105\nv_cvt_pk_bf16_f32 v115, v106, v107")
    a("ds_write_b128 v29, v[112:115]")
    a("s_waitcnt lgkmcnt(0)\ns_barrier")
    if opt.get('dbg3'): stamp(10)
    G3G = opt.get('gate3', 0)
    if G3G:
        a(f"s_cmp_eq_u32 {SW}, 0\ns_cbranch_scc0 L_nh3\nv_mov_b32 v21, {TAG}\ns_mov_b64 exec, 1")
        a(f"buffer_store_dword v21, v183, {S_WS}, 0 offen\ns_mov_b64 exec, -1\nL_nh3:")
    for j in range(4): a(f"ds_read_b128 {vr(32+4*j)}, v31 offset:{1024*j}")
    STA = opt.get('stafter', 0)
    STMF = opt.get('stmf', 32)
    def stats_store():
        a(f"s_cmp_eq_u32 {SW}, 0\ns_cbranch_scc0 L_Y_nostat")
        a("v_cndmask_b32 v110, v188, v189, s[8:9]\nv_cndmask_b32 v111, v190, v191, s[8:9]\nv_cndmask_b32 v110, v110, v111, s[10:11]")
        a(f"v_mov_b32 v109, {TAG}\nv_mov_b32 v111, {TAG}")
        a("s_mov_b64 exec, 0x00f0000f")
        a(f"buffer_store_dwordx4 v[108:111], v26, {S_WS}, s72 offen sc1")
        a("s_mov_b64 exec, -1\nL_Y_nostat:")
    def o_pack(hf, k):
        o = 160+4*(2*hf+k); L = []
        for e in range(4):
            d = 120+4*(4*hf+e)
            L.append(f"v_cndmask_b32 v{d+k}, v{d+k}, v{d+2+k}, s[12:13]")
        d0 = 120+16*hf
        L += [f"v_cvt_pk_bf16_f32 v{o}, v{d0+k}, v{d0+4+k}", f"v_mov_b32 v{o+1}, {TAG}", f"v_cvt_pk_bf16_f32 v{o+2}, v{d0+8+k}, v{d0+12+k}", f"v_mov_b32 v{o+3}, {TAG}"]
        L.append(f"buffer_store_dwordx4 {vr(o)}, v30, {S_WS}, {'s73' if k == 0 else 's71x'} offen offset:{256*hf} sc1")
        return L
    if OSPLIT:
        a("s_add_u32 s75, s73, 65536")
        a("s_waitcnt lgkmcnt(0)")
        for j in range(4): mfma(vr(188), vr(32+4*j), vr(184), j == 0)
        pend = []
        n = 0
        for t in range(8):
            for j in range(4):
                mfma(vr(120+4*t), vr(32+4*j), ar(128+(t*4+j)*4), j == 0)
                n += 1
                if n in (4, 10, 16, 22, 28): wo_load()
                if n == 18:
                    stats_store()
                    pend = [x.replace('s71x', 's75') for x in o_pack(0, 0) + o_pack(0, 1)]
                if n > 18:
                    for _ in range(2):
                        if pend: a(pend.pop(0))
        while pend: a(pend.pop(0))
        for k in range(2):
            for x in o_pack(1, k): a(x.replace('s71x', 's75'))
    else:
        if STMF < 32:
            for j in range(4):
                a(f"s_waitcnt lgkmcnt({3-j})")
                mfma(vr(188), vr(32+4*j), vr(184), j == 0)
        for j in range(4):
            if STMF >= 32:
                a(f"s_waitcnt lgkmcnt({3-j})")
                mfma(vr(188), vr(32+4*j), vr(184), j == 0)
            for t in range(8):
                if j*8+t == STMF: stats_store()
                mfma(vr(120+4*t), vr(32+4*j), ar(128+(t*4+j)*4), j == 0)
                if (j*8+t) in (3, 9, 15, 21, 27): wo_load()
        if STMF < 32: STA = -1
        for r in range(4):
            if r == STA: stats_store()
            o = 160+4*r
            for e in range(4): a(f"v_cndmask_b32 v{120+4*e+r}, v{120+4*e+r}, v{136+4*e+r}, s[12:13]")
            a(f"v_cvt_pk_bf16_f32 v{o}, v{120+r}, v{124+r}\nv_mov_b32 v{o+1}, {TAG}\nv_cvt_pk_bf16_f32 v{o+2}, v{128+r}, v{132+r}\nv_mov_b32 v{o+3}, {TAG}")
            a(f"buffer_store_dwordx4 {vr(o)}, v30, {S_WS}, s73 offen sc1")
            if r < 3: a("s_add_u32 s73, s73, 65536")
        if STA == 4: stats_store()
    stamp(6)
    if YPRE: m_coef_unpack()
    a("s_add_u32 s65, s74, 16")
    a(f"s_waitcnt vmcnt({2 if OSPLIT else 4})")
    wo_slice_dma("s74", 0)
    a("s_cmp_lt_u32 s74, 4\ns_cbranch_scc0 L_Y_one")
    wo_slice_dma("s65", 32768)
    a("L_Y_one:")
    if not YPRE:
        m_coef_loads()
        tail_prefetch()
        s5_addresses()
    a("s_waitcnt vmcnt(0)")
    wo_slice_frags(0, 0)
    a("s_cmp_lt_u32 s74, 4\ns_cbranch_scc0 L_Y_one2")
    wo_slice_frags(32768, 32)
    a("L_Y_one2:")
    if not YPRE: m_coef_unpack()
    stamp(7)
    a.c("================= S5: out[32u..32u+31] over the 4 heads of this XCD group (wave = head)")
    a(f"s_add_u32 s68, s101, {CPB-CP}")
    a("s_waitcnt lgkmcnt(0)")
    poll_begin("L_p4", ("s66", "s101", "s68"))
    G4D = opt.get('g4dense', 1)
    def g4_loads(fl):
        if G4D:
            a(f"buffer_load_dwordx4 v[140:143], v240, {S_WS}, s66 offen {fl}\nbuffer_load_dwordx4 v[144:147], v240, {S_WS}, s66 offen offset:1024 {fl}")
        else:
            for dq in range(4):
                a(f"buffer_load_dwordx4 {vr(100+8*dq)}, v240, {S_WS}, s66 offen offset:{512*dq} {fl}")
                a(f"buffer_load_dwordx4 {vr(104+8*dq)}, v240, {S_WS}, s66 offen offset:{512*dq+256} {fl}")
    dual_loads("L_p4", g4_loads)
    a("s_waitcnt vmcnt(0)")
    tagcheck("v14", ["v141", "v143", "v145", "v147"] if G4D else [f"v{100+8*dq+k}" for dq in range(4) for k in (1,3,5,7)])
    poll_end("L_p4", "v14")
    stamp(8)
    if G4D:
        a("v_mov_b32 v141, v142\nv_mov_b32 v145, v146")
        a("ds_write_b64 v236, v[140:141]\nds_write_b64 v236, v[144:145] offset:512")
        for dq in range(4): a(f"ds_read_b128 {vr(100+8*dq)}, v235 offset:{256*dq}")
        a("s_waitcnt lgkmcnt(0)")
    else:
        for dq in range(4):
            r = 100+8*dq
            a(f"v_mov_b32 v{r+1}, v{r+2}\nv_mov_b32 v{r+2}, v{r+4}\nv_mov_b32 v{r+3}, v{r+6}")
    a("v_cmp_eq_u32 vcc, 1, v4")
    def unit_mm(a0, d0, lds_off):
        for dq in range(4):
            for tt in range(2):
                mfma(vr(d0+4*tt), vr(100+8*dq), ar(a0+(tt*4+dq)*4), dq == 0)
        a(f"v_pk_add_f32 v[{d0}:{d0+1}], v[{d0}:{d0+1}], v[{d0+2}:{d0+3}]\nv_pk_add_f32 v[{d0+4}:{d0+5}], v[{d0+4}:{d0+5}], v[{d0+6}:{d0+7}]")
        a(f"v_add_f32 v{d0}, v{d0}, v{d0+1}\nv_add_f32 v{d0+4}, v{d0+4}, v{d0+5}")
        a(f"v_cndmask_b32 v{d0}, v{d0}, v{d0+4}, vcc")
        a(f"s_mov_b32 exec_hi, 0\nds_write_b32 v241, v{d0} offset:{lds_off}\ns_mov_b64 exec, -1")
    unit_mm(0, 156, 0)
    a("s_cmp_lt_u32 s74, 4\ns_cbranch_scc0 L_Y_one3")
    unit_mm(32, 148, 512)
    a("L_Y_one3:")
    a("s_waitcnt lgkmcnt(0)\ns_barrier")
    a(f"s_cmp_eq_u32 {SW}, 0\ns_cbranch_scc1 L_Y_pub\ns_cmp_eq_u32 {SW}, 1\ns_cbranch_scc0 L_M\ns_cmp_lt_u32 s74, 4\ns_cbranch_scc0 L_M")
    a(f"v_add_u32 v242, 512, v242\nv_add_u32 v243, {16*128}, v243\nv_add_u32 v244, 64, v244")
    a("L_Y_pub:")
    a("ds_read_b32 v136, v242\nds_read_b32 v137, v242 offset:128\nds_read_b32 v138, v242 offset:256\nds_read_b32 v139, v242 offset:384")
    a("s_waitcnt lgkmcnt(0)")
    a("v_pk_add_f32 v[136:137], v[136:137], v[138:139]\nv_add_f32 v136, v136, v137")
    a("v_mov_b32_dpp v137, v136 row_shl:1 row_mask:0xf bank_mask:0xf")
    a(f"v_cvt_pk_bf16_f32 v138, v136, v137\nv_mov_b32 v139, {TAG}")
    a("s_mov_b32 exec_lo, 0x55555555\ns_mov_b32 exec_hi, 0")
    a(f"buffer_store_dwordx2 v[138:139], v243, {S_WS}, 0 offen sc1")
    if opt.get('gate', 1):
        a("s_mov_b64 exec, 1")
        a(f"buffer_store_dword v139, v244, {S_WS}, 0 offen")
    a("s_mov_b64 exec, -1")

    a.c("================= M stage")
    a("L_M:")
    a("s_mul_i32 s64, s2, 3\ns_cmp_ge_u32 s64, 640\ns_cbranch_scc1 L_fin")
    a(f"v_mov_b32 v144, {f2u(C0):#x}\nv_mov_b32 v145, {f2u(C0):#x}")
    for k in range(3): a(f"v_mov_b32 v{146+2*k}, 0\nv_mov_b32 v{147+2*k}, 0")
    a(f"v_add_u32 v15, s64, v1\nv_min_u32 v15, 639, v15\nv_lshlrev_b32 v15, 2, v15\nv_add_u32 v15, {HB}, v15")
    a("v_mov_b32 v132, 0\nv_mov_b32 v133, 0")
    a(f"s_cmp_eq_u32 {SW}, 3\ns_cbranch_scc1 L_M_wait")
    a(f"v_lshlrev_b32 v13, 4, v0\ns_mov_b32 s66, {XP}\ns_mov_b32 s67, {XP+5120}\ns_mov_b32 s68, {XP+10240}\ns_mov_b32 s69, {XP+15360}")
    a("s_mov_b32 s63, 0xffff0000")
    a("v_lshlrev_b32 v136, 16, v246\nv_and_b32 v137, s63, v246\nv_lshlrev_b32 v138, 16, v247\nv_and_b32 v139, s63, v247")
    a(f"v_add_u32 v17, {HB}, v13\ns_lshl_b32 s62, {SW}, 3\ns_add_u32 s62, s62, {SB}\nv_mov_b32 v19, s62")
    a(f"s_cmp_eq_u32 {SW}, 2\ns_cselect_b32 s72, 0, -1\ns_mov_b32 exec_hi, s72")
    stamp(9)
    if opt.get('gate', 1):
        a(f"s_mov_b64 s[98:99], exec\ns_mov_b64 exec, 0xfffff\ns_and_b32 s62, s2, 7\ns_lshl_b32 s62, s62, 7\ns_add_u32 s62, s62, {UF}\nv_lshlrev_b32 v14, 2, v1\nv_mov_b32 v16, v14\ns_mov_b32 s61, 0")
        a("L_g6:")
        a(f"buffer_load_dword v100, v16, {S_WS}, s62 offen {LF}\ns_waitcnt vmcnt(0)")
        a(f"v_cmp_ne_u32 vcc, {TAG}, v100\ns_add_u32 s61, s61, 1\ns_cmp_gt_u32 s61, {opt.get('gatemax', 64)}\ns_cbranch_scc1 L_g6x\ns_cbranch_vccnz L_g6")
        a("L_g6x:")
        for _ in range(opt.get('gextra', 0)):
            a(f"buffer_load_dword v100, v16, {S_WS}, s62 offen {LF}\ns_waitcnt vmcnt(0)")
        a("s_mov_b64 exec, s[98:99]")
    MPROG = opt.get('mprog', 1)
    def m_row_add(xx):
        b = 100+4*xx
        a(f"v_lshlrev_b32 v140, 16, v{b}\nv_and_b32 v141, s63, v{b}\nv_lshlrev_b32 v142, 16, v{b+2}\nv_and_b32 v143, s63, v{b+2}")
        a("v_pk_add_f32 v[136:137], v[136:137], v[140:141]\nv_pk_add_f32 v[138:139], v[138:139], v[142:143]")
    if MPROG:
        for xx in range(8):
            a(f"buffer_load_dwordx4 {vr(100+4*xx)}, v13, {S_WS}, s{66+(xx>>1)} offen offset:{2560*(xx&1)} sc1")
        for xx in range(8):
            a(f"s_waitcnt vmcnt({7-xx})")
            if xx == 0: a(f"v_xor_b32 v14, {TAG}, v101")
            else: a(f"v_bitop3_b32 v14, v{100+4*xx+1}, {TAG}, v14 bitop3:0xbe")
            a(f"v_bitop3_b32 v14, v{100+4*xx+3}, {TAG}, v14 bitop3:0xbe")
            m_row_add(xx)
        a("v_cmp_ne_u32 vcc, 0, v14\ns_cbranch_vccz L_M_sum\ns_and_b64 exec, exec, vcc")
    poll_begin("L_p6")
    for xx in range(8):
        a(f"buffer_load_dwordx4 {vr(100+4*xx)}, v13, {S_WS}, s{66+(xx>>1)} offen offset:{2560*(xx&1)} sc1")
    a("s_waitcnt vmcnt(0)")
    tagcheck("v14", [f"v{100+4*xx+k}" for xx in range(8) for k in (1,3)])
    poll_end("L_p6", "v14")
    a("s_mov_b32 exec_hi, s72")
    a("v_lshlrev_b32 v136, 16, v246\nv_and_b32 v137, s63, v246\nv_lshlrev_b32 v138, 16, v247\nv_and_b32 v139, s63, v247")
    for xx in range(8): m_row_add(xx)
    a("L_M_sum:")
    stamp(10)
    a("v_cvt_pk_bf16_f32 v140, v136, v137\nv_cvt_pk_bf16_f32 v141, v138, v139")
    a("v_lshlrev_b32 v136, 16, v140\nv_and_b32 v137, s63, v140\nv_lshlrev_b32 v138, 16, v141\nv_and_b32 v139, s63, v141")
    a("ds_write_b128 v17, v[136:139]")
    for k in range(4): a(f"v_subrev_f32 v{140+k}, s3, v{136+k}")
    a("v_add_f32 v132, v140, v141\nv_mul_f32 v133, v140, v140\nv_add_f32 v134, v142, v143\nv_fmac_f32 v133, v141, v141\nv_add_f32 v132, v132, v134\nv_fmac_f32 v133, v142, v142\nv_fmac_f32 v133, v143, v143")
    a("s_mov_b64 exec, -1")
    wave_allreduce("v_add_f32", ["v132", "v133"], ["v134", "v135"])
    a("s_mov_b64 exec, 1\nds_write_b64 v19, v[132:133]\ns_mov_b64 exec, -1")
    a(f"s_or_b32 s62, s2, {SW}\ns_cmp_eq_u32 s62, 0\ns_cbranch_scc0 L_noep")
    a(f"v_mov_b32 v16, {TAG}\ns_mov_b64 exec, 1\nbuffer_store_dword v16, v18, {S_WS}, 0 offen sc1\ns_mov_b64 exec, -1")
    a("L_noep:")
    a("s_waitcnt lgkmcnt(0)")
    a("L_M_wait:")
    a("s_barrier")
    a(f"v_mov_b32 v16, {SB}\nds_read_b128 v[120:123], v16\nds_read_b64 v[124:125], v16 offset:16\nds_read_b32 v136, v15\ns_mov_b32 s62, {f2u(1.0/640):#x}\ns_waitcnt lgkmcnt(0)")
    a("v_add_f32 v130, v120, v122\nv_add_f32 v132, v121, v123\nv_add_f32 v130, v130, v124\nv_add_f32 v132, v132, v125")
    a("v_mul_f32 v130, s62, v130\nv_mul_f32 v132, s62, v132")
    a("v_fma_f32 v132, -v130, v130, v132")
    a("v_add_f32 v130, s3, v130")
    a(f"v_add_f32 v133, {f2u(EPS):#x}, v132\nv_rsq_f32 v133, v133")
    a("v_sub_f32 v140, v136, v130")
    a("v_mul_f32 v134, v133, v133\nv_mul_f32 v134, v134, v132")
    a(f"v_add_f32 v134, {f2u(EPS):#x}, v134\nv_rsq_f32 v134, v134\nv_mul_f32 v140, v140, v133\ns_mov_b32 s62, {f2u(C1):#x}\nv_mul_f32 v140, v140, v134")
    for k in range(3):
        a(f"v_readlane_b32 s{70+2*k}, v140, {k}")
    for k in range(3):
        t = f"s[{70+2*k}:{71+2*k}]"
        U = lambda i: f"v[{152+2*i}:{153+2*i}]"
        Z = lambda i: f"v[{160+2*i}:{161+2*i}]"
        for i in range(4): a(f"v_pk_fma_f32 {U(i)}, v[{210+2*i}:{211+2*i}], {t}, v[{218+2*i}:{219+2*i}] op_sel_hi:[1,0,1]")
        for i in range(4): a(f"v_pk_mul_f32 {Z(i)}, {U(i)}, {U(i)}")
        for i in range(4): a(f"v_pk_fma_f32 {Z(i)}, {Z(i)}, s[62:63], v[144:145] op_sel_hi:[1,0,1]")
        for i in range(4): a(f"v_pk_mul_f32 {Z(i)}, {Z(i)}, {U(i)}")
        for i in range(4): a(f"v_exp_f32 v{160+2*i}, v{160+2*i}\nv_exp_f32 v{161+2*i}, v{161+2*i}")
        for i in range(4): a(f"v_pk_mul_f32 {U(i)}, {U(i)}, v[{226+2*i}:{227+2*i}]")
        for i in range(4): a(f"v_pk_add_f32 {Z(i)}, {Z(i)}, 1.0 op_sel_hi:[1,0]")
        for i in range(4): a(f"v_rcp_f32 v{160+2*i}, v{160+2*i}\nv_rcp_f32 v{161+2*i}, v{161+2*i}")
        for i in range(4): a(f"v_pk_fma_f32 v[{146+2*k}:{147+2*k}], {U(i)}, {Z(i)}, v[{146+2*k}:{147+2*k}]")
    for k in range(3): a(f"v_add_f32 v{146+2*k}, v{146+2*k}, v{147+2*k}")
    wave_allreduce("v_add_f32", ["v146","v148","v150"], ["v147","v149","v151"])
    a(f"s_lshl_b32 s62, {SW}, 4\ns_add_u32 s62, s62, {MRED}\nv_mov_b32 v15, s62\nv_mov_b32 v147, v148\nv_mov_b32 v148, v150")
    a("s_mov_b64 exec, 1\nds_write_b96 v15, v[146:148]\ns_mov_b64 exec, -1")
    a("s_waitcnt lgkmcnt(0)\ns_barrier")
    a(f"s_cmp_eq_u32 {SW}, 0\ns_cbranch_scc0 L_fin")
    a(f"v_lshlrev_b32 v15, 2, v1\nv_add_u32 v15, {MRED}, v15")
    a("ds_read_b32 v100, v15\nds_read_b32 v101, v15 offset:16\nds_read_b32 v102, v15 offset:32\nds_read_b32 v103, v15 offset:48")
    srd(S_T, 26, 1280)
    a("v_add_u32 v15, s64, v1\nv_lshlrev_b32 v16, 1, v15")
    a("v_add_f32 v136, v136, v208")
    a("s_waitcnt lgkmcnt(0)")
    a("v_add_f32 v100, v100, v101\nv_add_f32 v102, v102, v103\nv_add_f32 v100, v100, v102\nv_add_f32 v100, v100, v136")
    a("v_cvt_pk_bf16_f32 v100, v100, v100")
    a("v_cmp_gt_u32 vcc, 640, v15\ns_and_b64 exec, vcc, 7")
    a("s_cbranch_execz L_fin")
    a(f"buffer_store_short v100, v16, {S_T}, 0 offen")
    a("L_fin:")
    if opt.get('pin'):
        a(f"s_waitcnt lgkmcnt(0)\ns_add_u32 s76, s76, {opt['pin']}")
        a("L_pin:\ns_memrealtime s[78:79]\ns_waitcnt lgkmcnt(0)\ns_sub_u32 s80, s78, s76\ns_cmp_lt_i32 s80, 0\ns_cbranch_scc1 L_pin")
    if profile and opt.get('dbgout'):
        stamp(11)
        a("s_mov_b64 exec, -1\ns_waitcnt lgkmcnt(0)")
        srd(S_T, 28, 256)
        a(f"s_cmp_eq_u32 {SW}, 0\ns_cbranch_scc0 L_end")
        a("v_mov_b32 v18, 0\ns_mov_b64 exec, 1")
        a(f"s_not_b32 s62, s76\nv_mov_b32 v15, s62\nbuffer_atomic_umax v15, v18, {S_T}, 0 offen")
        a(f"v_mov_b32 v15, s98\nbuffer_atomic_umax v15, v18, {S_T}, 0 offen offset:44")
        a("s_bitcmp1_b32 s2, 7\ns_cbranch_scc1 L_dy")
        for k in range(1, 9):
            a(f"v_mov_b32 v15, s{76+2*k}\nbuffer_atomic_umax v15, v18, {S_T}, 0 offen offset:{4*k}")
        a(f"v_mov_b32 v15, s{76+2*10}\nbuffer_atomic_umax v15, v18, {S_T}, 0 offen offset:40")
        a(f"v_mov_b32 v15, s{76+2*9}\nbuffer_atomic_umax v15, v18, {S_T}, 0 offen offset:36")
        a("s_branch L_end\nL_dy:")
        for j, k in enumerate((2, 4, 6, 8)):
            a(f"v_mov_b32 v15, s{76+2*k}\nbuffer_atomic_umax v15, v18, {S_T}, 0 offen offset:{48+4*j}")
    elif profile:
        stamp(11)
        a("s_mov_b64 exec, -1\ns_waitcnt lgkmcnt(0)")
        a(f"s_lshl_b32 s62, s2, 2\ns_add_u32 s62, s62, {SW}\ns_lshl_b32 s62, s62, 6\ns_add_u32 s62, s62, {TS}")
        a("v_mov_b32 v18, 0\ns_mov_b64 exec, 1")
        for k in range(12):
            a(f"v_mov_b32 v15, s{76+2*k}\nbuffer_store_dword v15, v18, {S_WS}, s62 offen offset:{4*k}")
        a(f"v_mov_b32 v15, s100\nbuffer_store_dword v15, v18, {S_WS}, s62 offen offset:48")
        a(f"s_getreg_b32 s100, hwreg(HW_REG_XCC_ID)\nv_mov_b32 v15, s100\nbuffer_store_dword v15, v18, {S_WS}, s62 offen offset:52")
        a(f"s_getreg_b32 s100, hwreg(HW_REG_HW_ID)\nv_mov_b32 v15, s100\nbuffer_store_dword v15, v18, {S_WS}, s62 offen offset:56")
    a("L_end:")
    a("s_endpgm")
    a("L_code_end:")
    a(f".set CODE_BYTES, L_code_end - {NAME}")
    a('.section .rodata,"a"\n.p2align 6')
    a(f".amdhsa_kernel {NAME}")
    a("  .amdhsa_next_free_vgpr 512\n  .amdhsa_next_free_sgpr 102\n  .amdhsa_accum_offset 256\n  .amdhsa_group_segment_fixed_size 0\n  .amdhsa_kernarg_size 112\n  .amdhsa_user_sgpr_count 2\n  .amdhsa_user_sgpr_kernarg_segment_ptr 1\n  .amdhsa_system_sgpr_workgroup_id_x 1")
    a(".end_amdhsa_kernel")
    n = a.hazard_pass()
    return a.text(), n

LAYOUT = dict(QG=QG, QA=QA, ST=ST, CP=CP, HG=HG, OUTP=OUTP, OP=OP, TS=TS, XP=XP)
if __name__ == "__main__":
    prof = "prof" in sys.argv[2:]
    opt = {}
    for x in sys.argv[2:]:
        if '=' in x:
            k, v = x.split('='); opt[k] = int(v) if v.lstrip('-').isdigit() else v
    txt, n = gen(profile=prof, opt=opt)
    open(sys.argv[1], "w").write(txt)
    print("auto nops:", n, "lines:", txt.count("\n"), LAYOUT)
```

```python
import sys, math, struct
from asmlib import Asm

NAME = "sequential_preLN__compressed_kv_cla__mixer_token_mlp__decode_kernel"
HEADER = open('sequential_preLN__compressed_kv_cla__mixer_token_mlp__decode.s.ref').read().split('; Override')[0]

def f2u(x): return struct.unpack('<I', struct.pack('<f', x))[0]

QG   = 4096
QA   = QG + 131072
ST   = QA + 65536
CP   = ST + 16384
HG   = CP + 65536
SENT2 = HG + 4096
SENT5 = SENT2 + 16384
QGB  = SENT5 + 16384
CPB  = QGB + 131072
OUTP = CPB + 65536
OUTPB = OUTP + 128*2560
XP   = OUTPB + 128*2560
UF   = XP + 8*2560
YF   = UF + 1024
OP   = (2 << 20) + 4096
TS   = (4 << 20) + 65536
assert YF + 8*128 <= OP
WS_SIZE = 5 << 20
CKV_STRIDE = 1056
QS = 135168; PX = 143616; MX = 147712; LX = 147968; MRED = 148224; MB = 148288
WUK = 0; WUV = 32768; OS = 65536; S1RED = 74752; WX = 82944; RRED = 83456
S1RED_C = 148480
LDS_BYTES = 156672
WO_STRIDE = 1312
GS = 65536
HB = PX; SB = MB; RR = PX + 2560

SCALE = (128 ** -0.5) * math.log2(math.e)
C0 = -2.0 * math.sqrt(2.0 / math.pi) * math.log2(math.e)
C1 = C0 * 0.044715
EPS = 1e-5

S_WS, S_X, S_A, S_B, S_C, S_T = 's[32:35]', 's[36:39]', 's[40:43]', 's[44:47]', 's[48:51]', 's[52:55]'
TAG, SW, SR, SH, SSUB = 's56', 's57', 's58', 's59', 's60'

def gen(profile=False, spin_limit=400000, opt=None):
    opt = opt or {}
    WARM = opt.get('warm', 1)
    STPOS = opt.get('stpos', 1)
    a = Asm()
    NT = " nt" if opt.get('nt', 1) else ""
    LF = opt.get('lflag', 'nt')
    BP = opt.get('bper', 32) - 1
    SMASK = opt.get('smask', 0xfff)
    def stamp(k):
        if profile and (SMASK >> k) & 1:
            assert k < 12
            a(f"s_memrealtime s[{76+2*k}:{77+2*k}]")
    def srd(dst, ptr, size):
        d = int(dst[2:dst.index(':')])
        a(f"s_mov_b32 s{d}, s{ptr}\ns_mov_b32 s{d+1}, s{ptr+1}\ns_mov_b32 s{d+2}, {size}\ns_mov_b32 s{d+3}, 0x00020000")
    DPPS = ("quad_perm:[1,0,3,2]", "quad_perm:[2,3,0,1]", "row_half_mirror", "row_mirror")
    def row_allreduce(op, vs):
        for m in DPPS:
            for v in vs: a(f"{op}_dpp {v}, {v}, {v} {m} row_mask:0xf bank_mask:0xf")
    def swapred(sw, op, vs, ts):
        for v, t in zip(vs, ts): a(f"v_mov_b32 {t}, {v}")
        for v, t in zip(vs, ts): a(f"{sw} {v}, {t}")
        for v, t in zip(vs, ts): a(f"{op} {v}, {v}, {t}")
    def swap16(op, vs, ts): swapred("v_permlane16_swap_b32", op, vs, ts)
    def swap32(op, vs, ts): swapred("v_permlane32_swap_b32", op, vs, ts)
    def wave_allreduce(op, vs, ts):
        row_allreduce(op, vs); swap16(op, vs, ts); swap32(op, vs, ts)
    MASKED = opt.get('masked', 1)
    def poll_begin(name, dual=None):
        a(f"s_mov_b32 s61, 0")
        a(f"{name}:")
        if dual:
            a(f"s_and_b32 s75, s61, {BP}\ns_cmp_eq_u32 s75, {BP}\ns_cselect_b32 {dual[0]}, {dual[2]}, {dual[1]}")
    def poll_end(name, bad):
        a(f"v_cmp_ne_u32 vcc, 0, {bad}")
        a(f"s_add_u32 s61, s61, 1")
        a(f"s_cmp_gt_u32 s61, {spin_limit}")
        a(f"s_cbranch_scc1 {name}_x")
        if MASKED:
            a(f"s_and_b64 exec, exec, vcc")
            a(f"s_cbranch_execnz {name}")
        else:
            a(f"s_cbranch_vccnz {name}")
        a(f"{name}_x:")
        if MASKED: a("s_mov_b64 exec, -1")
        if profile and opt.get('cntfor') == name:
            a("s_mov_b32 s100, s61")
    def tagcheck(bad, tags):
        a(f"v_xor_b32 {bad}, {TAG}, {tags[0]}")
        for t in tags[1:]:
            a(f"v_bitop3_b32 {bad}, {t}, {TAG}, {bad} bitop3:0xbe")
    def mfma(d, A, B, first):
        a(f"v_mfma_f32_16x16x32_bf16 {d}, {A}, {B}, {'0' if first else d}")
    def vr(b, n=4): return f"v[{b}:{b+n-1}]"
    def ar(b, n=4): return f"a[{b}:{b+n-1}]"

    a.lines += [l for l in HEADER.strip().split('\n')]
    a(f"; @launch grid=(256,1,1) block=(256,1,1) lds={LDS_BYTES}")
    a('.amdgcn_target "amdgcn-amd-amdhsa--gfx950"')
    for l in """
One persistent launch, 256 workgroups (one per CU).  Absorbed MLA decode + token mixer, all stages chained through d_ws:
  S1 (all)  q partials      = LN(x) . w_q              rows split 8 ways per head
  S2 (X)    q_abs[h, c]     = q[h] . w_uk[c, h]        (scale and log2(e) folded in)
  S3 (Y)    scores, running max / sum and P.c_kv for 128 keys x 8 heads (MFMA)
  S4 (X)    combine the 32 key splits (true max), ctx partial = ctx_lat . w_uv
  S5 (Y)    out partial for 32 columns over the 4 heads of the workgroup id class (id & 7)
  M  (all)  h = x + out, LN(LN(h)), token MLP for 3 columns per workgroup
X = ids 0..127, Y = ids 128..255.  Hand-offs are 8-byte granules {payload, tag}; tag = (word 0 of d_ws at entry) + 1,
word 0 is set to the tag at the end.  Hand-offs inside one id class are written twice: a plain store (seen quickly when the
class shares an L2) and a write-through copy that consumers probe every 32nd poll, so no placement is assumed.
""".strip().split("\n"): a.c(l)
    a(f".text\n.globl {NAME}\n.p2align 8\n.type {NAME},@function\n{NAME}:")
    WPOS = opt.get('wpos', 0)
    def warm_load():
        a("s_getpc_b64 s[52:53]\nL_pc:\ns_sub_u32 s52, s52, L_pc-%s\ns_subb_u32 s53, s53, 0\nv_lshlrev_b32 v254, 7, v0\ns_mov_b32 s54, CODE_BYTES\ns_mov_b32 s55, 0x00020000" % NAME)
        a("buffer_load_dword v251, v254, s[52:55], 0 offen")
    if WARM and WPOS == 0: warm_load()
    stamp(0)
    if opt.get('pin'): a("s_memrealtime s[76:77]")
    if profile: a("s_mov_b32 s100, 99")
    a("s_cmp_ge_u32 s2, 256\ns_cbranch_scc1 L_end")
    a("s_load_dwordx16 s[4:19], s[0:1], 0\ns_load_dwordx8 s[20:27], s[0:1], 64\ns_load_dwordx4 s[28:31], s[0:1], 96")
    a("v_and_b32 v1, 63, v0\nv_lshrrev_b32 v2, 6, v0\nv_and_b32 v3, 15, v0\nv_bfe_u32 v4, v0, 4, 2")
    a(f"v_readfirstlane_b32 {SW}, v2")
    a(f"s_and_b32 s61, s2, 7\ns_bfe_u32 s62, s2, 0x40003\ns_lshl_b32 {SR}, s61, 4\ns_add_u32 {SR}, {SR}, s62")
    a(f"s_lshr_b32 {SH}, {SR}, 2\ns_and_b32 {SSUB}, {SR}, 3")
    a("v_mov_b32 v18, 0")
    for k in range(240, 245): a(f"v_mov_b32 v{k}, 0")
    a("s_waitcnt lgkmcnt(0)")
    srd(S_WS, 30, WS_SIZE)
    a(f"buffer_load_dword v250, v18, {S_WS}, 0 offen")
    if opt.get('tlbw', 0):
        a(f"s_mov_b32 s62, {2<<20}\ns_mov_b32 s63, {(4<<20)+8192}")
        a(f"buffer_load_dword v255, v18, {S_WS}, s62 offen\nbuffer_load_dword v255, v18, {S_WS}, s63 offen")
    srd(S_X, 4, 1280)
    def m_coef_loads():
        a("v_lshlrev_b32 v17, 2, v0")
        for k, p in enumerate((18, 20, 22)):
            srd(S_T, p, 3456)
            for i in range(4):
                a(f"buffer_load_dword v{196+4*k+i}, v17, {S_T}, 0 offen offset:{1024*i}")
        srd(S_T, 24, 2)
        a(f"buffer_load_ushort v208, v18, {S_T}, 0 offen")
    def m_coef_unpack():
        a("s_mov_b32 s63, 0xffff0000")
        for k in range(3):
            for i in range(4):
                s_ = 196+4*k+i; d = 210+8*k+2*i
                a(f"v_lshlrev_b32 v{d}, 16, v{s_}\nv_and_b32 v{d+1}, s63, v{s_}")
        a("v_lshlrev_b32 v208, 16, v208")
    def rewarm(tagname):
        if not opt.get('rewarm', 1): return 0
        a(f"s_getpc_b64 s[52:53]\nL_pc{tagname}:\ns_mov_b32 s54, L_code_end-L_pc{tagname}\ns_mov_b32 s55, 0x00020000\nv_lshlrev_b32 v254, 7, v0")
        a("buffer_load_dword v251, v254, s[52:55], 0 offen")
        return 1
    def tail_prefetch():
        a(f"v_lshlrev_b32 v245, 3, v0\nbuffer_load_dwordx2 v[246:247], v245, {S_X}, 0 offen")
        if opt.get('gate', 1):
            a(f"s_and_b32 s62, s2, 7\ns_lshl_b32 s62, s62, 7\ns_add_u32 s62, s62, {UF}\nv_lshlrev_b32 v249, 2, v1\nv_and_b32 v249, 127, v249")
            a(f"buffer_load_dword v252, v249, {S_WS}, s62 offen {LF}")
    def wo_slice_dma(su="s74", lds0=0):
        a(f"v_lshrrev_b32 v9, 2, v1\nv_mul_u32_u24 v9, 1280, v9\nv_bfe_u32 v10, v1, 4, 1\nv_lshlrev_b32 v10, 1, v10\nv_and_b32 v11, 3, v1\nv_xor_b32 v10, v10, v11\nv_lshl_add_u32 v9, v10, 4, v9")
        a(f"s_and_b32 s62, s2, 7\ns_lshl_b32 s62, s62, 2\ns_add_u32 s62, s62, {SW}\ns_mul_i32 s62, s62, {128*1280}\ns_lshl_b32 s63, {su}, 6\ns_add_u32 s62, s62, s63\ns_lshl_b32 s63, {SW}, 13\ns_add_u32 s63, s63, {lds0}")
        for k in range(8):
            a(f"s_mov_b32 m0, s63\ns_add_u32 s63, s63, 1024")
            a(f"buffer_load_dwordx4 v9, {S_B}, s62 offen lds")
            if k < 7: a(f"s_add_u32 s62, s62, {16*1280}")
    def wo_slice_frags(lds0=0, a0=0):
        a(f"v_lshrrev_b32 v9, 2, v3\nv_lshl_add_u32 v9, v4, 2, v9\nv_lshlrev_b32 v9, 6, v9\nv_and_b32 v10, 1, v4\nv_lshl_add_u32 v9, v10, 5, v9\nv_and_b32 v10, 3, v3\nv_lshl_add_u32 v9, v10, 3, v9\ns_lshl_b32 s62, {SW}, 13\nv_add_u32 v9, s62, v9\nv_xor_b32 v10, 32, v9")
        for tt in range(2):
            for dq in range(4):
                for uu in range(2):
                    r = a0+(tt*4+dq)*4+2*uu
                    a(f"ds_read_b64_tr_b16 a[{r}:{r+1}], {'v9' if tt == 0 else 'v10'} offset:{lds0+2048*dq+1024*uu}")
    def s5_addresses():
        if opt.get('g4dense', 1):
            a("v_lshlrev_b32 v240, 4, v1")
            a(f"v_lshrrev_b32 v236, 5, v1\nv_lshlrev_b32 v236, 8, v236\nv_bfe_u32 v235, v1, 2, 2\nv_lshl_add_u32 v236, v235, 6, v236\nv_and_b32 v235, 3, v1\nv_lshl_add_u32 v236, v235, 4, v236\nv_bfe_u32 v235, v1, 4, 1\nv_lshl_add_u32 v236, v235, 3, v236")
            a(f"s_lshl_b32 s62, {SW}, 10\ns_add_u32 s62, s62, {GS}\nv_add_u32 v236, s62, v236")
            a(f"v_and_b32 v235, 3, v3\nv_lshlrev_b32 v235, 4, v235\nv_lshl_add_u32 v235, v4, 6, v235\nv_add_u32 v235, s62, v235")
        else:
            a(f"v_and_b32 v240, 3, v3\nv_lshlrev_b32 v240, 4, v240\nv_lshl_add_u32 v240, v4, 6, v240")
        a(f"s_and_b32 s62, s2, 7\ns_lshl_b32 s63, s62, 2\ns_add_u32 s63, s63, {SW}\ns_lshl_b32 s63, s63, 11\ns_add_u32 s101, s63, {CP}")
        a(f"s_mul_i32 s63, s62, 2560\ns_lshl_b32 s65, s74, 7\ns_add_u32 s63, s63, s65\ns_add_u32 s63, s63, {XP}\nv_lshlrev_b32 v243, 2, v1\nv_add_u32 v243, s63, v243")
        a(f"s_lshl_b32 s62, s62, 7\ns_lshl_b32 s63, s74, 2\ns_add_u32 s62, s62, s63\ns_add_u32 s62, s62, {UF}\nv_mov_b32 v244, s62")
        a(f"v_lshlrev_b32 v241, 2, v1\nv_add_u32 v242, {RR}, v241\ns_lshl_b32 s62, {SW}, 7\nv_add_u32 v241, s62, v242")
        if opt.get('prewarm', 1):
            a(f"v_lshlrev_b32 v253, 7, v3\nbuffer_load_dword v252, v253, {S_WS}, s101 offen {LF}")
    def sentinel(base):
        lab = f"L_s{base}"
        a(f"s_cmp_eq_u32 {SW}, 0\ns_cbranch_scc0 {lab}")
        a(f"v_mov_b32 v240, {TAG}\nv_mov_b32 v241, {TAG}\nv_mov_b32 v242, {TAG}\nv_mov_b32 v243, {TAG}\nv_lshlrev_b32 v244, 4, v1")
        a(f"s_lshl_b32 s62, {SR}, 7\ns_add_u32 s62, s62, {base}\ns_mov_b64 exec, 0xff")
        a(f"buffer_store_dwordx4 v[240:243], v244, {S_WS}, s62 offen sc1")
        a(f"s_mov_b64 exec, -1\n{lab}:")

    NW = 1 if WARM else 0
    PWX = 1 if opt.get("prewarm", 1) else 0

    a.c("================= S1: q partials, head h1 = 4*xcd + (idx>>3), rows 80*me..80*me+79, me = idx&7")
    a("s_lshr_b32 s72, s2, 6\ns_and_b32 s73, s2, 7\ns_lshl_b32 s73, s73, 2\ns_add_u32 s72, s72, s73")
    a("s_bfe_u32 s73, s2, 0x30003")
    srd(S_A, 8, 5242880)
    a("v_lshlrev_b32 v5, 2, v1")
    for j in range(5): a(f"buffer_load_dword v{32+j}, v5, {S_X}, 0 offen offset:{256*j}")
    a(f"v_lshrrev_b32 v6, 4, v0\ns_mul_i32 s62, s73, 80\nv_add_u32 v7, s62, v6\nv_lshlrev_b32 v7, 1, v7")
    for i in range(5): a(f"buffer_load_ushort v{40+2*i}, v7, {S_X}, 0 offen offset:{32*i}")
    a("v_lshlrev_b32 v8, 4, v3\nv_lshl_add_u32 v8, v6, 13, v8")
    a(f"s_mul_i32 s61, s73, {80*8192}\ns_lshl_b32 s62, s72, 8\ns_add_u32 s61, s61, s62")
    for i in range(5):
        a(f"buffer_load_dwordx4 {vr(60+4*i)}, v8, {S_A}, s61 offen{NT}")
        if i < 4: a(f"s_add_u32 s61, s61, {16*8192}")
    WL = 1 if (WARM and WPOS == 1) else 0
    if WL: warm_load()
    a("v_xor_b32 v9, v3, v4\nv_lshlrev_b32 v9, 4, v9\nv_lshl_add_u32 v9, v4, 13, v9")
    a("v_xor_b32 v10, 64, v9\nv_xor_b32 v11, 128, v9\nv_xor_b32 v12, 192, v9")
    a("s_bitcmp1_b32 s2, 7\ns_cbranch_scc1 L_nouk")
    srd(S_B, 10, 4194304)
    a(f"s_lshl_b32 s66, {SSUB}, 20\ns_lshl_b32 s63, {SH}, 8\ns_add_u32 s66, s66, s63\ns_lshl_b32 s63, {SW}, 18\ns_add_u32 s66, s66, s63")
    a(f"s_lshl_b32 s67, {SW}, 13")
    NUP = opt.get('nup', 8)
    def uk_dma(k):
        a(f"s_mov_b32 m0, s67\ns_add_u32 s67, s67, 1024")
        a(f"buffer_load_dwordx4 v{9+(k&3)}, {S_B}, s66 offen{NT} lds")
        if k < 7: a(f"s_add_u32 s66, s66, 32768")
    for k in range(NUP): uk_dma(k)
    if PWX:
        a(f"v_and_b32 v253, 31, v1\nv_lshlrev_b32 v253, 7, v253\ns_lshl_b32 s62, {SH}, 12\ns_add_u32 s62, s62, {QG}")
        a(f"buffer_load_dword v252, v253, {S_WS}, s62 offen {LF}")
    a("s_branch L_s1c")
    a("L_nouk:")
    EARLY = opt.get('early', 0)
    ER = opt.get('erows', 0)
    def ckv_group(q, j0=0, j1=8):
        a(f"s_add_u32 s62, {SSUB}, {q}\ns_and_b32 s62, s62, 3\ns_add_u32 s63, s69, {(q*8+j0)*CKV_STRIDE}\ns_lshl_b32 s62, s62, 13\ns_add_u32 s62, s62, s68")
        if j0: a(f"s_add_u32 s62, s62, {1024*j0}")
        for j in range(j0, j1):
            a(f"s_mov_b32 m0, s63\ns_add_u32 s63, s63, {CKV_STRIDE}")
            a(f"buffer_load_dwordx4 v9, {S_B}, s62 offen{' nt' if opt.get('ntc', 0) == 2 or (opt.get('ntc', 0) == 1 and q == 0) else ''} lds")
            if j < j1-1: a(f"s_add_u32 s62, s62, 1024")
    srd(S_B, 6, 4194304)
    a("v_lshlrev_b32 v9, 4, v1")
    a(f"s_lshl_b32 s68, {SH}, 17\ns_lshl_b32 s63, {SW}, 15\ns_add_u32 s68, s68, s63")
    a(f"s_mul_i32 s69, {SW}, {32*CKV_STRIDE}")
    for q in range(EARLY): ckv_group(q)
    if ER: ckv_group(0, 0, ER)
    a("L_s1c:")
    a(f"v_lshlrev_b32 v241, 9, v6\nv_lshl_add_u32 v241, v3, 4, v241\nv_add_u32 v241, {S1RED_C}, v241")
    a(f"v_and_b32 v14, 31, v1\nv_lshrrev_b32 v242, 3, v14\ns_lshl_b32 s62, {SW}, 2\nv_add_u32 v242, s62, v242\nv_lshlrev_b32 v242, 4, v242")
    a("v_bfe_u32 v16, v1, 2, 1\nv_lshl_add_u32 v242, v16, 8, v242\nv_and_b32 v16, 3, v1\nv_lshl_add_u32 v242, v16, 2, v242\nv_lshrrev_b32 v16, 5, v1\nv_lshl_add_u32 v242, v16, 12, v242")
    a(f"v_add_u32 v242, {S1RED_C}, v242")
    a(f"s_lshl_b32 s70, s72, 12\ns_lshl_b32 s63, {SW}, 10\ns_add_u32 s70, s70, s63\ns_lshl_b32 s63, s73, 4\ns_add_u32 s70, s70, s63\ns_add_u32 s70, s70, {QG}\ns_add_u32 s71, s70, {QGB-QG}")
    a("v_lshrrev_b32 v237, 3, v14\nv_lshlrev_b32 v237, 7, v237\nv_bfe_u32 v16, v14, 2, 1\nv_lshl_add_u32 v237, v16, 9, v237\nv_bfe_u32 v16, v14, 1, 1\nv_lshl_add_u32 v237, v16, 3, v237")
    stamp(1)
    def s1_body(extra, late=()):
        late = list(late)
        a(f"s_waitcnt vmcnt({10+extra})")
        a(f"v_readfirstlane_b32 {TAG}, v250\ns_add_u32 {TAG}, {TAG}, 1")
        a("s_mov_b32 s63, 0xffff0000")
        for j in range(5):
            a(f"v_lshlrev_b32 v{100+2*j}, 16, v{32+j}\nv_and_b32 v{101+2*j}, s63, v{32+j}")
        a("v_readfirstlane_b32 s64, v100")
        for k in range(100, 110): a(f"v_subrev_f32 v{k}, s64, v{k}")
        a("s_mov_b32 s3, s64")
        a("v_add_f32 v110, v100, v101\nv_mul_f32 v112, v100, v100")
        a("v_fmac_f32 v112, v101, v101")
        for k in range(102, 110): a(f"v_add_f32 v110, v110, v{k}\nv_fmac_f32 v112, v{k}, v{k}")
        wave_allreduce("v_add_f32", ["v110", "v112"], ["v111", "v113"])
        a(f"s_mov_b32 s65, {f2u(1.0/640):#x}\nv_mul_f32 v110, s65, v110\nv_mul_f32 v112, s65, v112")
        a(f"v_fma_f32 v112, -v110, v110, v112\nv_add_f32 v112, {f2u(EPS):#x}, v112\nv_rsq_f32 v113, v112")
        a("v_add_f32 v110, s64, v110")
        a(f"s_waitcnt vmcnt({5+extra})")
        for i in range(5):
            r = 40+2*i
            a(f"v_lshlrev_b32 v{r}, 16, v{r}\nv_sub_f32 v{r}, v{r}, v110\nv_mul_f32 v{r}, v{r}, v113")
        for k in range(100, 108): a(f"v_mov_b32 v{k}, 0")
        issued = 0
        for i in range(5):
            a(f"s_waitcnt vmcnt({4-i+extra+issued})")
            w = 60+4*i; l = 40+2*i
            for d in range(4):
                a(f"v_lshlrev_b32 v{108+2*(d&1)}, 16, v{w+d}\nv_and_b32 v{109+2*(d&1)}, s63, v{w+d}")
                a(f"v_pk_fma_f32 v[{100+2*d}:{101+2*d}], v[{108+2*(d&1)}:{109+2*(d&1)}], v[{l}:{l+1}], v[{100+2*d}:{101+2*d}] op_sel_hi:[1,0,1]")
            if late:
                late.pop(0)(); issued += 1
    a("s_bitcmp1_b32 s2, 7\ns_cbranch_scc1 L_s1y")
    s1_body(NUP+PWX+WL, [(lambda k=k: uk_dma(k)) for k in range(NUP, 8)])
    a("s_branch L_s1r")
    a("L_s1y:")
    s1_body(8*EARLY+WL+ER)
    a("L_s1r:")
    stamp(2)
    MID = opt.get('mid', 0)
    a("ds_write_b128 v241, v[100:103]\nds_write_b128 v241, v[104:107] offset:256")
    if MID:
        a("s_bitcmp1_b32 s2, 7\ns_cbranch_scc0 L_nomid")
        ckv_group(0)
        a("L_nomid:")
    a("s_waitcnt lgkmcnt(0)\ns_barrier")
    for k in range(4): a(f"ds_read2st64_b32 v[{100+2*k}:{101+2*k}], v242 offset0:{4*k} offset1:{4*k+2}")
    a("s_waitcnt lgkmcnt(0)")
    a("v_add_f32 v100, v100, v101\nv_add_f32 v102, v102, v103\nv_add_f32 v104, v104, v105\nv_add_f32 v106, v106, v107")
    a("v_add_f32 v100, v100, v102\nv_add_f32 v104, v104, v106\nv_add_f32 v100, v100, v104")
    swap32("v_add_f32", ["v100"], ["v101"])
    a("v_mov_b32_dpp v101, v100 row_shl:1 row_mask:0xf bank_mask:0xf")
    a(f"v_cvt_pk_bf16_f32 v238, v100, v101\nv_mov_b32 v239, {TAG}")
    a("s_mov_b32 exec_lo, 0x55555555\ns_mov_b32 exec_hi, 0")
    a(f"buffer_store_dwordx2 v[238:239], v237, {S_WS}, s70 offen")
    a("s_bitcmp1_b32 s2, 7\ns_cbranch_scc0 L_Xgo")
    a(f"buffer_store_dwordx2 v[238:239], v237, {S_WS}, s71 offen sc1")
    a("s_mov_b64 exec, -1")
    a("s_branch L_Y")
    a("L_Xgo:")
    a("s_mov_b64 exec, -1")

    a.c("================= X role: S2 (q_abs), S4 (ctx partial), R")
    srd(S_C, 12, 4194304)
    G1E = opt.get('g1early', 1)
    a(f"v_and_b32 v17, 7, v3\nv_lshlrev_b32 v17, 4, v17\nv_lshl_add_u32 v17, v4, 7, v17\ns_lshl_b32 s63, {SH}, 12\ns_add_u32 s63, s63, {QG}\ns_add_u32 s64, s63, {QGB-QG}")
    if G1E:
        a(f"s_waitcnt vmcnt({1+opt.get('g1k', 2)})")
        for s in range(4):
            r = 148+8*s
            a(f"buffer_load_dwordx4 {vr(r)}, v17, {S_WS}, s63 offen offset:{1024*s} {LF}")
            a(f"buffer_load_dwordx4 {vr(r+4)}, v17, {S_WS}, s63 offen offset:{1024*s+512} {LF}")
    a(f"s_lshl_b32 s62, {SW}, 5\nv_add_u32 v13, s62, v3\nv_lshlrev_b32 v13, 8, v13\nv_xor_b32 v14, v3, v4\nv_lshl_add_u32 v13, v14, 4, v13")
    a("v_xor_b32 v14, 64, v13\nv_xor_b32 v15, 128, v13\nv_xor_b32 v16, 192, v13")
    a(f"s_waitcnt vmcnt({9 if G1E else 1})")
    for tile in range(2):
        for s in range(4):
            a(f"ds_read_b128 {vr(116+(tile*4+s)*4)}, v{13+s} offset:{WUK+4096*tile}")
    stamp(3)
    a("v_mov_b32 v13, v17")
    if G1E:
        a("s_waitcnt vmcnt(0)")
        tagcheck("v14", [f"v{148+8*s+k}" for s in range(4) for k in (1,3,5,7)])
        a("s_mov_b32 s61, 0\nv_cmp_ne_u32 vcc, 0, v14\ns_cbranch_vccz L_p1_x")
        if MASKED: a("s_and_b64 exec, exec, vcc")
    def qgb_store():
        a("s_mov_b64 s[78-2:78-1], exec" if False else "s_mov_b64 s[98:99], exec")
        a("s_mov_b32 exec_lo, 0x55555555\ns_mov_b32 exec_hi, 0")
        a(f"buffer_store_dwordx2 v[238:239], v237, {S_WS}, s71 offen sc1")
        a("s_mov_b64 exec, s[98:99]")
    poll_begin("L_p1", ("s62", "s63", "s64"))
    a(f"s_cmp_eq_u32 s61, {BP}\ns_cbranch_scc0 L_p1n")
    qgb_store()
    a("L_p1n:")
    def dual_loads(name, emit):
        a(f"s_cmp_eq_u32 s75, {BP}\ns_cbranch_scc1 {name}_b")
        emit(LF)
        a(f"s_branch {name}_c\n{name}_b:")
        emit("sc1")
        a(f"{name}_c:")
    def g1_loads(fl):
        for s in range(4):
            r = 148+8*s
            a(f"buffer_load_dwordx4 {vr(r)}, v13, {S_WS}, s62 offen offset:{1024*s} {fl}")
            a(f"buffer_load_dwordx4 {vr(r+4)}, v13, {S_WS}, s62 offen offset:{1024*s+512} {fl}")
    dual_loads("L_p1", g1_loads)
    a("s_waitcnt vmcnt(0)")
    tagcheck("v14", [f"v{148+8*s+k}" for s in range(4) for k in (1,3,5,7)])
    poll_end("L_p1", "v14")
    a(f"s_cmp_gt_u32 s61, {BP}\ns_cbranch_scc1 L_p1m")
    qgb_store()
    a("L_p1m:")
    stamp(4)
    if opt.get('sent2', 0): sentinel(SENT2)
    for s in range(4):
        r = 148+8*s
        a(f"v_mov_b32 v{r+1}, v{r+2}\nv_mov_b32 v{r+2}, v{r+4}\nv_mov_b32 v{r+3}, v{r+6}")
    a("s_waitcnt lgkmcnt(0)")
    for s in range(4):
        for tile in range(2):
            mfma(vr(180+4*tile), vr(148+8*s), vr(116+(tile*4+s)*4), s == 0)
    a(f"s_mov_b32 s63, {f2u(SCALE):#x}")
    a("v_lshlrev_b32 v13, 2, v3\nv_lshl_add_u32 v13, v4, 6, v13\nv_cmp_eq_u32 vcc, 1, v4")
    a(f"s_lshl_b32 s62, {SR}, 9\ns_lshl_b32 s64, {SW}, 7\ns_add_u32 s62, s62, s64\ns_add_u32 s62, s62, {QA}")
    a("v_add_f32 v180, v180, v181\nv_add_f32 v184, v184, v185\nv_add_f32 v182, v182, v183\nv_add_f32 v186, v186, v187")
    a("v_add_f32 v180, v180, v182\nv_add_f32 v184, v184, v186")
    swap16("v_add_f32", ["v180", "v184"], ["v181", "v185"])
    a("v_cndmask_b32 v180, v180, v184, vcc\nv_mul_f32 v180, s63, v180")
    a("v_mov_b32_dpp v181, v180 row_shl:1 row_mask:0xf bank_mask:0xf")
    a(f"v_cvt_pk_bf16_f32 v188, v180, v181\nv_mov_b32 v189, {TAG}")
    a("s_mov_b32 exec_lo, 0x55555555\ns_mov_b32 exec_hi, 0")
    a(f"buffer_store_dwordx2 v[188:189], v13, {S_WS}, s62 offen sc1")
    a("s_mov_b64 exec, -1")
    stamp(5)
    a("v_lshrrev_b32 v15, 1, v3\nv_and_b32 v16, 1, v4\nv_lshlrev_b32 v16, 2, v16\nv_xor_b32 v15, v15, v16\nv_lshlrev_b32 v15, 5, v15\nv_and_b32 v16, 1, v0\nv_lshl_add_u32 v15, v16, 4, v15\nv_lshl_add_u32 v15, v4, 13, v15")
    a(f"s_lshl_b32 s62, {SW}, 1\ns_and_b32 s63, s62, 3\ns_lshl_b32 s63, s63, 5\nv_xor_b32 v16, s63, v15\ns_add_u32 s62, s62, 1\ns_and_b32 s63, s62, 3\ns_lshl_b32 s63, s63, 5\nv_xor_b32 v15, s63, v15")
    a(f"s_lshl_b32 s62, {SSUB}, 20\ns_lshl_b32 s63, {SH}, 8\ns_add_u32 s62, s62, s63\ns_lshl_b32 s63, {SW}, 18\ns_add_u32 s62, s62, s63")
    a(f"s_lshl_b32 s63, {SW}, 13\ns_add_u32 s63, s63, {WUV}")
    for k in range(8):
        a(f"s_mov_b32 m0, s63\ns_add_u32 s63, s63, 1024")
        a(f"buffer_load_dwordx4 {'v16' if k < 4 else 'v15'}, {S_C}, s62 offen{NT} lds")
        if k < 7: a("s_add_u32 s62, s62, 32768")
    rewarm("x")
    m_coef_loads()
    tail_prefetch()
    a("s_waitcnt vmcnt(0)\ns_barrier")
    a("v_lshrrev_b32 v19, 2, v3\nv_lshl_add_u32 v19, v4, 2, v19")
    a("v_lshrrev_b32 v20, 2, v3\nv_and_b32 v21, 1, v4\nv_lshl_add_u32 v21, v21, 2, v20")
    a(f"s_lshl_b32 s62, {SW}, 1\nv_xor_b32 v21, s62, v21\nv_lshlrev_b32 v21, 5, v21")
    a("v_lshl_add_u32 v20, v20, 4, v4\nv_lshl_add_u32 v20, v20, 8, v21\nv_and_b32 v21, 3, v3\nv_lshl_add_u32 v20, v21, 3, v20\nv_xor_b32 v21, 32, v20")
    for tt in range(2):
        for j in range(4):
            for u in range(2):
                r = 60+(tt*4+j)*4+2*u; tau = 2*j+u
                a(f"ds_read_b64_tr_b16 v[{r}:{r+1}], {'v20' if tt==0 else 'v21'} offset:{WUV+16384*(tau>>2)+1024*(tau&3)}")
    m_coef_unpack()
    a("v_lshlrev_b32 v22, 4, v0\nv_and_b32 v23, 31, v1\nv_lshlrev_b32 v23, 9, v23")
    a(f"s_lshl_b32 s62, {SR}, 14\ns_add_u32 s66, s62, {OP}\ns_add_u32 s67, s66, 4096\ns_add_u32 s68, s66, 8192\ns_add_u32 s69, s66, 12288")
    a(f"s_lshr_b32 s62, {SH}, 3\ns_lshl_b32 s62, s62, 7\ns_and_b32 s63, {SH}, 7\ns_lshl_b32 s63, s63, 4\ns_add_u32 s62, s62, s63\ns_add_u32 s70, s62, {ST}")
    a(f"v_lshrrev_b32 v24, 5, v0\nv_mul_u32_u24 v24, 288, v24\nv_and_b32 v25, 31, v0\nv_lshl_add_u32 v24, v25, 3, v24\nv_add_u32 v24, {OS}, v24")
    a(f"s_lshl_b32 s62, {SW}, 7\ns_add_u32 s71, s62, {WX}\nv_and_b32 v25, 31, v1\nv_lshlrev_b32 v25, 2, v25\nv_add_u32 v25, s71, v25")
    a(f"v_lshlrev_b32 v27, 4, v4\nv_add_u32 v27, s71, v27")
    a(f"v_mul_u32_u24 v28, 288, v19\nv_and_b32 v29, 3, v3\nv_lshl_add_u32 v28, v29, 3, v28\nv_add_u32 v28, {OS}, v28")
    a(f"s_lshl_b32 s72, {SH}, 11\ns_lshl_b32 s63, {SW}, 9\ns_add_u32 s72, s72, s63\ns_lshl_b32 s63, {SSUB}, 4\ns_add_u32 s72, s72, s63\ns_add_u32 s72, s72, {CP}\ns_add_u32 s73, s72, {CPB-CP}")
    a("v_lshrrev_b32 v30, 2, v3\nv_lshlrev_b32 v30, 6, v30\nv_bfe_u32 v14, v3, 1, 1\nv_lshl_add_u32 v30, v14, 3, v30\nv_lshl_add_u32 v30, v4, 8, v30\nv_cmp_eq_u32 s[8:9], 1, v4")
    stamp(6)
    if opt.get('gate3', 0):
        a(f"s_and_b32 s62, s2, 7\ns_lshl_b32 s62, s62, 7\ns_add_u32 s62, s62, {YF}\nv_lshlrev_b32 v16, 2, v1\ns_mov_b64 exec, 0xffff\ns_mov_b32 s61, 0")
        a("L_g3:")
        a(f"buffer_load_dword v100, v16, {S_WS}, s62 offen {LF}\ns_waitcnt vmcnt(0)")
        a(f"v_cmp_ne_u32 vcc, {TAG}, v100\ns_add_u32 s61, s61, 1\ns_cmp_gt_u32 s61, 64\ns_cbranch_scc1 L_g3x\ns_cbranch_vccnz L_g3")
        a("L_g3x:\ns_mov_b64 exec, -1")
    a("s_mov_b32 exec_hi, 0")
    poll_begin("L_p3a")
    a(f"buffer_load_dwordx4 v[116:119], v23, {S_WS}, s70 offen sc1")
    a("s_waitcnt vmcnt(0)")
    tagcheck("v14", ["v117", "v119"])
    poll_end("L_p3a", "v14")
    if opt.get('dbg3'): stamp(10)
    for i in range(4):
        a(f"buffer_load_dwordx4 {vr(100+4*i)}, v22, {S_WS}, s{66+i} offen sc1")
    a("v_mov_b32 v120, v116")
    row_allreduce("v_max_f32", ["v120"]); swap16("v_max_f32", ["v120"], ["v121"])
    a("v_sub_f32 v116, v116, v120\nv_exp_f32 v116, v116\nv_mul_f32 v118, v116, v118")
    row_allreduce("v_add_f32", ["v118"]); swap16("v_add_f32", ["v118"], ["v121"])
    a("v_rcp_f32 v118, v118\nv_mul_f32 v116, v116, v118")
    a("s_mov_b32 exec_hi, 0\nds_write_b32 v25, v116\ns_mov_b64 exec, -1")
    a("ds_read_b128 v[120:123], v27\nds_read_b128 v[124:127], v27 offset:64")
    a("s_waitcnt vmcnt(0)")
    tagcheck("v14", [f"v{100+4*i+k}" for i in range(4) for k in (1,3)])
    a("v_cmp_ne_u32 vcc, 0, v14\ns_cbranch_vccz L_p3b_x")
    if MASKED: a("s_and_b64 exec, exec, vcc")
    poll_begin("L_p3b")
    for i in range(4):
        a(f"buffer_load_dwordx4 {vr(100+4*i)}, v22, {S_WS}, s{66+i} offen sc1")
    a("s_waitcnt vmcnt(0)")
    tagcheck("v14", [f"v{100+4*i+k}" for i in range(4) for k in (1,3)])
    poll_end("L_p3b", "v14")
    stamp(7)
    for i in range(4):
        a(f"v_mov_b32 v{101+4*i}, v{102+4*i}\nds_write_b64 v24, v[{100+4*i}:{101+4*i}] offset:{2304*i}")
    a("s_waitcnt lgkmcnt(0)\ns_barrier")
    for t in range(8):
        for u in range(2):
            r = 132+4*t+2*u
            a(f"ds_read_b64_tr_b16 v[{r}:{r+1}], v28 offset:{4608*u+32*t}")
    a("v_cvt_pk_bf16_f32 v128, v120, v121\nv_cvt_pk_bf16_f32 v129, v122, v123\nv_cvt_pk_bf16_f32 v130, v124, v125\nv_cvt_pk_bf16_f32 v131, v126, v127")
    for t in range(8):
        a(f"s_waitcnt lgkmcnt({14-2*t})")
        mfma(vr(164+4*t), vr(132+4*t), vr(128), True)
    for j in range(4):
        d0 = 164+8*j; o = 100+4*j
        a(f"v_cvt_pk_bf16_f32 v{o}, v{d0}, v{d0+1}\nv_cvt_pk_bf16_f32 v{o+1}, v{d0+2}, v{d0+3}\nv_cvt_pk_bf16_f32 v{o+2}, v{d0+4}, v{d0+5}\nv_cvt_pk_bf16_f32 v{o+3}, v{d0+6}, v{d0+7}")
    for j in range(4):
        for tt in range(2):
            mfma(vr(116+4*tt), vr(100+4*j), vr(60+(tt*4+j)*4), j == 0)
    a("v_cndmask_b32 v116, v116, v120, s[8:9]")
    a("v_mov_b32_dpp v117, v116 row_shl:1 row_mask:0xf bank_mask:0xf")
    a(f"v_cvt_pk_bf16_f32 v118, v116, v117\nv_mov_b32 v119, {TAG}")
    a("s_mov_b32 exec_lo, 0x55555555\ns_mov_b32 exec_hi, 0")
    a(f"buffer_store_dwordx2 v[118:119], v30, {S_WS}, s72 offen")
    a(f"buffer_store_dwordx2 v[118:119], v30, {S_WS}, s73 offen sc1")
    a("s_mov_b64 exec, -1")
    stamp(8)
    a("s_branch L_M")

    a.c("================= Y role: S3 (attention), S5 (out partial)")
    a("L_Y:")
    a("v_lshlrev_b32 v5, 4, v1")
    YD = 0
    for q in range(max(EARLY, MID), 4): ckv_group(q, ER if q == 0 else 0, 8)
    stamp(1)
    srd(S_B, 14, 5242880)
    a("s_bfe_u32 s74, s2, 0x40003")
    YPRE = opt.get('ypre', 0)
    PWY = 0
    if YPRE:
        m_coef_loads()
        tail_prefetch()
        s5_addresses()
        PWY = 13 + 1 + (1 if opt.get('gate', 1) else 0) + (1 if opt.get('prewarm', 1) else 0)
    a(f"s_lshl_b32 s62, {SW}, 5\nv_add_u32 v6, s62, v3\nv_mul_u32_u24 v6, {CKV_STRIDE}, v6\nv_lshl_add_u32 v6, v4, 4, v6")
    a("v_lshrrev_b32 v19, 2, v3\nv_lshl_add_u32 v19, v4, 2, v19")
    a(f"v_mul_u32_u24 v7, {CKV_STRIDE}, v19\nv_and_b32 v8, 3, v3\nv_lshl_add_u32 v7, v8, 3, v7\ns_lshl_b32 s62, {SW}, 8\nv_add_u32 v7, s62, v7\nv_add_u32 v8, {64*CKV_STRIDE}, v7")
    a("v_lshlrev_b32 v22, 4, v0")
    a(f"s_lshl_b32 s62, {SSUB}, 14\ns_add_u32 s66, s62, {QA}\ns_add_u32 s67, s66, 4096\ns_add_u32 s68, s66, 8192\ns_add_u32 s69, s66, 12288")
    a(f"v_lshrrev_b32 v24, 7, v0\nv_mul_u32_u24 v24, {CKV_STRIDE}, v24\nv_and_b32 v25, 127, v0\nv_lshl_add_u32 v24, v25, 3, v24\nv_add_u32 v24, {QS}, v24")
    a(f"v_and_b32 v25, 7, v3\nv_mul_u32_u24 v25, {CKV_STRIDE}, v25\nv_lshl_add_u32 v25, v4, 4, v25\nv_add_u32 v25, {QS}, v25")
    a(f"s_lshl_b32 s62, {SW}, 2\ns_add_u32 s62, s62, {MX}\nv_lshlrev_b32 v26, 4, v3\nv_add_u32 v27, s62, v26\nv_add_u32 v28, {MX}, v26")
    a(f"s_lshl_b32 s62, {SW}, 10\ns_add_u32 s62, s62, {PX}\nv_add_u32 v29, s62, v5\nv_add_u32 v31, {PX}, v5")
    for k in range(4): a(f"v_mov_b32 v{184+k}, 0x3f803f80")
    a(f"s_and_b32 s62, s2, 7\ns_lshl_b32 s62, s62, 7\ns_bfe_u32 s63, s2, 0x40003\ns_lshl_b32 s63, s63, 2\ns_add_u32 s62, s62, s63\ns_add_u32 s62, s62, {YF}\nv_mov_b32 v183, s62")
    a("v_and_b32 v21, 1, v3\nv_cmp_eq_u32 s[8:9], 1, v21\nv_and_b32 v21, 2, v3\nv_cmp_eq_u32 s[10:11], 2, v21")
    OSPLIT = opt.get('osplit', 1)
    if OSPLIT:
        a("v_and_b32 v30, 1, v4\nv_lshlrev_b32 v30, 18, v30\nv_lshl_add_u32 v30, v3, 4, v30\nv_lshrrev_b32 v21, 1, v4\nv_lshl_add_u32 v30, v21, 17, v30\nv_cmp_eq_u32 s[12:13], 1, v21")
    else:
        a("v_and_b32 v30, 1, v4\nv_lshlrev_b32 v30, 18, v30\nv_lshl_add_u32 v30, v3, 4, v30\nv_lshrrev_b32 v21, 1, v4\nv_lshl_add_u32 v30, v21, 8, v30\nv_cmp_eq_u32 s[12:13], 1, v21")
    a(f"s_lshl_b32 s73, {SSUB}, 19\ns_lshl_b32 s63, {SW}, 14\ns_add_u32 s73, s73, s63\ns_lshl_b32 s63, {SH}, 9\ns_add_u32 s73, s73, s63\ns_add_u32 s73, s73, {OP}")
    a(f"s_lshl_b32 s72, {SR}, 7\ns_add_u32 s72, s72, {ST}")
    G2E = opt.get('g2early', 1)
    for tile in range(2):
        if tile == 1 and G2E:
            for i in range(4):
                a(f"buffer_load_dwordx4 {vr(100+4*i)}, v22, {S_WS}, s{66+i} offen sc1")
        a(f"s_waitcnt vmcnt({PWY + (16 if tile == 0 else (4 if G2E else 0))})")
        if tile == 1: stamp(2)
        for s in range(16):
            a(f"ds_read_b128 {ar((tile*16+s)*4)}, v6 offset:{tile*16*CKV_STRIDE+64*s}")
    stamp(3)
    if opt.get('sent2', 0):
        poll_begin("L_p2a")
        a(f"buffer_load_dword v100, v23, {S_WS}, s70 offen sc1")
        a("s_waitcnt vmcnt(0)")
        tagcheck("v14", ["v100"])
        poll_end("L_p2a", "v14")
    if G2E:
        a("s_waitcnt vmcnt(0)")
        tagcheck("v14", [f"v{100+4*i+k}" for i in range(4) for k in (1,3)])
        a("v_cmp_ne_u32 vcc, 0, v14\ns_cbranch_vccz L_p2_x")
        if MASKED: a("s_and_b64 exec, exec, vcc")
    poll_begin("L_p2")
    for i in range(4):
        a(f"buffer_load_dwordx4 {vr(100+4*i)}, v22, {S_WS}, s{66+i} offen sc1")
    a("s_waitcnt vmcnt(0)")
    tagcheck("v14", [f"v{100+4*i+k}" for i in range(4) for k in (1,3)])
    poll_end("L_p2", "v14")
    stamp(4)
    for i in range(4):
        a(f"v_mov_b32 v{101+4*i}, v{102+4*i}\nds_write_b64 v24, v[{100+4*i}:{101+4*i}] offset:{2*CKV_STRIDE*i}")
    a("s_waitcnt lgkmcnt(0)\ns_barrier")
    for s in range(16):
        a(f"ds_read_b128 {vr(32+4*s)}, v25 offset:{64*s}")
    wo_n = [0]
    a(f"s_mul_i32 s71, {SR}, 40960")
    def wo_load():
        i = wo_n[0]; wo_n[0] += 1
        a(f"buffer_load_dwordx4 {vr(192)}, v22, {S_B}, s71 offen\ns_add_u32 s71, s71, 4096")
    pv = []
    for t in range(8):
        for j in range(4):
            for u in range(2):
                r = 128+(t*4+j)*4+2*u
                pv.append(f"ds_read_b64_tr_b16 a[{r}:{r+1}], {'v7' if j < 2 else 'v8'} offset:{(32*(j&1)+16*u)*CKV_STRIDE+32*t}")
    for s in range(16):
        if s < 4: a(f"s_waitcnt lgkmcnt({12-4*s})")
        for tile in range(2):
            sidx = s
            mfma(vr(100+4*tile), ar((tile*16+s)*4), vr(32+4*s), s == 0)
            if s >= 3:
                for _ in range(3 if pv else 0):
                    if pv: a(pv.pop(0))
            if tile == 1 and s in (2, 5, 8, 11, 14): wo_load()
    while pv: a(pv.pop(0))
    stamp(5)
    a("v_max3_f32 v108, v100, v101, v102\nv_max3_f32 v109, v103, v104, v105\nv_max3_f32 v108, v108, v106, v107\nv_max_f32 v108, v108, v109")
    swap16("v_max_f32", ["v108"], ["v109"]); swap32("v_max_f32", ["v108"], ["v109"])
    a("ds_write_b32 v27, v108")
    a("s_waitcnt lgkmcnt(0)\ns_barrier")
    a(f"ds_read_b128 v[108:111], v28\ns_waitcnt lgkmcnt(0)")
    a("v_max3_f32 v108, v108, v109, v110\nv_max_f32 v108, v108, v111")
    for k in range(8): a(f"v_sub_f32 v{100+k}, v{100+k}, v108")
    for k in range(8): a(f"v_exp_f32 v{100+k}, v{100+k}")
    a("v_cvt_pk_bf16_f32 v112, v100, v101\nv_cvt_pk_bf16_f32 v113, v102, v103\nv_cvt_pk_bf16_f32 v114, v104, v105\nv_cvt_pk_bf16_f32 v115, v106, v107")
    a("ds_write_b128 v29, v[112:115]")
    a("s_waitcnt lgkmcnt(0)\ns_barrier")
    if opt.get('dbg3'): stamp(10)
    G3G = opt.get('gate3', 0)
    if G3G:
        a(f"s_cmp_eq_u32 {SW}, 0\ns_cbranch_scc0 L_nh3\nv_mov_b32 v21, {TAG}\ns_mov_b64 exec, 1")
        a(f"buffer_store_dword v21, v183, {S_WS}, 0 offen\ns_mov_b64 exec, -1\nL_nh3:")
    for j in range(4): a(f"ds_read_b128 {vr(32+4*j)}, v31 offset:{1024*j}")
    STA = opt.get('stafter', 0)
    STMF = opt.get('stmf', 32)
    def stats_store():
        a(f"s_cmp_eq_u32 {SW}, 0\ns_cbranch_scc0 L_Y_nostat")
        a("v_cndmask_b32 v110, v188, v189, s[8:9]\nv_cndmask_b32 v111, v190, v191, s[8:9]\nv_cndmask_b32 v110, v110, v111, s[10:11]")
        a(f"v_mov_b32 v109, {TAG}\nv_mov_b32 v111, {TAG}")
        a("s_mov_b64 exec, 0x00f0000f")
        a(f"buffer_store_dwordx4 v[108:111], v26, {S_WS}, s72 offen sc1")
        a("s_mov_b64 exec, -1\nL_Y_nostat:")
    def o_pack(hf, k):
        o = 160+4*(2*hf+k); L = []
        for e in range(4):
            d = 120+4*(4*hf+e)
            L.append(f"v_cndmask_b32 v{d+k}, v{d+k}, v{d+2+k}, s[12:13]")
        d0 = 120+16*hf
        L += [f"v_cvt_pk_bf16_f32 v{o}, v{d0+k}, v{d0+4+k}", f"v_mov_b32 v{o+1}, {TAG}", f"v_cvt_pk_bf16_f32 v{o+2}, v{d0+8+k}, v{d0+12+k}", f"v_mov_b32 v{o+3}, {TAG}"]
        L.append(f"buffer_store_dwordx4 {vr(o)}, v30, {S_WS}, {'s73' if k == 0 else 's71x'} offen offset:{256*hf} sc1")
        return L
    if OSPLIT:
        a("s_add_u32 s75, s73, 65536")
        a("s_waitcnt lgkmcnt(0)")
        for j in range(4): mfma(vr(188), vr(32+4*j), vr(184), j == 0)
        pend = []
        n = 0
        for t in range(8):
            for j in range(4):
                mfma(vr(120+4*t), vr(32+4*j), ar(128+(t*4+j)*4), j == 0)
                n += 1
                if n in (4, 10, 16, 22, 28): wo_load()
                if n == 18:
                    stats_store()
                    pend = [x.replace('s71x', 's75') for x in o_pack(0, 0) + o_pack(0, 1)]
                if n > 18:
                    for _ in range(2):
                        if pend: a(pend.pop(0))
        while pend: a(pend.pop(0))
        for k in range(2):
            for x in o_pack(1, k): a(x.replace('s71x', 's75'))
    else:
        if STMF < 32:
            for j in range(4):
                a(f"s_waitcnt lgkmcnt({3-j})")
                mfma(vr(188), vr(32+4*j), vr(184), j == 0)
        for j in range(4):
            if STMF >= 32:
                a(f"s_waitcnt lgkmcnt({3-j})")
                mfma(vr(188), vr(32+4*j), vr(184), j == 0)
            for t in range(8):
                if j*8+t == STMF: stats_store()
                mfma(vr(120+4*t), vr(32+4*j), ar(128+(t*4+j)*4), j == 0)
                if (j*8+t) in (3, 9, 15, 21, 27): wo_load()
        if STMF < 32: STA = -1
        for r in range(4):
            if r == STA: stats_store()
            o = 160+4*r
            for e in range(4): a(f"v_cndmask_b32 v{120+4*e+r}, v{120+4*e+r}, v{136+4*e+r}, s[12:13]")
            a(f"v_cvt_pk_bf16_f32 v{o}, v{120+r}, v{124+r}\nv_mov_b32 v{o+1}, {TAG}\nv_cvt_pk_bf16_f32 v{o+2}, v{128+r}, v{132+r}\nv_mov_b32 v{o+3}, {TAG}")
            a(f"buffer_store_dwordx4 {vr(o)}, v30, {S_WS}, s73 offen sc1")
            if r < 3: a("s_add_u32 s73, s73, 65536")
        if STA == 4: stats_store()
    stamp(6)
    if YPRE: m_coef_unpack()
    a("s_add_u32 s65, s74, 16")
    a(f"s_waitcnt vmcnt({2 if OSPLIT else 4})")
    wo_slice_dma("s74", 0)
    a("s_cmp_lt_u32 s74, 4\ns_cbranch_scc0 L_Y_one")
    wo_slice_dma("s65", 32768)
    a("L_Y_one:")
    rewarm("y")
    if not YPRE:
        m_coef_loads()
        tail_prefetch()
        s5_addresses()
    a("s_waitcnt vmcnt(0)")
    wo_slice_frags(0, 0)
    a("s_cmp_lt_u32 s74, 4\ns_cbranch_scc0 L_Y_one2")
    wo_slice_frags(32768, 32)
    a("L_Y_one2:")
    if not YPRE: m_coef_unpack()
    stamp(7)
    a.c("================= S5: out[32u..32u+31] over the 4 heads of this XCD group (wave = head)")
    a(f"s_add_u32 s68, s101, {CPB-CP}")
    a("s_waitcnt lgkmcnt(0)")
    poll_begin("L_p4", ("s66", "s101", "s68"))
    G4D = opt.get('g4dense', 1)
    def g4_loads(fl):
        if G4D:
            a(f"buffer_load_dwordx4 v[140:143], v240, {S_WS}, s66 offen {fl}\nbuffer_load_dwordx4 v[144:147], v240, {S_WS}, s66 offen offset:1024 {fl}")
        else:
            for dq in range(4):
                a(f"buffer_load_dwordx4 {vr(100+8*dq)}, v240, {S_WS}, s66 offen offset:{512*dq} {fl}")
                a(f"buffer_load_dwordx4 {vr(104+8*dq)}, v240, {S_WS}, s66 offen offset:{512*dq+256} {fl}")
    dual_loads("L_p4", g4_loads)
    a("s_waitcnt vmcnt(0)")
    tagcheck("v14", ["v141", "v143", "v145", "v147"] if G4D else [f"v{100+8*dq+k}" for dq in range(4) for k in (1,3,5,7)])
    poll_end("L_p4", "v14")
    stamp(8)
    if G4D:
        a("v_mov_b32 v141, v142\nv_mov_b32 v145, v146")
        a("ds_write_b64 v236, v[140:141]\nds_write_b64 v236, v[144:145] offset:512")
        for dq in range(4): a(f"ds_read_b128 {vr(100+8*dq)}, v235 offset:{256*dq}")
        a("s_waitcnt lgkmcnt(0)")
    else:
        for dq in range(4):
            r = 100+8*dq
            a(f"v_mov_b32 v{r+1}, v{r+2}\nv_mov_b32 v{r+2}, v{r+4}\nv_mov_b32 v{r+3}, v{r+6}")
    a("v_cmp_eq_u32 vcc, 1, v4")
    def unit_mm(a0, d0, lds_off):
        for dq in range(4):
            for tt in range(2):
                mfma(vr(d0+4*tt), vr(100+8*dq), ar(a0+(tt*4+dq)*4), dq == 0)
        a(f"v_pk_add_f32 v[{d0}:{d0+1}], v[{d0}:{d0+1}], v[{d0+2}:{d0+3}]\nv_pk_add_f32 v[{d0+4}:{d0+5}], v[{d0+4}:{d0+5}], v[{d0+6}:{d0+7}]")
        a(f"v_add_f32 v{d0}, v{d0}, v{d0+1}\nv_add_f32 v{d0+4}, v{d0+4}, v{d0+5}")
        a(f"v_cndmask_b32 v{d0}, v{d0}, v{d0+4}, vcc")
        a(f"s_mov_b32 exec_hi, 0\nds_write_b32 v241, v{d0} offset:{lds_off}\ns_mov_b64 exec, -1")
    unit_mm(0, 156, 0)
    a("s_cmp_lt_u32 s74, 4\ns_cbranch_scc0 L_Y_one3")
    unit_mm(32, 148, 512)
    a("L_Y_one3:")
    a("s_waitcnt lgkmcnt(0)\ns_barrier")
    a(f"s_cmp_eq_u32 {SW}, 0\ns_cbranch_scc1 L_Y_pub\ns_cmp_eq_u32 {SW}, 1\ns_cbranch_scc0 L_M\ns_cmp_lt_u32 s74, 4\ns_cbranch_scc0 L_M")
    a(f"v_add_u32 v242, 512, v242\nv_add_u32 v243, {16*128}, v243\nv_add_u32 v244, 64, v244")
    a("L_Y_pub:")
    a("ds_read_b32 v136, v242\nds_read_b32 v137, v242 offset:128\nds_read_b32 v138, v242 offset:256\nds_read_b32 v139, v242 offset:384")
    a("s_waitcnt lgkmcnt(0)")
    a("v_pk_add_f32 v[136:137], v[136:137], v[138:139]\nv_add_f32 v136, v136, v137")
    a("v_mov_b32_dpp v137, v136 row_shl:1 row_mask:0xf bank_mask:0xf")
    a(f"v_cvt_pk_bf16_f32 v138, v136, v137\nv_mov_b32 v139, {TAG}")
    a("s_mov_b32 exec_lo, 0x55555555\ns_mov_b32 exec_hi, 0")
    a(f"buffer_store_dwordx2 v[138:139], v243, {S_WS}, 0 offen sc1")
    if opt.get('gate', 1):
        a("s_mov_b64 exec, 1")
        a(f"buffer_store_dword v139, v244, {S_WS}, 0 offen")
    a("s_mov_b64 exec, -1")

    a.c("================= M stage")
    a("L_M:")
    a("s_mul_i32 s64, s2, 3\ns_cmp_ge_u32 s64, 640\ns_cbranch_scc1 L_fin")
    a(f"v_mov_b32 v144, {f2u(C0):#x}\nv_mov_b32 v145, {f2u(C0):#x}")
    for k in range(3): a(f"v_mov_b32 v{146+2*k}, 0\nv_mov_b32 v{147+2*k}, 0")
    a(f"v_add_u32 v15, s64, v1\nv_min_u32 v15, 639, v15\nv_lshlrev_b32 v15, 2, v15\nv_add_u32 v15, {HB}, v15")
    a("v_mov_b32 v132, 0\nv_mov_b32 v133, 0")
    a(f"s_cmp_eq_u32 {SW}, 3\ns_cbranch_scc1 L_M_wait")
    a(f"v_lshlrev_b32 v13, 4, v0\ns_mov_b32 s66, {XP}\ns_mov_b32 s67, {XP+5120}\ns_mov_b32 s68, {XP+10240}\ns_mov_b32 s69, {XP+15360}")
    a("s_mov_b32 s63, 0xffff0000")
    a("v_lshlrev_b32 v136, 16, v246\nv_and_b32 v137, s63, v246\nv_lshlrev_b32 v138, 16, v247\nv_and_b32 v139, s63, v247")
    a(f"v_add_u32 v17, {HB}, v13\ns_lshl_b32 s62, {SW}, 3\ns_add_u32 s62, s62, {SB}\nv_mov_b32 v19, s62")
    a(f"s_cmp_eq_u32 {SW}, 2\ns_cselect_b32 s72, 0, -1\ns_mov_b32 exec_hi, s72")
    stamp(9)
    if opt.get('gate', 1):
        a(f"s_mov_b64 s[98:99], exec\ns_mov_b64 exec, 0xfffff\ns_and_b32 s62, s2, 7\ns_lshl_b32 s62, s62, 7\ns_add_u32 s62, s62, {UF}\nv_lshlrev_b32 v14, 2, v1\nv_mov_b32 v16, v14\ns_mov_b32 s61, 0")
        a("L_g6:")
        a(f"buffer_load_dword v100, v16, {S_WS}, s62 offen {LF}\ns_waitcnt vmcnt(0)")
        a(f"v_cmp_ne_u32 vcc, {TAG}, v100\ns_add_u32 s61, s61, 1\ns_cmp_gt_u32 s61, {opt.get('gatemax', 64)}\ns_cbranch_scc1 L_g6x\ns_cbranch_vccnz L_g6")
        a("L_g6x:")
        for _ in range(opt.get('gextra', 0)):
            a(f"buffer_load_dword v100, v16, {S_WS}, s62 offen {LF}\ns_waitcnt vmcnt(0)")
        a("s_mov_b64 exec, s[98:99]")
    MPROG = opt.get('mprog', 1)
    def m_row_add(xx):
        b = 100+4*xx
        a(f"v_lshlrev_b32 v140, 16, v{b}\nv_and_b32 v141, s63, v{b}\nv_lshlrev_b32 v142, 16, v{b+2}\nv_and_b32 v143, s63, v{b+2}")
        a("v_pk_add_f32 v[136:137], v[136:137], v[140:141]\nv_pk_add_f32 v[138:139], v[138:139], v[142:143]")
    if MPROG:
        for xx in range(8):
            a(f"buffer_load_dwordx4 {vr(100+4*xx)}, v13, {S_WS}, s{66+(xx>>1)} offen offset:{2560*(xx&1)} sc1")
        for xx in range(8):
            a(f"s_waitcnt vmcnt({7-xx})")
            if xx == 0: a(f"v_xor_b32 v14, {TAG}, v101")
            else: a(f"v_bitop3_b32 v14, v{100+4*xx+1}, {TAG}, v14 bitop3:0xbe")
            a(f"v_bitop3_b32 v14, v{100+4*xx+3}, {TAG}, v14 bitop3:0xbe")
            m_row_add(xx)
        a("v_cmp_ne_u32 vcc, 0, v14\ns_cbranch_vccz L_M_sum\ns_and_b64 exec, exec, vcc")
    poll_begin("L_p6")
    for xx in range(8):
        a(f"buffer_load_dwordx4 {vr(100+4*xx)}, v13, {S_WS}, s{66+(xx>>1)} offen offset:{2560*(xx&1)} sc1")
    a("s_waitcnt vmcnt(0)")
    tagcheck("v14", [f"v{100+4*xx+k}" for xx in range(8) for k in (1,3)])
    poll_end("L_p6", "v14")
    a("s_mov_b32 exec_hi, s72")
    a("v_lshlrev_b32 v136, 16, v246\nv_and_b32 v137, s63, v246\nv_lshlrev_b32 v138, 16, v247\nv_and_b32 v139, s63, v247")
    for xx in range(8): m_row_add(xx)
    a("L_M_sum:")
    stamp(10)
    a("v_cvt_pk_bf16_f32 v140, v136, v137\nv_cvt_pk_bf16_f32 v141, v138, v139")
    a("v_lshlrev_b32 v136, 16, v140\nv_and_b32 v137, s63, v140\nv_lshlrev_b32 v138, 16, v141\nv_and_b32 v139, s63, v141")
    a("ds_write_b128 v17, v[136:139]")
    for k in range(4): a(f"v_subrev_f32 v{140+k}, s3, v{136+k}")
    a("v_add_f32 v132, v140, v141\nv_mul_f32 v133, v140, v140\nv_add_f32 v134, v142, v143\nv_fmac_f32 v133, v141, v141\nv_add_f32 v132, v132, v134\nv_fmac_f32 v133, v142, v142\nv_fmac_f32 v133, v143, v143")
    a("s_mov_b64 exec, -1")
    wave_allreduce("v_add_f32", ["v132", "v133"], ["v134", "v135"])
    a("s_mov_b64 exec, 1\nds_write_b64 v19, v[132:133]\ns_mov_b64 exec, -1")
    a(f"s_or_b32 s62, s2, {SW}\ns_cmp_eq_u32 s62, 0\ns_cbranch_scc0 L_noep")
    a(f"v_mov_b32 v16, {TAG}\ns_mov_b64 exec, 1\nbuffer_store_dword v16, v18, {S_WS}, 0 offen sc1\ns_mov_b64 exec, -1")
    a("L_noep:")
    a("s_waitcnt lgkmcnt(0)")
    a("L_M_wait:")
    a("s_barrier")
    a(f"v_mov_b32 v16, {SB}\nds_read_b128 v[120:123], v16\nds_read_b64 v[124:125], v16 offset:16\nds_read_b32 v136, v15\ns_mov_b32 s62, {f2u(1.0/640):#x}\ns_waitcnt lgkmcnt(0)")
    a("v_add_f32 v130, v120, v122\nv_add_f32 v132, v121, v123\nv_add_f32 v130, v130, v124\nv_add_f32 v132, v132, v125")
    a("v_mul_f32 v130, s62, v130\nv_mul_f32 v132, s62, v132")
    a("v_fma_f32 v132, -v130, v130, v132")
    a("v_add_f32 v130, s3, v130")
    a(f"v_add_f32 v133, {f2u(EPS):#x}, v132\nv_rsq_f32 v133, v133")
    a("v_sub_f32 v140, v136, v130")
    a("v_mul_f32 v134, v133, v133\nv_mul_f32 v134, v134, v132")
    a(f"v_add_f32 v134, {f2u(EPS):#x}, v134\nv_rsq_f32 v134, v134\nv_mul_f32 v140, v140, v133\ns_mov_b32 s62, {f2u(C1):#x}\nv_mul_f32 v140, v140, v134")
    for k in range(3):
        a(f"v_readlane_b32 s{70+2*k}, v140, {k}")
    for k in range(3):
        t = f"s[{70+2*k}:{71+2*k}]"
        U = lambda i: f"v[{152+2*i}:{153+2*i}]"
        Z = lambda i: f"v[{160+2*i}:{161+2*i}]"
        for i in range(4): a(f"v_pk_fma_f32 {U(i)}, v[{210+2*i}:{211+2*i}], {t}, v[{218+2*i}:{219+2*i}] op_sel_hi:[1,0,1]")
        for i in range(4): a(f"v_pk_mul_f32 {Z(i)}, {U(i)}, {U(i)}")
        for i in range(4): a(f"v_pk_fma_f32 {Z(i)}, {Z(i)}, s[62:63], v[144:145] op_sel_hi:[1,0,1]")
        for i in range(4): a(f"v_pk_mul_f32 {Z(i)}, {Z(i)}, {U(i)}")
        for i in range(4): a(f"v_exp_f32 v{160+2*i}, v{160+2*i}\nv_exp_f32 v{161+2*i}, v{161+2*i}")
        for i in range(4): a(f"v_pk_mul_f32 {U(i)}, {U(i)}, v[{226+2*i}:{227+2*i}]")
        for i in range(4): a(f"v_pk_add_f32 {Z(i)}, {Z(i)}, 1.0 op_sel_hi:[1,0]")
        for i in range(4): a(f"v_rcp_f32 v{160+2*i}, v{160+2*i}\nv_rcp_f32 v{161+2*i}, v{161+2*i}")
        for i in range(4): a(f"v_pk_fma_f32 v[{146+2*k}:{147+2*k}], {U(i)}, {Z(i)}, v[{146+2*k}:{147+2*k}]")
    for k in range(3): a(f"v_add_f32 v{146+2*k}, v{146+2*k}, v{147+2*k}")
    wave_allreduce("v_add_f32", ["v146","v148","v150"], ["v147","v149","v151"])
    a(f"s_lshl_b32 s62, {SW}, 4\ns_add_u32 s62, s62, {MRED}\nv_mov_b32 v15, s62\nv_mov_b32 v147, v148\nv_mov_b32 v148, v150")
    a("s_mov_b64 exec, 1\nds_write_b96 v15, v[146:148]\ns_mov_b64 exec, -1")
    a("s_waitcnt lgkmcnt(0)\ns_barrier")
    a(f"s_cmp_eq_u32 {SW}, 0\ns_cbranch_scc0 L_fin")
    a(f"v_lshlrev_b32 v15, 2, v1\nv_add_u32 v15, {MRED}, v15")
    a("ds_read_b32 v100, v15\nds_read_b32 v101, v15 offset:16\nds_read_b32 v102, v15 offset:32\nds_read_b32 v103, v15 offset:48")
    srd(S_T, 26, 1280)
    a("v_add_u32 v15, s64, v1\nv_lshlrev_b32 v16, 1, v15")
    a("v_add_f32 v136, v136, v208")
    a("s_waitcnt lgkmcnt(0)")
    a("v_add_f32 v100, v100, v101\nv_add_f32 v102, v102, v103\nv_add_f32 v100, v100, v102\nv_add_f32 v100, v100, v136")
    a("v_cvt_pk_bf16_f32 v100, v100, v100")
    a("v_cmp_gt_u32 vcc, 640, v15\ns_and_b64 exec, vcc, 7")
    a("s_cbranch_execz L_fin")
    a(f"buffer_store_short v100, v16, {S_T}, 0 offen")
    a("L_fin:")
    if opt.get('pin'):
        a(f"s_waitcnt lgkmcnt(0)\ns_add_u32 s76, s76, {opt['pin']}")
        a("L_pin:\ns_memrealtime s[78:79]\ns_waitcnt lgkmcnt(0)\ns_sub_u32 s80, s78, s76\ns_cmp_lt_i32 s80, 0\ns_cbranch_scc1 L_pin")
    if profile and opt.get('dbgout'):
        stamp(11)
        a("s_mov_b64 exec, -1\ns_waitcnt lgkmcnt(0)")
        srd(S_T, 28, 256)
        a(f"s_cmp_eq_u32 {SW}, 0\ns_cbranch_scc0 L_end")
        a("v_mov_b32 v18, 0\ns_mov_b64 exec, 1")
        a(f"s_not_b32 s62, s76\nv_mov_b32 v15, s62\nbuffer_atomic_umax v15, v18, {S_T}, 0 offen")
        a(f"v_mov_b32 v15, s98\nbuffer_atomic_umax v15, v18, {S_T}, 0 offen offset:44")
        a("s_bitcmp1_b32 s2, 7\ns_cbranch_scc1 L_dy")
        for k in range(1, 9):
            a(f"v_mov_b32 v15, s{76+2*k}\nbuffer_atomic_umax v15, v18, {S_T}, 0 offen offset:{4*k}")
        a(f"v_mov_b32 v15, s{76+2*10}\nbuffer_atomic_umax v15, v18, {S_T}, 0 offen offset:40")
        a(f"v_mov_b32 v15, s{76+2*9}\nbuffer_atomic_umax v15, v18, {S_T}, 0 offen offset:36")
        a("s_branch L_end\nL_dy:")
        for j, k in enumerate((2, 4, 6, 8)):
            a(f"v_mov_b32 v15, s{76+2*k}\nbuffer_atomic_umax v15, v18, {S_T}, 0 offen offset:{48+4*j}")
    elif profile:
        stamp(11)
        a("s_mov_b64 exec, -1\ns_waitcnt lgkmcnt(0)")
        a(f"s_lshl_b32 s62, s2, 2\ns_add_u32 s62, s62, {SW}\ns_lshl_b32 s62, s62, 6\ns_add_u32 s62, s62, {TS}")
        a("v_mov_b32 v18, 0\ns_mov_b64 exec, 1")
        for k in range(12):
            a(f"v_mov_b32 v15, s{76+2*k}\nbuffer_store_dword v15, v18, {S_WS}, s62 offen offset:{4*k}")
        a(f"v_mov_b32 v15, s100\nbuffer_store_dword v15, v18, {S_WS}, s62 offen offset:48")
        a(f"s_getreg_b32 s100, hwreg(HW_REG_XCC_ID)\nv_mov_b32 v15, s100\nbuffer_store_dword v15, v18, {S_WS}, s62 offen offset:52")
        a(f"s_getreg_b32 s100, hwreg(HW_REG_HW_ID)\nv_mov_b32 v15, s100\nbuffer_store_dword v15, v18, {S_WS}, s62 offen offset:56")
    a("L_end:")
    a("s_endpgm")
    a("L_code_end:")
    a(f".set CODE_BYTES, L_code_end - {NAME}")
    a('.section .rodata,"a"\n.p2align 6')
    a(f".amdhsa_kernel {NAME}")
    a("  .amdhsa_next_free_vgpr 512\n  .amdhsa_next_free_sgpr 102\n  .amdhsa_accum_offset 256\n  .amdhsa_group_segment_fixed_size 0\n  .amdhsa_kernarg_size 112\n  .amdhsa_user_sgpr_count 2\n  .amdhsa_user_sgpr_kernarg_segment_ptr 1\n  .amdhsa_system_sgpr_workgroup_id_x 1")
    a(".end_amdhsa_kernel")
    n = a.hazard_pass()
    return a.text(), n

LAYOUT = dict(QG=QG, QA=QA, ST=ST, CP=CP, HG=HG, OUTP=OUTP, OP=OP, TS=TS, XP=XP)
if __name__ == "__main__":
    prof = "prof" in sys.argv[2:]
    opt = {}
    for x in sys.argv[2:]:
        if '=' in x:
            k, v = x.split('='); opt[k] = int(v) if v.lstrip('-').isdigit() else v
    txt, n = gen(profile=prof, opt=opt)
    open(sys.argv[1], "w").write(txt)
    print("auto nops:", n, "lines:", txt.count("\n"), LAYOUT)
```

```python
import sys, math, struct
from asmlib import Asm

NAME = "sequential_preLN__compressed_kv_cla__mixer_token_mlp__decode_kernel"
HEADER = open('sequential_preLN__compressed_kv_cla__mixer_token_mlp__decode.s.ref').read().split('; Override')[0]

def f2u(x): return struct.unpack('<I', struct.pack('<f', x))[0]

QG   = 4096
QA   = QG + 131072
ST   = QA + 65536
CP   = ST + 16384
HG   = CP + 65536
SENT2 = HG + 4096
SENT5 = SENT2 + 16384
QGB  = SENT5 + 16384
CPB  = QGB + 131072
OUTP = CPB + 65536
OUTPB = OUTP + 128*2560
XP   = OUTPB + 128*2560
UF   = XP + 8*2560
YF   = UF + 1024
OP   = (2 << 20) + 4096
TS   = (4 << 20) + 65536
assert YF + 8*128 <= OP
WS_SIZE = 5 << 20
CKV_STRIDE = 1056
QS = 135168; PX = 143616; MX = 147712; LX = 147968; MRED = 148224; MB = 148288
WUK = 0; WUV = 32768; OS = 65536; S1RED = 74752; WX = 82944; RRED = 83456
S1RED_C = 148480
LDS_BYTES = 156672
WO_STRIDE = 1312
GS = 65536
HB = PX; SB = MB; RR = PX + 2560

SCALE = (128 ** -0.5) * math.log2(math.e)
C0 = -2.0 * math.sqrt(2.0 / math.pi) * math.log2(math.e)
C1 = C0 * 0.044715
EPS = 1e-5

S_WS, S_X, S_A, S_B, S_C, S_T = 's[32:35]', 's[36:39]', 's[40:43]', 's[44:47]', 's[48:51]', 's[52:55]'
TAG, SW, SR, SH, SSUB = 's56', 's57', 's58', 's59', 's60'

def gen(profile=False, spin_limit=400000, opt=None):
    opt = opt or {}
    WARM = opt.get('warm', 1)
    STPOS = opt.get('stpos', 1)
    a = Asm()
    NT = " nt" if opt.get('nt', 1) else ""
    LF = opt.get('lflag', 'nt')
    GN = ' nt' if opt.get('gnt', 0) else ''
    SN = ' nt' if opt.get('snt', 0) else ''
    BP = opt.get('bper', 32) - 1
    SMASK = opt.get('smask', 0xfff)
    def stamp(k):
        if profile and (SMASK >> k) & 1:
            assert k < 12
            a(f"s_memrealtime s[{76+2*k}:{77+2*k}]")
    def srd(dst, ptr, size):
        d = int(dst[2:dst.index(':')])
        a(f"s_mov_b32 s{d}, s{ptr}\ns_mov_b32 s{d+1}, s{ptr+1}\ns_mov_b32 s{d+2}, {size}\ns_mov_b32 s{d+3}, 0x00020000")
    DPPS = ("quad_perm:[1,0,3,2]", "quad_perm:[2,3,0,1]", "row_half_mirror", "row_mirror")
    def row_allreduce(op, vs):
        for m in DPPS:
            for v in vs: a(f"{op}_dpp {v}, {v}, {v} {m} row_mask:0xf bank_mask:0xf")
    def swapred(sw, op, vs, ts):
        for v, t in zip(vs, ts): a(f"v_mov_b32 {t}, {v}")
        for v, t in zip(vs, ts): a(f"{sw} {v}, {t}")
        for v, t in zip(vs, ts): a(f"{op} {v}, {v}, {t}")
    def swap16(op, vs, ts): swapred("v_permlane16_swap_b32", op, vs, ts)
    def swap32(op, vs, ts): swapred("v_permlane32_swap_b32", op, vs, ts)
    def wave_allreduce(op, vs, ts):
        row_allreduce(op, vs); swap16(op, vs, ts); swap32(op, vs, ts)
    MASKED = opt.get('masked', 1)
    def poll_begin(name, dual=None):
        a(f"s_mov_b32 s61, 0")
        a(f"{name}:")
        if dual:
            a(f"s_and_b32 s75, s61, {BP}\ns_cmp_eq_u32 s75, {BP}\ns_cselect_b32 {dual[0]}, {dual[2]}, {dual[1]}")
    def poll_end(name, bad):
        a(f"v_cmp_ne_u32 vcc, 0, {bad}")
        a(f"s_add_u32 s61, s61, 1")
        a(f"s_cmp_gt_u32 s61, {spin_limit}")
        a(f"s_cbranch_scc1 {name}_x")
        if MASKED:
            a(f"s_and_b64 exec, exec, vcc")
            a(f"s_cbranch_execnz {name}")
        else:
            a(f"s_cbranch_vccnz {name}")
        a(f"{name}_x:")
        if MASKED: a("s_mov_b64 exec, -1")
        if profile and opt.get('cntfor') == name:
            a("s_mov_b32 s100, s61")
    def tagcheck(bad, tags):
        a(f"v_xor_b32 {bad}, {TAG}, {tags[0]}")
        for t in tags[1:]:
            a(f"v_bitop3_b32 {bad}, {t}, {TAG}, {bad} bitop3:0xbe")
    def mfma(d, A, B, first):
        a(f"v_mfma_f32_16x16x32_bf16 {d}, {A}, {B}, {'0' if first else d}")
    def vr(b, n=4): return f"v[{b}:{b+n-1}]"
    def ar(b, n=4): return f"a[{b}:{b+n-1}]"

    a.lines += [l for l in HEADER.strip().split('\n')]
    a(f"; @launch grid=(256,1,1) block=(256,1,1) lds={LDS_BYTES}")
    a('.amdgcn_target "amdgcn-amd-amdhsa--gfx950"')
    for l in """
One persistent launch, 256 workgroups (one per CU).  Absorbed MLA decode + token mixer, all stages chained through d_ws:
  S1 (all)  q partials      = LN(x) . w_q              rows split 8 ways per head
  S2 (X)    q_abs[h, c]     = q[h] . w_uk[c, h]        (scale and log2(e) folded in)
  S3 (Y)    scores, running max / sum and P.c_kv for 128 keys x 8 heads (MFMA)
  S4 (X)    combine the 32 key splits (true max), ctx partial = ctx_lat . w_uv
  S5 (Y)    out partial for 32 columns over the 4 heads of the workgroup id class (id & 7)
  M  (all)  h = x + out, LN(LN(h)), token MLP for 3 columns per workgroup
X = ids 0..127, Y = ids 128..255.  Hand-offs are 8-byte granules {payload, tag}; tag = (word 0 of d_ws at entry) + 1,
word 0 is set to the tag at the end.  Hand-offs inside one id class are written twice: a plain store (seen quickly when the
class shares an L2) and a write-through copy that consumers probe every 32nd poll, so no placement is assumed.
""".strip().split("\n"): a.c(l)
    a(f".text\n.globl {NAME}\n.p2align 8\n.type {NAME},@function\n{NAME}:")
    WPOS = opt.get('wpos', 0)
    def warm_load():
        a("s_getpc_b64 s[52:53]\nL_pc:\ns_sub_u32 s52, s52, L_pc-%s\ns_subb_u32 s53, s53, 0\nv_lshlrev_b32 v254, 7, v0\ns_mov_b32 s54, CODE_BYTES\ns_mov_b32 s55, 0x00020000" % NAME)
        a("buffer_load_dword v251, v254, s[52:55], 0 offen")
    if WARM and WPOS == 0: warm_load()
    stamp(0)
    if opt.get('pin'): a("s_memrealtime s[76:77]")
    if profile: a("s_mov_b32 s100, 99")
    a("s_cmp_ge_u32 s2, 256\ns_cbranch_scc1 L_end")
    a("s_load_dwordx16 s[4:19], s[0:1], 0\ns_load_dwordx8 s[20:27], s[0:1], 64\ns_load_dwordx4 s[28:31], s[0:1], 96")
    a("v_and_b32 v1, 63, v0\nv_lshrrev_b32 v2, 6, v0\nv_and_b32 v3, 15, v0\nv_bfe_u32 v4, v0, 4, 2")
    a(f"v_readfirstlane_b32 {SW}, v2")
    a(f"s_and_b32 s61, s2, 7\ns_bfe_u32 s62, s2, 0x40003\ns_lshl_b32 {SR}, s61, 4\ns_add_u32 {SR}, {SR}, s62")
    a(f"s_lshr_b32 {SH}, {SR}, 2\ns_and_b32 {SSUB}, {SR}, 3")
    a("v_mov_b32 v18, 0")
    for k in range(240, 245): a(f"v_mov_b32 v{k}, 0")
    a("s_waitcnt lgkmcnt(0)")
    srd(S_WS, 30, WS_SIZE)
    a(f"buffer_load_dword v250, v18, {S_WS}, 0 offen")
    if opt.get('tlbw', 0):
        a(f"s_mov_b32 s62, {2<<20}\ns_mov_b32 s63, {(4<<20)+8192}")
        a(f"buffer_load_dword v255, v18, {S_WS}, s62 offen\nbuffer_load_dword v255, v18, {S_WS}, s63 offen")
    srd(S_X, 4, 1280)
    def m_coef_loads():
        a("v_lshlrev_b32 v17, 2, v0")
        for k, p in enumerate((18, 20, 22)):
            srd(S_T, p, 3456)
            for i in range(4):
                a(f"buffer_load_dword v{196+4*k+i}, v17, {S_T}, 0 offen offset:{1024*i}")
        srd(S_T, 24, 2)
        a(f"buffer_load_ushort v208, v18, {S_T}, 0 offen")
    def m_coef_unpack():
        a("s_mov_b32 s63, 0xffff0000")
        for k in range(3):
            for i in range(4):
                s_ = 196+4*k+i; d = 210+8*k+2*i
                a(f"v_lshlrev_b32 v{d}, 16, v{s_}\nv_and_b32 v{d+1}, s63, v{s_}")
        a("v_lshlrev_b32 v208, 16, v208")
    def rewarm(tagname):
        if not opt.get('rewarm', 0): return 0
        a(f"s_getpc_b64 s[52:53]\nL_pc{tagname}:\ns_mov_b32 s54, L_code_end-L_pc{tagname}\ns_mov_b32 s55, 0x00020000\nv_lshlrev_b32 v254, 7, v0")
        a("buffer_load_dword v251, v254, s[52:55], 0 offen")
        return 1
    def tail_prefetch():
        a(f"v_lshlrev_b32 v245, 3, v0\nbuffer_load_dwordx2 v[246:247], v245, {S_X}, 0 offen")
        if opt.get('gate', 1):
            a(f"s_and_b32 s62, s2, 7\ns_lshl_b32 s62, s62, 7\ns_add_u32 s62, s62, {UF}\nv_lshlrev_b32 v249, 2, v1\nv_and_b32 v249, 127, v249")
            a(f"buffer_load_dword v252, v249, {S_WS}, s62 offen {LF}")
    def wo_slice_dma(su="s74", lds0=0):
        a(f"v_lshrrev_b32 v9, 2, v1\nv_mul_u32_u24 v9, 1280, v9\nv_bfe_u32 v10, v1, 4, 1\nv_lshlrev_b32 v10, 1, v10\nv_and_b32 v11, 3, v1\nv_xor_b32 v10, v10, v11\nv_lshl_add_u32 v9, v10, 4, v9")
        a(f"s_and_b32 s62, s2, 7\ns_lshl_b32 s62, s62, 2\ns_add_u32 s62, s62, {SW}\ns_mul_i32 s62, s62, {128*1280}\ns_lshl_b32 s63, {su}, 6\ns_add_u32 s62, s62, s63\ns_lshl_b32 s63, {SW}, 13\ns_add_u32 s63, s63, {lds0}")
        for k in range(8):
            a(f"s_mov_b32 m0, s63\ns_add_u32 s63, s63, 1024")
            a(f"buffer_load_dwordx4 v9, {S_B}, s62 offen lds")
            if k < 7: a(f"s_add_u32 s62, s62, {16*1280}")
    def wo_slice_frags(lds0=0, a0=0):
        a(f"v_lshrrev_b32 v9, 2, v3\nv_lshl_add_u32 v9, v4, 2, v9\nv_lshlrev_b32 v9, 6, v9\nv_and_b32 v10, 1, v4\nv_lshl_add_u32 v9, v10, 5, v9\nv_and_b32 v10, 3, v3\nv_lshl_add_u32 v9, v10, 3, v9\ns_lshl_b32 s62, {SW}, 13\nv_add_u32 v9, s62, v9\nv_xor_b32 v10, 32, v9")
        for tt in range(2):
            for dq in range(4):
                for uu in range(2):
                    r = a0+(tt*4+dq)*4+2*uu
                    a(f"ds_read_b64_tr_b16 a[{r}:{r+1}], {'v9' if tt == 0 else 'v10'} offset:{lds0+2048*dq+1024*uu}")
    def s5_addresses():
        if opt.get('g4dense', 1):
            a("v_lshlrev_b32 v240, 4, v1")
            a(f"v_lshrrev_b32 v236, 5, v1\nv_lshlrev_b32 v236, 8, v236\nv_bfe_u32 v235, v1, 2, 2\nv_lshl_add_u32 v236, v235, 6, v236\nv_and_b32 v235, 3, v1\nv_lshl_add_u32 v236, v235, 4, v236\nv_bfe_u32 v235, v1, 4, 1\nv_lshl_add_u32 v236, v235, 3, v236")
            a(f"s_lshl_b32 s62, {SW}, 10\ns_add_u32 s62, s62, {GS}\nv_add_u32 v236, s62, v236")
            a(f"v_and_b32 v235, 3, v3\nv_lshlrev_b32 v235, 4, v235\nv_lshl_add_u32 v235, v4, 6, v235\nv_add_u32 v235, s62, v235")
        else:
            a(f"v_and_b32 v240, 3, v3\nv_lshlrev_b32 v240, 4, v240\nv_lshl_add_u32 v240, v4, 6, v240")
        a(f"s_and_b32 s62, s2, 7\ns_lshl_b32 s63, s62, 2\ns_add_u32 s63, s63, {SW}\ns_lshl_b32 s63, s63, 11\ns_add_u32 s101, s63, {CP}")
        a(f"s_mul_i32 s63, s62, 2560\ns_lshl_b32 s65, s74, 7\ns_add_u32 s63, s63, s65\ns_add_u32 s63, s63, {XP}\nv_lshlrev_b32 v243, 2, v1\nv_add_u32 v243, s63, v243")
        a(f"s_lshl_b32 s62, s62, 7\ns_lshl_b32 s63, s74, 2\ns_add_u32 s62, s62, s63\ns_add_u32 s62, s62, {UF}\nv_mov_b32 v244, s62")
        a(f"v_lshlrev_b32 v241, 2, v1\nv_add_u32 v242, {RR}, v241\ns_lshl_b32 s62, {SW}, 7\nv_add_u32 v241, s62, v242")
        if opt.get('ptouch', 0):
            a(f"s_mov_b64 exec, 1\nbuffer_load_dword v252, v243, {S_WS}, 0 offen\nbuffer_load_dword v252, v243, {S_WS}, 0 offen offset:2048\ns_mov_b64 exec, -1")
        if opt.get('prewarm', 1):
            a(f"v_lshlrev_b32 v253, 7, v3\nbuffer_load_dword v252, v253, {S_WS}, s101 offen {LF}")
    def sentinel(base):
        lab = f"L_s{base}"
        a(f"s_cmp_eq_u32 {SW}, 0\ns_cbranch_scc0 {lab}")
        a(f"v_mov_b32 v240, {TAG}\nv_mov_b32 v241, {TAG}\nv_mov_b32 v242, {TAG}\nv_mov_b32 v243, {TAG}\nv_lshlrev_b32 v244, 4, v1")
        a(f"s_lshl_b32 s62, {SR}, 7\ns_add_u32 s62, s62, {base}\ns_mov_b64 exec, 0xff")
        a(f"buffer_store_dwordx4 v[240:243], v244, {S_WS}, s62 offen sc1")
        a(f"s_mov_b64 exec, -1\n{lab}:")

    NW = 1 if WARM else 0
    PWX = 1 if opt.get("prewarm", 1) else 0

    a.c("================= S1: q partials, head h1 = 4*xcd + (idx>>3), rows 80*me..80*me+79, me = idx&7")
    a("s_lshr_b32 s72, s2, 6\ns_and_b32 s73, s2, 7\ns_lshl_b32 s73, s73, 2\ns_add_u32 s72, s72, s73")
    a("s_bfe_u32 s73, s2, 0x30003")
    srd(S_A, 8, 5242880)
    a("v_lshlrev_b32 v5, 2, v1")
    for j in range(5): a(f"buffer_load_dword v{32+j}, v5, {S_X}, 0 offen offset:{256*j}")
    a(f"v_lshrrev_b32 v6, 4, v0\ns_mul_i32 s62, s73, 80\nv_add_u32 v7, s62, v6\nv_lshlrev_b32 v7, 1, v7")
    for i in range(5): a(f"buffer_load_ushort v{40+2*i}, v7, {S_X}, 0 offen offset:{32*i}")
    a("v_lshlrev_b32 v8, 4, v3\nv_lshl_add_u32 v8, v6, 13, v8")
    a(f"s_mul_i32 s61, s73, {80*8192}\ns_lshl_b32 s62, s72, 8\ns_add_u32 s61, s61, s62")
    for i in range(5):
        a(f"buffer_load_dwordx4 {vr(60+4*i)}, v8, {S_A}, s61 offen{NT}")
        if i < 4: a(f"s_add_u32 s61, s61, {16*8192}")
    WL = 1 if (WARM and WPOS == 1) else 0
    if WL: warm_load()
    a("v_xor_b32 v9, v3, v4\nv_lshlrev_b32 v9, 4, v9\nv_lshl_add_u32 v9, v4, 13, v9")
    a("v_xor_b32 v10, 64, v9\nv_xor_b32 v11, 128, v9\nv_xor_b32 v12, 192, v9")
    a("s_bitcmp1_b32 s2, 7\ns_cbranch_scc1 L_nouk")
    srd(S_B, 10, 4194304)
    a(f"s_lshl_b32 s66, {SSUB}, 20\ns_lshl_b32 s63, {SH}, 8\ns_add_u32 s66, s66, s63\ns_lshl_b32 s63, {SW}, 18\ns_add_u32 s66, s66, s63")
    a(f"s_lshl_b32 s67, {SW}, 13")
    NUP = opt.get('nup', 8)
    def uk_dma(k):
        a(f"s_mov_b32 m0, s67\ns_add_u32 s67, s67, 1024")
        a(f"buffer_load_dwordx4 v{9+(k&3)}, {S_B}, s66 offen{NT} lds")
        if k < 7: a(f"s_add_u32 s66, s66, 32768")
    for k in range(NUP): uk_dma(k)
    if PWX:
        a(f"v_and_b32 v253, 31, v1\nv_lshlrev_b32 v253, 7, v253\ns_lshl_b32 s62, {SH}, 12\ns_add_u32 s62, s62, {QG}")
        a(f"buffer_load_dword v252, v253, {S_WS}, s62 offen {LF}")
    PTX = 0
    if opt.get('ptouch', 0):
        a(f"s_lshl_b32 s62, {SR}, 9\ns_lshl_b32 s63, {SW}, 7\ns_add_u32 s62, s62, s63\ns_add_u32 s62, s62, {QA}")
        a(f"buffer_load_dword v252, v18, {S_WS}, s62 offen")
        PTX = 1
    a("s_branch L_s1c")
    a("L_nouk:")
    EARLY = opt.get('early', 0)
    ER = opt.get('erows', 0)
    def ckv_group(q, j0=0, j1=8):
        a(f"s_add_u32 s62, {SSUB}, {q}\ns_and_b32 s62, s62, 3\ns_add_u32 s63, s69, {(q*8+j0)*CKV_STRIDE}\ns_lshl_b32 s62, s62, 13\ns_add_u32 s62, s62, s68")
        if j0: a(f"s_add_u32 s62, s62, {1024*j0}")
        for j in range(j0, j1):
            a(f"s_mov_b32 m0, s63\ns_add_u32 s63, s63, {CKV_STRIDE}")
            a(f"buffer_load_dwordx4 v9, {S_B}, s62 offen{' nt' if opt.get('ntc', 0) == 2 or (opt.get('ntc', 0) == 1 and q == 0) else ''} lds")
            if j < j1-1: a(f"s_add_u32 s62, s62, 1024")
    srd(S_B, 6, 4194304)
    a("v_lshlrev_b32 v9, 4, v1")
    a(f"s_lshl_b32 s68, {SH}, 17\ns_lshl_b32 s63, {SW}, 15\ns_add_u32 s68, s68, s63")
    a(f"s_mul_i32 s69, {SW}, {32*CKV_STRIDE}")
    for q in range(EARLY): ckv_group(q)
    if ER: ckv_group(0, 0, ER)
    a("L_s1c:")
    a(f"v_lshlrev_b32 v241, 9, v6\nv_lshl_add_u32 v241, v3, 4, v241\nv_add_u32 v241, {S1RED_C}, v241")
    a(f"v_and_b32 v14, 31, v1\nv_lshrrev_b32 v242, 3, v14\ns_lshl_b32 s62, {SW}, 2\nv_add_u32 v242, s62, v242\nv_lshlrev_b32 v242, 4, v242")
    a("v_bfe_u32 v16, v1, 2, 1\nv_lshl_add_u32 v242, v16, 8, v242\nv_and_b32 v16, 3, v1\nv_lshl_add_u32 v242, v16, 2, v242\nv_lshrrev_b32 v16, 5, v1\nv_lshl_add_u32 v242, v16, 12, v242")
    a(f"v_add_u32 v242, {S1RED_C}, v242")
    a(f"s_lshl_b32 s70, s72, 12\ns_lshl_b32 s63, {SW}, 10\ns_add_u32 s70, s70, s63\ns_lshl_b32 s63, s73, 4\ns_add_u32 s70, s70, s63\ns_add_u32 s70, s70, {QG}\ns_add_u32 s71, s70, {QGB-QG}")
    a("v_lshrrev_b32 v237, 3, v14\nv_lshlrev_b32 v237, 7, v237\nv_bfe_u32 v16, v14, 2, 1\nv_lshl_add_u32 v237, v16, 9, v237\nv_bfe_u32 v16, v14, 1, 1\nv_lshl_add_u32 v237, v16, 3, v237")
    stamp(1)
    def s1_body(extra, late=()):
        late = list(late)
        a(f"s_waitcnt vmcnt({10+extra})")
        a(f"v_readfirstlane_b32 {TAG}, v250\ns_add_u32 {TAG}, {TAG}, 1")
        a("s_mov_b32 s63, 0xffff0000")
        for j in range(5):
            a(f"v_lshlrev_b32 v{100+2*j}, 16, v{32+j}\nv_and_b32 v{101+2*j}, s63, v{32+j}")
        a("v_readfirstlane_b32 s64, v100")
        for k in range(100, 110): a(f"v_subrev_f32 v{k}, s64, v{k}")
        a("s_mov_b32 s3, s64")
        a("v_add_f32 v110, v100, v101\nv_mul_f32 v112, v100, v100")
        a("v_fmac_f32 v112, v101, v101")
        for k in range(102, 110): a(f"v_add_f32 v110, v110, v{k}\nv_fmac_f32 v112, v{k}, v{k}")
        wave_allreduce("v_add_f32", ["v110", "v112"], ["v111", "v113"])
        a(f"s_mov_b32 s65, {f2u(1.0/640):#x}\nv_mul_f32 v110, s65, v110\nv_mul_f32 v112, s65, v112")
        a(f"v_fma_f32 v112, -v110, v110, v112\nv_add_f32 v112, {f2u(EPS):#x}, v112\nv_rsq_f32 v113, v112")
        a("v_add_f32 v110, s64, v110")
        a(f"s_waitcnt vmcnt({5+extra})")
        for i in range(5):
            r = 40+2*i
            a(f"v_lshlrev_b32 v{r}, 16, v{r}\nv_sub_f32 v{r}, v{r}, v110\nv_mul_f32 v{r}, v{r}, v113")
        for k in range(100, 108): a(f"v_mov_b32 v{k}, 0")
        issued = 0
        for i in range(5):
            a(f"s_waitcnt vmcnt({4-i+extra+issued})")
            w = 60+4*i; l = 40+2*i
            for d in range(4):
                a(f"v_lshlrev_b32 v{108+2*(d&1)}, 16, v{w+d}\nv_and_b32 v{109+2*(d&1)}, s63, v{w+d}")
                a(f"v_pk_fma_f32 v[{100+2*d}:{101+2*d}], v[{108+2*(d&1)}:{109+2*(d&1)}], v[{l}:{l+1}], v[{100+2*d}:{101+2*d}] op_sel_hi:[1,0,1]")
            if late:
                late.pop(0)(); issued += 1
    a("s_bitcmp1_b32 s2, 7\ns_cbranch_scc1 L_s1y")
    s1_body(NUP+PWX+WL+PTX, [(lambda k=k: uk_dma(k)) for k in range(NUP, 8)])
    a("s_branch L_s1r")
    a("L_s1y:")
    s1_body(8*EARLY+WL+ER)
    a("L_s1r:")
    stamp(2)
    MID = opt.get('mid', 0)
    a("ds_write_b128 v241, v[100:103]\nds_write_b128 v241, v[104:107] offset:256")
    if MID:
        a("s_bitcmp1_b32 s2, 7\ns_cbranch_scc0 L_nomid")
        ckv_group(0)
        a("L_nomid:")
    a("s_waitcnt lgkmcnt(0)\ns_barrier")
    for k in range(4): a(f"ds_read2st64_b32 v[{100+2*k}:{101+2*k}], v242 offset0:{4*k} offset1:{4*k+2}")
    a("s_waitcnt lgkmcnt(0)")
    a("v_add_f32 v100, v100, v101\nv_add_f32 v102, v102, v103\nv_add_f32 v104, v104, v105\nv_add_f32 v106, v106, v107")
    a("v_add_f32 v100, v100, v102\nv_add_f32 v104, v104, v106\nv_add_f32 v100, v100, v104")
    swap32("v_add_f32", ["v100"], ["v101"])
    a("v_mov_b32_dpp v101, v100 row_shl:1 row_mask:0xf bank_mask:0xf")
    a(f"v_cvt_pk_bf16_f32 v238, v100, v101\nv_mov_b32 v239, {TAG}")
    a("s_mov_b32 exec_lo, 0x55555555\ns_mov_b32 exec_hi, 0")
    a(f"buffer_store_dwordx2 v[238:239], v237, {S_WS}, s70 offen")
    a("s_bitcmp1_b32 s2, 7\ns_cbranch_scc0 L_Xgo")
    a(f"buffer_store_dwordx2 v[238:239], v237, {S_WS}, s71 offen sc1")
    a("s_mov_b64 exec, -1")
    a("s_branch L_Y")
    a("L_Xgo:")
    a("s_mov_b64 exec, -1")

    a.c("================= X role: S2 (q_abs), S4 (ctx partial), R")
    srd(S_C, 12, 4194304)
    G1E = opt.get('g1early', 1)
    a(f"v_and_b32 v17, 7, v3\nv_lshlrev_b32 v17, 4, v17\nv_lshl_add_u32 v17, v4, 7, v17\ns_lshl_b32 s63, {SH}, 12\ns_add_u32 s63, s63, {QG}\ns_add_u32 s64, s63, {QGB-QG}")
    if G1E:
        a(f"s_waitcnt vmcnt({1+opt.get('g1k', 2)})")
        for s in range(4):
            r = 148+8*s
            a(f"buffer_load_dwordx4 {vr(r)}, v17, {S_WS}, s63 offen offset:{1024*s} {LF}")
            a(f"buffer_load_dwordx4 {vr(r+4)}, v17, {S_WS}, s63 offen offset:{1024*s+512} {LF}")
    a(f"s_lshl_b32 s62, {SW}, 5\nv_add_u32 v13, s62, v3\nv_lshlrev_b32 v13, 8, v13\nv_xor_b32 v14, v3, v4\nv_lshl_add_u32 v13, v14, 4, v13")
    a("v_xor_b32 v14, 64, v13\nv_xor_b32 v15, 128, v13\nv_xor_b32 v16, 192, v13")
    a(f"s_waitcnt vmcnt({9 if G1E else 1})")
    for tile in range(2):
        for s in range(4):
            a(f"ds_read_b128 {vr(116+(tile*4+s)*4)}, v{13+s} offset:{WUK+4096*tile}")
    stamp(3)
    a("v_mov_b32 v13, v17")
    if G1E:
        a("s_waitcnt vmcnt(0)")
        tagcheck("v14", [f"v{148+8*s+k}" for s in range(4) for k in (1,3,5,7)])
        a("s_mov_b32 s61, 0\nv_cmp_ne_u32 vcc, 0, v14\ns_cbranch_vccz L_p1_x")
        if MASKED: a("s_and_b64 exec, exec, vcc")
    def qgb_store():
        a("s_mov_b64 s[78-2:78-1], exec" if False else "s_mov_b64 s[98:99], exec")
        a("s_mov_b32 exec_lo, 0x55555555\ns_mov_b32 exec_hi, 0")
        a(f"buffer_store_dwordx2 v[238:239], v237, {S_WS}, s71 offen sc1")
        a("s_mov_b64 exec, s[98:99]")
    poll_begin("L_p1", ("s62", "s63", "s64"))
    a(f"s_cmp_eq_u32 s61, {BP}\ns_cbranch_scc0 L_p1n")
    qgb_store()
    a("L_p1n:")
    def dual_loads(name, emit):
        a(f"s_cmp_eq_u32 s75, {BP}\ns_cbranch_scc1 {name}_b")
        emit(LF)
        a(f"s_branch {name}_c\n{name}_b:")
        emit("sc1")
        a(f"{name}_c:")
    def g1_loads(fl):
        for s in range(4):
            r = 148+8*s
            a(f"buffer_load_dwordx4 {vr(r)}, v13, {S_WS}, s62 offen offset:{1024*s} {fl}")
            a(f"buffer_load_dwordx4 {vr(r+4)}, v13, {S_WS}, s62 offen offset:{1024*s+512} {fl}")
    dual_loads("L_p1", g1_loads)
    a("s_waitcnt vmcnt(0)")
    tagcheck("v14", [f"v{148+8*s+k}" for s in range(4) for k in (1,3,5,7)])
    poll_end("L_p1", "v14")
    a(f"s_cmp_gt_u32 s61, {BP}\ns_cbranch_scc1 L_p1m")
    qgb_store()
    a("L_p1m:")
    stamp(4)
    if opt.get('sent2', 0): sentinel(SENT2)
    for s in range(4):
        r = 148+8*s
        a(f"v_mov_b32 v{r+1}, v{r+2}\nv_mov_b32 v{r+2}, v{r+4}\nv_mov_b32 v{r+3}, v{r+6}")
    a("s_waitcnt lgkmcnt(0)")
    for s in range(4):
        for tile in range(2):
            mfma(vr(180+4*tile), vr(148+8*s), vr(116+(tile*4+s)*4), s == 0)
    a(f"s_mov_b32 s63, {f2u(SCALE):#x}")
    a("v_lshlrev_b32 v13, 2, v3\nv_lshl_add_u32 v13, v4, 6, v13\nv_cmp_eq_u32 vcc, 1, v4")
    a(f"s_lshl_b32 s62, {SR}, 9\ns_lshl_b32 s64, {SW}, 7\ns_add_u32 s62, s62, s64\ns_add_u32 s62, s62, {QA}")
    a("v_add_f32 v180, v180, v181\nv_add_f32 v184, v184, v185\nv_add_f32 v182, v182, v183\nv_add_f32 v186, v186, v187")
    a("v_add_f32 v180, v180, v182\nv_add_f32 v184, v184, v186")
    swap16("v_add_f32", ["v180", "v184"], ["v181", "v185"])
    a("v_cndmask_b32 v180, v180, v184, vcc\nv_mul_f32 v180, s63, v180")
    a("v_mov_b32_dpp v181, v180 row_shl:1 row_mask:0xf bank_mask:0xf")
    a(f"v_cvt_pk_bf16_f32 v188, v180, v181\nv_mov_b32 v189, {TAG}")
    a("s_mov_b32 exec_lo, 0x55555555\ns_mov_b32 exec_hi, 0")
    a(f"buffer_store_dwordx2 v[188:189], v13, {S_WS}, s62 offen sc1")
    a("s_mov_b64 exec, -1")
    stamp(5)
    a("v_lshrrev_b32 v15, 1, v3\nv_and_b32 v16, 1, v4\nv_lshlrev_b32 v16, 2, v16\nv_xor_b32 v15, v15, v16\nv_lshlrev_b32 v15, 5, v15\nv_and_b32 v16, 1, v0\nv_lshl_add_u32 v15, v16, 4, v15\nv_lshl_add_u32 v15, v4, 13, v15")
    a(f"s_lshl_b32 s62, {SW}, 1\ns_and_b32 s63, s62, 3\ns_lshl_b32 s63, s63, 5\nv_xor_b32 v16, s63, v15\ns_add_u32 s62, s62, 1\ns_and_b32 s63, s62, 3\ns_lshl_b32 s63, s63, 5\nv_xor_b32 v15, s63, v15")
    a(f"s_lshl_b32 s62, {SSUB}, 20\ns_lshl_b32 s63, {SH}, 8\ns_add_u32 s62, s62, s63\ns_lshl_b32 s63, {SW}, 18\ns_add_u32 s62, s62, s63")
    a(f"s_lshl_b32 s63, {SW}, 13\ns_add_u32 s63, s63, {WUV}")
    for k in range(8):
        a(f"s_mov_b32 m0, s63\ns_add_u32 s63, s63, 1024")
        a(f"buffer_load_dwordx4 {'v16' if k < 4 else 'v15'}, {S_C}, s62 offen{NT if opt.get('ntuv', 1) else ''} lds")
        if k < 7: a("s_add_u32 s62, s62, 32768")
    rewarm("x")
    m_coef_loads()
    tail_prefetch()
    a("s_waitcnt vmcnt(0)\ns_barrier")
    a("v_lshrrev_b32 v19, 2, v3\nv_lshl_add_u32 v19, v4, 2, v19")
    a("v_lshrrev_b32 v20, 2, v3\nv_and_b32 v21, 1, v4\nv_lshl_add_u32 v21, v21, 2, v20")
    a(f"s_lshl_b32 s62, {SW}, 1\nv_xor_b32 v21, s62, v21\nv_lshlrev_b32 v21, 5, v21")
    a("v_lshl_add_u32 v20, v20, 4, v4\nv_lshl_add_u32 v20, v20, 8, v21\nv_and_b32 v21, 3, v3\nv_lshl_add_u32 v20, v21, 3, v20\nv_xor_b32 v21, 32, v20")
    for tt in range(2):
        for j in range(4):
            for u in range(2):
                r = 60+(tt*4+j)*4+2*u; tau = 2*j+u
                a(f"ds_read_b64_tr_b16 v[{r}:{r+1}], {'v20' if tt==0 else 'v21'} offset:{WUV+16384*(tau>>2)+1024*(tau&3)}")
    m_coef_unpack()
    a("v_lshlrev_b32 v22, 4, v0\nv_and_b32 v23, 31, v1\nv_lshlrev_b32 v23, 9, v23")
    a(f"s_lshl_b32 s62, {SR}, 14\ns_add_u32 s66, s62, {OP}\ns_add_u32 s67, s66, 4096\ns_add_u32 s68, s66, 8192\ns_add_u32 s69, s66, 12288")
    a(f"s_lshr_b32 s62, {SH}, 3\ns_lshl_b32 s62, s62, 7\ns_and_b32 s63, {SH}, 7\ns_lshl_b32 s63, s63, 4\ns_add_u32 s62, s62, s63\ns_add_u32 s70, s62, {ST}")
    a(f"v_lshrrev_b32 v24, 5, v0\nv_mul_u32_u24 v24, 288, v24\nv_and_b32 v25, 31, v0\nv_lshl_add_u32 v24, v25, 3, v24\nv_add_u32 v24, {OS}, v24")
    a(f"s_lshl_b32 s62, {SW}, 7\ns_add_u32 s71, s62, {WX}\nv_and_b32 v25, 31, v1\nv_lshlrev_b32 v25, 2, v25\nv_add_u32 v25, s71, v25")
    a(f"v_lshlrev_b32 v27, 4, v4\nv_add_u32 v27, s71, v27")
    a(f"v_mul_u32_u24 v28, 288, v19\nv_and_b32 v29, 3, v3\nv_lshl_add_u32 v28, v29, 3, v28\nv_add_u32 v28, {OS}, v28")
    a(f"s_lshl_b32 s72, {SH}, 11\ns_lshl_b32 s63, {SW}, 9\ns_add_u32 s72, s72, s63\ns_lshl_b32 s63, {SSUB}, 4\ns_add_u32 s72, s72, s63\ns_add_u32 s72, s72, {CP}\ns_add_u32 s73, s72, {CPB-CP}")
    a("v_lshrrev_b32 v30, 2, v3\nv_lshlrev_b32 v30, 6, v30\nv_bfe_u32 v14, v3, 1, 1\nv_lshl_add_u32 v30, v14, 3, v30\nv_lshl_add_u32 v30, v4, 8, v30\nv_cmp_eq_u32 s[8:9], 1, v4")
    stamp(6)
    if opt.get('gate3', 0):
        a(f"s_and_b32 s62, s2, 7\ns_lshl_b32 s62, s62, 7\ns_add_u32 s62, s62, {YF}\nv_lshlrev_b32 v16, 2, v1\ns_mov_b64 exec, 0xffff\ns_mov_b32 s61, 0")
        a("L_g3:")
        a(f"buffer_load_dword v100, v16, {S_WS}, s62 offen {LF}\ns_waitcnt vmcnt(0)")
        a(f"v_cmp_ne_u32 vcc, {TAG}, v100\ns_add_u32 s61, s61, 1\ns_cmp_gt_u32 s61, 64\ns_cbranch_scc1 L_g3x\ns_cbranch_vccnz L_g3")
        a("L_g3x:\ns_mov_b64 exec, -1")
    a("s_mov_b32 exec_hi, 0")
    poll_begin("L_p3a")
    a(f"buffer_load_dwordx4 v[116:119], v23, {S_WS}, s70 offen sc1")
    a("s_waitcnt vmcnt(0)")
    tagcheck("v14", ["v117", "v119"])
    poll_end("L_p3a", "v14")
    if opt.get('dbg3'): stamp(10)
    for i in range(4):
        a(f"buffer_load_dwordx4 {vr(100+4*i)}, v22, {S_WS}, s{66+i} offen sc1{GN}")
    a("v_mov_b32 v120, v116")
    row_allreduce("v_max_f32", ["v120"]); swap16("v_max_f32", ["v120"], ["v121"])
    a("v_sub_f32 v116, v116, v120\nv_exp_f32 v116, v116\nv_mul_f32 v118, v116, v118")
    row_allreduce("v_add_f32", ["v118"]); swap16("v_add_f32", ["v118"], ["v121"])
    a("v_rcp_f32 v118, v118\nv_mul_f32 v116, v116, v118")
    a("s_mov_b32 exec_hi, 0\nds_write_b32 v25, v116\ns_mov_b64 exec, -1")
    a("ds_read_b128 v[120:123], v27\nds_read_b128 v[124:127], v27 offset:64")
    a("s_waitcnt vmcnt(0)")
    tagcheck("v14", [f"v{100+4*i+k}" for i in range(4) for k in (1,3)])
    a("v_cmp_ne_u32 vcc, 0, v14\ns_cbranch_vccz L_p3b_x")
    if MASKED: a("s_and_b64 exec, exec, vcc")
    poll_begin("L_p3b")
    for i in range(4):
        a(f"buffer_load_dwordx4 {vr(100+4*i)}, v22, {S_WS}, s{66+i} offen sc1{GN}")
    a("s_waitcnt vmcnt(0)")
    tagcheck("v14", [f"v{100+4*i+k}" for i in range(4) for k in (1,3)])
    poll_end("L_p3b", "v14")
    stamp(7)
    for i in range(4):
        a(f"v_mov_b32 v{101+4*i}, v{102+4*i}\nds_write_b64 v24, v[{100+4*i}:{101+4*i}] offset:{2304*i}")
    a("s_waitcnt lgkmcnt(0)\ns_barrier")
    for t in range(8):
        for u in range(2):
            r = 132+4*t+2*u
            a(f"ds_read_b64_tr_b16 v[{r}:{r+1}], v28 offset:{4608*u+32*t}")
    a("v_cvt_pk_bf16_f32 v128, v120, v121\nv_cvt_pk_bf16_f32 v129, v122, v123\nv_cvt_pk_bf16_f32 v130, v124, v125\nv_cvt_pk_bf16_f32 v131, v126, v127")
    for t in range(8):
        a(f"s_waitcnt lgkmcnt({14-2*t})")
        mfma(vr(164+4*t), vr(132+4*t), vr(128), True)
    for j in range(4):
        d0 = 164+8*j; o = 100+4*j
        a(f"v_cvt_pk_bf16_f32 v{o}, v{d0}, v{d0+1}\nv_cvt_pk_bf16_f32 v{o+1}, v{d0+2}, v{d0+3}\nv_cvt_pk_bf16_f32 v{o+2}, v{d0+4}, v{d0+5}\nv_cvt_pk_bf16_f32 v{o+3}, v{d0+6}, v{d0+7}")
    for j in range(4):
        for tt in range(2):
            mfma(vr(116+4*tt), vr(100+4*j), vr(60+(tt*4+j)*4), j == 0)
    a("v_cndmask_b32 v116, v116, v120, s[8:9]")
    a("v_mov_b32_dpp v117, v116 row_shl:1 row_mask:0xf bank_mask:0xf")
    a(f"v_cvt_pk_bf16_f32 v118, v116, v117\nv_mov_b32 v119, {TAG}")
    a("s_mov_b32 exec_lo, 0x55555555\ns_mov_b32 exec_hi, 0")
    a(f"buffer_store_dwordx2 v[118:119], v30, {S_WS}, s72 offen")
    a(f"buffer_store_dwordx2 v[118:119], v30, {S_WS}, s73 offen sc1")
    a("s_mov_b64 exec, -1")
    stamp(8)
    a("s_branch L_M")

    a.c("================= Y role: S3 (attention), S5 (out partial)")
    a("L_Y:")
    a("v_lshlrev_b32 v5, 4, v1")
    YD = 0
    for q in range(max(EARLY, MID), 4): ckv_group(q, ER if q == 0 else 0, 8)
    stamp(1)
    srd(S_B, 14, 5242880)
    a("s_bfe_u32 s74, s2, 0x40003")
    YPRE = opt.get('ypre', 0)
    PWY = 0
    if YPRE:
        m_coef_loads()
        tail_prefetch()
        s5_addresses()
        PWY = 13 + 1 + (1 if opt.get('gate', 1) else 0) + (1 if opt.get('prewarm', 1) else 0)
    a(f"s_lshl_b32 s62, {SW}, 5\nv_add_u32 v6, s62, v3\nv_mul_u32_u24 v6, {CKV_STRIDE}, v6\nv_lshl_add_u32 v6, v4, 4, v6")
    a("v_lshrrev_b32 v19, 2, v3\nv_lshl_add_u32 v19, v4, 2, v19")
    a(f"v_mul_u32_u24 v7, {CKV_STRIDE}, v19\nv_and_b32 v8, 3, v3\nv_lshl_add_u32 v7, v8, 3, v7\ns_lshl_b32 s62, {SW}, 8\nv_add_u32 v7, s62, v7\nv_add_u32 v8, {64*CKV_STRIDE}, v7")
    a("v_lshlrev_b32 v22, 4, v0")
    a(f"s_lshl_b32 s62, {SSUB}, 14\ns_add_u32 s66, s62, {QA}\ns_add_u32 s67, s66, 4096\ns_add_u32 s68, s66, 8192\ns_add_u32 s69, s66, 12288")
    a(f"v_lshrrev_b32 v24, 7, v0\nv_mul_u32_u24 v24, {CKV_STRIDE}, v24\nv_and_b32 v25, 127, v0\nv_lshl_add_u32 v24, v25, 3, v24\nv_add_u32 v24, {QS}, v24")
    a(f"v_and_b32 v25, 7, v3\nv_mul_u32_u24 v25, {CKV_STRIDE}, v25\nv_lshl_add_u32 v25, v4, 4, v25\nv_add_u32 v25, {QS}, v25")
    a(f"s_lshl_b32 s62, {SW}, 2\ns_add_u32 s62, s62, {MX}\nv_lshlrev_b32 v26, 4, v3\nv_add_u32 v27, s62, v26\nv_add_u32 v28, {MX}, v26")
    a(f"s_lshl_b32 s62, {SW}, 10\ns_add_u32 s62, s62, {PX}\nv_add_u32 v29, s62, v5\nv_add_u32 v31, {PX}, v5")
    for k in range(4): a(f"v_mov_b32 v{184+k}, 0x3f803f80")
    a(f"s_and_b32 s62, s2, 7\ns_lshl_b32 s62, s62, 7\ns_bfe_u32 s63, s2, 0x40003\ns_lshl_b32 s63, s63, 2\ns_add_u32 s62, s62, s63\ns_add_u32 s62, s62, {YF}\nv_mov_b32 v183, s62")
    a("v_and_b32 v21, 1, v3\nv_cmp_eq_u32 s[8:9], 1, v21\nv_and_b32 v21, 2, v3\nv_cmp_eq_u32 s[10:11], 2, v21")
    OSPLIT = opt.get('osplit', 1)
    if OSPLIT:
        a("v_and_b32 v30, 1, v4\nv_lshlrev_b32 v30, 18, v30\nv_lshl_add_u32 v30, v3, 4, v30\nv_lshrrev_b32 v21, 1, v4\nv_lshl_add_u32 v30, v21, 17, v30\nv_cmp_eq_u32 s[12:13], 1, v21")
    else:
        a("v_and_b32 v30, 1, v4\nv_lshlrev_b32 v30, 18, v30\nv_lshl_add_u32 v30, v3, 4, v30\nv_lshrrev_b32 v21, 1, v4\nv_lshl_add_u32 v30, v21, 8, v30\nv_cmp_eq_u32 s[12:13], 1, v21")
    a(f"s_lshl_b32 s73, {SSUB}, 19\ns_lshl_b32 s63, {SW}, 14\ns_add_u32 s73, s73, s63\ns_lshl_b32 s63, {SH}, 9\ns_add_u32 s73, s73, s63\ns_add_u32 s73, s73, {OP}")
    a(f"s_lshl_b32 s72, {SR}, 7\ns_add_u32 s72, s72, {ST}")
    G2E = opt.get('g2early', 1)
    for tile in range(2):
        if tile == 1 and G2E:
            for i in range(4):
                a(f"buffer_load_dwordx4 {vr(100+4*i)}, v22, {S_WS}, s{66+i} offen sc1{GN}")
        a(f"s_waitcnt vmcnt({PWY + (16 if tile == 0 else (4 if G2E else 0))})")
        if tile == 1: stamp(2)
        for s in range(16):
            a(f"ds_read_b128 {ar((tile*16+s)*4)}, v6 offset:{tile*16*CKV_STRIDE+64*s}")
    stamp(3)
    if opt.get('sent2', 0):
        poll_begin("L_p2a")
        a(f"buffer_load_dword v100, v23, {S_WS}, s70 offen sc1")
        a("s_waitcnt vmcnt(0)")
        tagcheck("v14", ["v100"])
        poll_end("L_p2a", "v14")
    if G2E:
        a("s_waitcnt vmcnt(0)")
        tagcheck("v14", [f"v{100+4*i+k}" for i in range(4) for k in (1,3)])
        a("v_cmp_ne_u32 vcc, 0, v14\ns_cbranch_vccz L_p2_x")
        if MASKED: a("s_and_b64 exec, exec, vcc")
    poll_begin("L_p2")
    for i in range(4):
        a(f"buffer_load_dwordx4 {vr(100+4*i)}, v22, {S_WS}, s{66+i} offen sc1{GN}")
    a("s_waitcnt vmcnt(0)")
    tagcheck("v14", [f"v{100+4*i+k}" for i in range(4) for k in (1,3)])
    poll_end("L_p2", "v14")
    stamp(4)
    for i in range(4):
        a(f"v_mov_b32 v{101+4*i}, v{102+4*i}\nds_write_b64 v24, v[{100+4*i}:{101+4*i}] offset:{2*CKV_STRIDE*i}")
    a("s_waitcnt lgkmcnt(0)\ns_barrier")
    for s in range(16):
        a(f"ds_read_b128 {vr(32+4*s)}, v25 offset:{64*s}")
    if opt.get('ptouch', 0):
        a(f"v_lshrrev_b32 v253, 2, v1\nv_lshlrev_b32 v253, 16, v253\nv_and_b32 v252, 3, v1\nv_lshl_add_u32 v253, v252, 7, v253\ns_mov_b32 exec_hi, 0")
        a(f"buffer_load_dword v252, v253, {S_WS}, s73 offen\ns_mov_b64 exec, 1")
        a(f"buffer_load_dword v252, v18, {S_WS}, s72 offen\ns_mov_b64 exec, -1")
    wo_n = [0]
    a(f"s_mul_i32 s71, {SR}, 40960")
    def wo_load():
        i = wo_n[0]; wo_n[0] += 1
        a(f"buffer_load_dwordx4 {vr(192)}, v22, {S_B}, s71 offen{' nt' if opt.get('ntwo', 0) else ''}\ns_add_u32 s71, s71, 4096")
    pv = []
    for t in range(8):
        for j in range(4):
            for u in range(2):
                r = 128+(t*4+j)*4+2*u
                pv.append(f"ds_read_b64_tr_b16 a[{r}:{r+1}], {'v7' if j < 2 else 'v8'} offset:{(32*(j&1)+16*u)*CKV_STRIDE+32*t}")
    for s in range(16):
        if s < 4: a(f"s_waitcnt lgkmcnt({12-4*s})")
        for tile in range(2):
            sidx = s
            mfma(vr(100+4*tile), ar((tile*16+s)*4), vr(32+4*s), s == 0)
            if s >= 3:
                for _ in range(3 if pv else 0):
                    if pv: a(pv.pop(0))
            if tile == 1 and s in (2, 5, 8, 11, 14): wo_load()
    while pv: a(pv.pop(0))
    stamp(5)
    a("v_max3_f32 v108, v100, v101, v102\nv_max3_f32 v109, v103, v104, v105\nv_max3_f32 v108, v108, v106, v107\nv_max_f32 v108, v108, v109")
    swap16("v_max_f32", ["v108"], ["v109"]); swap32("v_max_f32", ["v108"], ["v109"])
    a("ds_write_b32 v27, v108")
    a("s_waitcnt lgkmcnt(0)\ns_barrier")
    a(f"ds_read_b128 v[108:111], v28\ns_waitcnt lgkmcnt(0)")
    a("v_max3_f32 v108, v108, v109, v110\nv_max_f32 v108, v108, v111")
    for k in range(8): a(f"v_sub_f32 v{100+k}, v{100+k}, v108")
    for k in range(8): a(f"v_exp_f32 v{100+k}, v{100+k}")
    a("v_cvt_pk_bf16_f32 v112, v100, v101\nv_cvt_pk_bf16_f32 v113, v102, v103\nv_cvt_pk_bf16_f32 v114, v104, v105\nv_cvt_pk_bf16_f32 v115, v106, v107")
    a("ds_write_b128 v29, v[112:115]")
    a("s_waitcnt lgkmcnt(0)\ns_barrier")
    if opt.get('dbg3'): stamp(10)
    G3G = opt.get('gate3', 0)
    if G3G:
        a(f"s_cmp_eq_u32 {SW}, 0\ns_cbranch_scc0 L_nh3\nv_mov_b32 v21, {TAG}\ns_mov_b64 exec, 1")
        a(f"buffer_store_dword v21, v183, {S_WS}, 0 offen\ns_mov_b64 exec, -1\nL_nh3:")
    for j in range(4): a(f"ds_read_b128 {vr(32+4*j)}, v31 offset:{1024*j}")
    STA = opt.get('stafter', 0)
    STMF = opt.get('stmf', 32)
    def stats_store():
        a(f"s_cmp_eq_u32 {SW}, 0\ns_cbranch_scc0 L_Y_nostat")
        a("v_cndmask_b32 v110, v188, v189, s[8:9]\nv_cndmask_b32 v111, v190, v191, s[8:9]\nv_cndmask_b32 v110, v110, v111, s[10:11]")
        a(f"v_mov_b32 v109, {TAG}\nv_mov_b32 v111, {TAG}")
        a("s_mov_b64 exec, 0x00f0000f")
        a(f"buffer_store_dwordx4 v[108:111], v26, {S_WS}, s72 offen sc1")
        a("s_mov_b64 exec, -1\nL_Y_nostat:")
    def o_pack(hf, k):
        o = 160+4*(2*hf+k); L = []
        for e in range(4):
            d = 120+4*(4*hf+e)
            L.append(f"v_cndmask_b32 v{d+k}, v{d+k}, v{d+2+k}, s[12:13]")
        d0 = 120+16*hf
        L += [f"v_cvt_pk_bf16_f32 v{o}, v{d0+k}, v{d0+4+k}", f"v_mov_b32 v{o+1}, {TAG}", f"v_cvt_pk_bf16_f32 v{o+2}, v{d0+8+k}, v{d0+12+k}", f"v_mov_b32 v{o+3}, {TAG}"]
        L.append(f"buffer_store_dwordx4 {vr(o)}, v30, {S_WS}, {'s73' if k == 0 else 's71x'} offen offset:{256*hf} sc1{SN}")
        return L
    if OSPLIT:
        a("s_add_u32 s75, s73, 65536")
        a("s_waitcnt lgkmcnt(0)")
        for j in range(4): mfma(vr(188), vr(32+4*j), vr(184), j == 0)
        pend = []
        n = 0
        for t in range(8):
            for j in range(4):
                mfma(vr(120+4*t), vr(32+4*j), ar(128+(t*4+j)*4), j == 0)
                n += 1
                if n in (4, 10, 16, 22, 28): wo_load()
                if n == 18:
                    stats_store()
                    pend = [x.replace('s71x', 's75') for x in o_pack(0, 0) + o_pack(0, 1)]
                if n > 18:
                    for _ in range(2):
                        if pend: a(pend.pop(0))
        while pend: a(pend.pop(0))
        for k in range(2):
            for x in o_pack(1, k): a(x.replace('s71x', 's75'))
    else:
        if STMF < 32:
            for j in range(4):
                a(f"s_waitcnt lgkmcnt({3-j})")
                mfma(vr(188), vr(32+4*j), vr(184), j == 0)
        for j in range(4):
            if STMF >= 32:
                a(f"s_waitcnt lgkmcnt({3-j})")
                mfma(vr(188), vr(32+4*j), vr(184), j == 0)
            for t in range(8):
                if j*8+t == STMF: stats_store()
                mfma(vr(120+4*t), vr(32+4*j), ar(128+(t*4+j)*4), j == 0)
                if (j*8+t) in (3, 9, 15, 21, 27): wo_load()
        if STMF < 32: STA = -1
        for r in range(4):
            if r == STA: stats_store()
            o = 160+4*r
            for e in range(4): a(f"v_cndmask_b32 v{120+4*e+r}, v{120+4*e+r}, v{136+4*e+r}, s[12:13]")
            a(f"v_cvt_pk_bf16_f32 v{o}, v{120+r}, v{124+r}\nv_mov_b32 v{o+1}, {TAG}\nv_cvt_pk_bf16_f32 v{o+2}, v{128+r}, v{132+r}\nv_mov_b32 v{o+3}, {TAG}")
            a(f"buffer_store_dwordx4 {vr(o)}, v30, {S_WS}, s73 offen sc1")
            if r < 3: a("s_add_u32 s73, s73, 65536")
        if STA == 4: stats_store()
    stamp(6)
    if YPRE: m_coef_unpack()
    a("s_add_u32 s65, s74, 16")
    a(f"s_waitcnt vmcnt({2 if OSPLIT else 4})")
    wo_slice_dma("s74", 0)
    a("s_cmp_lt_u32 s74, 4\ns_cbranch_scc0 L_Y_one")
    wo_slice_dma("s65", 32768)
    a("L_Y_one:")
    rewarm("y")
    if not YPRE:
        m_coef_loads()
        tail_prefetch()
        s5_addresses()
    a("s_waitcnt vmcnt(0)")
    wo_slice_frags(0, 0)
    a("s_cmp_lt_u32 s74, 4\ns_cbranch_scc0 L_Y_one2")
    wo_slice_frags(32768, 32)
    a("L_Y_one2:")
    if not YPRE: m_coef_unpack()
    stamp(7)
    a.c("================= S5: out[32u..32u+31] over the 4 heads of this XCD group (wave = head)")
    a(f"s_add_u32 s68, s101, {CPB-CP}")
    a("s_waitcnt lgkmcnt(0)")
    poll_begin("L_p4", ("s66", "s101", "s68"))
    G4D = opt.get('g4dense', 1)
    def g4_loads(fl):
        if G4D:
            a(f"buffer_load_dwordx4 v[140:143], v240, {S_WS}, s66 offen {fl}\nbuffer_load_dwordx4 v[144:147], v240, {S_WS}, s66 offen offset:1024 {fl}")
        else:
            for dq in range(4):
                a(f"buffer_load_dwordx4 {vr(100+8*dq)}, v240, {S_WS}, s66 offen offset:{512*dq} {fl}")
                a(f"buffer_load_dwordx4 {vr(104+8*dq)}, v240, {S_WS}, s66 offen offset:{512*dq+256} {fl}")
    dual_loads("L_p4", g4_loads)
    a("s_waitcnt vmcnt(0)")
    tagcheck("v14", ["v141", "v143", "v145", "v147"] if G4D else [f"v{100+8*dq+k}" for dq in range(4) for k in (1,3,5,7)])
    poll_end("L_p4", "v14")
    stamp(8)
    if G4D:
        a("v_mov_b32 v141, v142\nv_mov_b32 v145, v146")
        a("ds_write_b64 v236, v[140:141]\nds_write_b64 v236, v[144:145] offset:512")
        for dq in range(4): a(f"ds_read_b128 {vr(100+8*dq)}, v235 offset:{256*dq}")
        a("s_waitcnt lgkmcnt(0)")
    else:
        for dq in range(4):
            r = 100+8*dq
            a(f"v_mov_b32 v{r+1}, v{r+2}\nv_mov_b32 v{r+2}, v{r+4}\nv_mov_b32 v{r+3}, v{r+6}")
    a("v_cmp_eq_u32 vcc, 1, v4")
    def unit_mm(a0, d0, lds_off):
        for dq in range(4):
            for tt in range(2):
                mfma(vr(d0+4*tt), vr(100+8*dq), ar(a0+(tt*4+dq)*4), dq == 0)
        a(f"v_pk_add_f32 v[{d0}:{d0+1}], v[{d0}:{d0+1}], v[{d0+2}:{d0+3}]\nv_pk_add_f32 v[{d0+4}:{d0+5}], v[{d0+4}:{d0+5}], v[{d0+6}:{d0+7}]")
        a(f"v_add_f32 v{d0}, v{d0}, v{d0+1}\nv_add_f32 v{d0+4}, v{d0+4}, v{d0+5}")
        a(f"v_cndmask_b32 v{d0}, v{d0}, v{d0+4}, vcc")
        a(f"s_mov_b32 exec_hi, 0\nds_write_b32 v241, v{d0} offset:{lds_off}\ns_mov_b64 exec, -1")
    unit_mm(0, 156, 0)
    a("s_cmp_lt_u32 s74, 4\ns_cbranch_scc0 L_Y_one3")
    unit_mm(32, 148, 512)
    a("L_Y_one3:")
    a("s_waitcnt lgkmcnt(0)\ns_barrier")
    a(f"s_cmp_eq_u32 {SW}, 0\ns_cbranch_scc1 L_Y_pub\ns_cmp_eq_u32 {SW}, 1\ns_cbranch_scc0 L_M\ns_cmp_lt_u32 s74, 4\ns_cbranch_scc0 L_M")
    a(f"v_add_u32 v242, 512, v242\nv_add_u32 v243, {16*128}, v243\nv_add_u32 v244, 64, v244")
    a("L_Y_pub:")
    a("ds_read_b32 v136, v242\nds_read_b32 v137, v242 offset:128\nds_read_b32 v138, v242 offset:256\nds_read_b32 v139, v242 offset:384")
    a("s_waitcnt lgkmcnt(0)")
    a("v_pk_add_f32 v[136:137], v[136:137], v[138:139]\nv_add_f32 v136, v136, v137")
    a("v_mov_b32_dpp v137, v136 row_shl:1 row_mask:0xf bank_mask:0xf")
    a(f"v_cvt_pk_bf16_f32 v138, v136, v137\nv_mov_b32 v139, {TAG}")
    a("s_mov_b32 exec_lo, 0x55555555\ns_mov_b32 exec_hi, 0")
    a(f"buffer_store_dwordx2 v[138:139], v243, {S_WS}, 0 offen sc1")
    if opt.get('gate', 1):
        a("s_mov_b64 exec, 1")
        a(f"buffer_store_dword v139, v244, {S_WS}, 0 offen")
    a("s_mov_b64 exec, -1")

    a.c("================= M stage")
    a("L_M:")
    a("s_mul_i32 s64, s2, 3\ns_cmp_ge_u32 s64, 640\ns_cbranch_scc1 L_fin")
    a(f"v_mov_b32 v144, {f2u(C0):#x}\nv_mov_b32 v145, {f2u(C0):#x}")
    for k in range(3): a(f"v_mov_b32 v{146+2*k}, 0\nv_mov_b32 v{147+2*k}, 0")
    a(f"v_add_u32 v15, s64, v1\nv_min_u32 v15, 639, v15\nv_lshlrev_b32 v15, 2, v15\nv_add_u32 v15, {HB}, v15")
    a("v_mov_b32 v132, 0\nv_mov_b32 v133, 0")
    a(f"s_cmp_eq_u32 {SW}, 3\ns_cbranch_scc1 L_M_wait")
    a(f"v_lshlrev_b32 v13, 4, v0\ns_mov_b32 s66, {XP}\ns_mov_b32 s67, {XP+5120}\ns_mov_b32 s68, {XP+10240}\ns_mov_b32 s69, {XP+15360}")
    a("s_mov_b32 s63, 0xffff0000")
    a("v_lshlrev_b32 v136, 16, v246\nv_and_b32 v137, s63, v246\nv_lshlrev_b32 v138, 16, v247\nv_and_b32 v139, s63, v247")
    a(f"v_add_u32 v17, {HB}, v13\ns_lshl_b32 s62, {SW}, 3\ns_add_u32 s62, s62, {SB}\nv_mov_b32 v19, s62")
    a(f"s_cmp_eq_u32 {SW}, 2\ns_cselect_b32 s72, 0, -1\ns_mov_b32 exec_hi, s72")
    stamp(9)
    if opt.get('gate', 1):
        a(f"s_mov_b64 s[98:99], exec\ns_mov_b64 exec, 0xfffff\ns_and_b32 s62, s2, 7\ns_lshl_b32 s62, s62, 7\ns_add_u32 s62, s62, {UF}\nv_lshlrev_b32 v14, 2, v1\nv_mov_b32 v16, v14\ns_mov_b32 s61, 0")
        a("L_g6:")
        a(f"buffer_load_dword v100, v16, {S_WS}, s62 offen {LF}\ns_waitcnt vmcnt(0)")
        a(f"v_cmp_ne_u32 vcc, {TAG}, v100\ns_add_u32 s61, s61, 1\ns_cmp_gt_u32 s61, {opt.get('gatemax', 64)}\ns_cbranch_scc1 L_g6x\ns_cbranch_vccnz L_g6")
        a("L_g6x:")
        for _ in range(opt.get('gextra', 0)):
            a(f"buffer_load_dword v100, v16, {S_WS}, s62 offen {LF}\ns_waitcnt vmcnt(0)")
        a("s_mov_b64 exec, s[98:99]")
    MPROG = opt.get('mprog', 1)
    def m_row_add(xx):
        b = 100+4*xx
        a(f"v_lshlrev_b32 v140, 16, v{b}\nv_and_b32 v141, s63, v{b}\nv_lshlrev_b32 v142, 16, v{b+2}\nv_and_b32 v143, s63, v{b+2}")
        a("v_pk_add_f32 v[136:137], v[136:137], v[140:141]\nv_pk_add_f32 v[138:139], v[138:139], v[142:143]")
    if MPROG:
        for xx in range(8):
            a(f"buffer_load_dwordx4 {vr(100+4*xx)}, v13, {S_WS}, s{66+(xx>>1)} offen offset:{2560*(xx&1)} sc1{GN}")
        for xx in range(8):
            a(f"s_waitcnt vmcnt({7-xx})")
            if xx == 0: a(f"v_xor_b32 v14, {TAG}, v101")
            else: a(f"v_bitop3_b32 v14, v{100+4*xx+1}, {TAG}, v14 bitop3:0xbe")
            a(f"v_bitop3_b32 v14, v{100+4*xx+3}, {TAG}, v14 bitop3:0xbe")
            m_row_add(xx)
        a("v_cmp_ne_u32 vcc, 0, v14\ns_cbranch_vccz L_M_sum\ns_and_b64 exec, exec, vcc")
    poll_begin("L_p6")
    for xx in range(8):
        a(f"buffer_load_dwordx4 {vr(100+4*xx)}, v13, {S_WS}, s{66+(xx>>1)} offen offset:{2560*(xx&1)} sc1{GN}")
    a("s_waitcnt vmcnt(0)")
    tagcheck("v14", [f"v{100+4*xx+k}" for xx in range(8) for k in (1,3)])
    poll_end("L_p6", "v14")
    a("s_mov_b32 exec_hi, s72")
    a("v_lshlrev_b32 v136, 16, v246\nv_and_b32 v137, s63, v246\nv_lshlrev_b32 v138, 16, v247\nv_and_b32 v139, s63, v247")
    for xx in range(8): m_row_add(xx)
    a("L_M_sum:")
    stamp(10)
    a("v_cvt_pk_bf16_f32 v140, v136, v137\nv_cvt_pk_bf16_f32 v141, v138, v139")
    a("v_lshlrev_b32 v136, 16, v140\nv_and_b32 v137, s63, v140\nv_lshlrev_b32 v138, 16, v141\nv_and_b32 v139, s63, v141")
    a("ds_write_b128 v17, v[136:139]")
    for k in range(4): a(f"v_subrev_f32 v{140+k}, s3, v{136+k}")
    a("v_add_f32 v132, v140, v141\nv_mul_f32 v133, v140, v140\nv_add_f32 v134, v142, v143\nv_fmac_f32 v133, v141, v141\nv_add_f32 v132, v132, v134\nv_fmac_f32 v133, v142, v142\nv_fmac_f32 v133, v143, v143")
    a("s_mov_b64 exec, -1")
    wave_allreduce("v_add_f32", ["v132", "v133"], ["v134", "v135"])
    a("s_mov_b64 exec, 1\nds_write_b64 v19, v[132:133]\ns_mov_b64 exec, -1")
    a(f"s_or_b32 s62, s2, {SW}\ns_cmp_eq_u32 s62, 0\ns_cbranch_scc0 L_noep")
    a(f"v_mov_b32 v16, {TAG}\ns_mov_b64 exec, 1\nbuffer_store_dword v16, v18, {S_WS}, 0 offen sc1\ns_mov_b64 exec, -1")
    a("L_noep:")
    a("s_waitcnt lgkmcnt(0)")
    a("L_M_wait:")
    a("s_barrier")
    a(f"v_mov_b32 v16, {SB}\nds_read_b128 v[120:123], v16\nds_read_b64 v[124:125], v16 offset:16\nds_read_b32 v136, v15\ns_mov_b32 s62, {f2u(1.0/640):#x}\ns_waitcnt lgkmcnt(0)")
    a("v_add_f32 v130, v120, v122\nv_add_f32 v132, v121, v123\nv_add_f32 v130, v130, v124\nv_add_f32 v132, v132, v125")
    a("v_mul_f32 v130, s62, v130\nv_mul_f32 v132, s62, v132")
    a("v_fma_f32 v132, -v130, v130, v132")
    a("v_add_f32 v130, s3, v130")
    a(f"v_add_f32 v133, {f2u(EPS):#x}, v132\nv_rsq_f32 v133, v133")
    a("v_sub_f32 v140, v136, v130")
    a("v_mul_f32 v134, v133, v133\nv_mul_f32 v134, v134, v132")
    a(f"v_add_f32 v134, {f2u(EPS):#x}, v134\nv_rsq_f32 v134, v134\nv_mul_f32 v140, v140, v133\ns_mov_b32 s62, {f2u(C1):#x}\nv_mul_f32 v140, v140, v134")
    for k in range(3):
        a(f"v_readlane_b32 s{70+2*k}, v140, {k}")
    for k in range(3):
        t = f"s[{70+2*k}:{71+2*k}]"
        U = lambda i: f"v[{152+2*i}:{153+2*i}]"
        Z = lambda i: f"v[{160+2*i}:{161+2*i}]"
        for i in range(4): a(f"v_pk_fma_f32 {U(i)}, v[{210+2*i}:{211+2*i}], {t}, v[{218+2*i}:{219+2*i}] op_sel_hi:[1,0,1]")
        for i in range(4): a(f"v_pk_mul_f32 {Z(i)}, {U(i)}, {U(i)}")
        for i in range(4): a(f"v_pk_fma_f32 {Z(i)}, {Z(i)}, s[62:63], v[144:145] op_sel_hi:[1,0,1]")
        for i in range(4): a(f"v_pk_mul_f32 {Z(i)}, {Z(i)}, {U(i)}")
        for i in range(4): a(f"v_exp_f32 v{160+2*i}, v{160+2*i}\nv_exp_f32 v{161+2*i}, v{161+2*i}")
        for i in range(4): a(f"v_pk_mul_f32 {U(i)}, {U(i)}, v[{226+2*i}:{227+2*i}]")
        for i in range(4): a(f"v_pk_add_f32 {Z(i)}, {Z(i)}, 1.0 op_sel_hi:[1,0]")
        for i in range(4): a(f"v_rcp_f32 v{160+2*i}, v{160+2*i}\nv_rcp_f32 v{161+2*i}, v{161+2*i}")
        for i in range(4): a(f"v_pk_fma_f32 v[{146+2*k}:{147+2*k}], {U(i)}, {Z(i)}, v[{146+2*k}:{147+2*k}]")
    for k in range(3): a(f"v_add_f32 v{146+2*k}, v{146+2*k}, v{147+2*k}")
    wave_allreduce("v_add_f32", ["v146","v148","v150"], ["v147","v149","v151"])
    a(f"s_lshl_b32 s62, {SW}, 4\ns_add_u32 s62, s62, {MRED}\nv_mov_b32 v15, s62\nv_mov_b32 v147, v148\nv_mov_b32 v148, v150")
    a("s_mov_b64 exec, 1\nds_write_b96 v15, v[146:148]\ns_mov_b64 exec, -1")
    a("s_waitcnt lgkmcnt(0)\ns_barrier")
    a(f"s_cmp_eq_u32 {SW}, 0\ns_cbranch_scc0 L_fin")
    a(f"v_lshlrev_b32 v15, 2, v1\nv_add_u32 v15, {MRED}, v15")
    a("ds_read_b32 v100, v15\nds_read_b32 v101, v15 offset:16\nds_read_b32 v102, v15 offset:32\nds_read_b32 v103, v15 offset:48")
    srd(S_T, 26, 1280)
    a("v_add_u32 v15, s64, v1\nv_lshlrev_b32 v16, 1, v15")
    a("v_add_f32 v136, v136, v208")
    a("s_waitcnt lgkmcnt(0)")
    a("v_add_f32 v100, v100, v101\nv_add_f32 v102, v102, v103\nv_add_f32 v100, v100, v102\nv_add_f32 v100, v100, v136")
    a("v_cvt_pk_bf16_f32 v100, v100, v100")
    a("v_cmp_gt_u32 vcc, 640, v15\ns_and_b64 exec, vcc, 7")
    a("s_cbranch_execz L_fin")
    a(f"buffer_store_short v100, v16, {S_T}, 0 offen")
    a("L_fin:")
    if opt.get('pin'):
        a(f"s_waitcnt lgkmcnt(0)\ns_add_u32 s76, s76, {opt['pin']}")
        a("L_pin:\ns_memrealtime s[78:79]\ns_waitcnt lgkmcnt(0)\ns_sub_u32 s80, s78, s76\ns_cmp_lt_i32 s80, 0\ns_cbranch_scc1 L_pin")
    if profile and opt.get('dbgout'):
        stamp(11)
        a("s_mov_b64 exec, -1\ns_waitcnt lgkmcnt(0)")
        srd(S_T, 28, 256)
        a(f"s_cmp_eq_u32 {SW}, 0\ns_cbranch_scc0 L_end")
        a("v_mov_b32 v18, 0\ns_mov_b64 exec, 1")
        a(f"s_not_b32 s62, s76\nv_mov_b32 v15, s62\nbuffer_atomic_umax v15, v18, {S_T}, 0 offen")
        a(f"v_mov_b32 v15, s98\nbuffer_atomic_umax v15, v18, {S_T}, 0 offen offset:44")
        a("s_bitcmp1_b32 s2, 7\ns_cbranch_scc1 L_dy")
        for k in range(1, 9):
            a(f"v_mov_b32 v15, s{76+2*k}\nbuffer_atomic_umax v15, v18, {S_T}, 0 offen offset:{4*k}")
        a(f"v_mov_b32 v15, s{76+2*10}\nbuffer_atomic_umax v15, v18, {S_T}, 0 offen offset:40")
        a(f"v_mov_b32 v15, s{76+2*9}\nbuffer_atomic_umax v15, v18, {S_T}, 0 offen offset:36")
        a("s_branch L_end\nL_dy:")
        for j, k in enumerate((2, 4, 6, 8)):
            a(f"v_mov_b32 v15, s{76+2*k}\nbuffer_atomic_umax v15, v18, {S_T}, 0 offen offset:{48+4*j}")
    elif profile:
        stamp(11)
        a("s_mov_b64 exec, -1\ns_waitcnt lgkmcnt(0)")
        a(f"s_lshl_b32 s62, s2, 2\ns_add_u32 s62, s62, {SW}\ns_lshl_b32 s62, s62, 6\ns_add_u32 s62, s62, {TS}")
        a("v_mov_b32 v18, 0\ns_mov_b64 exec, 1")
        for k in range(12):
            a(f"v_mov_b32 v15, s{76+2*k}\nbuffer_store_dword v15, v18, {S_WS}, s62 offen offset:{4*k}")
        a(f"v_mov_b32 v15, s100\nbuffer_store_dword v15, v18, {S_WS}, s62 offen offset:48")
        a(f"s_getreg_b32 s100, hwreg(HW_REG_XCC_ID)\nv_mov_b32 v15, s100\nbuffer_store_dword v15, v18, {S_WS}, s62 offen offset:52")
        a(f"s_getreg_b32 s100, hwreg(HW_REG_HW_ID)\nv_mov_b32 v15, s100\nbuffer_store_dword v15, v18, {S_WS}, s62 offen offset:56")
    a("L_end:")
    a("s_endpgm")
    a("L_code_end:")
    a(f".set CODE_BYTES, L_code_end - {NAME}")
    a('.section .rodata,"a"\n.p2align 6')
    a(f".amdhsa_kernel {NAME}")
    a("  .amdhsa_next_free_vgpr 512\n  .amdhsa_next_free_sgpr 102\n  .amdhsa_accum_offset 256\n  .amdhsa_group_segment_fixed_size 0\n  .amdhsa_kernarg_size 112\n  .amdhsa_user_sgpr_count 2\n  .amdhsa_user_sgpr_kernarg_segment_ptr 1\n  .amdhsa_system_sgpr_workgroup_id_x 1")
    a(".end_amdhsa_kernel")
    n = a.hazard_pass()
    return a.text(), n

LAYOUT = dict(QG=QG, QA=QA, ST=ST, CP=CP, HG=HG, OUTP=OUTP, OP=OP, TS=TS, XP=XP)
if __name__ == "__main__":
    prof = "prof" in sys.argv[2:]
    opt = {}
    for x in sys.argv[2:]:
        if '=' in x:
            k, v = x.split('='); opt[k] = int(v) if v.lstrip('-').isdigit() else v
    txt, n = gen(profile=prof, opt=opt)
    open(sys.argv[1], "w").write(txt)
    print("auto nops:", n, "lines:", txt.count("\n"), LAYOUT)
```

```python
import sys, math, struct
from asmlib import Asm

NAME = "sequential_preLN__compressed_kv_cla__mixer_token_mlp__decode_kernel"
HEADER = open('sequential_preLN__compressed_kv_cla__mixer_token_mlp__decode.s.ref').read().split('; Override')[0]

def f2u(x): return struct.unpack('<I', struct.pack('<f', x))[0]

QG   = 4096
QA   = QG + 131072
ST   = QA + 65536
CP   = ST + 16384
HG   = CP + 65536
SENT2 = HG + 4096
SENT5 = SENT2 + 16384
QGB  = SENT5 + 16384
CPB  = QGB + 131072
OUTP = CPB + 65536
OUTPB = OUTP + 128*2560
XP   = OUTPB + 128*2560
UF   = XP + 8*2560
YF   = UF + 1024
OP   = (2 << 20) + 4096
TS   = (4 << 20) + 65536
assert YF + 8*128 <= OP
WS_SIZE = 5 << 20
CKV_STRIDE = 1056
QS = 135168; PX = 143616; MX = 147712; LX = 147968; MRED = 148224; MB = 148288
WUK = 0; WUV = 32768; OS = 65536; S1RED = 74752; WX = 82944; RRED = 83456
S1RED_C = 148480
LDS_BYTES = 156672
WO_STRIDE = 1312
GS = 65536
HB = PX; SB = MB; RR = PX + 2560

SCALE = (128 ** -0.5) * math.log2(math.e)
C0 = -2.0 * math.sqrt(2.0 / math.pi) * math.log2(math.e)
C1 = C0 * 0.044715
EPS = 1e-5

S_WS, S_X, S_A, S_B, S_C, S_T = 's[32:35]', 's[36:39]', 's[40:43]', 's[44:47]', 's[48:51]', 's[52:55]'
TAG, SW, SR, SH, SSUB = 's56', 's57', 's58', 's59', 's60'

def gen(profile=False, spin_limit=400000, opt=None):
    opt = opt or {}
    WARM = opt.get('warm', 1)
    STPOS = opt.get('stpos', 1)
    a = Asm()
    NT = " nt" if opt.get('nt', 1) else ""
    LF = opt.get('lflag', 'nt')
    GN = ' nt' if opt.get('gnt', 0) else ''
    SN = ' nt' if opt.get('snt', 0) else ''
    BP = opt.get('bper', 32) - 1
    SMASK = opt.get('smask', 0xfff)
    def stamp(k):
        if profile and (SMASK >> k) & 1:
            assert k < 12
            a(f"s_memrealtime s[{76+2*k}:{77+2*k}]")
    def srd(dst, ptr, size):
        d = int(dst[2:dst.index(':')])
        a(f"s_mov_b32 s{d}, s{ptr}\ns_mov_b32 s{d+1}, s{ptr+1}\ns_mov_b32 s{d+2}, {size}\ns_mov_b32 s{d+3}, 0x00020000")
    DPPS = ("quad_perm:[1,0,3,2]", "quad_perm:[2,3,0,1]", "row_half_mirror", "row_mirror")
    def row_allreduce(op, vs):
        for m in DPPS:
            for v in vs: a(f"{op}_dpp {v}, {v}, {v} {m} row_mask:0xf bank_mask:0xf")
    def swapred(sw, op, vs, ts):
        for v, t in zip(vs, ts): a(f"v_mov_b32 {t}, {v}")
        for v, t in zip(vs, ts): a(f"{sw} {v}, {t}")
        for v, t in zip(vs, ts): a(f"{op} {v}, {v}, {t}")
    def swap16(op, vs, ts): swapred("v_permlane16_swap_b32", op, vs, ts)
    def swap32(op, vs, ts): swapred("v_permlane32_swap_b32", op, vs, ts)
    def wave_allreduce(op, vs, ts):
        row_allreduce(op, vs); swap16(op, vs, ts); swap32(op, vs, ts)
    MASKED = opt.get('masked', 1)
    def poll_begin(name, dual=None):
        a(f"s_mov_b32 s61, 0")
        a(f"{name}:")
        if dual:
            a(f"s_and_b32 s75, s61, {BP}\ns_cmp_eq_u32 s75, {BP}\ns_cselect_b32 {dual[0]}, {dual[2]}, {dual[1]}")
    def poll_end(name, bad):
        a(f"v_cmp_ne_u32 vcc, 0, {bad}")
        a(f"s_add_u32 s61, s61, 1")
        a(f"s_cmp_gt_u32 s61, {spin_limit}")
        a(f"s_cbranch_scc1 {name}_x")
        if MASKED:
            a(f"s_and_b64 exec, exec, vcc")
            a(f"s_cbranch_execnz {name}")
        else:
            a(f"s_cbranch_vccnz {name}")
        a(f"{name}_x:")
        if MASKED: a("s_mov_b64 exec, -1")
        if profile and opt.get('cntfor') == name:
            a("s_mov_b32 s100, s61")
    def tagcheck(bad, tags):
        a(f"v_xor_b32 {bad}, {TAG}, {tags[0]}")
        for t in tags[1:]:
            a(f"v_bitop3_b32 {bad}, {t}, {TAG}, {bad} bitop3:0xbe")
    def mfma(d, A, B, first):
        a(f"v_mfma_f32_16x16x32_bf16 {d}, {A}, {B}, {'0' if first else d}")
    def vr(b, n=4): return f"v[{b}:{b+n-1}]"
    def ar(b, n=4): return f"a[{b}:{b+n-1}]"

    a.lines += [l for l in HEADER.strip().split('\n')]
    a(f"; @launch grid=(256,1,1) block=(256,1,1) lds={LDS_BYTES}")
    a('.amdgcn_target "amdgcn-amd-amdhsa--gfx950"')
    for l in """
One persistent launch, 256 workgroups (one per CU).  Absorbed MLA decode + token mixer, all stages chained through d_ws:
  S1 (all)  q partials      = LN(x) . w_q              rows split 8 ways per head
  S2 (X)    q_abs[h, c]     = q[h] . w_uk[c, h]        (scale and log2(e) folded in)
  S3 (Y)    scores, running max / sum and P.c_kv for 128 keys x 8 heads (MFMA)
  S4 (X)    combine the 32 key splits (true max), ctx partial = ctx_lat . w_uv
  S5 (Y)    out partial for 32 columns over the 4 heads of the workgroup id class (id & 7)
  M  (all)  h = x + out, LN(LN(h)), token MLP for 3 columns per workgroup
X = ids 0..127, Y = ids 128..255.  Hand-offs are 8-byte granules {payload, tag}; tag = (word 0 of d_ws at entry) + 1,
word 0 is set to the tag at the end.  Hand-offs inside one id class are written twice: a plain store (seen quickly when the
class shares an L2) and a write-through copy that consumers probe every 32nd poll, so no placement is assumed.
""".strip().split("\n"): a.c(l)
    a(f".text\n.globl {NAME}\n.p2align 8\n.type {NAME},@function\n{NAME}:")
    WPOS = opt.get('wpos', 0)
    def warm_load():
        a("s_getpc_b64 s[52:53]\nL_pc:\ns_sub_u32 s52, s52, L_pc-%s\ns_subb_u32 s53, s53, 0\nv_lshlrev_b32 v254, 7, v0\ns_mov_b32 s54, CODE_BYTES\ns_mov_b32 s55, 0x00020000" % NAME)
        a("buffer_load_dword v251, v254, s[52:55], 0 offen")
    if WARM and WPOS == 0: warm_load()
    stamp(0)
    if opt.get('pin'): a("s_memrealtime s[76:77]")
    if profile: a("s_mov_b32 s100, 99")
    a("s_cmp_ge_u32 s2, 256\ns_cbranch_scc1 L_end")
    a("s_load_dwordx16 s[4:19], s[0:1], 0\ns_load_dwordx8 s[20:27], s[0:1], 64\ns_load_dwordx4 s[28:31], s[0:1], 96")
    a("v_and_b32 v1, 63, v0\nv_lshrrev_b32 v2, 6, v0\nv_and_b32 v3, 15, v0\nv_bfe_u32 v4, v0, 4, 2")
    a(f"v_readfirstlane_b32 {SW}, v2")
    a(f"s_and_b32 s61, s2, 7\ns_bfe_u32 s62, s2, 0x40003\ns_lshl_b32 {SR}, s61, 4\ns_add_u32 {SR}, {SR}, s62")
    a(f"s_lshr_b32 {SH}, {SR}, 2\ns_and_b32 {SSUB}, {SR}, 3")
    a("v_mov_b32 v18, 0")
    for k in range(240, 245): a(f"v_mov_b32 v{k}, 0")
    a("s_waitcnt lgkmcnt(0)")
    srd(S_WS, 30, WS_SIZE)
    a(f"buffer_load_dword v250, v18, {S_WS}, 0 offen")
    if opt.get('tlbw', 0):
        a(f"s_mov_b32 s62, {2<<20}\ns_mov_b32 s63, {(4<<20)+8192}")
        a(f"buffer_load_dword v255, v18, {S_WS}, s62 offen\nbuffer_load_dword v255, v18, {S_WS}, s63 offen")
    srd(S_X, 4, 1280)
    def m_coef_loads():
        a("v_lshlrev_b32 v17, 2, v0")
        for k, p in enumerate((18, 20, 22)):
            srd(S_T, p, 3456)
            for i in range(4):
                a(f"buffer_load_dword v{196+4*k+i}, v17, {S_T}, 0 offen offset:{1024*i}")
        srd(S_T, 24, 2)
        a(f"buffer_load_ushort v208, v18, {S_T}, 0 offen")
    def m_coef_unpack():
        a("s_mov_b32 s63, 0xffff0000")
        for k in range(3):
            for i in range(4):
                s_ = 196+4*k+i; d = 210+8*k+2*i
                a(f"v_lshlrev_b32 v{d}, 16, v{s_}\nv_and_b32 v{d+1}, s63, v{s_}")
        a("v_lshlrev_b32 v208, 16, v208")
    def rewarm(tagname):
        if not opt.get('rewarm', 0): return 0
        a(f"s_getpc_b64 s[52:53]\nL_pc{tagname}:\ns_mov_b32 s54, L_code_end-L_pc{tagname}\ns_mov_b32 s55, 0x00020000\nv_lshlrev_b32 v254, 7, v0")
        a("buffer_load_dword v251, v254, s[52:55], 0 offen")
        return 1
    def tail_prefetch():
        a(f"v_lshlrev_b32 v245, 3, v0\nbuffer_load_dwordx2 v[246:247], v245, {S_X}, 0 offen")
        if opt.get('gate', 1):
            a(f"s_and_b32 s62, s2, 7\ns_lshl_b32 s62, s62, 7\ns_add_u32 s62, s62, {UF}\nv_lshlrev_b32 v249, 2, v1\nv_and_b32 v249, 127, v249")
            a(f"buffer_load_dword v252, v249, {S_WS}, s62 offen {LF}")
    def wo_slice_dma(su="s74", lds0=0):
        a(f"v_lshrrev_b32 v9, 2, v1\nv_mul_u32_u24 v9, 1280, v9\nv_bfe_u32 v10, v1, 4, 1\nv_lshlrev_b32 v10, 1, v10\nv_and_b32 v11, 3, v1\nv_xor_b32 v10, v10, v11\nv_lshl_add_u32 v9, v10, 4, v9")
        a(f"s_and_b32 s62, s2, 7\ns_lshl_b32 s62, s62, 2\ns_add_u32 s62, s62, {SW}\ns_mul_i32 s62, s62, {128*1280}\ns_lshl_b32 s63, {su}, 6\ns_add_u32 s62, s62, s63\ns_lshl_b32 s63, {SW}, 13\ns_add_u32 s63, s63, {lds0}")
        for k in range(8):
            a(f"s_mov_b32 m0, s63\ns_add_u32 s63, s63, 1024")
            a(f"buffer_load_dwordx4 v9, {S_B}, s62 offen lds")
            if k < 7: a(f"s_add_u32 s62, s62, {16*1280}")
    def wo_slice_frags(lds0=0, a0=0):
        a(f"v_lshrrev_b32 v9, 2, v3\nv_lshl_add_u32 v9, v4, 2, v9\nv_lshlrev_b32 v9, 6, v9\nv_and_b32 v10, 1, v4\nv_lshl_add_u32 v9, v10, 5, v9\nv_and_b32 v10, 3, v3\nv_lshl_add_u32 v9, v10, 3, v9\ns_lshl_b32 s62, {SW}, 13\nv_add_u32 v9, s62, v9\nv_xor_b32 v10, 32, v9")
        for tt in range(2):
            for dq in range(4):
                for uu in range(2):
                    r = a0+(tt*4+dq)*4+2*uu
                    a(f"ds_read_b64_tr_b16 a[{r}:{r+1}], {'v9' if tt == 0 else 'v10'} offset:{lds0+2048*dq+1024*uu}")
    def s5_addresses():
        if opt.get('g4dense', 1):
            a("v_lshlrev_b32 v240, 4, v1")
            a(f"v_lshrrev_b32 v236, 5, v1\nv_lshlrev_b32 v236, 8, v236\nv_bfe_u32 v235, v1, 2, 2\nv_lshl_add_u32 v236, v235, 6, v236\nv_and_b32 v235, 3, v1\nv_lshl_add_u32 v236, v235, 4, v236\nv_bfe_u32 v235, v1, 4, 1\nv_lshl_add_u32 v236, v235, 3, v236")
            a(f"s_lshl_b32 s62, {SW}, 10\ns_add_u32 s62, s62, {GS}\nv_add_u32 v236, s62, v236")
            a(f"v_and_b32 v235, 3, v3\nv_lshlrev_b32 v235, 4, v235\nv_lshl_add_u32 v235, v4, 6, v235\nv_add_u32 v235, s62, v235")
        else:
            a(f"v_and_b32 v240, 3, v3\nv_lshlrev_b32 v240, 4, v240\nv_lshl_add_u32 v240, v4, 6, v240")
        a(f"s_and_b32 s62, s2, 7\ns_lshl_b32 s63, s62, 2\ns_add_u32 s63, s63, {SW}\ns_lshl_b32 s63, s63, 11\ns_add_u32 s101, s63, {CP}")
        a(f"s_mul_i32 s63, s62, 2560\ns_lshl_b32 s65, s74, 7\ns_add_u32 s63, s63, s65\ns_add_u32 s63, s63, {XP}\nv_lshlrev_b32 v243, 2, v1\nv_add_u32 v243, s63, v243")
        a(f"s_lshl_b32 s62, s62, 7\ns_lshl_b32 s63, s74, 2\ns_add_u32 s62, s62, s63\ns_add_u32 s62, s62, {UF}\nv_mov_b32 v244, s62")
        a(f"v_lshlrev_b32 v241, 2, v1\nv_add_u32 v242, {RR}, v241\ns_lshl_b32 s62, {SW}, 7\nv_add_u32 v241, s62, v242")
        if opt.get('ptouch', 0):
            a(f"s_mov_b64 exec, 1\nbuffer_load_dword v252, v243, {S_WS}, 0 offen\nbuffer_load_dword v252, v243, {S_WS}, 0 offen offset:2048\ns_mov_b64 exec, -1")
        if opt.get('prewarm', 1):
            a(f"v_lshlrev_b32 v253, 7, v3\nbuffer_load_dword v252, v253, {S_WS}, s101 offen {LF}")
    def sentinel(base):
        lab = f"L_s{base}"
        a(f"s_cmp_eq_u32 {SW}, 0\ns_cbranch_scc0 {lab}")
        a(f"v_mov_b32 v240, {TAG}\nv_mov_b32 v241, {TAG}\nv_mov_b32 v242, {TAG}\nv_mov_b32 v243, {TAG}\nv_lshlrev_b32 v244, 4, v1")
        a(f"s_lshl_b32 s62, {SR}, 7\ns_add_u32 s62, s62, {base}\ns_mov_b64 exec, 0xff")
        a(f"buffer_store_dwordx4 v[240:243], v244, {S_WS}, s62 offen sc1")
        a(f"s_mov_b64 exec, -1\n{lab}:")

    NW = 1 if WARM else 0
    PWX = 1 if opt.get("prewarm", 1) else 0

    a.c("================= S1: q partials, head h1 = 4*xcd + (idx>>3), rows 80*me..80*me+79, me = idx&7")
    a("s_lshr_b32 s72, s2, 6\ns_and_b32 s73, s2, 7\ns_lshl_b32 s73, s73, 2\ns_add_u32 s72, s72, s73")
    a("s_bfe_u32 s73, s2, 0x30003")
    srd(S_A, 8, 5242880)
    a("v_lshlrev_b32 v5, 2, v1")
    for j in range(5): a(f"buffer_load_dword v{32+j}, v5, {S_X}, 0 offen offset:{256*j}")
    a(f"v_lshrrev_b32 v6, 4, v0\ns_mul_i32 s62, s73, 80\nv_add_u32 v7, s62, v6\nv_lshlrev_b32 v7, 1, v7")
    for i in range(5): a(f"buffer_load_ushort v{40+2*i}, v7, {S_X}, 0 offen offset:{32*i}")
    a("v_lshlrev_b32 v8, 4, v3\nv_lshl_add_u32 v8, v6, 13, v8")
    a(f"s_mul_i32 s61, s73, {80*8192}\ns_lshl_b32 s62, s72, 8\ns_add_u32 s61, s61, s62")
    for i in range(5):
        a(f"buffer_load_dwordx4 {vr(60+4*i)}, v8, {S_A}, s61 offen{NT}")
        if i < 4: a(f"s_add_u32 s61, s61, {16*8192}")
    WL = 1 if (WARM and WPOS == 1) else 0
    if WL: warm_load()
    a("v_xor_b32 v9, v3, v4\nv_lshlrev_b32 v9, 4, v9\nv_lshl_add_u32 v9, v4, 13, v9")
    a("v_xor_b32 v10, 64, v9\nv_xor_b32 v11, 128, v9\nv_xor_b32 v12, 192, v9")
    a("s_bitcmp1_b32 s2, 7\ns_cbranch_scc1 L_nouk")
    srd(S_B, 10, 4194304)
    a(f"s_lshl_b32 s66, {SSUB}, 20\ns_lshl_b32 s63, {SH}, 8\ns_add_u32 s66, s66, s63\ns_lshl_b32 s63, {SW}, 18\ns_add_u32 s66, s66, s63")
    a(f"s_lshl_b32 s67, {SW}, 13")
    NUP = opt.get('nup', 8)
    def uk_dma(k):
        a(f"s_mov_b32 m0, s67\ns_add_u32 s67, s67, 1024")
        a(f"buffer_load_dwordx4 v{9+(k&3)}, {S_B}, s66 offen{NT} lds")
        if k < 7: a(f"s_add_u32 s66, s66, 32768")
    for k in range(NUP): uk_dma(k)
    if PWX:
        a(f"v_and_b32 v253, 31, v1\nv_lshlrev_b32 v253, 7, v253\ns_lshl_b32 s62, {SH}, 12\ns_add_u32 s62, s62, {QG}")
        a(f"buffer_load_dword v252, v253, {S_WS}, s62 offen {LF}")
    PTX = 0
    if opt.get('ptouch', 0):
        a(f"s_lshl_b32 s62, {SR}, 9\ns_lshl_b32 s63, {SW}, 7\ns_add_u32 s62, s62, s63\ns_add_u32 s62, s62, {QA}")
        a(f"buffer_load_dword v252, v18, {S_WS}, s62 offen")
        PTX = 1
    a("s_branch L_s1c")
    a("L_nouk:")
    EARLY = opt.get('early', 0)
    ER = opt.get('erows', 0)
    def ckv_group(q, j0=0, j1=8):
        a(f"s_add_u32 s62, {SSUB}, {q}\ns_and_b32 s62, s62, 3\ns_add_u32 s63, s69, {(q*8+j0)*CKV_STRIDE}\ns_lshl_b32 s62, s62, 13\ns_add_u32 s62, s62, s68")
        if j0: a(f"s_add_u32 s62, s62, {1024*j0}")
        for j in range(j0, j1):
            a(f"s_mov_b32 m0, s63\ns_add_u32 s63, s63, {CKV_STRIDE}")
            a(f"buffer_load_dwordx4 v9, {S_B}, s62 offen{' nt' if opt.get('ntc', 0) == 2 or (opt.get('ntc', 0) == 1 and q == 0) else ''} lds")
            if j < j1-1: a(f"s_add_u32 s62, s62, 1024")
    srd(S_B, 6, 4194304)
    a("v_lshlrev_b32 v9, 4, v1")
    a(f"s_lshl_b32 s68, {SH}, 17\ns_lshl_b32 s63, {SW}, 15\ns_add_u32 s68, s68, s63")
    a(f"s_mul_i32 s69, {SW}, {32*CKV_STRIDE}")
    for q in range(EARLY): ckv_group(q)
    if ER: ckv_group(0, 0, ER)
    a("L_s1c:")
    a(f"v_lshlrev_b32 v241, 9, v6\nv_lshl_add_u32 v241, v3, 4, v241\nv_add_u32 v241, {S1RED_C}, v241")
    a(f"v_and_b32 v14, 31, v1\nv_lshrrev_b32 v242, 3, v14\ns_lshl_b32 s62, {SW}, 2\nv_add_u32 v242, s62, v242\nv_lshlrev_b32 v242, 4, v242")
    a("v_bfe_u32 v16, v1, 2, 1\nv_lshl_add_u32 v242, v16, 8, v242\nv_and_b32 v16, 3, v1\nv_lshl_add_u32 v242, v16, 2, v242\nv_lshrrev_b32 v16, 5, v1\nv_lshl_add_u32 v242, v16, 12, v242")
    a(f"v_add_u32 v242, {S1RED_C}, v242")
    a(f"s_lshl_b32 s70, s72, 12\ns_lshl_b32 s63, {SW}, 10\ns_add_u32 s70, s70, s63\ns_lshl_b32 s63, s73, 4\ns_add_u32 s70, s70, s63\ns_add_u32 s70, s70, {QG}\ns_add_u32 s71, s70, {QGB-QG}")
    a("v_lshrrev_b32 v237, 3, v14\nv_lshlrev_b32 v237, 7, v237\nv_bfe_u32 v16, v14, 2, 1\nv_lshl_add_u32 v237, v16, 9, v237\nv_bfe_u32 v16, v14, 1, 1\nv_lshl_add_u32 v237, v16, 3, v237")
    stamp(1)
    def s1_body(extra, late=()):
        late = list(late)
        a(f"s_waitcnt vmcnt({10+extra})")
        a(f"v_readfirstlane_b32 {TAG}, v250\ns_add_u32 {TAG}, {TAG}, 1")
        a("s_mov_b32 s63, 0xffff0000")
        for j in range(5):
            a(f"v_lshlrev_b32 v{100+2*j}, 16, v{32+j}\nv_and_b32 v{101+2*j}, s63, v{32+j}")
        a("v_readfirstlane_b32 s64, v100")
        for k in range(100, 110): a(f"v_subrev_f32 v{k}, s64, v{k}")
        a("s_mov_b32 s3, s64")
        a("v_add_f32 v110, v100, v101\nv_mul_f32 v112, v100, v100")
        a("v_fmac_f32 v112, v101, v101")
        for k in range(102, 110): a(f"v_add_f32 v110, v110, v{k}\nv_fmac_f32 v112, v{k}, v{k}")
        wave_allreduce("v_add_f32", ["v110", "v112"], ["v111", "v113"])
        a(f"s_mov_b32 s65, {f2u(1.0/640):#x}\nv_mul_f32 v110, s65, v110\nv_mul_f32 v112, s65, v112")
        a(f"v_fma_f32 v112, -v110, v110, v112\nv_add_f32 v112, {f2u(EPS):#x}, v112\nv_rsq_f32 v113, v112")
        a("v_add_f32 v110, s64, v110")
        a(f"s_waitcnt vmcnt({5+extra})")
        for i in range(5):
            r = 40+2*i
            a(f"v_lshlrev_b32 v{r}, 16, v{r}\nv_sub_f32 v{r}, v{r}, v110\nv_mul_f32 v{r}, v{r}, v113")
        for k in range(100, 108): a(f"v_mov_b32 v{k}, 0")
        issued = 0
        for i in range(5):
            a(f"s_waitcnt vmcnt({4-i+extra+issued})")
            w = 60+4*i; l = 40+2*i
            for d in range(4):
                a(f"v_lshlrev_b32 v{108+2*(d&1)}, 16, v{w+d}\nv_and_b32 v{109+2*(d&1)}, s63, v{w+d}")
                a(f"v_pk_fma_f32 v[{100+2*d}:{101+2*d}], v[{108+2*(d&1)}:{109+2*(d&1)}], v[{l}:{l+1}], v[{100+2*d}:{101+2*d}] op_sel_hi:[1,0,1]")
            if late:
                late.pop(0)(); issued += 1
    a("s_bitcmp1_b32 s2, 7\ns_cbranch_scc1 L_s1y")
    s1_body(NUP+PWX+WL+PTX, [(lambda k=k: uk_dma(k)) for k in range(NUP, 8)])
    a("s_branch L_s1r")
    a("L_s1y:")
    s1_body(8*EARLY+WL+ER)
    a("L_s1r:")
    stamp(2)
    MID = opt.get('mid', 0)
    a("ds_write_b128 v241, v[100:103]\nds_write_b128 v241, v[104:107] offset:256")
    if MID:
        a("s_bitcmp1_b32 s2, 7\ns_cbranch_scc0 L_nomid")
        ckv_group(0)
        a("L_nomid:")
    a("s_waitcnt lgkmcnt(0)\ns_barrier")
    for k in range(4): a(f"ds_read2st64_b32 v[{100+2*k}:{101+2*k}], v242 offset0:{4*k} offset1:{4*k+2}")
    a("s_waitcnt lgkmcnt(0)")
    a("v_add_f32 v100, v100, v101\nv_add_f32 v102, v102, v103\nv_add_f32 v104, v104, v105\nv_add_f32 v106, v106, v107")
    a("v_add_f32 v100, v100, v102\nv_add_f32 v104, v104, v106\nv_add_f32 v100, v100, v104")
    swap32("v_add_f32", ["v100"], ["v101"])
    a("v_mov_b32_dpp v101, v100 row_shl:1 row_mask:0xf bank_mask:0xf")
    a(f"v_cvt_pk_bf16_f32 v238, v100, v101\nv_mov_b32 v239, {TAG}")
    a("s_mov_b32 exec_lo, 0x55555555\ns_mov_b32 exec_hi, 0")
    a(f"buffer_store_dwordx2 v[238:239], v237, {S_WS}, s70 offen")
    a("s_bitcmp1_b32 s2, 7\ns_cbranch_scc0 L_Xgo")
    a(f"buffer_store_dwordx2 v[238:239], v237, {S_WS}, s71 offen sc1")
    a("s_mov_b64 exec, -1")
    a("s_branch L_Y")
    a("L_Xgo:")
    a("s_mov_b64 exec, -1")

    a.c("================= X role: S2 (q_abs), S4 (ctx partial), R")
    srd(S_C, 12, 4194304)
    G1E = opt.get('g1early', 1)
    a(f"v_and_b32 v17, 7, v3\nv_lshlrev_b32 v17, 4, v17\nv_lshl_add_u32 v17, v4, 7, v17\ns_lshl_b32 s63, {SH}, 12\ns_add_u32 s63, s63, {QG}\ns_add_u32 s64, s63, {QGB-QG}")
    if G1E:
        a(f"s_waitcnt vmcnt({1+opt.get('g1k', 2)})")
        for s in range(4):
            r = 148+8*s
            a(f"buffer_load_dwordx4 {vr(r)}, v17, {S_WS}, s63 offen offset:{1024*s} {LF}")
            a(f"buffer_load_dwordx4 {vr(r+4)}, v17, {S_WS}, s63 offen offset:{1024*s+512} {LF}")
    a(f"s_lshl_b32 s62, {SW}, 5\nv_add_u32 v13, s62, v3\nv_lshlrev_b32 v13, 8, v13\nv_xor_b32 v14, v3, v4\nv_lshl_add_u32 v13, v14, 4, v13")
    a("v_xor_b32 v14, 64, v13\nv_xor_b32 v15, 128, v13\nv_xor_b32 v16, 192, v13")
    a(f"s_waitcnt vmcnt({9 if G1E else 1})")
    for tile in range(2):
        for s in range(4):
            a(f"ds_read_b128 {vr(116+(tile*4+s)*4)}, v{13+s} offset:{WUK+4096*tile}")
    stamp(3)
    a("v_mov_b32 v13, v17")
    if G1E:
        a("s_waitcnt vmcnt(0)")
        tagcheck("v14", [f"v{148+8*s+k}" for s in range(4) for k in (1,3,5,7)])
        a("s_mov_b32 s61, 0\nv_cmp_ne_u32 vcc, 0, v14\ns_cbranch_vccz L_p1_x")
        if MASKED: a("s_and_b64 exec, exec, vcc")
    def qgb_store():
        a("s_mov_b64 s[78-2:78-1], exec" if False else "s_mov_b64 s[98:99], exec")
        a("s_mov_b32 exec_lo, 0x55555555\ns_mov_b32 exec_hi, 0")
        a(f"buffer_store_dwordx2 v[238:239], v237, {S_WS}, s71 offen sc1")
        a("s_mov_b64 exec, s[98:99]")
    poll_begin("L_p1", ("s62", "s63", "s64"))
    a(f"s_cmp_eq_u32 s61, {BP}\ns_cbranch_scc0 L_p1n")
    qgb_store()
    a("L_p1n:")
    def dual_loads(name, emit):
        a(f"s_cmp_eq_u32 s75, {BP}\ns_cbranch_scc1 {name}_b")
        emit(LF)
        a(f"s_branch {name}_c\n{name}_b:")
        emit("sc1")
        a(f"{name}_c:")
    def g1_loads(fl):
        for s in range(4):
            r = 148+8*s
            a(f"buffer_load_dwordx4 {vr(r)}, v13, {S_WS}, s62 offen offset:{1024*s} {fl}")
            a(f"buffer_load_dwordx4 {vr(r+4)}, v13, {S_WS}, s62 offen offset:{1024*s+512} {fl}")
    dual_loads("L_p1", g1_loads)
    a("s_waitcnt vmcnt(0)")
    tagcheck("v14", [f"v{148+8*s+k}" for s in range(4) for k in (1,3,5,7)])
    poll_end("L_p1", "v14")
    a(f"s_cmp_gt_u32 s61, {BP}\ns_cbranch_scc1 L_p1m")
    qgb_store()
    a("L_p1m:")
    stamp(4)
    if opt.get('sent2', 0): sentinel(SENT2)
    for s in range(4):
        r = 148+8*s
        a(f"v_mov_b32 v{r+1}, v{r+2}\nv_mov_b32 v{r+2}, v{r+4}\nv_mov_b32 v{r+3}, v{r+6}")
    a("s_waitcnt lgkmcnt(0)")
    for s in range(4):
        for tile in range(2):
            mfma(vr(180+4*tile), vr(148+8*s), vr(116+(tile*4+s)*4), s == 0)
    a(f"s_mov_b32 s63, {f2u(SCALE):#x}")
    a("v_lshlrev_b32 v13, 2, v3\nv_lshl_add_u32 v13, v4, 6, v13\nv_cmp_eq_u32 vcc, 1, v4")
    a(f"s_lshl_b32 s62, {SR}, 9\ns_lshl_b32 s64, {SW}, 7\ns_add_u32 s62, s62, s64\ns_add_u32 s62, s62, {QA}")
    a("v_add_f32 v180, v180, v181\nv_add_f32 v184, v184, v185\nv_add_f32 v182, v182, v183\nv_add_f32 v186, v186, v187")
    a("v_add_f32 v180, v180, v182\nv_add_f32 v184, v184, v186")
    swap16("v_add_f32", ["v180", "v184"], ["v181", "v185"])
    a("v_cndmask_b32 v180, v180, v184, vcc\nv_mul_f32 v180, s63, v180")
    a("v_mov_b32_dpp v181, v180 row_shl:1 row_mask:0xf bank_mask:0xf")
    a(f"v_cvt_pk_bf16_f32 v188, v180, v181\nv_mov_b32 v189, {TAG}")
    a("s_mov_b32 exec_lo, 0x55555555\ns_mov_b32 exec_hi, 0")
    a(f"buffer_store_dwordx2 v[188:189], v13, {S_WS}, s62 offen sc1")
    a("s_mov_b64 exec, -1")
    stamp(5)
    a("v_lshrrev_b32 v15, 1, v3\nv_and_b32 v16, 1, v4\nv_lshlrev_b32 v16, 2, v16\nv_xor_b32 v15, v15, v16\nv_lshlrev_b32 v15, 5, v15\nv_and_b32 v16, 1, v0\nv_lshl_add_u32 v15, v16, 4, v15\nv_lshl_add_u32 v15, v4, 13, v15")
    a(f"s_lshl_b32 s62, {SW}, 1\ns_and_b32 s63, s62, 3\ns_lshl_b32 s63, s63, 5\nv_xor_b32 v16, s63, v15\ns_add_u32 s62, s62, 1\ns_and_b32 s63, s62, 3\ns_lshl_b32 s63, s63, 5\nv_xor_b32 v15, s63, v15")
    a(f"s_lshl_b32 s62, {SSUB}, 20\ns_lshl_b32 s63, {SH}, 8\ns_add_u32 s62, s62, s63\ns_lshl_b32 s63, {SW}, 18\ns_add_u32 s62, s62, s63")
    a(f"s_lshl_b32 s63, {SW}, 13\ns_add_u32 s63, s63, {WUV}")
    for k in range(8):
        a(f"s_mov_b32 m0, s63\ns_add_u32 s63, s63, 1024")
        a(f"buffer_load_dwordx4 {'v16' if k < 4 else 'v15'}, {S_C}, s62 offen{NT if opt.get('ntuv', 1) else ''} lds")
        if k < 7: a("s_add_u32 s62, s62, 32768")
    rewarm("x")
    m_coef_loads()
    tail_prefetch()
    a("s_waitcnt vmcnt(0)\ns_barrier")
    a("v_lshrrev_b32 v19, 2, v3\nv_lshl_add_u32 v19, v4, 2, v19")
    a("v_lshrrev_b32 v20, 2, v3\nv_and_b32 v21, 1, v4\nv_lshl_add_u32 v21, v21, 2, v20")
    a(f"s_lshl_b32 s62, {SW}, 1\nv_xor_b32 v21, s62, v21\nv_lshlrev_b32 v21, 5, v21")
    a("v_lshl_add_u32 v20, v20, 4, v4\nv_lshl_add_u32 v20, v20, 8, v21\nv_and_b32 v21, 3, v3\nv_lshl_add_u32 v20, v21, 3, v20\nv_xor_b32 v21, 32, v20")
    for tt in range(2):
        for j in range(4):
            for u in range(2):
                r = 60+(tt*4+j)*4+2*u; tau = 2*j+u
                a(f"ds_read_b64_tr_b16 v[{r}:{r+1}], {'v20' if tt==0 else 'v21'} offset:{WUV+16384*(tau>>2)+1024*(tau&3)}")
    m_coef_unpack()
    a("v_lshlrev_b32 v22, 4, v0\nv_and_b32 v23, 31, v1\nv_lshlrev_b32 v23, 9, v23")
    a(f"s_lshl_b32 s62, {SR}, 14\ns_add_u32 s66, s62, {OP}\ns_add_u32 s67, s66, 4096\ns_add_u32 s68, s66, 8192\ns_add_u32 s69, s66, 12288")
    a(f"s_lshr_b32 s62, {SH}, 3\ns_lshl_b32 s62, s62, 7\ns_and_b32 s63, {SH}, 7\ns_lshl_b32 s63, s63, 4\ns_add_u32 s62, s62, s63\ns_add_u32 s70, s62, {ST}")
    a(f"v_lshrrev_b32 v24, 5, v0\nv_mul_u32_u24 v24, 288, v24\nv_and_b32 v25, 31, v0\nv_lshl_add_u32 v24, v25, 3, v24\nv_add_u32 v24, {OS}, v24")
    a(f"s_lshl_b32 s62, {SW}, 7\ns_add_u32 s71, s62, {WX}\nv_and_b32 v25, 31, v1\nv_lshlrev_b32 v25, 2, v25\nv_add_u32 v25, s71, v25")
    a(f"v_lshlrev_b32 v27, 4, v4\nv_add_u32 v27, s71, v27")
    a(f"v_mul_u32_u24 v28, 288, v19\nv_and_b32 v29, 3, v3\nv_lshl_add_u32 v28, v29, 3, v28\nv_add_u32 v28, {OS}, v28")
    a(f"s_lshl_b32 s72, {SH}, 11\ns_lshl_b32 s63, {SW}, 9\ns_add_u32 s72, s72, s63\ns_lshl_b32 s63, {SSUB}, 4\ns_add_u32 s72, s72, s63\ns_add_u32 s72, s72, {CP}\ns_add_u32 s73, s72, {CPB-CP}")
    a("v_lshrrev_b32 v30, 2, v3\nv_lshlrev_b32 v30, 6, v30\nv_bfe_u32 v14, v3, 1, 1\nv_lshl_add_u32 v30, v14, 3, v30\nv_lshl_add_u32 v30, v4, 8, v30\nv_cmp_eq_u32 s[8:9], 1, v4")
    stamp(6)
    if opt.get('gate3', 0):
        a(f"s_and_b32 s62, s2, 7\ns_lshl_b32 s62, s62, 7\ns_add_u32 s62, s62, {YF}\nv_lshlrev_b32 v16, 2, v1\ns_mov_b64 exec, 0xffff\ns_mov_b32 s61, 0")
        a("L_g3:")
        a(f"buffer_load_dword v100, v16, {S_WS}, s62 offen {LF}\ns_waitcnt vmcnt(0)")
        a(f"v_cmp_ne_u32 vcc, {TAG}, v100\ns_add_u32 s61, s61, 1\ns_cmp_gt_u32 s61, 64\ns_cbranch_scc1 L_g3x\ns_cbranch_vccnz L_g3")
        a("L_g3x:\ns_mov_b64 exec, -1")
    a("s_mov_b32 exec_hi, 0")
    poll_begin("L_p3a")
    a(f"buffer_load_dwordx4 v[116:119], v23, {S_WS}, s70 offen sc1")
    a("s_waitcnt vmcnt(0)")
    tagcheck("v14", ["v117", "v119"])
    poll_end("L_p3a", "v14")
    if opt.get('dbg3'): stamp(10)
    for i in range(4):
        a(f"buffer_load_dwordx4 {vr(100+4*i)}, v22, {S_WS}, s{66+i} offen sc1{GN}")
    a("v_mov_b32 v120, v116")
    row_allreduce("v_max_f32", ["v120"]); swap16("v_max_f32", ["v120"], ["v121"])
    a("v_sub_f32 v116, v116, v120\nv_exp_f32 v116, v116\nv_mul_f32 v118, v116, v118")
    row_allreduce("v_add_f32", ["v118"]); swap16("v_add_f32", ["v118"], ["v121"])
    a("v_rcp_f32 v118, v118\nv_mul_f32 v116, v116, v118")
    a("s_mov_b32 exec_hi, 0\nds_write_b32 v25, v116\ns_mov_b64 exec, -1")
    a("ds_read_b128 v[120:123], v27\nds_read_b128 v[124:127], v27 offset:64")
    a("s_waitcnt vmcnt(0)")
    tagcheck("v14", [f"v{100+4*i+k}" for i in range(4) for k in (1,3)])
    a("v_cmp_ne_u32 vcc, 0, v14\ns_cbranch_vccz L_p3b_x")
    if MASKED: a("s_and_b64 exec, exec, vcc")
    poll_begin("L_p3b")
    for i in range(4):
        a(f"buffer_load_dwordx4 {vr(100+4*i)}, v22, {S_WS}, s{66+i} offen sc1{GN}")
    a("s_waitcnt vmcnt(0)")
    tagcheck("v14", [f"v{100+4*i+k}" for i in range(4) for k in (1,3)])
    poll_end("L_p3b", "v14")
    stamp(7)
    for i in range(4):
        a(f"v_mov_b32 v{101+4*i}, v{102+4*i}\nds_write_b64 v24, v[{100+4*i}:{101+4*i}] offset:{2304*i}")
    a("s_waitcnt lgkmcnt(0)\ns_barrier")
    for t in range(8):
        for u in range(2):
            r = 132+4*t+2*u
            a(f"ds_read_b64_tr_b16 v[{r}:{r+1}], v28 offset:{4608*u+32*t}")
    a("v_cvt_pk_bf16_f32 v128, v120, v121\nv_cvt_pk_bf16_f32 v129, v122, v123\nv_cvt_pk_bf16_f32 v130, v124, v125\nv_cvt_pk_bf16_f32 v131, v126, v127")
    for t in range(8):
        a(f"s_waitcnt lgkmcnt({14-2*t})")
        mfma(vr(164+4*t), vr(132+4*t), vr(128), True)
    for j in range(4):
        d0 = 164+8*j; o = 100+4*j
        a(f"v_cvt_pk_bf16_f32 v{o}, v{d0}, v{d0+1}\nv_cvt_pk_bf16_f32 v{o+1}, v{d0+2}, v{d0+3}\nv_cvt_pk_bf16_f32 v{o+2}, v{d0+4}, v{d0+5}\nv_cvt_pk_bf16_f32 v{o+3}, v{d0+6}, v{d0+7}")
    for j in range(4):
        for tt in range(2):
            mfma(vr(116+4*tt), vr(100+4*j), vr(60+(tt*4+j)*4), j == 0)
    a("v_cndmask_b32 v116, v116, v120, s[8:9]")
    a("v_mov_b32_dpp v117, v116 row_shl:1 row_mask:0xf bank_mask:0xf")
    a(f"v_cvt_pk_bf16_f32 v118, v116, v117\nv_mov_b32 v119, {TAG}")
    a("s_mov_b32 exec_lo, 0x55555555\ns_mov_b32 exec_hi, 0")
    a(f"buffer_store_dwordx2 v[118:119], v30, {S_WS}, s72 offen")
    a(f"buffer_store_dwordx2 v[118:119], v30, {S_WS}, s73 offen sc1")
    a("s_mov_b64 exec, -1")
    stamp(8)
    a("s_branch L_M")

    a.c("================= Y role: S3 (attention), S5 (out partial)")
    a("L_Y:")
    a("v_lshlrev_b32 v5, 4, v1")
    YD = 0
    for q in range(max(EARLY, MID), 4): ckv_group(q, ER if q == 0 else 0, 8)
    stamp(1)
    srd(S_B, 14, 5242880)
    a("s_bfe_u32 s74, s2, 0x40003")
    YPRE = opt.get('ypre', 0)
    PWY = 0
    if YPRE:
        m_coef_loads()
        tail_prefetch()
        s5_addresses()
        PWY = 13 + 1 + (1 if opt.get('gate', 1) else 0) + (1 if opt.get('prewarm', 1) else 0)
    a(f"s_lshl_b32 s62, {SW}, 5\nv_add_u32 v6, s62, v3\nv_mul_u32_u24 v6, {CKV_STRIDE}, v6\nv_lshl_add_u32 v6, v4, 4, v6")
    a("v_lshrrev_b32 v19, 2, v3\nv_lshl_add_u32 v19, v4, 2, v19")
    a(f"v_mul_u32_u24 v7, {CKV_STRIDE}, v19\nv_and_b32 v8, 3, v3\nv_lshl_add_u32 v7, v8, 3, v7\ns_lshl_b32 s62, {SW}, 8\nv_add_u32 v7, s62, v7\nv_add_u32 v8, {64*CKV_STRIDE}, v7")
    a("v_lshlrev_b32 v22, 4, v0")
    a(f"s_lshl_b32 s62, {SSUB}, 14\ns_add_u32 s66, s62, {QA}\ns_add_u32 s67, s66, 4096\ns_add_u32 s68, s66, 8192\ns_add_u32 s69, s66, 12288")
    a(f"v_lshrrev_b32 v24, 7, v0\nv_mul_u32_u24 v24, {CKV_STRIDE}, v24\nv_and_b32 v25, 127, v0\nv_lshl_add_u32 v24, v25, 3, v24\nv_add_u32 v24, {QS}, v24")
    a(f"v_and_b32 v25, 7, v3\nv_mul_u32_u24 v25, {CKV_STRIDE}, v25\nv_lshl_add_u32 v25, v4, 4, v25\nv_add_u32 v25, {QS}, v25")
    a(f"s_lshl_b32 s62, {SW}, 2\ns_add_u32 s62, s62, {MX}\nv_lshlrev_b32 v26, 4, v3\nv_add_u32 v27, s62, v26\nv_add_u32 v28, {MX}, v26")
    a(f"s_lshl_b32 s62, {SW}, 10\ns_add_u32 s62, s62, {PX}\nv_add_u32 v29, s62, v5\nv_add_u32 v31, {PX}, v5")
    for k in range(4): a(f"v_mov_b32 v{184+k}, 0x3f803f80")
    a(f"s_and_b32 s62, s2, 7\ns_lshl_b32 s62, s62, 7\ns_bfe_u32 s63, s2, 0x40003\ns_lshl_b32 s63, s63, 2\ns_add_u32 s62, s62, s63\ns_add_u32 s62, s62, {YF}\nv_mov_b32 v183, s62")
    a("v_and_b32 v21, 1, v3\nv_cmp_eq_u32 s[8:9], 1, v21\nv_and_b32 v21, 2, v3\nv_cmp_eq_u32 s[10:11], 2, v21")
    OSPLIT = opt.get('osplit', 1)
    if OSPLIT:
        a("v_and_b32 v30, 1, v4\nv_lshlrev_b32 v30, 18, v30\nv_lshl_add_u32 v30, v3, 4, v30\nv_lshrrev_b32 v21, 1, v4\nv_lshl_add_u32 v30, v21, 17, v30\nv_cmp_eq_u32 s[12:13], 1, v21")
    else:
        a("v_and_b32 v30, 1, v4\nv_lshlrev_b32 v30, 18, v30\nv_lshl_add_u32 v30, v3, 4, v30\nv_lshrrev_b32 v21, 1, v4\nv_lshl_add_u32 v30, v21, 8, v30\nv_cmp_eq_u32 s[12:13], 1, v21")
    a(f"s_lshl_b32 s73, {SSUB}, 19\ns_lshl_b32 s63, {SW}, 14\ns_add_u32 s73, s73, s63\ns_lshl_b32 s63, {SH}, 9\ns_add_u32 s73, s73, s63\ns_add_u32 s73, s73, {OP}")
    a(f"s_lshl_b32 s72, {SR}, 7\ns_add_u32 s72, s72, {ST}")
    G2E = opt.get('g2early', 1)
    for tile in range(2):
        if tile == 1 and G2E:
            for i in range(4):
                a(f"buffer_load_dwordx4 {vr(100+4*i)}, v22, {S_WS}, s{66+i} offen sc1{GN}")
        a(f"s_waitcnt vmcnt({PWY + (16 if tile == 0 else (4 if G2E else 0))})")
        if tile == 1: stamp(2)
        for s in range(16):
            a(f"ds_read_b128 {ar((tile*16+s)*4)}, v6 offset:{tile*16*CKV_STRIDE+64*s}")
    stamp(3)
    if opt.get('sent2', 0):
        poll_begin("L_p2a")
        a(f"buffer_load_dword v100, v23, {S_WS}, s70 offen sc1")
        a("s_waitcnt vmcnt(0)")
        tagcheck("v14", ["v100"])
        poll_end("L_p2a", "v14")
    if G2E:
        a("s_waitcnt vmcnt(0)")
        tagcheck("v14", [f"v{100+4*i+k}" for i in range(4) for k in (1,3)])
        a("v_cmp_ne_u32 vcc, 0, v14\ns_cbranch_vccz L_p2_x")
        if MASKED: a("s_and_b64 exec, exec, vcc")
    poll_begin("L_p2")
    for i in range(4):
        a(f"buffer_load_dwordx4 {vr(100+4*i)}, v22, {S_WS}, s{66+i} offen sc1{GN}")
    a("s_waitcnt vmcnt(0)")
    tagcheck("v14", [f"v{100+4*i+k}" for i in range(4) for k in (1,3)])
    poll_end("L_p2", "v14")
    stamp(4)
    for i in range(4):
        a(f"v_mov_b32 v{101+4*i}, v{102+4*i}\nds_write_b64 v24, v[{100+4*i}:{101+4*i}] offset:{2*CKV_STRIDE*i}")
    a("s_waitcnt lgkmcnt(0)\ns_barrier")
    for s in range(16):
        a(f"ds_read_b128 {vr(32+4*s)}, v25 offset:{64*s}")
    if opt.get('ptouch', 0):
        a(f"v_lshrrev_b32 v253, 2, v1\nv_lshlrev_b32 v253, 16, v253\nv_and_b32 v252, 3, v1\nv_lshl_add_u32 v253, v252, 7, v253\ns_mov_b32 exec_hi, 0")
        a(f"buffer_load_dword v252, v253, {S_WS}, s73 offen\ns_mov_b64 exec, 1")
        a(f"buffer_load_dword v252, v18, {S_WS}, s72 offen\ns_mov_b64 exec, -1")
    wo_n = [0]
    a(f"s_mul_i32 s71, {SR}, 40960")
    def wo_load():
        i = wo_n[0]; wo_n[0] += 1
        a(f"buffer_load_dwordx4 {vr(192)}, v22, {S_B}, s71 offen{' nt' if opt.get('ntwo', 0) else ''}\ns_add_u32 s71, s71, 4096")
    pv = []
    for t in range(8):
        for j in range(4):
            for u in range(2):
                r = 128+(t*4+j)*4+2*u
                pv.append(f"ds_read_b64_tr_b16 a[{r}:{r+1}], {'v7' if j < 2 else 'v8'} offset:{(32*(j&1)+16*u)*CKV_STRIDE+32*t}")
    for s in range(16):
        if s < 4: a(f"s_waitcnt lgkmcnt({12-4*s})")
        for tile in range(2):
            sidx = s
            mfma(vr(100+4*tile), ar((tile*16+s)*4), vr(32+4*s), s == 0)
            if s >= 3:
                for _ in range(3 if pv else 0):
                    if pv: a(pv.pop(0))
            if tile == 1 and s in (2, 5, 8, 11, 14): wo_load()
    while pv: a(pv.pop(0))
    stamp(5)
    a("v_max3_f32 v108, v100, v101, v102\nv_max3_f32 v109, v103, v104, v105\nv_max3_f32 v108, v108, v106, v107\nv_max_f32 v108, v108, v109")
    swap16("v_max_f32", ["v108"], ["v109"]); swap32("v_max_f32", ["v108"], ["v109"])
    a("ds_write_b32 v27, v108")
    a("s_waitcnt lgkmcnt(0)\ns_barrier")
    a(f"ds_read_b128 v[108:111], v28\ns_waitcnt lgkmcnt(0)")
    a("v_max3_f32 v108, v108, v109, v110\nv_max_f32 v108, v108, v111")
    for k in range(8): a(f"v_sub_f32 v{100+k}, v{100+k}, v108")
    for k in range(8): a(f"v_exp_f32 v{100+k}, v{100+k}")
    a("v_cvt_pk_bf16_f32 v112, v100, v101\nv_cvt_pk_bf16_f32 v113, v102, v103\nv_cvt_pk_bf16_f32 v114, v104, v105\nv_cvt_pk_bf16_f32 v115, v106, v107")
    a("ds_write_b128 v29, v[112:115]")
    a("s_waitcnt lgkmcnt(0)\ns_barrier")
    if opt.get('dbg3'): stamp(10)
    G3G = opt.get('gate3', 0)
    if G3G:
        a(f"s_cmp_eq_u32 {SW}, 0\ns_cbranch_scc0 L_nh3\nv_mov_b32 v21, {TAG}\ns_mov_b64 exec, 1")
        a(f"buffer_store_dword v21, v183, {S_WS}, 0 offen\ns_mov_b64 exec, -1\nL_nh3:")
    for j in range(4): a(f"ds_read_b128 {vr(32+4*j)}, v31 offset:{1024*j}")
    STA = opt.get('stafter', 0)
    STMF = opt.get('stmf', 32)
    def stats_store():
        a(f"s_cmp_eq_u32 {SW}, 0\ns_cbranch_scc0 L_Y_nostat")
        a("v_cndmask_b32 v110, v188, v189, s[8:9]\nv_cndmask_b32 v111, v190, v191, s[8:9]\nv_cndmask_b32 v110, v110, v111, s[10:11]")
        a(f"v_mov_b32 v109, {TAG}\nv_mov_b32 v111, {TAG}")
        a("s_mov_b64 exec, 0x00f0000f")
        a(f"buffer_store_dwordx4 v[108:111], v26, {S_WS}, s72 offen sc1")
        a("s_mov_b64 exec, -1\nL_Y_nostat:")
    def o_pack(hf, k):
        o = 160+4*(2*hf+k); L = []
        for e in range(4):
            d = 120+4*(4*hf+e)
            L.append(f"v_cndmask_b32 v{d+k}, v{d+k}, v{d+2+k}, s[12:13]")
        d0 = 120+16*hf
        L += [f"v_cvt_pk_bf16_f32 v{o}, v{d0+k}, v{d0+4+k}", f"v_mov_b32 v{o+1}, {TAG}", f"v_cvt_pk_bf16_f32 v{o+2}, v{d0+8+k}, v{d0+12+k}", f"v_mov_b32 v{o+3}, {TAG}"]
        L.append(f"buffer_store_dwordx4 {vr(o)}, v30, {S_WS}, {'s73' if k == 0 else 's71x'} offen offset:{256*hf} sc1{SN}")
        return L
    if OSPLIT:
        a("s_add_u32 s75, s73, 65536")
        a("s_waitcnt lgkmcnt(0)")
        for j in range(4): mfma(vr(188), vr(32+4*j), vr(184), j == 0)
        pend = []
        n = 0
        for t in range(8):
            for j in range(4):
                mfma(vr(120+4*t), vr(32+4*j), ar(128+(t*4+j)*4), j == 0)
                n += 1
                if n in (4, 10, 16, 22, 28): wo_load()
                if n == 18:
                    stats_store()
                    pend = [x.replace('s71x', 's75') for x in o_pack(0, 0) + o_pack(0, 1)]
                if n > 18:
                    for _ in range(2):
                        if pend: a(pend.pop(0))
        while pend: a(pend.pop(0))
        for k in range(2):
            for x in o_pack(1, k): a(x.replace('s71x', 's75'))
    else:
        if STMF < 32:
            for j in range(4):
                a(f"s_waitcnt lgkmcnt({3-j})")
                mfma(vr(188), vr(32+4*j), vr(184), j == 0)
        for j in range(4):
            if STMF >= 32:
                a(f"s_waitcnt lgkmcnt({3-j})")
                mfma(vr(188), vr(32+4*j), vr(184), j == 0)
            for t in range(8):
                if j*8+t == STMF: stats_store()
                mfma(vr(120+4*t), vr(32+4*j), ar(128+(t*4+j)*4), j == 0)
                if (j*8+t) in (3, 9, 15, 21, 27): wo_load()
        if STMF < 32: STA = -1
        for r in range(4):
            if r == STA: stats_store()
            o = 160+4*r
            for e in range(4): a(f"v_cndmask_b32 v{120+4*e+r}, v{120+4*e+r}, v{136+4*e+r}, s[12:13]")
            a(f"v_cvt_pk_bf16_f32 v{o}, v{120+r}, v{124+r}\nv_mov_b32 v{o+1}, {TAG}\nv_cvt_pk_bf16_f32 v{o+2}, v{128+r}, v{132+r}\nv_mov_b32 v{o+3}, {TAG}")
            a(f"buffer_store_dwordx4 {vr(o)}, v30, {S_WS}, s73 offen sc1")
            if r < 3: a("s_add_u32 s73, s73, 65536")
        if STA == 4: stats_store()
    stamp(6)
    if YPRE: m_coef_unpack()
    a("s_add_u32 s65, s74, 16")
    a(f"s_waitcnt vmcnt({2 if OSPLIT else 4})")
    wo_slice_dma("s74", 0)
    a("s_cmp_lt_u32 s74, 4\ns_cbranch_scc0 L_Y_one")
    wo_slice_dma("s65", 32768)
    a("L_Y_one:")
    rewarm("y")
    if not YPRE:
        m_coef_loads()
        tail_prefetch()
        s5_addresses()
    a("s_waitcnt vmcnt(0)")
    wo_slice_frags(0, 0)
    a("s_cmp_lt_u32 s74, 4\ns_cbranch_scc0 L_Y_one2")
    wo_slice_frags(32768, 32)
    a("L_Y_one2:")
    if not YPRE: m_coef_unpack()
    stamp(7)
    a.c("================= S5: out[32u..32u+31] over the 4 heads of this XCD group (wave = head)")
    a(f"s_add_u32 s68, s101, {CPB-CP}")
    a("s_waitcnt lgkmcnt(0)")
    poll_begin("L_p4", ("s66", "s101", "s68"))
    G4D = opt.get('g4dense', 1)
    def g4_loads(fl):
        if G4D:
            a(f"buffer_load_dwordx4 v[140:143], v240, {S_WS}, s66 offen {fl}\nbuffer_load_dwordx4 v[144:147], v240, {S_WS}, s66 offen offset:1024 {fl}")
        else:
            for dq in range(4):
                a(f"buffer_load_dwordx4 {vr(100+8*dq)}, v240, {S_WS}, s66 offen offset:{512*dq} {fl}")
                a(f"buffer_load_dwordx4 {vr(104+8*dq)}, v240, {S_WS}, s66 offen offset:{512*dq+256} {fl}")
    dual_loads("L_p4", g4_loads)
    a("s_waitcnt vmcnt(0)")
    tagcheck("v14", ["v141", "v143", "v145", "v147"] if G4D else [f"v{100+8*dq+k}" for dq in range(4) for k in (1,3,5,7)])
    poll_end("L_p4", "v14")
    stamp(8)
    if G4D:
        a("v_mov_b32 v141, v142\nv_mov_b32 v145, v146")
        a("ds_write_b64 v236, v[140:141]\nds_write_b64 v236, v[144:145] offset:512")
        for dq in range(4): a(f"ds_read_b128 {vr(100+8*dq)}, v235 offset:{256*dq}")
        a("s_waitcnt lgkmcnt(0)")
    else:
        for dq in range(4):
            r = 100+8*dq
            a(f"v_mov_b32 v{r+1}, v{r+2}\nv_mov_b32 v{r+2}, v{r+4}\nv_mov_b32 v{r+3}, v{r+6}")
    a("v_cmp_eq_u32 vcc, 1, v4")
    def unit_mm(a0, d0, lds_off):
        for dq in range(4):
            for tt in range(2):
                mfma(vr(d0+4*tt), vr(100+8*dq), ar(a0+(tt*4+dq)*4), dq == 0)
        a(f"v_pk_add_f32 v[{d0}:{d0+1}], v[{d0}:{d0+1}], v[{d0+2}:{d0+3}]\nv_pk_add_f32 v[{d0+4}:{d0+5}], v[{d0+4}:{d0+5}], v[{d0+6}:{d0+7}]")
        a(f"v_add_f32 v{d0}, v{d0}, v{d0+1}\nv_add_f32 v{d0+4}, v{d0+4}, v{d0+5}")
        a(f"v_cndmask_b32 v{d0}, v{d0}, v{d0+4}, vcc")
        a(f"s_mov_b32 exec_hi, 0\nds_write_b32 v241, v{d0} offset:{lds_off}\ns_mov_b64 exec, -1")
    unit_mm(0, 156, 0)
    a("s_cmp_lt_u32 s74, 4\ns_cbranch_scc0 L_Y_one3")
    unit_mm(32, 148, 512)
    a("L_Y_one3:")
    a("s_waitcnt lgkmcnt(0)\ns_barrier")
    a(f"s_cmp_eq_u32 {SW}, 0\ns_cbranch_scc1 L_Y_pub\ns_cmp_eq_u32 {SW}, 1\ns_cbranch_scc0 L_M\ns_cmp_lt_u32 s74, 4\ns_cbranch_scc0 L_M")
    a(f"v_add_u32 v242, 512, v242\nv_add_u32 v243, {16*128}, v243\nv_add_u32 v244, 64, v244")
    a("L_Y_pub:")
    a("ds_read_b32 v136, v242\nds_read_b32 v137, v242 offset:128\nds_read_b32 v138, v242 offset:256\nds_read_b32 v139, v242 offset:384")
    a("s_waitcnt lgkmcnt(0)")
    a("v_pk_add_f32 v[136:137], v[136:137], v[138:139]\nv_add_f32 v136, v136, v137")
    a("v_mov_b32_dpp v137, v136 row_shl:1 row_mask:0xf bank_mask:0xf")
    a(f"v_cvt_pk_bf16_f32 v138, v136, v137\nv_mov_b32 v139, {TAG}")
    a("s_mov_b32 exec_lo, 0x55555555\ns_mov_b32 exec_hi, 0")
    a(f"buffer_store_dwordx2 v[138:139], v243, {S_WS}, 0 offen sc1")
    if opt.get('gate', 1):
        a("s_mov_b64 exec, 1")
        a(f"buffer_store_dword v139, v244, {S_WS}, 0 offen")
    a("s_mov_b64 exec, -1")

    a.c("================= M stage")
    a("L_M:")
    a("s_mul_i32 s64, s2, 3\ns_cmp_ge_u32 s64, 640\ns_cbranch_scc1 L_fin")
    a(f"v_mov_b32 v144, {f2u(C0):#x}\nv_mov_b32 v145, {f2u(C0):#x}")
    for k in range(3): a(f"v_mov_b32 v{146+2*k}, 0\nv_mov_b32 v{147+2*k}, 0")
    a(f"v_add_u32 v15, s64, v1\nv_min_u32 v15, 639, v15\nv_lshlrev_b32 v15, 2, v15\nv_add_u32 v15, {HB}, v15")
    a("v_mov_b32 v132, 0\nv_mov_b32 v133, 0")
    a(f"s_cmp_eq_u32 {SW}, 3\ns_cbranch_scc1 L_M_wait")
    a(f"v_lshlrev_b32 v13, 4, v0\ns_mov_b32 s66, {XP}\ns_mov_b32 s67, {XP+5120}\ns_mov_b32 s68, {XP+10240}\ns_mov_b32 s69, {XP+15360}")
    a("s_mov_b32 s63, 0xffff0000")
    a("v_lshlrev_b32 v136, 16, v246\nv_and_b32 v137, s63, v246\nv_lshlrev_b32 v138, 16, v247\nv_and_b32 v139, s63, v247")
    a(f"v_add_u32 v17, {HB}, v13\ns_lshl_b32 s62, {SW}, 3\ns_add_u32 s62, s62, {SB}\nv_mov_b32 v19, s62")
    a(f"s_cmp_eq_u32 {SW}, 2\ns_cselect_b32 s72, 0, -1\ns_mov_b32 exec_hi, s72")
    stamp(9)
    if opt.get('gate', 1):
        a(f"s_mov_b64 s[98:99], exec\ns_mov_b64 exec, 0xfffff\ns_and_b32 s62, s2, 7\ns_lshl_b32 s62, s62, 7\ns_add_u32 s62, s62, {UF}\nv_lshlrev_b32 v14, 2, v1\nv_mov_b32 v16, v14\ns_mov_b32 s61, 0")
        a("L_g6:")
        a(f"buffer_load_dword v100, v16, {S_WS}, s62 offen {LF}\ns_waitcnt vmcnt(0)")
        a(f"v_cmp_ne_u32 vcc, {TAG}, v100\ns_add_u32 s61, s61, 1\ns_cmp_gt_u32 s61, {opt.get('gatemax', 64)}\ns_cbranch_scc1 L_g6x\ns_cbranch_vccnz L_g6")
        a("L_g6x:")
        for _ in range(opt.get('gextra', 0)):
            a(f"buffer_load_dword v100, v16, {S_WS}, s62 offen {LF}\ns_waitcnt vmcnt(0)")
        a("s_mov_b64 exec, s[98:99]")
    MPROG = opt.get('mprog', 0)
    def m_row_add(xx):
        b = 100+4*xx
        a(f"v_lshlrev_b32 v140, 16, v{b}\nv_and_b32 v141, s63, v{b}\nv_lshlrev_b32 v142, 16, v{b+2}\nv_and_b32 v143, s63, v{b+2}")
        a("v_pk_add_f32 v[136:137], v[136:137], v[140:141]\nv_pk_add_f32 v[138:139], v[138:139], v[142:143]")
    if MPROG:
        for xx in range(8):
            a(f"buffer_load_dwordx4 {vr(100+4*xx)}, v13, {S_WS}, s{66+(xx>>1)} offen offset:{2560*(xx&1)} sc1{GN}")
        for xx in range(8):
            a(f"s_waitcnt vmcnt({7-xx})")
            if xx == 0: a(f"v_xor_b32 v14, {TAG}, v101")
            else: a(f"v_bitop3_b32 v14, v{100+4*xx+1}, {TAG}, v14 bitop3:0xbe")
            a(f"v_bitop3_b32 v14, v{100+4*xx+3}, {TAG}, v14 bitop3:0xbe")
            m_row_add(xx)
        a("v_cmp_ne_u32 vcc, 0, v14\ns_cbranch_vccz L_M_sum\ns_and_b64 exec, exec, vcc")
    poll_begin("L_p6")
    for xx in range(8):
        a(f"buffer_load_dwordx4 {vr(100+4*xx)}, v13, {S_WS}, s{66+(xx>>1)} offen offset:{2560*(xx&1)} sc1{GN}")
    a("s_waitcnt vmcnt(0)")
    tagcheck("v14", [f"v{100+4*xx+k}" for xx in range(8) for k in (1,3)])
    poll_end("L_p6", "v14")
    a("s_mov_b32 exec_hi, s72")
    a("v_lshlrev_b32 v136, 16, v246\nv_and_b32 v137, s63, v246\nv_lshlrev_b32 v138, 16, v247\nv_and_b32 v139, s63, v247")
    for xx in range(8): m_row_add(xx)
    a("L_M_sum:")
    for _ in range(opt.get('padnop', 0)): a("s_nop 0")
    if opt.get('padjmp', 0):
        for i in range(opt['padjmp']):
            a(f"s_branch L_pj{i}\n.p2align 6\nL_pj{i}:")
    stamp(10)
    a("v_cvt_pk_bf16_f32 v140, v136, v137\nv_cvt_pk_bf16_f32 v141, v138, v139")
    a("v_lshlrev_b32 v136, 16, v140\nv_and_b32 v137, s63, v140\nv_lshlrev_b32 v138, 16, v141\nv_and_b32 v139, s63, v141")
    a("ds_write_b128 v17, v[136:139]")
    for k in range(4): a(f"v_subrev_f32 v{140+k}, s3, v{136+k}")
    a("v_add_f32 v132, v140, v141\nv_mul_f32 v133, v140, v140\nv_add_f32 v134, v142, v143\nv_fmac_f32 v133, v141, v141\nv_add_f32 v132, v132, v134\nv_fmac_f32 v133, v142, v142\nv_fmac_f32 v133, v143, v143")
    a("s_mov_b64 exec, -1")
    wave_allreduce("v_add_f32", ["v132", "v133"], ["v134", "v135"])
    a("s_mov_b64 exec, 1\nds_write_b64 v19, v[132:133]\ns_mov_b64 exec, -1")
    a(f"s_or_b32 s62, s2, {SW}\ns_cmp_eq_u32 s62, 0\ns_cbranch_scc0 L_noep")
    a(f"v_mov_b32 v16, {TAG}\ns_mov_b64 exec, 1\nbuffer_store_dword v16, v18, {S_WS}, 0 offen sc1\ns_mov_b64 exec, -1")
    a("L_noep:")
    a("s_waitcnt lgkmcnt(0)")
    a("L_M_wait:")
    a("s_barrier")
    a(f"v_mov_b32 v16, {SB}\nds_read_b128 v[120:123], v16\nds_read_b64 v[124:125], v16 offset:16\nds_read_b32 v136, v15\ns_mov_b32 s62, {f2u(1.0/640):#x}\ns_waitcnt lgkmcnt(0)")
    a("v_add_f32 v130, v120, v122\nv_add_f32 v132, v121, v123\nv_add_f32 v130, v130, v124\nv_add_f32 v132, v132, v125")
    a("v_mul_f32 v130, s62, v130\nv_mul_f32 v132, s62, v132")
    a("v_fma_f32 v132, -v130, v130, v132")
    a("v_add_f32 v130, s3, v130")
    a(f"v_add_f32 v133, {f2u(EPS):#x}, v132\nv_rsq_f32 v133, v133")
    a("v_sub_f32 v140, v136, v130")
    a("v_mul_f32 v134, v133, v133\nv_mul_f32 v134, v134, v132")
    a(f"v_add_f32 v134, {f2u(EPS):#x}, v134\nv_rsq_f32 v134, v134\nv_mul_f32 v140, v140, v133\ns_mov_b32 s62, {f2u(C1):#x}\nv_mul_f32 v140, v140, v134")
    for k in range(3):
        a(f"v_readlane_b32 s{70+2*k}, v140, {k}")
    for k in range(3):
        t = f"s[{70+2*k}:{71+2*k}]"
        U = lambda i: f"v[{152+2*i}:{153+2*i}]"
        Z = lambda i: f"v[{160+2*i}:{161+2*i}]"
        for i in range(4): a(f"v_pk_fma_f32 {U(i)}, v[{210+2*i}:{211+2*i}], {t}, v[{218+2*i}:{219+2*i}] op_sel_hi:[1,0,1]")
        for i in range(4): a(f"v_pk_mul_f32 {Z(i)}, {U(i)}, {U(i)}")
        for i in range(4): a(f"v_pk_fma_f32 {Z(i)}, {Z(i)}, s[62:63], v[144:145] op_sel_hi:[1,0,1]")
        for i in range(4): a(f"v_pk_mul_f32 {Z(i)}, {Z(i)}, {U(i)}")
        for i in range(4): a(f"v_exp_f32 v{160+2*i}, v{160+2*i}\nv_exp_f32 v{161+2*i}, v{161+2*i}")
        for i in range(4): a(f"v_pk_mul_f32 {U(i)}, {U(i)}, v[{226+2*i}:{227+2*i}]")
        for i in range(4): a(f"v_pk_add_f32 {Z(i)}, {Z(i)}, 1.0 op_sel_hi:[1,0]")
        for i in range(4): a(f"v_rcp_f32 v{160+2*i}, v{160+2*i}\nv_rcp_f32 v{161+2*i}, v{161+2*i}")
        for i in range(4): a(f"v_pk_fma_f32 v[{146+2*k}:{147+2*k}], {U(i)}, {Z(i)}, v[{146+2*k}:{147+2*k}]")
    for k in range(3): a(f"v_add_f32 v{146+2*k}, v{146+2*k}, v{147+2*k}")
    wave_allreduce("v_add_f32", ["v146","v148","v150"], ["v147","v149","v151"])
    a(f"s_lshl_b32 s62, {SW}, 4\ns_add_u32 s62, s62, {MRED}\nv_mov_b32 v15, s62\nv_mov_b32 v147, v148\nv_mov_b32 v148, v150")
    a("s_mov_b64 exec, 1\nds_write_b96 v15, v[146:148]\ns_mov_b64 exec, -1")
    a("s_waitcnt lgkmcnt(0)\ns_barrier")
    a(f"s_cmp_eq_u32 {SW}, 0\ns_cbranch_scc0 L_fin")
    a(f"v_lshlrev_b32 v15, 2, v1\nv_add_u32 v15, {MRED}, v15")
    a("ds_read_b32 v100, v15\nds_read_b32 v101, v15 offset:16\nds_read_b32 v102, v15 offset:32\nds_read_b32 v103, v15 offset:48")
    srd(S_T, 26, 1280)
    a("v_add_u32 v15, s64, v1\nv_lshlrev_b32 v16, 1, v15")
    a("v_add_f32 v136, v136, v208")
    a("s_waitcnt lgkmcnt(0)")
    a("v_add_f32 v100, v100, v101\nv_add_f32 v102, v102, v103\nv_add_f32 v100, v100, v102\nv_add_f32 v100, v100, v136")
    a("v_cvt_pk_bf16_f32 v100, v100, v100")
    a("v_cmp_gt_u32 vcc, 640, v15\ns_and_b64 exec, vcc, 7")
    a("s_cbranch_execz L_fin")
    a(f"buffer_store_short v100, v16, {S_T}, 0 offen")
    a("L_fin:")
    if opt.get('pin'):
        a(f"s_waitcnt lgkmcnt(0)\ns_add_u32 s76, s76, {opt['pin']}")
        a("L_pin:\ns_memrealtime s[78:79]\ns_waitcnt lgkmcnt(0)\ns_sub_u32 s80, s78, s76\ns_cmp_lt_i32 s80, 0\ns_cbranch_scc1 L_pin")
    if profile and opt.get('dbgout'):
        stamp(11)
        a("s_mov_b64 exec, -1\ns_waitcnt lgkmcnt(0)")
        srd(S_T, 28, 256)
        a(f"s_cmp_eq_u32 {SW}, 0\ns_cbranch_scc0 L_end")
        a("v_mov_b32 v18, 0\ns_mov_b64 exec, 1")
        a(f"s_not_b32 s62, s76\nv_mov_b32 v15, s62\nbuffer_atomic_umax v15, v18, {S_T}, 0 offen")
        a(f"v_mov_b32 v15, s98\nbuffer_atomic_umax v15, v18, {S_T}, 0 offen offset:44")
        a("s_bitcmp1_b32 s2, 7\ns_cbranch_scc1 L_dy")
        for k in range(1, 9):
            a(f"v_mov_b32 v15, s{76+2*k}\nbuffer_atomic_umax v15, v18, {S_T}, 0 offen offset:{4*k}")
        a(f"v_mov_b32 v15, s{76+2*10}\nbuffer_atomic_umax v15, v18, {S_T}, 0 offen offset:40")
        a(f"v_mov_b32 v15, s{76+2*9}\nbuffer_atomic_umax v15, v18, {S_T}, 0 offen offset:36")
        a("s_branch L_end\nL_dy:")
        for j, k in enumerate((2, 4, 6, 8)):
            a(f"v_mov_b32 v15, s{76+2*k}\nbuffer_atomic_umax v15, v18, {S_T}, 0 offen offset:{48+4*j}")
    elif profile:
        stamp(11)
        a("s_mov_b64 exec, -1\ns_waitcnt lgkmcnt(0)")
        a(f"s_lshl_b32 s62, s2, 2\ns_add_u32 s62, s62, {SW}\ns_lshl_b32 s62, s62, 6\ns_add_u32 s62, s62, {TS}")
        a("v_mov_b32 v18, 0\ns_mov_b64 exec, 1")
        for k in range(12):
            a(f"v_mov_b32 v15, s{76+2*k}\nbuffer_store_dword v15, v18, {S_WS}, s62 offen offset:{4*k}")
        a(f"v_mov_b32 v15, s100\nbuffer_store_dword v15, v18, {S_WS}, s62 offen offset:48")
        a(f"s_getreg_b32 s100, hwreg(HW_REG_XCC_ID)\nv_mov_b32 v15, s100\nbuffer_store_dword v15, v18, {S_WS}, s62 offen offset:52")
        a(f"s_getreg_b32 s100, hwreg(HW_REG_HW_ID)\nv_mov_b32 v15, s100\nbuffer_store_dword v15, v18, {S_WS}, s62 offen offset:56")
    a("L_end:")
    a("s_endpgm")
    a("L_code_end:")
    a(f".set CODE_BYTES, L_code_end - {NAME}")
    a('.section .rodata,"a"\n.p2align 6')
    a(f".amdhsa_kernel {NAME}")
    a("  .amdhsa_next_free_vgpr 512\n  .amdhsa_next_free_sgpr 102\n  .amdhsa_accum_offset 256\n  .amdhsa_group_segment_fixed_size 0\n  .amdhsa_kernarg_size 112\n  .amdhsa_user_sgpr_count 2\n  .amdhsa_user_sgpr_kernarg_segment_ptr 1\n  .amdhsa_system_sgpr_workgroup_id_x 1")
    a(".end_amdhsa_kernel")
    n = a.hazard_pass()
    return a.text(), n

LAYOUT = dict(QG=QG, QA=QA, ST=ST, CP=CP, HG=HG, OUTP=OUTP, OP=OP, TS=TS, XP=XP)
if __name__ == "__main__":
    prof = "prof" in sys.argv[2:]
    opt = {}
    for x in sys.argv[2:]:
        if '=' in x:
            k, v = x.split('='); opt[k] = int(v) if v.lstrip('-').isdigit() else v
    txt, n = gen(profile=prof, opt=opt)
    open(sys.argv[1], "w").write(txt)
    print("auto nops:", n, "lines:", txt.count("\n"), LAYOUT)
```

```python
import sys, math, struct
from asmlib import Asm

NAME = "sequential_preLN__compressed_kv_cla__mixer_token_mlp__decode_kernel"
HEADER = open('sequential_preLN__compressed_kv_cla__mixer_token_mlp__decode.s.ref').read().split('; Override')[0]

def f2u(x): return struct.unpack('<I', struct.pack('<f', x))[0]

QG   = 4096
QA   = QG + 131072
ST   = QA + 65536
CP   = ST + 16384
HG   = CP + 65536
SENT2 = HG + 4096
SENT5 = SENT2 + 16384
QGB  = SENT5 + 16384
CPB  = QGB + 131072
OUTP = CPB + 65536
OUTPB = OUTP + 128*2560
XP   = OUTPB + 128*2560
UF   = XP + 8*2560
YF   = UF + 1024
OP   = (2 << 20) + 4096
TS   = (4 << 20) + 65536
assert YF + 8*128 <= OP
WS_SIZE = 5 << 20
CKV_STRIDE = 1056
QS = 135168; PX = 143616; MX = 147712; LX = 147968; MRED = 148224; MB = 148288
WUK = 0; WUV = 32768; OS = 65536; S1RED = 74752; WX = 82944; RRED = 83456
S1RED_C = 148480
LDS_BYTES = 156672
WO_STRIDE = 1312
GS = 65536
HB = PX; SB = MB; RR = PX + 2560

SCALE = (128 ** -0.5) * math.log2(math.e)
C0 = -2.0 * math.sqrt(2.0 / math.pi) * math.log2(math.e)
C1 = C0 * 0.044715
EPS = 1e-5

S_WS, S_X, S_A, S_B, S_C, S_T = 's[32:35]', 's[36:39]', 's[40:43]', 's[44:47]', 's[48:51]', 's[52:55]'
TAG, SW, SR, SH, SSUB = 's56', 's57', 's58', 's59', 's60'

def gen(profile=False, spin_limit=400000, opt=None):
    opt = opt or {}
    WARM = opt.get('warm', 1)
    STPOS = opt.get('stpos', 1)
    a = Asm()
    NT = " nt" if opt.get('nt', 1) else ""
    LF = opt.get('lflag', 'nt')
    GN = ' nt' if opt.get('gnt', 0) else ''
    SN = ' nt' if opt.get('snt', 0) else ''
    BP = opt.get('bper', 32) - 1
    SMASK = opt.get('smask', 0xfff)
    def stamp(k):
        if profile and (SMASK >> k) & 1:
            assert k < 12
            a(f"s_memrealtime s[{76+2*k}:{77+2*k}]")
    def srd(dst, ptr, size):
        d = int(dst[2:dst.index(':')])
        a(f"s_mov_b32 s{d}, s{ptr}\ns_mov_b32 s{d+1}, s{ptr+1}\ns_mov_b32 s{d+2}, {size}\ns_mov_b32 s{d+3}, 0x00020000")
    DPPS = ("quad_perm:[1,0,3,2]", "quad_perm:[2,3,0,1]", "row_half_mirror", "row_mirror")
    def row_allreduce(op, vs):
        for m in DPPS:
            for v in vs: a(f"{op}_dpp {v}, {v}, {v} {m} row_mask:0xf bank_mask:0xf")
    def swapred(sw, op, vs, ts):
        for v, t in zip(vs, ts): a(f"v_mov_b32 {t}, {v}")
        for v, t in zip(vs, ts): a(f"{sw} {v}, {t}")
        for v, t in zip(vs, ts): a(f"{op} {v}, {v}, {t}")
    def swap16(op, vs, ts): swapred("v_permlane16_swap_b32", op, vs, ts)
    def swap32(op, vs, ts): swapred("v_permlane32_swap_b32", op, vs, ts)
    def wave_allreduce(op, vs, ts):
        row_allreduce(op, vs); swap16(op, vs, ts); swap32(op, vs, ts)
    MASKED = opt.get('masked', 1)
    def poll_begin(name, dual=None):
        a(f"s_mov_b32 s61, 0")
        a(f"{name}:")
        if dual:
            a(f"s_and_b32 s75, s61, {BP}\ns_cmp_eq_u32 s75, {BP}\ns_cselect_b32 {dual[0]}, {dual[2]}, {dual[1]}")
    def poll_end(name, bad):
        a(f"v_cmp_ne_u32 vcc, 0, {bad}")
        a(f"s_add_u32 s61, s61, 1")
        a(f"s_cmp_gt_u32 s61, {spin_limit}")
        a(f"s_cbranch_scc1 {name}_x")
        if MASKED:
            a(f"s_and_b64 exec, exec, vcc")
            a(f"s_cbranch_execnz {name}")
        else:
            a(f"s_cbranch_vccnz {name}")
        a(f"{name}_x:")
        if MASKED: a("s_mov_b64 exec, -1")
        if profile and opt.get('cntfor') == name:
            a("s_mov_b32 s100, s61")
    def tagcheck(bad, tags):
        a(f"v_xor_b32 {bad}, {TAG}, {tags[0]}")
        for t in tags[1:]:
            a(f"v_bitop3_b32 {bad}, {t}, {TAG}, {bad} bitop3:0xbe")
    def mfma(d, A, B, first):
        a(f"v_mfma_f32_16x16x32_bf16 {d}, {A}, {B}, {'0' if first else d}")
    def vr(b, n=4): return f"v[{b}:{b+n-1}]"
    def ar(b, n=4): return f"a[{b}:{b+n-1}]"

    a.lines += [l for l in HEADER.strip().split('\n')]
    a(f"; @launch grid=(256,1,1) block=(256,1,1) lds={LDS_BYTES}")
    a('.amdgcn_target "amdgcn-amd-amdhsa--gfx950"')
    for l in """
One persistent launch, 256 workgroups (one per CU).  Absorbed MLA decode + token mixer, all stages chained through d_ws:
  S1 (all)  q partials      = LN(x) . w_q              rows split 8 ways per head
  S2 (X)    q_abs[h, c]     = q[h] . w_uk[c, h]        (scale and log2(e) folded in)
  S3 (Y)    scores, running max / sum and P.c_kv for 128 keys x 8 heads (MFMA)
  S4 (X)    combine the 32 key splits (true max), ctx partial = ctx_lat . w_uv
  S5 (Y)    out partial for 32 columns over the 4 heads of the workgroup id class (id & 7)
  M  (all)  h = x + out, LN(LN(h)), token MLP for 3 columns per workgroup
X = ids 0..127, Y = ids 128..255.  Hand-offs are 8-byte granules {payload, tag}; tag = (word 0 of d_ws at entry) + 1,
word 0 is set to the tag at the end.  Hand-offs inside one id class are written twice: a plain store (seen quickly when the
class shares an L2) and a write-through copy that consumers probe every 32nd poll, so no placement is assumed.
""".strip().split("\n"): a.c(l)
    a(f".text\n.globl {NAME}\n.p2align 8\n.type {NAME},@function\n{NAME}:")
    WPOS = opt.get('wpos', 0)
    def warm_load():
        a("s_getpc_b64 s[52:53]\nL_pc:\ns_sub_u32 s52, s52, L_pc-%s\ns_subb_u32 s53, s53, 0\nv_lshlrev_b32 v254, 7, v0\ns_mov_b32 s54, CODE_BYTES\ns_mov_b32 s55, 0x00020000" % NAME)
        a("buffer_load_dword v251, v254, s[52:55], 0 offen")
    a("s_load_dwordx16 s[4:19], s[0:1], 0\ns_load_dwordx8 s[20:27], s[0:1], 64\ns_load_dwordx4 s[28:31], s[0:1], 96")
    if WARM and WPOS == 0: warm_load()
    stamp(0)
    if opt.get('pin'): a("s_memrealtime s[76:77]")
    if profile: a("s_mov_b32 s100, 99")
    a("s_cmp_ge_u32 s2, 256\ns_cbranch_scc1 L_end")
    a("v_and_b32 v1, 63, v0\nv_lshrrev_b32 v2, 6, v0\nv_and_b32 v3, 15, v0\nv_bfe_u32 v4, v0, 4, 2")
    a(f"v_readfirstlane_b32 {SW}, v2")
    a(f"s_and_b32 s61, s2, 7\ns_bfe_u32 s62, s2, 0x40003\ns_lshl_b32 {SR}, s61, 4\ns_add_u32 {SR}, {SR}, s62")
    a(f"s_lshr_b32 {SH}, {SR}, 2\ns_and_b32 {SSUB}, {SR}, 3")
    a("v_mov_b32 v18, 0")
    for k in range(240, 245): a(f"v_mov_b32 v{k}, 0")
    a("s_lshr_b32 s72, s2, 6\ns_and_b32 s73, s2, 7\ns_lshl_b32 s73, s73, 2\ns_add_u32 s72, s72, s73")
    a("s_bfe_u32 s73, s2, 0x30003")
    a("v_lshlrev_b32 v5, 4, v1\nv_lshlrev_b32 v17, 2, v1")
    a(f"v_lshrrev_b32 v6, 4, v0\nv_mul_u32_u24 v13, 5, v6\ns_mul_i32 s62, s73, 160\nv_lshlrev_b32 v7, 1, v13\nv_add_u32 v7, s62, v7\nv_and_b32 v14, 2, v7\nv_lshlrev_b32 v14, 3, v14\nv_and_b32 v7, -4, v7")
    a("v_lshlrev_b32 v8, 4, v3\nv_lshl_add_u32 v8, v13, 13, v8\nv_mov_b32 v255, v14")
    a(f"s_mul_i32 s61, s73, {80*8192}\ns_lshl_b32 s62, s72, 8\ns_add_u32 s61, s61, s62")
    a("v_xor_b32 v9, v3, v4\nv_lshlrev_b32 v9, 4, v9\nv_lshl_add_u32 v9, v4, 13, v9")
    a("v_xor_b32 v10, 64, v9\nv_xor_b32 v11, 128, v9\nv_xor_b32 v12, 192, v9")
    a(f"s_mov_b32 s34, {WS_SIZE}\ns_mov_b32 s35, 0x00020000\ns_mov_b32 s38, 1280\ns_mov_b32 s39, 0x00020000\ns_mov_b32 s42, 5242880\ns_mov_b32 s43, 0x00020000")
    a("s_waitcnt lgkmcnt(0)")
    a("s_mov_b32 s36, s4\ns_mov_b32 s37, s5\ns_mov_b32 s32, s30\ns_mov_b32 s33, s31\ns_mov_b32 s40, s8\ns_mov_b32 s41, s9")
    a(f"buffer_load_dwordx4 v[32:35], v5, {S_X}, 0 offen\nbuffer_load_dword v36, v17, {S_X}, 0 offen offset:1024")
    a(f"buffer_load_dword v250, v18, {S_WS}, 0 offen")
    if opt.get('tlbw', 0):
        a(f"s_mov_b32 s62, {2<<20}\ns_mov_b32 s63, {(4<<20)+8192}")
        a(f"buffer_load_dword v255, v18, {S_WS}, s62 offen\nbuffer_load_dword v255, v18, {S_WS}, s63 offen")
    def m_coef_loads():
        a("v_lshlrev_b32 v17, 2, v0")
        for k, p in enumerate((18, 20, 22)):
            srd(S_T, p, 3456)
            for i in range(4):
                a(f"buffer_load_dword v{196+4*k+i}, v17, {S_T}, 0 offen offset:{1024*i}")
        srd(S_T, 24, 2)
        a(f"buffer_load_ushort v208, v18, {S_T}, 0 offen")
    def m_coef_unpack():
        a("s_mov_b32 s63, 0xffff0000")
        for k in range(3):
            for i in range(4):
                s_ = 196+4*k+i; d = 210+8*k+2*i
                a(f"v_lshlrev_b32 v{d}, 16, v{s_}\nv_and_b32 v{d+1}, s63, v{s_}")
        a("v_lshlrev_b32 v208, 16, v208")
    def rewarm(tagname):
        if not opt.get('rewarm', 0): return 0
        a(f"s_getpc_b64 s[52:53]\nL_pc{tagname}:\ns_mov_b32 s54, L_code_end-L_pc{tagname}\ns_mov_b32 s55, 0x00020000\nv_lshlrev_b32 v254, 7, v0")
        a("buffer_load_dword v251, v254, s[52:55], 0 offen")
        return 1
    def tail_prefetch():
        a(f"v_lshlrev_b32 v245, 3, v0\nbuffer_load_dwordx2 v[246:247], v245, {S_X}, 0 offen")
        if opt.get('gate', 1):
            a(f"s_and_b32 s62, s2, 7\ns_lshl_b32 s62, s62, 7\ns_add_u32 s62, s62, {UF}\nv_lshlrev_b32 v249, 2, v1\nv_and_b32 v249, 127, v249")
            a(f"buffer_load_dword v252, v249, {S_WS}, s62 offen {LF}")
    def wo_slice_dma(su="s74", lds0=0):
        a(f"v_lshrrev_b32 v9, 2, v1\nv_mul_u32_u24 v9, 1280, v9\nv_bfe_u32 v10, v1, 4, 1\nv_lshlrev_b32 v10, 1, v10\nv_and_b32 v11, 3, v1\nv_xor_b32 v10, v10, v11\nv_lshl_add_u32 v9, v10, 4, v9")
        a(f"s_and_b32 s62, s2, 7\ns_lshl_b32 s62, s62, 2\ns_add_u32 s62, s62, {SW}\ns_mul_i32 s62, s62, {128*1280}\ns_lshl_b32 s63, {su}, 6\ns_add_u32 s62, s62, s63\ns_lshl_b32 s63, {SW}, 13\ns_add_u32 s63, s63, {lds0}")
        for k in range(8):
            a(f"s_mov_b32 m0, s63\ns_add_u32 s63, s63, 1024")
            a(f"buffer_load_dwordx4 v9, {S_B}, s62 offen lds")
            if k < 7: a(f"s_add_u32 s62, s62, {16*1280}")
    def wo_slice_frags(lds0=0, a0=0):
        a(f"v_lshrrev_b32 v9, 2, v3\nv_lshl_add_u32 v9, v4, 2, v9\nv_lshlrev_b32 v9, 6, v9\nv_and_b32 v10, 1, v4\nv_lshl_add_u32 v9, v10, 5, v9\nv_and_b32 v10, 3, v3\nv_lshl_add_u32 v9, v10, 3, v9\ns_lshl_b32 s62, {SW}, 13\nv_add_u32 v9, s62, v9\nv_xor_b32 v10, 32, v9")
        for tt in range(2):
            for dq in range(4):
                for uu in range(2):
                    r = a0+(tt*4+dq)*4+2*uu
                    a(f"ds_read_b64_tr_b16 a[{r}:{r+1}], {'v9' if tt == 0 else 'v10'} offset:{lds0+2048*dq+1024*uu}")
    def s5_addresses():
        if opt.get('g4dense', 1):
            a("v_lshlrev_b32 v240, 4, v1")
            a(f"v_lshrrev_b32 v236, 5, v1\nv_lshlrev_b32 v236, 8, v236\nv_bfe_u32 v235, v1, 2, 2\nv_lshl_add_u32 v236, v235, 6, v236\nv_and_b32 v235, 3, v1\nv_lshl_add_u32 v236, v235, 4, v236\nv_bfe_u32 v235, v1, 4, 1\nv_lshl_add_u32 v236, v235, 3, v236")
            a(f"s_lshl_b32 s62, {SW}, 10\ns_add_u32 s62, s62, {GS}\nv_add_u32 v236, s62, v236")
            a(f"v_and_b32 v235, 3, v3\nv_lshlrev_b32 v235, 4, v235\nv_lshl_add_u32 v235, v4, 6, v235\nv_add_u32 v235, s62, v235")
        else:
            a(f"v_and_b32 v240, 3, v3\nv_lshlrev_b32 v240, 4, v240\nv_lshl_add_u32 v240, v4, 6, v240")
        a(f"s_and_b32 s62, s2, 7\ns_lshl_b32 s63, s62, 2\ns_add_u32 s63, s63, {SW}\ns_lshl_b32 s63, s63, 11\ns_add_u32 s101, s63, {CP}")
        a(f"s_mul_i32 s63, s62, 2560\ns_lshl_b32 s65, s74, 7\ns_add_u32 s63, s63, s65\ns_add_u32 s63, s63, {XP}\nv_lshlrev_b32 v243, 2, v1\nv_add_u32 v243, s63, v243")
        a(f"s_lshl_b32 s62, s62, 7\ns_lshl_b32 s63, s74, 2\ns_add_u32 s62, s62, s63\ns_add_u32 s62, s62, {UF}\nv_mov_b32 v244, s62")
        a(f"v_lshlrev_b32 v241, 2, v1\nv_add_u32 v242, {RR}, v241\ns_lshl_b32 s62, {SW}, 7\nv_add_u32 v241, s62, v242")
        if opt.get('ptouch', 0):
            a(f"s_mov_b64 exec, 1\nbuffer_load_dword v252, v243, {S_WS}, 0 offen\nbuffer_load_dword v252, v243, {S_WS}, 0 offen offset:2048\ns_mov_b64 exec, -1")
        if opt.get('prewarm', 1):
            a(f"v_lshlrev_b32 v253, 7, v3\nbuffer_load_dword v252, v253, {S_WS}, s101 offen {LF}")
    def sentinel(base):
        lab = f"L_s{base}"
        a(f"s_cmp_eq_u32 {SW}, 0\ns_cbranch_scc0 {lab}")
        a(f"v_mov_b32 v240, {TAG}\nv_mov_b32 v241, {TAG}\nv_mov_b32 v242, {TAG}\nv_mov_b32 v243, {TAG}\nv_lshlrev_b32 v244, 4, v1")
        a(f"s_lshl_b32 s62, {SR}, 7\ns_add_u32 s62, s62, {base}\ns_mov_b64 exec, 0xff")
        a(f"buffer_store_dwordx4 v[240:243], v244, {S_WS}, s62 offen sc1")
        a(f"s_mov_b64 exec, -1\n{lab}:")

    NW = 1 if WARM else 0
    PWX = 1 if opt.get("prewarm", 1) else 0

    a.c("================= S1: q partials, head h1 = 4*xcd + (idx>>3), rows 80*me..80*me+79, me = idx&7")
    a(f"buffer_load_dwordx3 v[52:54], v7, {S_X}, 0 offen")
    for i in range(5):
        a(f"buffer_load_dwordx4 {vr(60+4*i)}, v8, {S_A}, s61 offen{NT}")
        if i < 4: a(f"s_add_u32 s61, s61, 8192")
    WL = 1 if (WARM and WPOS == 1) else 0
    if WL: warm_load()
    a("s_bitcmp1_b32 s2, 7\ns_cbranch_scc1 L_nouk")
    srd(S_B, 10, 4194304)
    a(f"s_lshl_b32 s66, {SSUB}, 20\ns_lshl_b32 s63, {SH}, 8\ns_add_u32 s66, s66, s63\ns_lshl_b32 s63, {SW}, 18\ns_add_u32 s66, s66, s63")
    a(f"s_lshl_b32 s67, {SW}, 13")
    NUP = opt.get('nup', 8)
    def uk_dma(k):
        a(f"s_mov_b32 m0, s67\ns_add_u32 s67, s67, 1024")
        a(f"buffer_load_dwordx4 v{9+(k&3)}, {S_B}, s66 offen{NT} lds")
        if k < 7: a(f"s_add_u32 s66, s66, 32768")
    for k in range(NUP): uk_dma(k)
    if PWX:
        a(f"v_and_b32 v253, 31, v1\nv_lshlrev_b32 v253, 7, v253\ns_lshl_b32 s62, {SH}, 12\ns_add_u32 s62, s62, {QG}")
        a(f"buffer_load_dword v252, v253, {S_WS}, s62 offen {LF}")
    PTX = 0
    if opt.get('ptouch', 0):
        a(f"s_lshl_b32 s62, {SR}, 9\ns_lshl_b32 s63, {SW}, 7\ns_add_u32 s62, s62, s63\ns_add_u32 s62, s62, {QA}")
        a(f"buffer_load_dword v252, v18, {S_WS}, s62 offen")
        PTX = 1
    a("s_branch L_s1c")
    a("L_nouk:")
    EARLY = opt.get('early', 0)
    ER = opt.get('erows', 0)
    def ckv_group(q, j0=0, j1=8):
        a(f"s_add_u32 s62, {SSUB}, {q}\ns_and_b32 s62, s62, 3\ns_add_u32 s63, s69, {(q*8+j0)*CKV_STRIDE}\ns_lshl_b32 s62, s62, 13\ns_add_u32 s62, s62, s68")
        if j0: a(f"s_add_u32 s62, s62, {1024*j0}")
        for j in range(j0, j1):
            a(f"s_mov_b32 m0, s63\ns_add_u32 s63, s63, {CKV_STRIDE}")
            a(f"buffer_load_dwordx4 v9, {S_B}, s62 offen{' nt' if opt.get('ntc', 0) == 2 or (opt.get('ntc', 0) == 1 and q == 0) else ''} lds")
            if j < j1-1: a(f"s_add_u32 s62, s62, 1024")
    srd(S_B, 6, 4194304)
    a("v_lshlrev_b32 v9, 4, v1")
    a(f"s_lshl_b32 s68, {SH}, 17\ns_lshl_b32 s63, {SW}, 15\ns_add_u32 s68, s68, s63")
    a(f"s_mul_i32 s69, {SW}, {32*CKV_STRIDE}")
    for q in range(EARLY): ckv_group(q)
    if ER: ckv_group(0, 0, ER)
    a("L_s1c:")
    a(f"v_lshlrev_b32 v241, 9, v6\nv_lshl_add_u32 v241, v3, 4, v241\nv_add_u32 v241, {S1RED_C}, v241")
    a(f"v_and_b32 v14, 31, v1\nv_lshrrev_b32 v242, 3, v14\ns_lshl_b32 s62, {SW}, 2\nv_add_u32 v242, s62, v242\nv_lshlrev_b32 v242, 4, v242")
    a("v_bfe_u32 v16, v1, 2, 1\nv_lshl_add_u32 v242, v16, 8, v242\nv_and_b32 v16, 3, v1\nv_lshl_add_u32 v242, v16, 2, v242\nv_lshrrev_b32 v16, 5, v1\nv_lshl_add_u32 v242, v16, 12, v242")
    a(f"v_add_u32 v242, {S1RED_C}, v242")
    a(f"s_lshl_b32 s70, s72, 12\ns_lshl_b32 s63, {SW}, 10\ns_add_u32 s70, s70, s63\ns_lshl_b32 s63, s73, 4\ns_add_u32 s70, s70, s63\ns_add_u32 s70, s70, {QG}\ns_add_u32 s71, s70, {QGB-QG}")
    a("v_lshrrev_b32 v237, 3, v14\nv_lshlrev_b32 v237, 7, v237\nv_bfe_u32 v16, v14, 2, 1\nv_lshl_add_u32 v237, v16, 9, v237\nv_bfe_u32 v16, v14, 1, 1\nv_lshl_add_u32 v237, v16, 3, v237")
    stamp(1)
    def s1_body(extra, late=()):
        late = list(late)
        a(f"s_waitcnt vmcnt({6+extra})")
        a(f"v_readfirstlane_b32 {TAG}, v250\ns_add_u32 {TAG}, {TAG}, 1")
        a("s_mov_b32 s63, 0xffff0000")
        for j in range(5):
            a(f"v_lshlrev_b32 v{100+2*j}, 16, v{32+j}\nv_and_b32 v{101+2*j}, s63, v{32+j}")
        a("v_readfirstlane_b32 s64, v100")
        for k in range(100, 110): a(f"v_subrev_f32 v{k}, s64, v{k}")
        a("s_mov_b32 s3, s64")
        a("v_add_f32 v110, v100, v101\nv_mul_f32 v112, v100, v100")
        a("v_fmac_f32 v112, v101, v101")
        for k in range(102, 110): a(f"v_add_f32 v110, v110, v{k}\nv_fmac_f32 v112, v{k}, v{k}")
        wave_allreduce("v_add_f32", ["v110", "v112"], ["v111", "v113"])
        a(f"s_mov_b32 s65, {f2u(1.0/640):#x}\nv_mul_f32 v110, s65, v110\nv_mul_f32 v112, s65, v112")
        a(f"v_fma_f32 v112, -v110, v110, v112\nv_add_f32 v112, {f2u(EPS):#x}, v112\nv_rsq_f32 v113, v112")
        a("v_add_f32 v110, s64, v110")
        a(f"s_waitcnt vmcnt({5+extra})")
        a("v_alignbit_b32 v55, v53, v52, v255\nv_alignbit_b32 v56, v54, v53, v255\nv_lshrrev_b32 v57, v255, v54")
        a("v_lshlrev_b32 v40, 16, v55\nv_and_b32 v42, s63, v55\nv_lshlrev_b32 v44, 16, v56\nv_and_b32 v46, s63, v56\nv_lshlrev_b32 v48, 16, v57")
        for i in range(5):
            r = 40+2*i
            a(f"v_sub_f32 v{r}, v{r}, v110\nv_mul_f32 v{r}, v{r}, v113")
        for k in range(100, 108): a(f"v_mov_b32 v{k}, 0")
        issued = 0
        for i in range(5):
            a(f"s_waitcnt vmcnt({4-i+extra+issued})")
            w = 60+4*i; l = 40+2*i
            for d in range(4):
                a(f"v_lshlrev_b32 v{108+2*(d&1)}, 16, v{w+d}\nv_and_b32 v{109+2*(d&1)}, s63, v{w+d}")
                a(f"v_pk_fma_f32 v[{100+2*d}:{101+2*d}], v[{108+2*(d&1)}:{109+2*(d&1)}], v[{l}:{l+1}], v[{100+2*d}:{101+2*d}] op_sel_hi:[1,0,1]")
            if late:
                late.pop(0)(); issued += 1
    a("s_bitcmp1_b32 s2, 7\ns_cbranch_scc1 L_s1y")
    s1_body(NUP+PWX+WL+PTX, [(lambda k=k: uk_dma(k)) for k in range(NUP, 8)])
    a("s_branch L_s1r")
    a("L_s1y:")
    s1_body(8*EARLY+WL+ER)
    a("L_s1r:")
    stamp(2)
    MID = opt.get('mid', 0)
    a("ds_write_b128 v241, v[100:103]\nds_write_b128 v241, v[104:107] offset:256")
    if MID:
        a("s_bitcmp1_b32 s2, 7\ns_cbranch_scc0 L_nomid")
        ckv_group(0)
        a("L_nomid:")
    a("s_waitcnt lgkmcnt(0)\ns_barrier")
    for k in range(4): a(f"ds_read2st64_b32 v[{100+2*k}:{101+2*k}], v242 offset0:{4*k} offset1:{4*k+2}")
    a("s_waitcnt lgkmcnt(0)")
    a("v_add_f32 v100, v100, v101\nv_add_f32 v102, v102, v103\nv_add_f32 v104, v104, v105\nv_add_f32 v106, v106, v107")
    a("v_add_f32 v100, v100, v102\nv_add_f32 v104, v104, v106\nv_add_f32 v100, v100, v104")
    swap32("v_add_f32", ["v100"], ["v101"])
    a("v_mov_b32_dpp v101, v100 row_shl:1 row_mask:0xf bank_mask:0xf")
    a(f"v_cvt_pk_bf16_f32 v238, v100, v101\nv_mov_b32 v239, {TAG}")
    a("s_mov_b32 exec_lo, 0x55555555\ns_mov_b32 exec_hi, 0")
    a(f"buffer_store_dwordx2 v[238:239], v237, {S_WS}, s70 offen")
    a("s_bitcmp1_b32 s2, 7\ns_cbranch_scc0 L_Xgo")
    a(f"buffer_store_dwordx2 v[238:239], v237, {S_WS}, s71 offen sc1")
    a("s_mov_b64 exec, -1")
    a("s_branch L_Y")
    a("L_Xgo:")
    a("s_mov_b64 exec, -1")

    a.c("================= X role: S2 (q_abs), S4 (ctx partial), R")
    srd(S_C, 12, 4194304)
    G1E = opt.get('g1early', 1)
    a(f"v_and_b32 v17, 7, v3\nv_lshlrev_b32 v17, 4, v17\nv_lshl_add_u32 v17, v4, 7, v17\ns_lshl_b32 s63, {SH}, 12\ns_add_u32 s63, s63, {QG}\ns_add_u32 s64, s63, {QGB-QG}")
    if G1E:
        a(f"s_waitcnt vmcnt({1+opt.get('g1k', 2)})")
        for s in range(4):
            r = 148+8*s
            a(f"buffer_load_dwordx4 {vr(r)}, v17, {S_WS}, s63 offen offset:{1024*s} {LF}")
            a(f"buffer_load_dwordx4 {vr(r+4)}, v17, {S_WS}, s63 offen offset:{1024*s+512} {LF}")
    a(f"s_lshl_b32 s62, {SW}, 5\nv_add_u32 v13, s62, v3\nv_lshlrev_b32 v13, 8, v13\nv_xor_b32 v14, v3, v4\nv_lshl_add_u32 v13, v14, 4, v13")
    a("v_xor_b32 v14, 64, v13\nv_xor_b32 v15, 128, v13\nv_xor_b32 v16, 192, v13")
    a(f"s_waitcnt vmcnt({9 if G1E else 1})")
    for tile in range(2):
        for s in range(4):
            a(f"ds_read_b128 {vr(116+(tile*4+s)*4)}, v{13+s} offset:{WUK+4096*tile}")
    stamp(3)
    a("v_mov_b32 v13, v17")
    if G1E:
        a("s_waitcnt vmcnt(0)")
        tagcheck("v14", [f"v{148+8*s+k}" for s in range(4) for k in (1,3,5,7)])
        a("s_mov_b32 s61, 0\nv_cmp_ne_u32 vcc, 0, v14\ns_cbranch_vccz L_p1_x")
        if MASKED: a("s_and_b64 exec, exec, vcc")
    def qgb_store():
        a("s_mov_b64 s[78-2:78-1], exec" if False else "s_mov_b64 s[98:99], exec")
        a("s_mov_b32 exec_lo, 0x55555555\ns_mov_b32 exec_hi, 0")
        a(f"buffer_store_dwordx2 v[238:239], v237, {S_WS}, s71 offen sc1")
        a("s_mov_b64 exec, s[98:99]")
    poll_begin("L_p1", ("s62", "s63", "s64"))
    a(f"s_cmp_eq_u32 s61, {BP}\ns_cbranch_scc0 L_p1n")
    qgb_store()
    a("L_p1n:")
    def dual_loads(name, emit):
        a(f"s_cmp_eq_u32 s75, {BP}\ns_cbranch_scc1 {name}_b")
        emit(LF)
        a(f"s_branch {name}_c\n{name}_b:")
        emit("sc1")
        a(f"{name}_c:")
    def g1_loads(fl):
        for s in range(4):
            r = 148+8*s
            a(f"buffer_load_dwordx4 {vr(r)}, v13, {S_WS}, s62 offen offset:{1024*s} {fl}")
            a(f"buffer_load_dwordx4 {vr(r+4)}, v13, {S_WS}, s62 offen offset:{1024*s+512} {fl}")
    dual_loads("L_p1", g1_loads)
    a("s_waitcnt vmcnt(0)")
    tagcheck("v14", [f"v{148+8*s+k}" for s in range(4) for k in (1,3,5,7)])
    poll_end("L_p1", "v14")
    a(f"s_cmp_gt_u32 s61, {BP}\ns_cbranch_scc1 L_p1m")
    qgb_store()
    a("L_p1m:")
    stamp(4)
    if opt.get('sent2', 0): sentinel(SENT2)
    for s in range(4):
        r = 148+8*s
        a(f"v_mov_b32 v{r+1}, v{r+2}\nv_mov_b32 v{r+2}, v{r+4}\nv_mov_b32 v{r+3}, v{r+6}")
    a("s_waitcnt lgkmcnt(0)")
    for s in range(4):
        for tile in range(2):
            mfma(vr(180+4*tile), vr(148+8*s), vr(116+(tile*4+s)*4), s == 0)
    a(f"s_mov_b32 s63, {f2u(SCALE):#x}")
    a("v_lshlrev_b32 v13, 2, v3\nv_lshl_add_u32 v13, v4, 6, v13\nv_cmp_eq_u32 vcc, 1, v4")
    a(f"s_lshl_b32 s62, {SR}, 9\ns_lshl_b32 s64, {SW}, 7\ns_add_u32 s62, s62, s64\ns_add_u32 s62, s62, {QA}")
    a("v_add_f32 v180, v180, v181\nv_add_f32 v184, v184, v185\nv_add_f32 v182, v182, v183\nv_add_f32 v186, v186, v187")
    a("v_add_f32 v180, v180, v182\nv_add_f32 v184, v184, v186")
    swap16("v_add_f32", ["v180", "v184"], ["v181", "v185"])
    a("v_cndmask_b32 v180, v180, v184, vcc\nv_mul_f32 v180, s63, v180")
    a("v_mov_b32_dpp v181, v180 row_shl:1 row_mask:0xf bank_mask:0xf")
    a(f"v_cvt_pk_bf16_f32 v188, v180, v181\nv_mov_b32 v189, {TAG}")
    a("s_mov_b32 exec_lo, 0x55555555\ns_mov_b32 exec_hi, 0")
    a(f"buffer_store_dwordx2 v[188:189], v13, {S_WS}, s62 offen sc1")
    a("s_mov_b64 exec, -1")
    stamp(5)
    a("v_lshrrev_b32 v15, 1, v3\nv_and_b32 v16, 1, v4\nv_lshlrev_b32 v16, 2, v16\nv_xor_b32 v15, v15, v16\nv_lshlrev_b32 v15, 5, v15\nv_and_b32 v16, 1, v0\nv_lshl_add_u32 v15, v16, 4, v15\nv_lshl_add_u32 v15, v4, 13, v15")
    a(f"s_lshl_b32 s62, {SW}, 1\ns_and_b32 s63, s62, 3\ns_lshl_b32 s63, s63, 5\nv_xor_b32 v16, s63, v15\ns_add_u32 s62, s62, 1\ns_and_b32 s63, s62, 3\ns_lshl_b32 s63, s63, 5\nv_xor_b32 v15, s63, v15")
    a(f"s_lshl_b32 s62, {SSUB}, 20\ns_lshl_b32 s63, {SH}, 8\ns_add_u32 s62, s62, s63\ns_lshl_b32 s63, {SW}, 18\ns_add_u32 s62, s62, s63")
    a(f"s_lshl_b32 s63, {SW}, 13\ns_add_u32 s63, s63, {WUV}")
    for k in range(8):
        a(f"s_mov_b32 m0, s63\ns_add_u32 s63, s63, 1024")
        a(f"buffer_load_dwordx4 {'v16' if k < 4 else 'v15'}, {S_C}, s62 offen{NT if opt.get('ntuv', 1) else ''} lds")
        if k < 7: a("s_add_u32 s62, s62, 32768")
    rewarm("x")
    m_coef_loads()
    tail_prefetch()
    a("s_waitcnt vmcnt(0)\ns_barrier")
    a("v_lshrrev_b32 v19, 2, v3\nv_lshl_add_u32 v19, v4, 2, v19")
    a("v_lshrrev_b32 v20, 2, v3\nv_and_b32 v21, 1, v4\nv_lshl_add_u32 v21, v21, 2, v20")
    a(f"s_lshl_b32 s62, {SW}, 1\nv_xor_b32 v21, s62, v21\nv_lshlrev_b32 v21, 5, v21")
    a("v_lshl_add_u32 v20, v20, 4, v4\nv_lshl_add_u32 v20, v20, 8, v21\nv_and_b32 v21, 3, v3\nv_lshl_add_u32 v20, v21, 3, v20\nv_xor_b32 v21, 32, v20")
    for tt in range(2):
        for j in range(4):
            for u in range(2):
                r = 60+(tt*4+j)*4+2*u; tau = 2*j+u
                a(f"ds_read_b64_tr_b16 v[{r}:{r+1}], {'v20' if tt==0 else 'v21'} offset:{WUV+16384*(tau>>2)+1024*(tau&3)}")
    m_coef_unpack()
    a("v_lshlrev_b32 v22, 4, v0\nv_and_b32 v23, 31, v1\nv_lshlrev_b32 v23, 9, v23")
    a(f"s_lshl_b32 s62, {SR}, 14\ns_add_u32 s66, s62, {OP}\ns_add_u32 s67, s66, 4096\ns_add_u32 s68, s66, 8192\ns_add_u32 s69, s66, 12288")
    a(f"s_lshr_b32 s62, {SH}, 3\ns_lshl_b32 s62, s62, 7\ns_and_b32 s63, {SH}, 7\ns_lshl_b32 s63, s63, 4\ns_add_u32 s62, s62, s63\ns_add_u32 s70, s62, {ST}")
    a(f"v_lshrrev_b32 v24, 5, v0\nv_mul_u32_u24 v24, 288, v24\nv_and_b32 v25, 31, v0\nv_lshl_add_u32 v24, v25, 3, v24\nv_add_u32 v24, {OS}, v24")
    a(f"s_lshl_b32 s62, {SW}, 7\ns_add_u32 s71, s62, {WX}\nv_and_b32 v25, 31, v1\nv_lshlrev_b32 v25, 2, v25\nv_add_u32 v25, s71, v25")
    a(f"v_lshlrev_b32 v27, 4, v4\nv_add_u32 v27, s71, v27")
    a(f"v_mul_u32_u24 v28, 288, v19\nv_and_b32 v29, 3, v3\nv_lshl_add_u32 v28, v29, 3, v28\nv_add_u32 v28, {OS}, v28")
    a(f"s_lshl_b32 s72, {SH}, 11\ns_lshl_b32 s63, {SW}, 9\ns_add_u32 s72, s72, s63\ns_lshl_b32 s63, {SSUB}, 4\ns_add_u32 s72, s72, s63\ns_add_u32 s72, s72, {CP}\ns_add_u32 s73, s72, {CPB-CP}")
    a("v_lshrrev_b32 v30, 2, v3\nv_lshlrev_b32 v30, 6, v30\nv_bfe_u32 v14, v3, 1, 1\nv_lshl_add_u32 v30, v14, 3, v30\nv_lshl_add_u32 v30, v4, 8, v30\nv_cmp_eq_u32 s[8:9], 1, v4")
    stamp(6)
    if opt.get('gate3', 0):
        a(f"s_and_b32 s62, s2, 7\ns_lshl_b32 s62, s62, 7\ns_add_u32 s62, s62, {YF}\nv_lshlrev_b32 v16, 2, v1\ns_mov_b64 exec, 0xffff\ns_mov_b32 s61, 0")
        a("L_g3:")
        a(f"buffer_load_dword v100, v16, {S_WS}, s62 offen {LF}\ns_waitcnt vmcnt(0)")
        a(f"v_cmp_ne_u32 vcc, {TAG}, v100\ns_add_u32 s61, s61, 1\ns_cmp_gt_u32 s61, 64\ns_cbranch_scc1 L_g3x\ns_cbranch_vccnz L_g3")
        a("L_g3x:\ns_mov_b64 exec, -1")
    a("s_mov_b32 exec_hi, 0")
    poll_begin("L_p3a")
    a(f"buffer_load_dwordx4 v[116:119], v23, {S_WS}, s70 offen sc1")
    a("s_waitcnt vmcnt(0)")
    tagcheck("v14", ["v117", "v119"])
    poll_end("L_p3a", "v14")
    if opt.get('dbg3'): stamp(10)
    for i in range(4):
        a(f"buffer_load_dwordx4 {vr(100+4*i)}, v22, {S_WS}, s{66+i} offen sc1{GN}")
    a("v_mov_b32 v120, v116")
    row_allreduce("v_max_f32", ["v120"]); swap16("v_max_f32", ["v120"], ["v121"])
    a("v_sub_f32 v116, v116, v120\nv_exp_f32 v116, v116\nv_mul_f32 v118, v116, v118")
    row_allreduce("v_add_f32", ["v118"]); swap16("v_add_f32", ["v118"], ["v121"])
    a("v_rcp_f32 v118, v118\nv_mul_f32 v116, v116, v118")
    a("s_mov_b32 exec_hi, 0\nds_write_b32 v25, v116\ns_mov_b64 exec, -1")
    a("ds_read_b128 v[120:123], v27\nds_read_b128 v[124:127], v27 offset:64")
    a("s_waitcnt vmcnt(0)")
    tagcheck("v14", [f"v{100+4*i+k}" for i in range(4) for k in (1,3)])
    a("v_cmp_ne_u32 vcc, 0, v14\ns_cbranch_vccz L_p3b_x")
    if MASKED: a("s_and_b64 exec, exec, vcc")
    poll_begin("L_p3b")
    for i in range(4):
        a(f"buffer_load_dwordx4 {vr(100+4*i)}, v22, {S_WS}, s{66+i} offen sc1{GN}")
    a("s_waitcnt vmcnt(0)")
    tagcheck("v14", [f"v{100+4*i+k}" for i in range(4) for k in (1,3)])
    poll_end("L_p3b", "v14")
    stamp(7)
    for i in range(4):
        a(f"v_mov_b32 v{101+4*i}, v{102+4*i}\nds_write_b64 v24, v[{100+4*i}:{101+4*i}] offset:{2304*i}")
    a("s_waitcnt lgkmcnt(0)\ns_barrier")
    for t in range(8):
        for u in range(2):
            r = 132+4*t+2*u
            a(f"ds_read_b64_tr_b16 v[{r}:{r+1}], v28 offset:{4608*u+32*t}")
    a("v_cvt_pk_bf16_f32 v128, v120, v121\nv_cvt_pk_bf16_f32 v129, v122, v123\nv_cvt_pk_bf16_f32 v130, v124, v125\nv_cvt_pk_bf16_f32 v131, v126, v127")
    for t in range(8):
        a(f"s_waitcnt lgkmcnt({14-2*t})")
        mfma(vr(164+4*t), vr(132+4*t), vr(128), True)
    for j in range(4):
        d0 = 164+8*j; o = 100+4*j
        a(f"v_cvt_pk_bf16_f32 v{o}, v{d0}, v{d0+1}\nv_cvt_pk_bf16_f32 v{o+1}, v{d0+2}, v{d0+3}\nv_cvt_pk_bf16_f32 v{o+2}, v{d0+4}, v{d0+5}\nv_cvt_pk_bf16_f32 v{o+3}, v{d0+6}, v{d0+7}")
    for j in range(4):
        for tt in range(2):
            mfma(vr(116+4*tt), vr(100+4*j), vr(60+(tt*4+j)*4), j == 0)
    a("v_cndmask_b32 v116, v116, v120, s[8:9]")
    a("v_mov_b32_dpp v117, v116 row_shl:1 row_mask:0xf bank_mask:0xf")
    a(f"v_cvt_pk_bf16_f32 v118, v116, v117\nv_mov_b32 v119, {TAG}")
    a("s_mov_b32 exec_lo, 0x55555555\ns_mov_b32 exec_hi, 0")
    a(f"buffer_store_dwordx2 v[118:119], v30, {S_WS}, s72 offen")
    a(f"buffer_store_dwordx2 v[118:119], v30, {S_WS}, s73 offen sc1")
    a("s_mov_b64 exec, -1")
    stamp(8)
    a("s_branch L_M")

    a.c("================= Y role: S3 (attention), S5 (out partial)")
    a("L_Y:")
    a("v_lshlrev_b32 v5, 4, v1")
    YD = 0
    for q in range(max(EARLY, MID), 4): ckv_group(q, ER if q == 0 else 0, 8)
    stamp(1)
    srd(S_B, 14, 5242880)
    a("s_bfe_u32 s74, s2, 0x40003")
    YPRE = opt.get('ypre', 0)
    PWY = 0
    if YPRE:
        m_coef_loads()
        tail_prefetch()
        s5_addresses()
        PWY = 13 + 1 + (1 if opt.get('gate', 1) else 0) + (1 if opt.get('prewarm', 1) else 0)
    a(f"s_lshl_b32 s62, {SW}, 5\nv_add_u32 v6, s62, v3\nv_mul_u32_u24 v6, {CKV_STRIDE}, v6\nv_lshl_add_u32 v6, v4, 4, v6")
    a("v_lshrrev_b32 v19, 2, v3\nv_lshl_add_u32 v19, v4, 2, v19")
    a(f"v_mul_u32_u24 v7, {CKV_STRIDE}, v19\nv_and_b32 v8, 3, v3\nv_lshl_add_u32 v7, v8, 3, v7\ns_lshl_b32 s62, {SW}, 8\nv_add_u32 v7, s62, v7\nv_add_u32 v8, {64*CKV_STRIDE}, v7")
    a("v_lshlrev_b32 v22, 4, v0")
    a(f"s_lshl_b32 s62, {SSUB}, 14\ns_add_u32 s66, s62, {QA}\ns_add_u32 s67, s66, 4096\ns_add_u32 s68, s66, 8192\ns_add_u32 s69, s66, 12288")
    a(f"v_lshrrev_b32 v24, 7, v0\nv_mul_u32_u24 v24, {CKV_STRIDE}, v24\nv_and_b32 v25, 127, v0\nv_lshl_add_u32 v24, v25, 3, v24\nv_add_u32 v24, {QS}, v24")
    a(f"v_and_b32 v25, 7, v3\nv_mul_u32_u24 v25, {CKV_STRIDE}, v25\nv_lshl_add_u32 v25, v4, 4, v25\nv_add_u32 v25, {QS}, v25")
    a(f"s_lshl_b32 s62, {SW}, 2\ns_add_u32 s62, s62, {MX}\nv_lshlrev_b32 v26, 4, v3\nv_add_u32 v27, s62, v26\nv_add_u32 v28, {MX}, v26")
    a(f"s_lshl_b32 s62, {SW}, 10\ns_add_u32 s62, s62, {PX}\nv_add_u32 v29, s62, v5\nv_add_u32 v31, {PX}, v5")
    for k in range(4): a(f"v_mov_b32 v{184+k}, 0x3f803f80")
    a(f"s_and_b32 s62, s2, 7\ns_lshl_b32 s62, s62, 7\ns_bfe_u32 s63, s2, 0x40003\ns_lshl_b32 s63, s63, 2\ns_add_u32 s62, s62, s63\ns_add_u32 s62, s62, {YF}\nv_mov_b32 v183, s62")
    a("v_and_b32 v21, 1, v3\nv_cmp_eq_u32 s[8:9], 1, v21\nv_and_b32 v21, 2, v3\nv_cmp_eq_u32 s[10:11], 2, v21")
    OSPLIT = opt.get('osplit', 1)
    if OSPLIT:
        a("v_and_b32 v30, 1, v4\nv_lshlrev_b32 v30, 18, v30\nv_lshl_add_u32 v30, v3, 4, v30\nv_lshrrev_b32 v21, 1, v4\nv_lshl_add_u32 v30, v21, 17, v30\nv_cmp_eq_u32 s[12:13], 1, v21")
    else:
        a("v_and_b32 v30, 1, v4\nv_lshlrev_b32 v30, 18, v30\nv_lshl_add_u32 v30, v3, 4, v30\nv_lshrrev_b32 v21, 1, v4\nv_lshl_add_u32 v30, v21, 8, v30\nv_cmp_eq_u32 s[12:13], 1, v21")
    a(f"s_lshl_b32 s73, {SSUB}, 19\ns_lshl_b32 s63, {SW}, 14\ns_add_u32 s73, s73, s63\ns_lshl_b32 s63, {SH}, 9\ns_add_u32 s73, s73, s63\ns_add_u32 s73, s73, {OP}")
    a(f"s_lshl_b32 s72, {SR}, 7\ns_add_u32 s72, s72, {ST}")
    G2E = opt.get('g2early', 1)
    for tile in range(2):
        if tile == 1 and G2E:
            for i in range(4):
                a(f"buffer_load_dwordx4 {vr(100+4*i)}, v22, {S_WS}, s{66+i} offen sc1{GN}")
        a(f"s_waitcnt vmcnt({PWY + (16 if tile == 0 else (4 if G2E else 0))})")
        if tile == 1: stamp(2)
        for s in range(16):
            a(f"ds_read_b128 {ar((tile*16+s)*4)}, v6 offset:{tile*16*CKV_STRIDE+64*s}")
    stamp(3)
    if opt.get('sent2', 0):
        poll_begin("L_p2a")
        a(f"buffer_load_dword v100, v23, {S_WS}, s70 offen sc1")
        a("s_waitcnt vmcnt(0)")
        tagcheck("v14", ["v100"])
        poll_end("L_p2a", "v14")
    if G2E:
        a("s_waitcnt vmcnt(0)")
        tagcheck("v14", [f"v{100+4*i+k}" for i in range(4) for k in (1,3)])
        a("v_cmp_ne_u32 vcc, 0, v14\ns_cbranch_vccz L_p2_x")
        if MASKED: a("s_and_b64 exec, exec, vcc")
    poll_begin("L_p2")
    for i in range(4):
        a(f"buffer_load_dwordx4 {vr(100+4*i)}, v22, {S_WS}, s{66+i} offen sc1{GN}")
    a("s_waitcnt vmcnt(0)")
    tagcheck("v14", [f"v{100+4*i+k}" for i in range(4) for k in (1,3)])
    poll_end("L_p2", "v14")
    stamp(4)
    for i in range(4):
        a(f"v_mov_b32 v{101+4*i}, v{102+4*i}\nds_write_b64 v24, v[{100+4*i}:{101+4*i}] offset:{2*CKV_STRIDE*i}")
    a("s_waitcnt lgkmcnt(0)\ns_barrier")
    for s in range(16):
        a(f"ds_read_b128 {vr(32+4*s)}, v25 offset:{64*s}")
    if opt.get('ptouch', 0):
        a(f"v_lshrrev_b32 v253, 2, v1\nv_lshlrev_b32 v253, 16, v253\nv_and_b32 v252, 3, v1\nv_lshl_add_u32 v253, v252, 7, v253\ns_mov_b32 exec_hi, 0")
        a(f"buffer_load_dword v252, v253, {S_WS}, s73 offen\ns_mov_b64 exec, 1")
        a(f"buffer_load_dword v252, v18, {S_WS}, s72 offen\ns_mov_b64 exec, -1")
    wo_n = [0]
    a(f"s_mul_i32 s71, {SR}, 40960")
    def wo_load():
        i = wo_n[0]; wo_n[0] += 1
        a(f"buffer_load_dwordx4 {vr(192)}, v22, {S_B}, s71 offen{' nt' if opt.get('ntwo', 0) else ''}\ns_add_u32 s71, s71, 4096")
    pv = []
    for t in range(8):
        for j in range(4):
            for u in range(2):
                r = 128+(t*4+j)*4+2*u
                pv.append(f"ds_read_b64_tr_b16 a[{r}:{r+1}], {'v7' if j < 2 else 'v8'} offset:{(32*(j&1)+16*u)*CKV_STRIDE+32*t}")
    for s in range(16):
        if s < 4: a(f"s_waitcnt lgkmcnt({12-4*s})")
        for tile in range(2):
            sidx = s
            mfma(vr(100+4*tile), ar((tile*16+s)*4), vr(32+4*s), s == 0)
            if s >= 3:
                for _ in range(3 if pv else 0):
                    if pv: a(pv.pop(0))
            if tile == 1 and s in (2, 5, 8, 11, 14): wo_load()
    while pv: a(pv.pop(0))
    stamp(5)
    a("v_max3_f32 v108, v100, v101, v102\nv_max3_f32 v109, v103, v104, v105\nv_max3_f32 v108, v108, v106, v107\nv_max_f32 v108, v108, v109")
    swap16("v_max_f32", ["v108"], ["v109"]); swap32("v_max_f32", ["v108"], ["v109"])
    a("ds_write_b32 v27, v108")
    a("s_waitcnt lgkmcnt(0)\ns_barrier")
    a(f"ds_read_b128 v[108:111], v28\ns_waitcnt lgkmcnt(0)")
    a("v_max3_f32 v108, v108, v109, v110\nv_max_f32 v108, v108, v111")
    for k in range(8): a(f"v_sub_f32 v{100+k}, v{100+k}, v108")
    for k in range(8): a(f"v_exp_f32 v{100+k}, v{100+k}")
    a("v_cvt_pk_bf16_f32 v112, v100, v101\nv_cvt_pk_bf16_f32 v113, v102, v103\nv_cvt_pk_bf16_f32 v114, v104, v105\nv_cvt_pk_bf16_f32 v115, v106, v107")
    a("ds_write_b128 v29, v[112:115]")
    a("s_waitcnt lgkmcnt(0)\ns_barrier")
    if opt.get('dbg3'): stamp(10)
    G3G = opt.get('gate3', 0)
    if G3G:
        a(f"s_cmp_eq_u32 {SW}, 0\ns_cbranch_scc0 L_nh3\nv_mov_b32 v21, {TAG}\ns_mov_b64 exec, 1")
        a(f"buffer_store_dword v21, v183, {S_WS}, 0 offen\ns_mov_b64 exec, -1\nL_nh3:")
    for j in range(4): a(f"ds_read_b128 {vr(32+4*j)}, v31 offset:{1024*j}")
    STA = opt.get('stafter', 0)
    STMF = opt.get('stmf', 32)
    def stats_store():
        a(f"s_cmp_eq_u32 {SW}, 0\ns_cbranch_scc0 L_Y_nostat")
        a("v_cndmask_b32 v110, v188, v189, s[8:9]\nv_cndmask_b32 v111, v190, v191, s[8:9]\nv_cndmask_b32 v110, v110, v111, s[10:11]")
        a(f"v_mov_b32 v109, {TAG}\nv_mov_b32 v111, {TAG}")
        a("s_mov_b64 exec, 0x00f0000f")
        a(f"buffer_store_dwordx4 v[108:111], v26, {S_WS}, s72 offen sc1")
        a("s_mov_b64 exec, -1\nL_Y_nostat:")
    def o_pack(hf, k):
        o = 160+4*(2*hf+k); L = []
        for e in range(4):
            d = 120+4*(4*hf+e)
            L.append(f"v_cndmask_b32 v{d+k}, v{d+k}, v{d+2+k}, s[12:13]")
        d0 = 120+16*hf
        L += [f"v_cvt_pk_bf16_f32 v{o}, v{d0+k}, v{d0+4+k}", f"v_mov_b32 v{o+1}, {TAG}", f"v_cvt_pk_bf16_f32 v{o+2}, v{d0+8+k}, v{d0+12+k}", f"v_mov_b32 v{o+3}, {TAG}"]
        L.append(f"buffer_store_dwordx4 {vr(o)}, v30, {S_WS}, {'s73' if k == 0 else 's71x'} offen offset:{256*hf} sc1{SN}")
        return L
    if OSPLIT:
        a("s_add_u32 s75, s73, 65536")
        a("s_waitcnt lgkmcnt(0)")
        for j in range(4): mfma(vr(188), vr(32+4*j), vr(184), j == 0)
        pend = []
        n = 0
        for t in range(8):
            for j in range(4):
                mfma(vr(120+4*t), vr(32+4*j), ar(128+(t*4+j)*4), j == 0)
                n += 1
                if n in (4, 10, 16, 22, 28): wo_load()
                if n == 18:
                    stats_store()
                    pend = [x.replace('s71x', 's75') for x in o_pack(0, 0) + o_pack(0, 1)]
                if n > 18:
                    for _ in range(2):
                        if pend: a(pend.pop(0))
        while pend: a(pend.pop(0))
        for k in range(2):
            for x in o_pack(1, k): a(x.replace('s71x', 's75'))
    else:
        if STMF < 32:
            for j in range(4):
                a(f"s_waitcnt lgkmcnt({3-j})")
                mfma(vr(188), vr(32+4*j), vr(184), j == 0)
        for j in range(4):
            if STMF >= 32:
                a(f"s_waitcnt lgkmcnt({3-j})")
                mfma(vr(188), vr(32+4*j), vr(184), j == 0)
            for t in range(8):
                if j*8+t == STMF: stats_store()
                mfma(vr(120+4*t), vr(32+4*j), ar(128+(t*4+j)*4), j == 0)
                if (j*8+t) in (3, 9, 15, 21, 27): wo_load()
        if STMF < 32: STA = -1
        for r in range(4):
            if r == STA: stats_store()
            o = 160+4*r
            for e in range(4): a(f"v_cndmask_b32 v{120+4*e+r}, v{120+4*e+r}, v{136+4*e+r}, s[12:13]")
            a(f"v_cvt_pk_bf16_f32 v{o}, v{120+r}, v{124+r}\nv_mov_b32 v{o+1}, {TAG}\nv_cvt_pk_bf16_f32 v{o+2}, v{128+r}, v{132+r}\nv_mov_b32 v{o+3}, {TAG}")
            a(f"buffer_store_dwordx4 {vr(o)}, v30, {S_WS}, s73 offen sc1")
            if r < 3: a("s_add_u32 s73, s73, 65536")
        if STA == 4: stats_store()
    stamp(6)
    if YPRE: m_coef_unpack()
    a("s_add_u32 s65, s74, 16")
    a(f"s_waitcnt vmcnt({2 if OSPLIT else 4})")
    wo_slice_dma("s74", 0)
    a("s_cmp_lt_u32 s74, 4\ns_cbranch_scc0 L_Y_one")
    wo_slice_dma("s65", 32768)
    a("L_Y_one:")
    rewarm("y")
    if not YPRE:
        m_coef_loads()
        tail_prefetch()
        s5_addresses()
    a("s_waitcnt vmcnt(0)")
    wo_slice_frags(0, 0)
    a("s_cmp_lt_u32 s74, 4\ns_cbranch_scc0 L_Y_one2")
    wo_slice_frags(32768, 32)
    a("L_Y_one2:")
    if not YPRE: m_coef_unpack()
    stamp(7)
    a.c("================= S5: out[32u..32u+31] over the 4 heads of this XCD group (wave = head)")
    a(f"s_add_u32 s68, s101, {CPB-CP}")
    a("s_waitcnt lgkmcnt(0)")
    poll_begin("L_p4", ("s66", "s101", "s68"))
    G4D = opt.get('g4dense', 1)
    def g4_loads(fl):
        if G4D:
            a(f"buffer_load_dwordx4 v[140:143], v240, {S_WS}, s66 offen {fl}\nbuffer_load_dwordx4 v[144:147], v240, {S_WS}, s66 offen offset:1024 {fl}")
        else:
            for dq in range(4):
                a(f"buffer_load_dwordx4 {vr(100+8*dq)}, v240, {S_WS}, s66 offen offset:{512*dq} {fl}")
                a(f"buffer_load_dwordx4 {vr(104+8*dq)}, v240, {S_WS}, s66 offen offset:{512*dq+256} {fl}")
    dual_loads("L_p4", g4_loads)
    a("s_waitcnt vmcnt(0)")
    tagcheck("v14", ["v141", "v143", "v145", "v147"] if G4D else [f"v{100+8*dq+k}" for dq in range(4) for k in (1,3,5,7)])
    poll_end("L_p4", "v14")
    stamp(8)
    if G4D:
        a("v_mov_b32 v141, v142\nv_mov_b32 v145, v146")
        a("ds_write_b64 v236, v[140:141]\nds_write_b64 v236, v[144:145] offset:512")
        for dq in range(4): a(f"ds_read_b128 {vr(100+8*dq)}, v235 offset:{256*dq}")
        a("s_waitcnt lgkmcnt(0)")
    else:
        for dq in range(4):
            r = 100+8*dq
            a(f"v_mov_b32 v{r+1}, v{r+2}\nv_mov_b32 v{r+2}, v{r+4}\nv_mov_b32 v{r+3}, v{r+6}")
    a("v_cmp_eq_u32 vcc, 1, v4")
    def unit_mm(a0, d0, lds_off):
        for dq in range(4):
            for tt in range(2):
                mfma(vr(d0+4*tt), vr(100+8*dq), ar(a0+(tt*4+dq)*4), dq == 0)
        a(f"v_pk_add_f32 v[{d0}:{d0+1}], v[{d0}:{d0+1}], v[{d0+2}:{d0+3}]\nv_pk_add_f32 v[{d0+4}:{d0+5}], v[{d0+4}:{d0+5}], v[{d0+6}:{d0+7}]")
        a(f"v_add_f32 v{d0}, v{d0}, v{d0+1}\nv_add_f32 v{d0+4}, v{d0+4}, v{d0+5}")
        a(f"v_cndmask_b32 v{d0}, v{d0}, v{d0+4}, vcc")
        a(f"s_mov_b32 exec_hi, 0\nds_write_b32 v241, v{d0} offset:{lds_off}\ns_mov_b64 exec, -1")
    unit_mm(0, 156, 0)
    a("s_cmp_lt_u32 s74, 4\ns_cbranch_scc0 L_Y_one3")
    unit_mm(32, 148, 512)
    a("L_Y_one3:")
    a("s_waitcnt lgkmcnt(0)\ns_barrier")
    a(f"s_cmp_eq_u32 {SW}, 0\ns_cbranch_scc1 L_Y_pub\ns_cmp_eq_u32 {SW}, 1\ns_cbranch_scc0 L_M\ns_cmp_lt_u32 s74, 4\ns_cbranch_scc0 L_M")
    a(f"v_add_u32 v242, 512, v242\nv_add_u32 v243, {16*128}, v243\nv_add_u32 v244, 64, v244")
    a("L_Y_pub:")
    a("ds_read_b32 v136, v242\nds_read_b32 v137, v242 offset:128\nds_read_b32 v138, v242 offset:256\nds_read_b32 v139, v242 offset:384")
    a("s_waitcnt lgkmcnt(0)")
    a("v_pk_add_f32 v[136:137], v[136:137], v[138:139]\nv_add_f32 v136, v136, v137")
    a("v_mov_b32_dpp v137, v136 row_shl:1 row_mask:0xf bank_mask:0xf")
    a(f"v_cvt_pk_bf16_f32 v138, v136, v137\nv_mov_b32 v139, {TAG}")
    a("s_mov_b32 exec_lo, 0x55555555\ns_mov_b32 exec_hi, 0")
    a(f"buffer_store_dwordx2 v[138:139], v243, {S_WS}, 0 offen sc1")
    if opt.get('gate', 1):
        a("s_mov_b64 exec, 1")
        a(f"buffer_store_dword v139, v244, {S_WS}, 0 offen")
    a("s_mov_b64 exec, -1")

    a.c("================= M stage")
    a("L_M:")
    a("s_mul_i32 s64, s2, 3\ns_cmp_ge_u32 s64, 640\ns_cbranch_scc1 L_fin")
    a(f"v_mov_b32 v144, {f2u(C0):#x}\nv_mov_b32 v145, {f2u(C0):#x}")
    for k in range(3): a(f"v_mov_b32 v{146+2*k}, 0\nv_mov_b32 v{147+2*k}, 0")
    a(f"v_add_u32 v15, s64, v1\nv_min_u32 v15, 639, v15\nv_lshlrev_b32 v15, 2, v15\nv_add_u32 v15, {HB}, v15")
    a("v_mov_b32 v132, 0\nv_mov_b32 v133, 0")
    a(f"s_cmp_eq_u32 {SW}, 3\ns_cbranch_scc1 L_M_wait")
    a(f"v_lshlrev_b32 v13, 4, v0\ns_mov_b32 s66, {XP}\ns_mov_b32 s67, {XP+5120}\ns_mov_b32 s68, {XP+10240}\ns_mov_b32 s69, {XP+15360}")
    a("s_mov_b32 s63, 0xffff0000")
    a("v_lshlrev_b32 v136, 16, v246\nv_and_b32 v137, s63, v246\nv_lshlrev_b32 v138, 16, v247\nv_and_b32 v139, s63, v247")
    a(f"v_add_u32 v17, {HB}, v13\ns_lshl_b32 s62, {SW}, 3\ns_add_u32 s62, s62, {SB}\nv_mov_b32 v19, s62")
    a(f"s_cmp_eq_u32 {SW}, 2\ns_cselect_b32 s72, 0, -1\ns_mov_b32 exec_hi, s72")
    stamp(9)
    if opt.get('gate', 1):
        a(f"s_mov_b64 s[98:99], exec\ns_mov_b64 exec, 0xfffff\ns_and_b32 s62, s2, 7\ns_lshl_b32 s62, s62, 7\ns_add_u32 s62, s62, {UF}\nv_lshlrev_b32 v14, 2, v1\nv_mov_b32 v16, v14\ns_mov_b32 s61, 0")
        a("L_g6:")
        a(f"buffer_load_dword v100, v16, {S_WS}, s62 offen {LF}\ns_waitcnt vmcnt(0)")
        a(f"v_cmp_ne_u32 vcc, {TAG}, v100\ns_add_u32 s61, s61, 1\ns_cmp_gt_u32 s61, {opt.get('gatemax', 64)}\ns_cbranch_scc1 L_g6x\ns_cbranch_vccnz L_g6")
        a("L_g6x:")
        for _ in range(opt.get('gextra', 0)):
            a(f"buffer_load_dword v100, v16, {S_WS}, s62 offen {LF}\ns_waitcnt vmcnt(0)")
        a("s_mov_b64 exec, s[98:99]")
    MPROG = opt.get('mprog', 0)
    def m_row_add(xx):
        b = 100+4*xx
        a(f"v_lshlrev_b32 v140, 16, v{b}\nv_and_b32 v141, s63, v{b}\nv_lshlrev_b32 v142, 16, v{b+2}\nv_and_b32 v143, s63, v{b+2}")
        a("v_pk_add_f32 v[136:137], v[136:137], v[140:141]\nv_pk_add_f32 v[138:139], v[138:139], v[142:143]")
    if MPROG:
        for xx in range(8):
            a(f"buffer_load_dwordx4 {vr(100+4*xx)}, v13, {S_WS}, s{66+(xx>>1)} offen offset:{2560*(xx&1)} sc1{GN}")
        for xx in range(8):
            a(f"s_waitcnt vmcnt({7-xx})")
            if xx == 0: a(f"v_xor_b32 v14, {TAG}, v101")
            else: a(f"v_bitop3_b32 v14, v{100+4*xx+1}, {TAG}, v14 bitop3:0xbe")
            a(f"v_bitop3_b32 v14, v{100+4*xx+3}, {TAG}, v14 bitop3:0xbe")
            m_row_add(xx)
        a("v_cmp_ne_u32 vcc, 0, v14\ns_cbranch_vccz L_M_sum\ns_and_b64 exec, exec, vcc")
    poll_begin("L_p6")
    for xx in range(8):
        a(f"buffer_load_dwordx4 {vr(100+4*xx)}, v13, {S_WS}, s{66+(xx>>1)} offen offset:{2560*(xx&1)} sc1{GN}")
    a("s_waitcnt vmcnt(0)")
    tagcheck("v14", [f"v{100+4*xx+k}" for xx in range(8) for k in (1,3)])
    poll_end("L_p6", "v14")
    a("s_mov_b32 exec_hi, s72")
    a("v_lshlrev_b32 v136, 16, v246\nv_and_b32 v137, s63, v246\nv_lshlrev_b32 v138, 16, v247\nv_and_b32 v139, s63, v247")
    for xx in range(8): m_row_add(xx)
    a("L_M_sum:")
    for _ in range(opt.get('padnop', 0)): a("s_nop 0")
    if opt.get('padjmp', 0):
        for i in range(opt['padjmp']):
            a(f"s_branch L_pj{i}\n.p2align 6\nL_pj{i}:")
    stamp(10)
    a("v_cvt_pk_bf16_f32 v140, v136, v137\nv_cvt_pk_bf16_f32 v141, v138, v139")
    a("v_lshlrev_b32 v136, 16, v140\nv_and_b32 v137, s63, v140\nv_lshlrev_b32 v138, 16, v141\nv_and_b32 v139, s63, v141")
    a("ds_write_b128 v17, v[136:139]")
    for k in range(4): a(f"v_subrev_f32 v{140+k}, s3, v{136+k}")
    a("v_add_f32 v132, v140, v141\nv_mul_f32 v133, v140, v140\nv_add_f32 v134, v142, v143\nv_fmac_f32 v133, v141, v141\nv_add_f32 v132, v132, v134\nv_fmac_f32 v133, v142, v142\nv_fmac_f32 v133, v143, v143")
    a("s_mov_b64 exec, -1")
    wave_allreduce("v_add_f32", ["v132", "v133"], ["v134", "v135"])
    a("s_mov_b64 exec, 1\nds_write_b64 v19, v[132:133]\ns_mov_b64 exec, -1")
    a(f"s_or_b32 s62, s2, {SW}\ns_cmp_eq_u32 s62, 0\ns_cbranch_scc0 L_noep")
    a(f"v_mov_b32 v16, {TAG}\ns_mov_b64 exec, 1\nbuffer_store_dword v16, v18, {S_WS}, 0 offen sc1\ns_mov_b64 exec, -1")
    a("L_noep:")
    a("s_waitcnt lgkmcnt(0)")
    a("L_M_wait:")
    a("s_barrier")
    a(f"v_mov_b32 v16, {SB}\nds_read_b128 v[120:123], v16\nds_read_b64 v[124:125], v16 offset:16\nds_read_b32 v136, v15\ns_mov_b32 s62, {f2u(1.0/640):#x}\ns_waitcnt lgkmcnt(0)")
    a("v_add_f32 v130, v120, v122\nv_add_f32 v132, v121, v123\nv_add_f32 v130, v130, v124\nv_add_f32 v132, v132, v125")
    a("v_mul_f32 v130, s62, v130\nv_mul_f32 v132, s62, v132")
    a("v_fma_f32 v132, -v130, v130, v132")
    a("v_add_f32 v130, s3, v130")
    a(f"v_add_f32 v133, {f2u(EPS):#x}, v132\nv_rsq_f32 v133, v133")
    a("v_sub_f32 v140, v136, v130")
    a("v_mul_f32 v134, v133, v133\nv_mul_f32 v134, v134, v132")
    a(f"v_add_f32 v134, {f2u(EPS):#x}, v134\nv_rsq_f32 v134, v134\nv_mul_f32 v140, v140, v133\ns_mov_b32 s62, {f2u(C1):#x}\nv_mul_f32 v140, v140, v134")
    for k in range(3):
        a(f"v_readlane_b32 s{70+2*k}, v140, {k}")
    for k in range(3):
        t = f"s[{70+2*k}:{71+2*k}]"
        U = lambda i: f"v[{152+2*i}:{153+2*i}]"
        Z = lambda i: f"v[{160+2*i}:{161+2*i}]"
        for i in range(4): a(f"v_pk_fma_f32 {U(i)}, v[{210+2*i}:{211+2*i}], {t}, v[{218+2*i}:{219+2*i}] op_sel_hi:[1,0,1]")
        for i in range(4): a(f"v_pk_mul_f32 {Z(i)}, {U(i)}, {U(i)}")
        for i in range(4): a(f"v_pk_fma_f32 {Z(i)}, {Z(i)}, s[62:63], v[144:145] op_sel_hi:[1,0,1]")
        for i in range(4): a(f"v_pk_mul_f32 {Z(i)}, {Z(i)}, {U(i)}")
        for i in range(4): a(f"v_exp_f32 v{160+2*i}, v{160+2*i}\nv_exp_f32 v{161+2*i}, v{161+2*i}")
        for i in range(4): a(f"v_pk_mul_f32 {U(i)}, {U(i)}, v[{226+2*i}:{227+2*i}]")
        for i in range(4): a(f"v_pk_add_f32 {Z(i)}, {Z(i)}, 1.0 op_sel_hi:[1,0]")
        for i in range(4): a(f"v_rcp_f32 v{160+2*i}, v{160+2*i}\nv_rcp_f32 v{161+2*i}, v{161+2*i}")
        for i in range(4): a(f"v_pk_fma_f32 v[{146+2*k}:{147+2*k}], {U(i)}, {Z(i)}, v[{146+2*k}:{147+2*k}]")
    for k in range(3): a(f"v_add_f32 v{146+2*k}, v{146+2*k}, v{147+2*k}")
    wave_allreduce("v_add_f32", ["v146","v148","v150"], ["v147","v149","v151"])
    a(f"s_lshl_b32 s62, {SW}, 4\ns_add_u32 s62, s62, {MRED}\nv_mov_b32 v15, s62\nv_mov_b32 v147, v148\nv_mov_b32 v148, v150")
    a("s_mov_b64 exec, 1\nds_write_b96 v15, v[146:148]\ns_mov_b64 exec, -1")
    a("s_waitcnt lgkmcnt(0)\ns_barrier")
    a(f"s_cmp_eq_u32 {SW}, 0\ns_cbranch_scc0 L_fin")
    a(f"v_lshlrev_b32 v15, 2, v1\nv_add_u32 v15, {MRED}, v15")
    a("ds_read_b32 v100, v15\nds_read_b32 v101, v15 offset:16\nds_read_b32 v102, v15 offset:32\nds_read_b32 v103, v15 offset:48")
    srd(S_T, 26, 1280)
    a("v_add_u32 v15, s64, v1\nv_lshlrev_b32 v16, 1, v15")
    a("v_add_f32 v136, v136, v208")
    a("s_waitcnt lgkmcnt(0)")
    a("v_add_f32 v100, v100, v101\nv_add_f32 v102, v102, v103\nv_add_f32 v100, v100, v102\nv_add_f32 v100, v100, v136")
    a("v_cvt_pk_bf16_f32 v100, v100, v100")
    a("v_cmp_gt_u32 vcc, 640, v15\ns_and_b64 exec, vcc, 7")
    a("s_cbranch_execz L_fin")
    a(f"buffer_store_short v100, v16, {S_T}, 0 offen")
    a("L_fin:")
    if opt.get('pin'):
        a(f"s_waitcnt lgkmcnt(0)\ns_add_u32 s76, s76, {opt['pin']}")
        a("L_pin:\ns_memrealtime s[78:79]\ns_waitcnt lgkmcnt(0)\ns_sub_u32 s80, s78, s76\ns_cmp_lt_i32 s80, 0\ns_cbranch_scc1 L_pin")
    if profile and opt.get('dbgout'):
        stamp(11)
        a("s_mov_b64 exec, -1\ns_waitcnt lgkmcnt(0)")
        srd(S_T, 28, 256)
        a(f"s_cmp_eq_u32 {SW}, 0\ns_cbranch_scc0 L_end")
        a("v_mov_b32 v18, 0\ns_mov_b64 exec, 1")
        a(f"s_not_b32 s62, s76\nv_mov_b32 v15, s62\nbuffer_atomic_umax v15, v18, {S_T}, 0 offen")
        a(f"v_mov_b32 v15, s98\nbuffer_atomic_umax v15, v18, {S_T}, 0 offen offset:44")
        a("s_bitcmp1_b32 s2, 7\ns_cbranch_scc1 L_dy")
        for k in range(1, 9):
            a(f"v_mov_b32 v15, s{76+2*k}\nbuffer_atomic_umax v15, v18, {S_T}, 0 offen offset:{4*k}")
        a(f"v_mov_b32 v15, s{76+2*10}\nbuffer_atomic_umax v15, v18, {S_T}, 0 offen offset:40")
        a(f"v_mov_b32 v15, s{76+2*9}\nbuffer_atomic_umax v15, v18, {S_T}, 0 offen offset:36")
        a("s_branch L_end\nL_dy:")
        for j, k in enumerate((2, 4, 6, 8)):
            a(f"v_mov_b32 v15, s{76+2*k}\nbuffer_atomic_umax v15, v18, {S_T}, 0 offen offset:{48+4*j}")
    elif profile:
        stamp(11)
        a("s_mov_b64 exec, -1\ns_waitcnt lgkmcnt(0)")
        a(f"s_lshl_b32 s62, s2, 2\ns_add_u32 s62, s62, {SW}\ns_lshl_b32 s62, s62, 6\ns_add_u32 s62, s62, {TS}")
        a("v_mov_b32 v18, 0\ns_mov_b64 exec, 1")
        for k in range(12):
            a(f"v_mov_b32 v15, s{76+2*k}\nbuffer_store_dword v15, v18, {S_WS}, s62 offen offset:{4*k}")
        a(f"v_mov_b32 v15, s100\nbuffer_store_dword v15, v18, {S_WS}, s62 offen offset:48")
        a(f"s_getreg_b32 s100, hwreg(HW_REG_XCC_ID)\nv_mov_b32 v15, s100\nbuffer_store_dword v15, v18, {S_WS}, s62 offen offset:52")
        a(f"s_getreg_b32 s100, hwreg(HW_REG_HW_ID)\nv_mov_b32 v15, s100\nbuffer_store_dword v15, v18, {S_WS}, s62 offen offset:56")
    a("L_end:")
    a("s_endpgm")
    a("L_code_end:")
    a(f".set CODE_BYTES, L_code_end - {NAME}")
    a('.section .rodata,"a"\n.p2align 6')
    a(f".amdhsa_kernel {NAME}")
    a("  .amdhsa_next_free_vgpr 512\n  .amdhsa_next_free_sgpr 102\n  .amdhsa_accum_offset 256\n  .amdhsa_group_segment_fixed_size 0\n  .amdhsa_kernarg_size 112\n  .amdhsa_user_sgpr_count 2\n  .amdhsa_user_sgpr_kernarg_segment_ptr 1\n  .amdhsa_system_sgpr_workgroup_id_x 1")
    a(".end_amdhsa_kernel")
    n = a.hazard_pass()
    return a.text(), n

LAYOUT = dict(QG=QG, QA=QA, ST=ST, CP=CP, HG=HG, OUTP=OUTP, OP=OP, TS=TS, XP=XP)
if __name__ == "__main__":
    prof = "prof" in sys.argv[2:]
    opt = {}
    for x in sys.argv[2:]:
        if '=' in x:
            k, v = x.split('='); opt[k] = int(v) if v.lstrip('-').isdigit() else v
    txt, n = gen(profile=prof, opt=opt)
    open(sys.argv[1], "w").write(txt)
    print("auto nops:", n, "lines:", txt.count("\n"), LAYOUT)
```

```python
import sys, math, struct
from asmlib import Asm

NAME = "sequential_preLN__compressed_kv_cla__mixer_token_mlp__decode_kernel"
HEADER = open('sequential_preLN__compressed_kv_cla__mixer_token_mlp__decode.s.ref').read().split('; Override')[0]

def f2u(x): return struct.unpack('<I', struct.pack('<f', x))[0]

QG   = 4096
QA   = QG + 131072
ST   = QA + 65536
CP   = ST + 16384
HG   = CP + 65536
SENT2 = HG + 4096
SENT5 = SENT2 + 16384
QGB  = SENT5 + 16384
CPB  = QGB + 131072
OUTP = CPB + 65536
OUTPB = OUTP + 128*2560
XP   = OUTPB + 128*2560
UF   = XP + 8*2560
YF   = UF + 1024
OP   = (2 << 20) + 4096
TS   = (4 << 20) + 65536
assert YF + 8*128 <= OP
WS_SIZE = 5 << 20
CKV_STRIDE = 1056
QS = 135168; PX = 143616; MX = 147712; LX = 147968; MRED = 148224; MB = 148288
WUK = 0; WUV = 32768; OS = 65536; S1RED = 74752; WX = 82944; RRED = 83456
S1RED_C = 148480
LDS_BYTES = 156672
WO_STRIDE = 1312
GS = 65536
HB = PX; SB = MB; RR = PX + 2560

SCALE = (128 ** -0.5) * math.log2(math.e)
C0 = -2.0 * math.sqrt(2.0 / math.pi) * math.log2(math.e)
C1 = C0 * 0.044715
EPS = 1e-5

S_WS, S_X, S_A, S_B, S_C, S_T = 's[32:35]', 's[36:39]', 's[40:43]', 's[44:47]', 's[48:51]', 's[52:55]'
TAG, SW, SR, SH, SSUB = 's56', 's57', 's58', 's59', 's60'

def gen(profile=False, spin_limit=400000, opt=None):
    opt = opt or {}
    WARM = opt.get('warm', 1)
    STPOS = opt.get('stpos', 1)
    a = Asm()
    NT = " nt" if opt.get('nt', 1) else ""
    LF = opt.get('lflag', 'nt')
    GN = ' nt' if opt.get('gnt', 0) else ''
    SN = ' nt' if opt.get('snt', 0) else ''
    BP = opt.get('bper', 32) - 1
    SMASK = opt.get('smask', 0xfff)
    def stamp(k):
        if profile and (SMASK >> k) & 1:
            assert k < 12
            a(f"s_memrealtime s[{76+2*k}:{77+2*k}]")
    def srd(dst, ptr, size):
        d = int(dst[2:dst.index(':')])
        a(f"s_mov_b32 s{d}, s{ptr}\ns_mov_b32 s{d+1}, s{ptr+1}\ns_mov_b32 s{d+2}, {size}\ns_mov_b32 s{d+3}, 0x00020000")
    DPPS = ("quad_perm:[1,0,3,2]", "quad_perm:[2,3,0,1]", "row_half_mirror", "row_mirror")
    def row_allreduce(op, vs):
        for m in DPPS:
            for v in vs: a(f"{op}_dpp {v}, {v}, {v} {m} row_mask:0xf bank_mask:0xf")
    def swapred(sw, op, vs, ts):
        for v, t in zip(vs, ts): a(f"v_mov_b32 {t}, {v}")
        for v, t in zip(vs, ts): a(f"{sw} {v}, {t}")
        for v, t in zip(vs, ts): a(f"{op} {v}, {v}, {t}")
    def swap16(op, vs, ts): swapred("v_permlane16_swap_b32", op, vs, ts)
    def swap32(op, vs, ts): swapred("v_permlane32_swap_b32", op, vs, ts)
    def wave_allreduce(op, vs, ts):
        row_allreduce(op, vs); swap16(op, vs, ts); swap32(op, vs, ts)
    MASKED = opt.get('masked', 1)
    def poll_begin(name, dual=None):
        a(f"s_mov_b32 s61, 0")
        a(f"{name}:")
        if dual:
            a(f"s_and_b32 s75, s61, {BP}\ns_cmp_eq_u32 s75, {BP}\ns_cselect_b32 {dual[0]}, {dual[2]}, {dual[1]}")
    def poll_end(name, bad):
        a(f"v_cmp_ne_u32 vcc, 0, {bad}")
        a(f"s_add_u32 s61, s61, 1")
        a(f"s_cbranch_vccz {name}_x")
        a(f"s_cmp_gt_u32 s61, {spin_limit}")
        a(f"s_cbranch_scc1 {name}_x")
        if MASKED:
            a(f"s_and_b64 exec, exec, vcc")
            a(f"s_branch {name}")
        else:
            a(f"s_cbranch_vccnz {name}")
        a(f"{name}_x:")
        if MASKED: a("s_mov_b64 exec, -1")
        if profile and opt.get('cntfor') == name:
            a("s_mov_b32 s100, s61")
    def tagcheck(bad, tags):
        a(f"v_xor_b32 {bad}, {TAG}, {tags[0]}")
        for t in tags[1:]:
            a(f"v_bitop3_b32 {bad}, {t}, {TAG}, {bad} bitop3:0xbe")
    def mfma(d, A, B, first):
        a(f"v_mfma_f32_16x16x32_bf16 {d}, {A}, {B}, {'0' if first else d}")
    def vr(b, n=4): return f"v[{b}:{b+n-1}]"
    def ar(b, n=4): return f"a[{b}:{b+n-1}]"

    a.lines += [l for l in HEADER.strip().split('\n')]
    a(f"; @launch grid=(256,1,1) block=(256,1,1) lds={LDS_BYTES}")
    a('.amdgcn_target "amdgcn-amd-amdhsa--gfx950"')
    for l in """
One persistent launch, 256 workgroups (one per CU).  Absorbed MLA decode + token mixer, all stages chained through d_ws:
  S1 (all)  q partials      = LN(x) . w_q              rows split 8 ways per head
  S2 (X)    q_abs[h, c]     = q[h] . w_uk[c, h]        (scale and log2(e) folded in)
  S3 (Y)    scores, running max / sum and P.c_kv for 128 keys x 8 heads (MFMA)
  S4 (X)    combine the 32 key splits (true max), ctx partial = ctx_lat . w_uv
  S5 (Y)    out partial for 32 columns over the 4 heads of the workgroup id class (id & 7)
  M  (all)  h = x + out, LN(LN(h)), token MLP for 3 columns per workgroup
X = ids 0..127, Y = ids 128..255.  Hand-offs are 8-byte granules {payload, tag}; tag = (word 0 of d_ws at entry) + 1,
word 0 is set to the tag at the end.  Hand-offs inside one id class are written twice: a plain store (seen quickly when the
class shares an L2) and a write-through copy that consumers probe every 32nd poll, so no placement is assumed.
""".strip().split("\n"): a.c(l)
    a(f".text\n.globl {NAME}\n.p2align 8\n.type {NAME},@function\n{NAME}:")
    WPOS = opt.get('wpos', 0)
    def warm_load():
        a("s_getpc_b64 s[52:53]\nL_pc:\ns_sub_u32 s52, s52, L_pc-%s\ns_subb_u32 s53, s53, 0\nv_lshlrev_b32 v254, 7, v0\ns_mov_b32 s54, CODE_BYTES\ns_mov_b32 s55, 0x00020000" % NAME)
        a("buffer_load_dword v251, v254, s[52:55], 0 offen")
    a("s_load_dwordx16 s[4:19], s[0:1], 0\ns_load_dwordx8 s[20:27], s[0:1], 64\ns_load_dwordx4 s[28:31], s[0:1], 96")
    if WARM and WPOS == 0: warm_load()
    stamp(0)
    if opt.get('pin'): a("s_memrealtime s[76:77]")
    if profile: a("s_mov_b32 s100, 99")
    a("s_cmp_ge_u32 s2, 256\ns_cbranch_scc1 L_end")
    a("v_and_b32 v1, 63, v0\nv_lshrrev_b32 v2, 6, v0\nv_and_b32 v3, 15, v0\nv_bfe_u32 v4, v0, 4, 2")
    a(f"v_readfirstlane_b32 {SW}, v2")
    a(f"s_and_b32 s61, s2, 7\ns_bfe_u32 s62, s2, 0x40003\ns_lshl_b32 {SR}, s61, 4\ns_add_u32 {SR}, {SR}, s62")
    a(f"s_lshr_b32 {SH}, {SR}, 2\ns_and_b32 {SSUB}, {SR}, 3")
    a("v_mov_b32 v18, 0")
    for k in range(240, 245): a(f"v_mov_b32 v{k}, 0")
    a("s_lshr_b32 s72, s2, 6\ns_and_b32 s73, s2, 7\ns_lshl_b32 s73, s73, 2\ns_add_u32 s72, s72, s73")
    a("s_bfe_u32 s73, s2, 0x30003")
    a("v_lshlrev_b32 v5, 4, v1\nv_lshlrev_b32 v17, 2, v1")
    a(f"v_lshrrev_b32 v6, 4, v0\nv_mul_u32_u24 v13, 5, v6\ns_mul_i32 s62, s73, 160\nv_lshlrev_b32 v7, 1, v13\nv_add_u32 v7, s62, v7\nv_and_b32 v14, 2, v7\nv_lshlrev_b32 v14, 3, v14\nv_and_b32 v7, -4, v7")
    a("v_lshlrev_b32 v8, 4, v3\nv_lshl_add_u32 v8, v13, 13, v8\nv_mov_b32 v255, v14")
    a(f"s_mul_i32 s61, s73, {80*8192}\ns_lshl_b32 s62, s72, 8\ns_add_u32 s61, s61, s62")
    a("v_xor_b32 v9, v3, v4\nv_lshlrev_b32 v9, 4, v9\nv_lshl_add_u32 v9, v4, 13, v9")
    a("v_xor_b32 v10, 64, v9\nv_xor_b32 v11, 128, v9\nv_xor_b32 v12, 192, v9")
    a(f"s_mov_b32 s34, {WS_SIZE}\ns_mov_b32 s35, 0x00020000\ns_mov_b32 s38, 1280\ns_mov_b32 s39, 0x00020000\ns_mov_b32 s42, 5242880\ns_mov_b32 s43, 0x00020000")
    a("s_waitcnt lgkmcnt(0)")
    a("s_mov_b32 s36, s4\ns_mov_b32 s37, s5\ns_mov_b32 s32, s30\ns_mov_b32 s33, s31\ns_mov_b32 s40, s8\ns_mov_b32 s41, s9")
    a(f"buffer_load_dwordx4 v[32:35], v5, {S_X}, 0 offen\nbuffer_load_dword v36, v17, {S_X}, 0 offen offset:1024")
    a(f"buffer_load_dword v250, v18, {S_WS}, 0 offen")
    if opt.get('tlbw', 0):
        a(f"s_mov_b32 s62, {2<<20}\ns_mov_b32 s63, {(4<<20)+8192}")
        a(f"buffer_load_dword v255, v18, {S_WS}, s62 offen\nbuffer_load_dword v255, v18, {S_WS}, s63 offen")
    def m_coef_loads():
        a("v_lshlrev_b32 v17, 2, v0")
        for k, p in enumerate((18, 20, 22)):
            srd(S_T, p, 3456)
            for i in range(4):
                a(f"buffer_load_dword v{196+4*k+i}, v17, {S_T}, 0 offen offset:{1024*i}")
        srd(S_T, 24, 2)
        a(f"buffer_load_ushort v208, v18, {S_T}, 0 offen")
    def m_coef_unpack():
        a("s_mov_b32 s63, 0xffff0000")
        for k in range(3):
            for i in range(4):
                s_ = 196+4*k+i; d = 210+8*k+2*i
                a(f"v_lshlrev_b32 v{d}, 16, v{s_}\nv_and_b32 v{d+1}, s63, v{s_}")
        a("v_lshlrev_b32 v208, 16, v208")
    def rewarm(tagname):
        if not opt.get('rewarm', 0): return 0
        a(f"s_getpc_b64 s[52:53]\nL_pc{tagname}:\ns_mov_b32 s54, L_code_end-L_pc{tagname}\ns_mov_b32 s55, 0x00020000\nv_lshlrev_b32 v254, 7, v0")
        a("buffer_load_dword v251, v254, s[52:55], 0 offen")
        return 1
    def tail_prefetch():
        a(f"v_lshlrev_b32 v245, 3, v0\nbuffer_load_dwordx2 v[246:247], v245, {S_X}, 0 offen")
        if opt.get('gate', 1):
            a(f"s_and_b32 s62, s2, 7\ns_lshl_b32 s62, s62, 7\ns_add_u32 s62, s62, {UF}\nv_lshlrev_b32 v249, 2, v1\nv_and_b32 v249, 127, v249")
            a(f"buffer_load_dword v252, v249, {S_WS}, s62 offen {LF}")
    def wo_slice_dma(su="s74", lds0=0):
        a(f"v_lshrrev_b32 v9, 2, v1\nv_mul_u32_u24 v9, 1280, v9\nv_bfe_u32 v10, v1, 4, 1\nv_lshlrev_b32 v10, 1, v10\nv_and_b32 v11, 3, v1\nv_xor_b32 v10, v10, v11\nv_lshl_add_u32 v9, v10, 4, v9")
        a(f"s_and_b32 s62, s2, 7\ns_lshl_b32 s62, s62, 2\ns_add_u32 s62, s62, {SW}\ns_mul_i32 s62, s62, {128*1280}\ns_lshl_b32 s63, {su}, 6\ns_add_u32 s62, s62, s63\ns_lshl_b32 s63, {SW}, 13\ns_add_u32 s63, s63, {lds0}")
        for k in range(8):
            a(f"s_mov_b32 m0, s63\ns_add_u32 s63, s63, 1024")
            a(f"buffer_load_dwordx4 v9, {S_B}, s62 offen lds")
            if k < 7: a(f"s_add_u32 s62, s62, {16*1280}")
    def wo_slice_frags(lds0=0, a0=0):
        a(f"v_lshrrev_b32 v9, 2, v3\nv_lshl_add_u32 v9, v4, 2, v9\nv_lshlrev_b32 v9, 6, v9\nv_and_b32 v10, 1, v4\nv_lshl_add_u32 v9, v10, 5, v9\nv_and_b32 v10, 3, v3\nv_lshl_add_u32 v9, v10, 3, v9\ns_lshl_b32 s62, {SW}, 13\nv_add_u32 v9, s62, v9\nv_xor_b32 v10, 32, v9")
        for tt in range(2):
            for dq in range(4):
                for uu in range(2):
                    r = a0+(tt*4+dq)*4+2*uu
                    a(f"ds_read_b64_tr_b16 a[{r}:{r+1}], {'v9' if tt == 0 else 'v10'} offset:{lds0+2048*dq+1024*uu}")
    def s5_addresses():
        if opt.get('g4dense', 1):
            a("v_lshlrev_b32 v240, 4, v1")
            a(f"v_lshrrev_b32 v236, 5, v1\nv_lshlrev_b32 v236, 8, v236\nv_bfe_u32 v235, v1, 2, 2\nv_lshl_add_u32 v236, v235, 6, v236\nv_and_b32 v235, 3, v1\nv_lshl_add_u32 v236, v235, 4, v236\nv_bfe_u32 v235, v1, 4, 1\nv_lshl_add_u32 v236, v235, 3, v236")
            a(f"s_lshl_b32 s62, {SW}, 10\ns_add_u32 s62, s62, {GS}\nv_add_u32 v236, s62, v236")
            a(f"v_and_b32 v235, 3, v3\nv_lshlrev_b32 v235, 4, v235\nv_lshl_add_u32 v235, v4, 6, v235\nv_add_u32 v235, s62, v235")
        else:
            a(f"v_and_b32 v240, 3, v3\nv_lshlrev_b32 v240, 4, v240\nv_lshl_add_u32 v240, v4, 6, v240")
        a(f"s_and_b32 s62, s2, 7\ns_lshl_b32 s63, s62, 2\ns_add_u32 s63, s63, {SW}\ns_lshl_b32 s63, s63, 11\ns_add_u32 s101, s63, {CP}")
        a(f"s_mul_i32 s63, s62, 2560\ns_lshl_b32 s65, s74, 7\ns_add_u32 s63, s63, s65\ns_add_u32 s63, s63, {XP}\nv_lshlrev_b32 v243, 2, v1\nv_add_u32 v243, s63, v243")
        a(f"s_lshl_b32 s62, s62, 7\ns_lshl_b32 s63, s74, 2\ns_add_u32 s62, s62, s63\ns_add_u32 s62, s62, {UF}\nv_mov_b32 v244, s62")
        a(f"v_lshlrev_b32 v241, 2, v1\nv_add_u32 v242, {RR}, v241\ns_lshl_b32 s62, {SW}, 7\nv_add_u32 v241, s62, v242")
        if opt.get('ptouch', 0):
            a(f"s_mov_b64 exec, 1\nbuffer_load_dword v252, v243, {S_WS}, 0 offen\nbuffer_load_dword v252, v243, {S_WS}, 0 offen offset:2048\ns_mov_b64 exec, -1")
        if opt.get('prewarm', 1):
            a(f"v_lshlrev_b32 v253, 7, v3\nbuffer_load_dword v252, v253, {S_WS}, s101 offen {LF}")
    def sentinel(base):
        lab = f"L_s{base}"
        a(f"s_cmp_eq_u32 {SW}, 0\ns_cbranch_scc0 {lab}")
        a(f"v_mov_b32 v240, {TAG}\nv_mov_b32 v241, {TAG}\nv_mov_b32 v242, {TAG}\nv_mov_b32 v243, {TAG}\nv_lshlrev_b32 v244, 4, v1")
        a(f"s_lshl_b32 s62, {SR}, 7\ns_add_u32 s62, s62, {base}\ns_mov_b64 exec, 0xff")
        a(f"buffer_store_dwordx4 v[240:243], v244, {S_WS}, s62 offen sc1")
        a(f"s_mov_b64 exec, -1\n{lab}:")

    NW = 1 if WARM else 0
    PWX = 1 if opt.get("prewarm", 1) else 0

    a.c("================= S1: q partials, head h1 = 4*xcd + (idx>>3), rows 80*me..80*me+79, me = idx&7")
    a(f"buffer_load_dwordx3 v[52:54], v7, {S_X}, 0 offen")
    for i in range(5):
        a(f"buffer_load_dwordx4 {vr(60+4*i)}, v8, {S_A}, s61 offen{NT}")
        if i < 4: a(f"s_add_u32 s61, s61, 8192")
    WL = 1 if (WARM and WPOS == 1) else 0
    if WL: warm_load()
    a("s_bitcmp1_b32 s2, 7\ns_cbranch_scc1 L_nouk")
    srd(S_B, 10, 4194304)
    a(f"s_lshl_b32 s66, {SSUB}, 20\ns_lshl_b32 s63, {SH}, 8\ns_add_u32 s66, s66, s63\ns_lshl_b32 s63, {SW}, 18\ns_add_u32 s66, s66, s63")
    a(f"s_lshl_b32 s67, {SW}, 13")
    NUP = opt.get('nup', 8)
    def uk_dma(k):
        a(f"s_mov_b32 m0, s67\ns_add_u32 s67, s67, 1024")
        a(f"buffer_load_dwordx4 v{9+(k&3)}, {S_B}, s66 offen{NT} lds")
        if k < 7: a(f"s_add_u32 s66, s66, 32768")
    for k in range(NUP): uk_dma(k)
    if PWX:
        a(f"v_and_b32 v253, 31, v1\nv_lshlrev_b32 v253, 7, v253\ns_lshl_b32 s62, {SH}, 12\ns_add_u32 s62, s62, {QG}")
        a(f"buffer_load_dword v252, v253, {S_WS}, s62 offen {LF}")
    PTX = 0
    if opt.get('ptouch', 0):
        a(f"s_lshl_b32 s62, {SR}, 9\ns_lshl_b32 s63, {SW}, 7\ns_add_u32 s62, s62, s63\ns_add_u32 s62, s62, {QA}")
        a(f"buffer_load_dword v252, v18, {S_WS}, s62 offen")
        PTX = 1
    a("s_branch L_s1c")
    a("L_nouk:")
    EARLY = opt.get('early', 0)
    ER = opt.get('erows', 0)
    def ckv_group(q, j0=0, j1=8):
        a(f"s_add_u32 s62, {SSUB}, {q}\ns_and_b32 s62, s62, 3\ns_add_u32 s63, s69, {(q*8+j0)*CKV_STRIDE}\ns_lshl_b32 s62, s62, 13\ns_add_u32 s62, s62, s68")
        if j0: a(f"s_add_u32 s62, s62, {1024*j0}")
        for j in range(j0, j1):
            a(f"s_mov_b32 m0, s63\ns_add_u32 s63, s63, {CKV_STRIDE}")
            a(f"buffer_load_dwordx4 v9, {S_B}, s62 offen{' nt' if opt.get('ntc', 0) == 2 or (opt.get('ntc', 0) == 1 and q == 0) else ''} lds")
            if j < j1-1: a(f"s_add_u32 s62, s62, 1024")
    srd(S_B, 6, 4194304)
    a("v_lshlrev_b32 v9, 4, v1")
    a(f"s_lshl_b32 s68, {SH}, 17\ns_lshl_b32 s63, {SW}, 15\ns_add_u32 s68, s68, s63")
    a(f"s_mul_i32 s69, {SW}, {32*CKV_STRIDE}")
    for q in range(EARLY): ckv_group(q)
    if ER: ckv_group(0, 0, ER)
    a("L_s1c:")
    a(f"v_lshlrev_b32 v241, 9, v6\nv_lshl_add_u32 v241, v3, 4, v241\nv_add_u32 v241, {S1RED_C}, v241")
    a(f"v_and_b32 v14, 31, v1\nv_lshrrev_b32 v242, 3, v14\ns_lshl_b32 s62, {SW}, 2\nv_add_u32 v242, s62, v242\nv_lshlrev_b32 v242, 4, v242")
    a("v_bfe_u32 v16, v1, 2, 1\nv_lshl_add_u32 v242, v16, 8, v242\nv_and_b32 v16, 3, v1\nv_lshl_add_u32 v242, v16, 2, v242\nv_lshrrev_b32 v16, 5, v1\nv_lshl_add_u32 v242, v16, 12, v242")
    a(f"v_add_u32 v242, {S1RED_C}, v242")
    a(f"s_lshl_b32 s70, s72, 12\ns_lshl_b32 s63, {SW}, 10\ns_add_u32 s70, s70, s63\ns_lshl_b32 s63, s73, 4\ns_add_u32 s70, s70, s63\ns_add_u32 s70, s70, {QG}\ns_add_u32 s71, s70, {QGB-QG}")
    a("v_lshrrev_b32 v237, 3, v14\nv_lshlrev_b32 v237, 7, v237\nv_bfe_u32 v16, v14, 2, 1\nv_lshl_add_u32 v237, v16, 9, v237\nv_bfe_u32 v16, v14, 1, 1\nv_lshl_add_u32 v237, v16, 3, v237")
    stamp(1)
    def s1_body(extra, late=()):
        late = list(late)
        a(f"s_waitcnt vmcnt({6+extra})")
        a(f"v_readfirstlane_b32 {TAG}, v250\ns_add_u32 {TAG}, {TAG}, 1")
        a("s_mov_b32 s63, 0xffff0000")
        for j in range(5):
            a(f"v_lshlrev_b32 v{100+2*j}, 16, v{32+j}\nv_and_b32 v{101+2*j}, s63, v{32+j}")
        a("v_readfirstlane_b32 s64, v100")
        for k in range(100, 110): a(f"v_subrev_f32 v{k}, s64, v{k}")
        a("s_mov_b32 s3, s64")
        a("v_add_f32 v110, v100, v101\nv_mul_f32 v112, v100, v100")
        a("v_fmac_f32 v112, v101, v101")
        for k in range(102, 110): a(f"v_add_f32 v110, v110, v{k}\nv_fmac_f32 v112, v{k}, v{k}")
        wave_allreduce("v_add_f32", ["v110", "v112"], ["v111", "v113"])
        a(f"s_mov_b32 s65, {f2u(1.0/640):#x}\nv_mul_f32 v110, s65, v110\nv_mul_f32 v112, s65, v112")
        a(f"v_fma_f32 v112, -v110, v110, v112\nv_add_f32 v112, {f2u(EPS):#x}, v112\nv_rsq_f32 v113, v112")
        a("v_add_f32 v110, s64, v110")
        a(f"s_waitcnt vmcnt({5+extra})")
        a("v_alignbit_b32 v55, v53, v52, v255\nv_alignbit_b32 v56, v54, v53, v255\nv_lshrrev_b32 v57, v255, v54")
        a("v_lshlrev_b32 v40, 16, v55\nv_and_b32 v42, s63, v55\nv_lshlrev_b32 v44, 16, v56\nv_and_b32 v46, s63, v56\nv_lshlrev_b32 v48, 16, v57")
        for i in range(5):
            r = 40+2*i
            a(f"v_sub_f32 v{r}, v{r}, v110\nv_mul_f32 v{r}, v{r}, v113")
        for k in range(100, 108): a(f"v_mov_b32 v{k}, 0")
        issued = 0
        for i in range(5):
            a(f"s_waitcnt vmcnt({4-i+extra+issued})")
            w = 60+4*i; l = 40+2*i
            for d in range(4):
                a(f"v_lshlrev_b32 v{108+2*(d&1)}, 16, v{w+d}\nv_and_b32 v{109+2*(d&1)}, s63, v{w+d}")
                a(f"v_pk_fma_f32 v[{100+2*d}:{101+2*d}], v[{108+2*(d&1)}:{109+2*(d&1)}], v[{l}:{l+1}], v[{100+2*d}:{101+2*d}] op_sel_hi:[1,0,1]")
            if late:
                late.pop(0)(); issued += 1
    a("s_bitcmp1_b32 s2, 7\ns_cbranch_scc1 L_s1y")
    s1_body(NUP+PWX+WL+PTX, [(lambda k=k: uk_dma(k)) for k in range(NUP, 8)])
    a("s_branch L_s1r")
    a("L_s1y:")
    s1_body(8*EARLY+WL+ER)
    a("L_s1r:")
    stamp(2)
    MID = opt.get('mid', 0)
    a("ds_write_b128 v241, v[100:103]\nds_write_b128 v241, v[104:107] offset:256")
    if MID:
        a("s_bitcmp1_b32 s2, 7\ns_cbranch_scc0 L_nomid")
        ckv_group(0)
        a("L_nomid:")
    a("s_waitcnt lgkmcnt(0)\ns_barrier")
    for k in range(4): a(f"ds_read2st64_b32 v[{100+2*k}:{101+2*k}], v242 offset0:{4*k} offset1:{4*k+2}")
    a("s_waitcnt lgkmcnt(0)")
    a("v_add_f32 v100, v100, v101\nv_add_f32 v102, v102, v103\nv_add_f32 v104, v104, v105\nv_add_f32 v106, v106, v107")
    a("v_add_f32 v100, v100, v102\nv_add_f32 v104, v104, v106\nv_add_f32 v100, v100, v104")
    swap32("v_add_f32", ["v100"], ["v101"])
    a("v_mov_b32_dpp v101, v100 row_shl:1 row_mask:0xf bank_mask:0xf")
    a(f"v_cvt_pk_bf16_f32 v238, v100, v101\nv_mov_b32 v239, {TAG}")
    a("s_mov_b32 exec_lo, 0x55555555\ns_mov_b32 exec_hi, 0")
    a(f"buffer_store_dwordx2 v[238:239], v237, {S_WS}, s70 offen")
    a("s_bitcmp1_b32 s2, 7\ns_cbranch_scc0 L_Xgo")
    a(f"buffer_store_dwordx2 v[238:239], v237, {S_WS}, s71 offen sc1")
    a("s_mov_b64 exec, -1")
    a("s_branch L_Y")
    a("L_Xgo:")
    a("s_mov_b64 exec, -1")

    a.c("================= X role: S2 (q_abs), S4 (ctx partial), R")
    srd(S_C, 12, 4194304)
    G1E = opt.get('g1early', 1)
    a(f"v_and_b32 v17, 7, v3\nv_lshlrev_b32 v17, 4, v17\nv_lshl_add_u32 v17, v4, 7, v17\ns_lshl_b32 s63, {SH}, 12\ns_add_u32 s63, s63, {QG}\ns_add_u32 s64, s63, {QGB-QG}")
    if G1E:
        a(f"s_waitcnt vmcnt({1+opt.get('g1k', 2)})")
        for s in range(4):
            r = 148+8*s
            a(f"buffer_load_dwordx4 {vr(r)}, v17, {S_WS}, s63 offen offset:{1024*s} {LF}")
            a(f"buffer_load_dwordx4 {vr(r+4)}, v17, {S_WS}, s63 offen offset:{1024*s+512} {LF}")
    a(f"s_lshl_b32 s62, {SW}, 5\nv_add_u32 v13, s62, v3\nv_lshlrev_b32 v13, 8, v13\nv_xor_b32 v14, v3, v4\nv_lshl_add_u32 v13, v14, 4, v13")
    a("v_xor_b32 v14, 64, v13\nv_xor_b32 v15, 128, v13\nv_xor_b32 v16, 192, v13")
    a(f"s_waitcnt vmcnt({9 if G1E else 1})")
    for tile in range(2):
        for s in range(4):
            a(f"ds_read_b128 {vr(116+(tile*4+s)*4)}, v{13+s} offset:{WUK+4096*tile}")
    stamp(3)
    a("v_mov_b32 v13, v17")
    if G1E:
        a("s_waitcnt vmcnt(0)")
        tagcheck("v14", [f"v{148+8*s+k}" for s in range(4) for k in (1,3,5,7)])
        a("s_mov_b32 s61, 0\nv_cmp_ne_u32 vcc, 0, v14\ns_cbranch_vccz L_p1_x")
        if MASKED: a("s_and_b64 exec, exec, vcc")
    def qgb_store():
        a("s_mov_b64 s[78-2:78-1], exec" if False else "s_mov_b64 s[98:99], exec")
        a("s_mov_b32 exec_lo, 0x55555555\ns_mov_b32 exec_hi, 0")
        a(f"buffer_store_dwordx2 v[238:239], v237, {S_WS}, s71 offen sc1")
        a("s_mov_b64 exec, s[98:99]")
    poll_begin("L_p1", ("s62", "s63", "s64"))
    a(f"s_cmp_eq_u32 s61, {BP}\ns_cbranch_scc0 L_p1n")
    qgb_store()
    a("L_p1n:")
    def dual_loads(name, emit):
        a(f"s_cmp_eq_u32 s75, {BP}\ns_cbranch_scc1 {name}_b")
        emit(LF)
        a(f"s_branch {name}_c\n{name}_b:")
        emit("sc1")
        a(f"{name}_c:")
    def g1_loads(fl):
        for s in range(4):
            r = 148+8*s
            a(f"buffer_load_dwordx4 {vr(r)}, v13, {S_WS}, s62 offen offset:{1024*s} {fl}")
            a(f"buffer_load_dwordx4 {vr(r+4)}, v13, {S_WS}, s62 offen offset:{1024*s+512} {fl}")
    dual_loads("L_p1", g1_loads)
    a("s_waitcnt vmcnt(0)")
    tagcheck("v14", [f"v{148+8*s+k}" for s in range(4) for k in (1,3,5,7)])
    poll_end("L_p1", "v14")
    a(f"s_cmp_gt_u32 s61, {BP}\ns_cbranch_scc1 L_p1m")
    qgb_store()
    a("L_p1m:")
    stamp(4)
    if opt.get('sent2', 0): sentinel(SENT2)
    for s in range(4):
        r = 148+8*s
        a(f"v_mov_b32 v{r+1}, v{r+2}\nv_mov_b32 v{r+2}, v{r+4}\nv_mov_b32 v{r+3}, v{r+6}")
    a("s_waitcnt lgkmcnt(0)")
    for s in range(4):
        for tile in range(2):
            mfma(vr(180+4*tile), vr(148+8*s), vr(116+(tile*4+s)*4), s == 0)
    a(f"s_mov_b32 s63, {f2u(SCALE):#x}")
    a("v_lshlrev_b32 v13, 2, v3\nv_lshl_add_u32 v13, v4, 6, v13\nv_cmp_eq_u32 vcc, 1, v4")
    a(f"s_lshl_b32 s62, {SR}, 9\ns_lshl_b32 s64, {SW}, 7\ns_add_u32 s62, s62, s64\ns_add_u32 s62, s62, {QA}")
    a("v_add_f32 v180, v180, v181\nv_add_f32 v184, v184, v185\nv_add_f32 v182, v182, v183\nv_add_f32 v186, v186, v187")
    a("v_add_f32 v180, v180, v182\nv_add_f32 v184, v184, v186")
    swap16("v_add_f32", ["v180", "v184"], ["v181", "v185"])
    a("v_cndmask_b32 v180, v180, v184, vcc\nv_mul_f32 v180, s63, v180")
    a("v_mov_b32_dpp v181, v180 row_shl:1 row_mask:0xf bank_mask:0xf")
    a(f"v_cvt_pk_bf16_f32 v188, v180, v181\nv_mov_b32 v189, {TAG}")
    a("s_mov_b32 exec_lo, 0x55555555\ns_mov_b32 exec_hi, 0")
    a(f"buffer_store_dwordx2 v[188:189], v13, {S_WS}, s62 offen sc1")
    a("s_mov_b64 exec, -1")
    stamp(5)
    a("v_lshrrev_b32 v15, 1, v3\nv_and_b32 v16, 1, v4\nv_lshlrev_b32 v16, 2, v16\nv_xor_b32 v15, v15, v16\nv_lshlrev_b32 v15, 5, v15\nv_and_b32 v16, 1, v0\nv_lshl_add_u32 v15, v16, 4, v15\nv_lshl_add_u32 v15, v4, 13, v15")
    a(f"s_lshl_b32 s62, {SW}, 1\ns_and_b32 s63, s62, 3\ns_lshl_b32 s63, s63, 5\nv_xor_b32 v16, s63, v15\ns_add_u32 s62, s62, 1\ns_and_b32 s63, s62, 3\ns_lshl_b32 s63, s63, 5\nv_xor_b32 v15, s63, v15")
    a(f"s_lshl_b32 s62, {SSUB}, 20\ns_lshl_b32 s63, {SH}, 8\ns_add_u32 s62, s62, s63\ns_lshl_b32 s63, {SW}, 18\ns_add_u32 s62, s62, s63")
    a(f"s_lshl_b32 s63, {SW}, 13\ns_add_u32 s63, s63, {WUV}")
    for k in range(8):
        a(f"s_mov_b32 m0, s63\ns_add_u32 s63, s63, 1024")
        a(f"buffer_load_dwordx4 {'v16' if k < 4 else 'v15'}, {S_C}, s62 offen{NT if opt.get('ntuv', 1) else ''} lds")
        if k < 7: a("s_add_u32 s62, s62, 32768")
    rewarm("x")
    m_coef_loads()
    tail_prefetch()
    a("s_waitcnt vmcnt(0)\ns_barrier")
    a("v_lshrrev_b32 v19, 2, v3\nv_lshl_add_u32 v19, v4, 2, v19")
    a("v_lshrrev_b32 v20, 2, v3\nv_and_b32 v21, 1, v4\nv_lshl_add_u32 v21, v21, 2, v20")
    a(f"s_lshl_b32 s62, {SW}, 1\nv_xor_b32 v21, s62, v21\nv_lshlrev_b32 v21, 5, v21")
    a("v_lshl_add_u32 v20, v20, 4, v4\nv_lshl_add_u32 v20, v20, 8, v21\nv_and_b32 v21, 3, v3\nv_lshl_add_u32 v20, v21, 3, v20\nv_xor_b32 v21, 32, v20")
    for tt in range(2):
        for j in range(4):
            for u in range(2):
                r = 60+(tt*4+j)*4+2*u; tau = 2*j+u
                a(f"ds_read_b64_tr_b16 v[{r}:{r+1}], {'v20' if tt==0 else 'v21'} offset:{WUV+16384*(tau>>2)+1024*(tau&3)}")
    m_coef_unpack()
    a("v_lshlrev_b32 v22, 4, v0\nv_and_b32 v23, 31, v1\nv_lshlrev_b32 v23, 9, v23")
    a(f"s_lshl_b32 s62, {SR}, 14\ns_add_u32 s66, s62, {OP}\ns_add_u32 s67, s66, 4096\ns_add_u32 s68, s66, 8192\ns_add_u32 s69, s66, 12288")
    a(f"s_lshr_b32 s62, {SH}, 3\ns_lshl_b32 s62, s62, 7\ns_and_b32 s63, {SH}, 7\ns_lshl_b32 s63, s63, 4\ns_add_u32 s62, s62, s63\ns_add_u32 s70, s62, {ST}")
    a(f"v_lshrrev_b32 v24, 5, v0\nv_mul_u32_u24 v24, 288, v24\nv_and_b32 v25, 31, v0\nv_lshl_add_u32 v24, v25, 3, v24\nv_add_u32 v24, {OS}, v24")
    a("v_add_u32 v32, 2304, v24\nv_add_u32 v33, 4608, v24\nv_add_u32 v34, 6912, v24")
    a(f"s_lshl_b32 s62, {SW}, 7\ns_add_u32 s71, s62, {WX}\nv_and_b32 v25, 31, v1\nv_lshlrev_b32 v25, 2, v25\nv_add_u32 v25, s71, v25")
    a(f"v_lshlrev_b32 v27, 4, v4\nv_add_u32 v27, s71, v27")
    a(f"v_mul_u32_u24 v28, 288, v19\nv_and_b32 v29, 3, v3\nv_lshl_add_u32 v28, v29, 3, v28\nv_add_u32 v28, {OS}, v28")
    a(f"s_lshl_b32 s72, {SH}, 11\ns_lshl_b32 s63, {SW}, 9\ns_add_u32 s72, s72, s63\ns_lshl_b32 s63, {SSUB}, 4\ns_add_u32 s72, s72, s63\ns_add_u32 s72, s72, {CP}\ns_add_u32 s73, s72, {CPB-CP}")
    a("v_lshrrev_b32 v30, 2, v3\nv_lshlrev_b32 v30, 6, v30\nv_bfe_u32 v14, v3, 1, 1\nv_lshl_add_u32 v30, v14, 3, v30\nv_lshl_add_u32 v30, v4, 8, v30\nv_cmp_eq_u32 s[8:9], 1, v4")
    stamp(6)
    if opt.get('gate3', 0):
        a(f"s_and_b32 s62, s2, 7\ns_lshl_b32 s62, s62, 7\ns_add_u32 s62, s62, {YF}\nv_lshlrev_b32 v16, 2, v1\ns_mov_b64 exec, 0xffff\ns_mov_b32 s61, 0")
        a("L_g3:")
        a(f"buffer_load_dword v100, v16, {S_WS}, s62 offen {LF}\ns_waitcnt vmcnt(0)")
        a(f"v_cmp_ne_u32 vcc, {TAG}, v100\ns_add_u32 s61, s61, 1\ns_cmp_gt_u32 s61, 64\ns_cbranch_scc1 L_g3x\ns_cbranch_vccnz L_g3")
        a("L_g3x:\ns_mov_b64 exec, -1")
    a("s_mov_b32 exec_hi, 0")
    poll_begin("L_p3a")
    a(f"buffer_load_dwordx4 v[116:119], v23, {S_WS}, s70 offen sc1")
    a("s_waitcnt vmcnt(0)")
    tagcheck("v14", ["v117", "v119"])
    poll_end("L_p3a", "v14")
    if opt.get('dbg3'): stamp(10)
    for i in range(4):
        a(f"buffer_load_dwordx4 {vr(100+4*i)}, v22, {S_WS}, s{66+i} offen sc1{GN}")
    a("v_mov_b32 v120, v116")
    row_allreduce("v_max_f32", ["v120"]); swap16("v_max_f32", ["v120"], ["v121"])
    a("v_sub_f32 v116, v116, v120\nv_exp_f32 v116, v116\nv_mul_f32 v118, v116, v118")
    row_allreduce("v_add_f32", ["v118"]); swap16("v_add_f32", ["v118"], ["v121"])
    a("v_rcp_f32 v118, v118\nv_mul_f32 v116, v116, v118")
    a("s_mov_b32 exec_hi, 0\nds_write_b32 v25, v116\ns_mov_b64 exec, -1")
    a("ds_read_b128 v[120:123], v27\nds_read_b128 v[124:127], v27 offset:64")
    a("s_waitcnt vmcnt(0)")
    tagcheck("v14", [f"v{100+4*i+k}" for i in range(4) for k in (1,3)])
    a("v_cmp_ne_u32 vcc, 0, v14\ns_cbranch_vccz L_p3b_x")
    if MASKED: a("s_and_b64 exec, exec, vcc")
    poll_begin("L_p3b")
    for i in range(4):
        a(f"buffer_load_dwordx4 {vr(100+4*i)}, v22, {S_WS}, s{66+i} offen sc1{GN}")
    a("s_waitcnt vmcnt(0)")
    tagcheck("v14", [f"v{100+4*i+k}" for i in range(4) for k in (1,3)])
    poll_end("L_p3b", "v14")
    stamp(7)
    for i in range(4):
        a(f"ds_write2_b32 v{24 if i == 0 else 31+i}, v{100+4*i}, v{102+4*i} offset0:0 offset1:1")
    a("s_waitcnt lgkmcnt(0)\ns_barrier")
    for t in range(8):
        for u in range(2):
            r = 132+4*t+2*u
            a(f"ds_read_b64_tr_b16 v[{r}:{r+1}], v28 offset:{4608*u+32*t}")
    a("v_cvt_pk_bf16_f32 v128, v120, v121\nv_cvt_pk_bf16_f32 v129, v122, v123\nv_cvt_pk_bf16_f32 v130, v124, v125\nv_cvt_pk_bf16_f32 v131, v126, v127")
    for t in range(8):
        a(f"s_waitcnt lgkmcnt({14-2*t})")
        mfma(vr(164+4*t), vr(132+4*t), vr(128), True)
    for j in range(4):
        d0 = 164+8*j; o = 100+4*j
        a(f"v_cvt_pk_bf16_f32 v{o}, v{d0}, v{d0+1}\nv_cvt_pk_bf16_f32 v{o+1}, v{d0+2}, v{d0+3}\nv_cvt_pk_bf16_f32 v{o+2}, v{d0+4}, v{d0+5}\nv_cvt_pk_bf16_f32 v{o+3}, v{d0+6}, v{d0+7}")
    for j in range(4):
        for tt in range(2):
            mfma(vr(116+4*tt), vr(100+4*j), vr(60+(tt*4+j)*4), j == 0)
    a("v_cndmask_b32 v116, v116, v120, s[8:9]")
    a("v_mov_b32_dpp v117, v116 row_shl:1 row_mask:0xf bank_mask:0xf")
    a(f"v_cvt_pk_bf16_f32 v118, v116, v117\nv_mov_b32 v119, {TAG}")
    a("s_mov_b32 exec_lo, 0x55555555\ns_mov_b32 exec_hi, 0")
    a(f"buffer_store_dwordx2 v[118:119], v30, {S_WS}, s72 offen")
    a(f"buffer_store_dwordx2 v[118:119], v30, {S_WS}, s73 offen sc1")
    a("s_mov_b64 exec, -1")
    stamp(8)
    a("s_branch L_M")

    a.c("================= Y role: S3 (attention), S5 (out partial)")
    a("L_Y:")
    a("v_lshlrev_b32 v5, 4, v1")
    YD = 0
    for q in range(max(EARLY, MID), 4): ckv_group(q, ER if q == 0 else 0, 8)
    stamp(1)
    srd(S_B, 14, 5242880)
    a("s_bfe_u32 s74, s2, 0x40003")
    YPRE = opt.get('ypre', 0)
    PWY = 0
    if YPRE:
        m_coef_loads()
        tail_prefetch()
        s5_addresses()
        PWY = 13 + 1 + (1 if opt.get('gate', 1) else 0) + (1 if opt.get('prewarm', 1) else 0)
    a(f"s_lshl_b32 s62, {SW}, 5\nv_add_u32 v6, s62, v3\nv_mul_u32_u24 v6, {CKV_STRIDE}, v6\nv_lshl_add_u32 v6, v4, 4, v6")
    a("v_lshrrev_b32 v19, 2, v3\nv_lshl_add_u32 v19, v4, 2, v19")
    a(f"v_mul_u32_u24 v7, {CKV_STRIDE}, v19\nv_and_b32 v8, 3, v3\nv_lshl_add_u32 v7, v8, 3, v7\ns_lshl_b32 s62, {SW}, 8\nv_add_u32 v7, s62, v7\nv_add_u32 v8, {64*CKV_STRIDE}, v7")
    a("v_lshlrev_b32 v22, 4, v0")
    a(f"s_lshl_b32 s62, {SSUB}, 14\ns_add_u32 s66, s62, {QA}\ns_add_u32 s67, s66, 4096\ns_add_u32 s68, s66, 8192\ns_add_u32 s69, s66, 12288")
    a(f"v_lshrrev_b32 v24, 7, v0\nv_mul_u32_u24 v24, {CKV_STRIDE}, v24\nv_and_b32 v25, 127, v0\nv_lshl_add_u32 v24, v25, 3, v24\nv_add_u32 v24, {QS}, v24")
    a(f"v_add_u32 v16, {2*CKV_STRIDE}, v24\nv_add_u32 v17, {4*CKV_STRIDE}, v24\nv_add_u32 v18, {6*CKV_STRIDE}, v24" if False else f"v_add_u32 v16, {2*CKV_STRIDE}, v24\nv_add_u32 v17, {4*CKV_STRIDE}, v24\nv_add_u32 v20, {6*CKV_STRIDE}, v24")
    a(f"v_and_b32 v25, 7, v3\nv_mul_u32_u24 v25, {CKV_STRIDE}, v25\nv_lshl_add_u32 v25, v4, 4, v25\nv_add_u32 v25, {QS}, v25")
    a(f"s_lshl_b32 s62, {SW}, 2\ns_add_u32 s62, s62, {MX}\nv_lshlrev_b32 v26, 4, v3\nv_add_u32 v27, s62, v26\nv_add_u32 v28, {MX}, v26")
    a(f"s_lshl_b32 s62, {SW}, 10\ns_add_u32 s62, s62, {PX}\nv_add_u32 v29, s62, v5\nv_add_u32 v31, {PX}, v5")
    for k in range(4): a(f"v_mov_b32 v{184+k}, 0x3f803f80")
    a(f"s_and_b32 s62, s2, 7\ns_lshl_b32 s62, s62, 7\ns_bfe_u32 s63, s2, 0x40003\ns_lshl_b32 s63, s63, 2\ns_add_u32 s62, s62, s63\ns_add_u32 s62, s62, {YF}\nv_mov_b32 v183, s62")
    a("v_and_b32 v21, 1, v3\nv_cmp_eq_u32 s[8:9], 1, v21\nv_and_b32 v21, 2, v3\nv_cmp_eq_u32 s[10:11], 2, v21")
    OSPLIT = opt.get('osplit', 1)
    if OSPLIT:
        a("v_and_b32 v30, 1, v4\nv_lshlrev_b32 v30, 18, v30\nv_lshl_add_u32 v30, v3, 4, v30\nv_lshrrev_b32 v21, 1, v4\nv_lshl_add_u32 v30, v21, 17, v30\nv_cmp_eq_u32 s[12:13], 1, v21")
    else:
        a("v_and_b32 v30, 1, v4\nv_lshlrev_b32 v30, 18, v30\nv_lshl_add_u32 v30, v3, 4, v30\nv_lshrrev_b32 v21, 1, v4\nv_lshl_add_u32 v30, v21, 8, v30\nv_cmp_eq_u32 s[12:13], 1, v21")
    a(f"s_lshl_b32 s73, {SSUB}, 19\ns_lshl_b32 s63, {SW}, 14\ns_add_u32 s73, s73, s63\ns_lshl_b32 s63, {SH}, 9\ns_add_u32 s73, s73, s63\ns_add_u32 s73, s73, {OP}")
    a(f"s_lshl_b32 s72, {SR}, 7\ns_add_u32 s72, s72, {ST}")
    G2E = opt.get('g2early', 1)
    for tile in range(2):
        if tile == 1 and G2E:
            for i in range(4):
                a(f"buffer_load_dwordx4 {vr(100+4*i)}, v22, {S_WS}, s{66+i} offen sc1{GN}")
        a(f"s_waitcnt vmcnt({PWY + (16 if tile == 0 else (4 if G2E else 0))})")
        if tile == 1: stamp(2)
        for s in range(16):
            a(f"ds_read_b128 {ar((tile*16+s)*4)}, v6 offset:{tile*16*CKV_STRIDE+64*s}")
    stamp(3)
    if opt.get('sent2', 0):
        poll_begin("L_p2a")
        a(f"buffer_load_dword v100, v23, {S_WS}, s70 offen sc1")
        a("s_waitcnt vmcnt(0)")
        tagcheck("v14", ["v100"])
        poll_end("L_p2a", "v14")
    if G2E:
        a("s_waitcnt vmcnt(0)")
        tagcheck("v14", [f"v{100+4*i+k}" for i in range(4) for k in (1,3)])
        a("v_cmp_ne_u32 vcc, 0, v14\ns_cbranch_vccz L_p2_x")
        if MASKED: a("s_and_b64 exec, exec, vcc")
    poll_begin("L_p2")
    for i in range(4):
        a(f"buffer_load_dwordx4 {vr(100+4*i)}, v22, {S_WS}, s{66+i} offen sc1{GN}")
    a("s_waitcnt vmcnt(0)")
    tagcheck("v14", [f"v{100+4*i+k}" for i in range(4) for k in (1,3)])
    poll_end("L_p2", "v14")
    stamp(4)
    for i in range(4):
        a(f"ds_write2_b32 v{(24, 16, 17, 20)[i]}, v{100+4*i}, v{102+4*i} offset0:0 offset1:1")
    a("s_waitcnt lgkmcnt(0)\ns_barrier")
    for s in range(16):
        a(f"ds_read_b128 {vr(32+4*s)}, v25 offset:{64*s}")
    if opt.get('ptouch', 0):
        a(f"v_lshrrev_b32 v253, 2, v1\nv_lshlrev_b32 v253, 16, v253\nv_and_b32 v252, 3, v1\nv_lshl_add_u32 v253, v252, 7, v253\ns_mov_b32 exec_hi, 0")
        a(f"buffer_load_dword v252, v253, {S_WS}, s73 offen\ns_mov_b64 exec, 1")
        a(f"buffer_load_dword v252, v18, {S_WS}, s72 offen\ns_mov_b64 exec, -1")
    wo_n = [0]
    a(f"s_mul_i32 s71, {SR}, 40960")
    def wo_load():
        i = wo_n[0]; wo_n[0] += 1
        a(f"buffer_load_dwordx4 {vr(192)}, v22, {S_B}, s71 offen{' nt' if opt.get('ntwo', 0) else ''}\ns_add_u32 s71, s71, 4096")
    pv = []
    for t in range(8):
        for j in range(4):
            for u in range(2):
                r = 128+(t*4+j)*4+2*u
                pv.append(f"ds_read_b64_tr_b16 a[{r}:{r+1}], {'v7' if j < 2 else 'v8'} offset:{(32*(j&1)+16*u)*CKV_STRIDE+32*t}")
    for s in range(16):
        if s < 4: a(f"s_waitcnt lgkmcnt({12-4*s})")
        for tile in range(2):
            sidx = s
            mfma(vr(100+4*tile), ar((tile*16+s)*4), vr(32+4*s), s == 0)
            if s >= 3:
                for _ in range(3 if pv else 0):
                    if pv: a(pv.pop(0))
            if tile == 1 and s in (2, 5, 8, 11, 14): wo_load()
    while pv: a(pv.pop(0))
    stamp(5)
    a("v_max3_f32 v108, v100, v101, v102\nv_max3_f32 v109, v103, v104, v105\nv_max3_f32 v108, v108, v106, v107\nv_max_f32 v108, v108, v109")
    swap16("v_max_f32", ["v108"], ["v109"]); swap32("v_max_f32", ["v108"], ["v109"])
    a("ds_write_b32 v27, v108")
    a("s_waitcnt lgkmcnt(0)\ns_barrier")
    a(f"ds_read_b128 v[108:111], v28\ns_waitcnt lgkmcnt(0)")
    a("v_max3_f32 v108, v108, v109, v110\nv_max_f32 v108, v108, v111")
    for k in range(8): a(f"v_sub_f32 v{100+k}, v{100+k}, v108")
    for k in range(8): a(f"v_exp_f32 v{100+k}, v{100+k}")
    a("v_cvt_pk_bf16_f32 v112, v100, v101\nv_cvt_pk_bf16_f32 v113, v102, v103\nv_cvt_pk_bf16_f32 v114, v104, v105\nv_cvt_pk_bf16_f32 v115, v106, v107")
    a("ds_write_b128 v29, v[112:115]")
    a("s_waitcnt lgkmcnt(0)\ns_barrier")
    if opt.get('dbg3'): stamp(10)
    G3G = opt.get('gate3', 0)
    if G3G:
        a(f"s_cmp_eq_u32 {SW}, 0\ns_cbranch_scc0 L_nh3\nv_mov_b32 v21, {TAG}\ns_mov_b64 exec, 1")
        a(f"buffer_store_dword v21, v183, {S_WS}, 0 offen\ns_mov_b64 exec, -1\nL_nh3:")
    for j in range(4): a(f"ds_read_b128 {vr(32+4*j)}, v31 offset:{1024*j}")
    STA = opt.get('stafter', 0)
    STMF = opt.get('stmf', 32)
    def stats_store():
        a(f"s_cmp_eq_u32 {SW}, 0\ns_cbranch_scc0 L_Y_nostat")
        a("v_cndmask_b32 v110, v188, v189, s[8:9]\nv_cndmask_b32 v111, v190, v191, s[8:9]\nv_cndmask_b32 v110, v110, v111, s[10:11]")
        a(f"v_mov_b32 v109, {TAG}\nv_mov_b32 v111, {TAG}")
        a("s_mov_b64 exec, 0x00f0000f")
        a(f"buffer_store_dwordx4 v[108:111], v26, {S_WS}, s72 offen sc1")
        a("s_mov_b64 exec, -1\nL_Y_nostat:")
    def o_pack(hf, k):
        o = 160+4*(2*hf+k); L = []
        for e in range(4):
            d = 120+4*(4*hf+e)
            L.append(f"v_cndmask_b32 v{d+k}, v{d+k}, v{d+2+k}, s[12:13]")
        d0 = 120+16*hf
        L += [f"v_cvt_pk_bf16_f32 v{o}, v{d0+k}, v{d0+4+k}", f"v_mov_b32 v{o+1}, {TAG}", f"v_cvt_pk_bf16_f32 v{o+2}, v{d0+8+k}, v{d0+12+k}", f"v_mov_b32 v{o+3}, {TAG}"]
        L.append(f"buffer_store_dwordx4 {vr(o)}, v30, {S_WS}, {'s73' if k == 0 else 's71x'} offen offset:{256*hf} sc1{SN}")
        return L
    if OSPLIT:
        a("s_add_u32 s75, s73, 65536")
        a("s_waitcnt lgkmcnt(0)")
        for j in range(4): mfma(vr(188), vr(32+4*j), vr(184), j == 0)
        pend = []
        n = 0
        for t in range(8):
            for j in range(4):
                mfma(vr(120+4*t), vr(32+4*j), ar(128+(t*4+j)*4), j == 0)
                n += 1
                if n in (4, 10, 16, 22, 28): wo_load()
                if n == opt.get('stn', 18): stats_store()
                if n == 18:
                    pend = [x.replace('s71x', 's75') for x in o_pack(0, 0) + o_pack(0, 1)]
                if n > 18:
                    for _ in range(2):
                        if pend: a(pend.pop(0))
        while pend: a(pend.pop(0))
        if opt.get('stn', 18) > 32: stats_store()
        for k in range(2):
            for x in o_pack(1, k): a(x.replace('s71x', 's75'))
    else:
        if STMF < 32:
            for j in range(4):
                a(f"s_waitcnt lgkmcnt({3-j})")
                mfma(vr(188), vr(32+4*j), vr(184), j == 0)
        for j in range(4):
            if STMF >= 32:
                a(f"s_waitcnt lgkmcnt({3-j})")
                mfma(vr(188), vr(32+4*j), vr(184), j == 0)
            for t in range(8):
                if j*8+t == STMF: stats_store()
                mfma(vr(120+4*t), vr(32+4*j), ar(128+(t*4+j)*4), j == 0)
                if (j*8+t) in (3, 9, 15, 21, 27): wo_load()
        if STMF < 32: STA = -1
        for r in range(4):
            if r == STA: stats_store()
            o = 160+4*r
            for e in range(4): a(f"v_cndmask_b32 v{120+4*e+r}, v{120+4*e+r}, v{136+4*e+r}, s[12:13]")
            a(f"v_cvt_pk_bf16_f32 v{o}, v{120+r}, v{124+r}\nv_mov_b32 v{o+1}, {TAG}\nv_cvt_pk_bf16_f32 v{o+2}, v{128+r}, v{132+r}\nv_mov_b32 v{o+3}, {TAG}")
            a(f"buffer_store_dwordx4 {vr(o)}, v30, {S_WS}, s73 offen sc1")
            if r < 3: a("s_add_u32 s73, s73, 65536")
        if STA == 4: stats_store()
    stamp(6)
    if YPRE: m_coef_unpack()
    a("s_add_u32 s65, s74, 16")
    a(f"s_waitcnt vmcnt({2 if OSPLIT else 4})")
    wo_slice_dma("s74", 0)
    a("s_cmp_lt_u32 s74, 4\ns_cbranch_scc0 L_Y_one")
    wo_slice_dma("s65", 32768)
    a("L_Y_one:")
    rewarm("y")
    if not YPRE:
        m_coef_loads()
        tail_prefetch()
        s5_addresses()
    a("s_waitcnt vmcnt(0)")
    wo_slice_frags(0, 0)
    a("s_cmp_lt_u32 s74, 4\ns_cbranch_scc0 L_Y_one2")
    wo_slice_frags(32768, 32)
    a("L_Y_one2:")
    if not YPRE: m_coef_unpack()
    stamp(7)
    a.c("================= S5: out[32u..32u+31] over the 4 heads of this XCD group (wave = head)")
    a(f"s_add_u32 s68, s101, {CPB-CP}")
    a("s_waitcnt lgkmcnt(0)")
    poll_begin("L_p4", ("s66", "s101", "s68"))
    G4D = opt.get('g4dense', 1)
    def g4_loads(fl):
        if G4D:
            a(f"buffer_load_dwordx4 v[140:143], v240, {S_WS}, s66 offen {fl}\nbuffer_load_dwordx4 v[144:147], v240, {S_WS}, s66 offen offset:1024 {fl}")
        else:
            for dq in range(4):
                a(f"buffer_load_dwordx4 {vr(100+8*dq)}, v240, {S_WS}, s66 offen offset:{512*dq} {fl}")
                a(f"buffer_load_dwordx4 {vr(104+8*dq)}, v240, {S_WS}, s66 offen offset:{512*dq+256} {fl}")
    dual_loads("L_p4", g4_loads)
    a("s_waitcnt vmcnt(0)")
    tagcheck("v14", ["v141", "v143", "v145", "v147"] if G4D else [f"v{100+8*dq+k}" for dq in range(4) for k in (1,3,5,7)])
    poll_end("L_p4", "v14")
    stamp(8)
    if G4D:
        a("v_mov_b32 v141, v142\nv_mov_b32 v145, v146")
        a("ds_write_b64 v236, v[140:141]\nds_write_b64 v236, v[144:145] offset:512")
        for dq in range(4): a(f"ds_read_b128 {vr(100+8*dq)}, v235 offset:{256*dq}")
        a("s_waitcnt lgkmcnt(0)")
    else:
        for dq in range(4):
            r = 100+8*dq
            a(f"v_mov_b32 v{r+1}, v{r+2}\nv_mov_b32 v{r+2}, v{r+4}\nv_mov_b32 v{r+3}, v{r+6}")
    a("v_cmp_eq_u32 vcc, 1, v4")
    def unit_mm(a0, d0, lds_off):
        for dq in range(4):
            for tt in range(2):
                mfma(vr(d0+4*tt), vr(100+8*dq), ar(a0+(tt*4+dq)*4), dq == 0)
        a(f"v_pk_add_f32 v[{d0}:{d0+1}], v[{d0}:{d0+1}], v[{d0+2}:{d0+3}]\nv_pk_add_f32 v[{d0+4}:{d0+5}], v[{d0+4}:{d0+5}], v[{d0+6}:{d0+7}]")
        a(f"v_add_f32 v{d0}, v{d0}, v{d0+1}\nv_add_f32 v{d0+4}, v{d0+4}, v{d0+5}")
        a(f"v_cndmask_b32 v{d0}, v{d0}, v{d0+4}, vcc")
        a(f"s_mov_b32 exec_hi, 0\nds_write_b32 v241, v{d0} offset:{lds_off}\ns_mov_b64 exec, -1")
    unit_mm(0, 156, 0)
    a("s_cmp_lt_u32 s74, 4\ns_cbranch_scc0 L_Y_one3")
    unit_mm(32, 148, 512)
    a("L_Y_one3:")
    a("s_waitcnt lgkmcnt(0)\ns_barrier")
    a(f"s_cmp_eq_u32 {SW}, 0\ns_cbranch_scc1 L_Y_pub\ns_cmp_eq_u32 {SW}, 1\ns_cbranch_scc0 L_M\ns_cmp_lt_u32 s74, 4\ns_cbranch_scc0 L_M")
    a(f"v_add_u32 v242, 512, v242\nv_add_u32 v243, {16*128}, v243\nv_add_u32 v244, 64, v244")
    a("L_Y_pub:")
    a("ds_read_b32 v136, v242\nds_read_b32 v137, v242 offset:128\nds_read_b32 v138, v242 offset:256\nds_read_b32 v139, v242 offset:384")
    a("s_waitcnt lgkmcnt(0)")
    a("v_pk_add_f32 v[136:137], v[136:137], v[138:139]\nv_add_f32 v136, v136, v137")
    a("v_mov_b32_dpp v137, v136 row_shl:1 row_mask:0xf bank_mask:0xf")
    a(f"v_cvt_pk_bf16_f32 v138, v136, v137\nv_mov_b32 v139, {TAG}")
    a("s_mov_b32 exec_lo, 0x55555555\ns_mov_b32 exec_hi, 0")
    a(f"buffer_store_dwordx2 v[138:139], v243, {S_WS}, 0 offen sc1")
    if opt.get('gate', 1):
        a("s_mov_b64 exec, 1")
        a(f"buffer_store_dword v139, v244, {S_WS}, 0 offen")
    a("s_mov_b64 exec, -1")

    a.c("================= M stage")
    a("L_M:")
    a("s_mul_i32 s64, s2, 3\ns_cmp_ge_u32 s64, 640\ns_cbranch_scc1 L_fin")
    a(f"v_mov_b32 v144, {f2u(C0):#x}\nv_mov_b32 v145, {f2u(C0):#x}")
    for k in range(3): a(f"v_mov_b32 v{146+2*k}, 0\nv_mov_b32 v{147+2*k}, 0")
    a(f"v_add_u32 v15, s64, v1\nv_min_u32 v15, 639, v15\nv_lshlrev_b32 v15, 2, v15\nv_add_u32 v15, {HB}, v15")
    a("v_mov_b32 v132, 0\nv_mov_b32 v133, 0")
    a(f"s_cmp_eq_u32 {SW}, 3\ns_cbranch_scc1 L_M_wait")
    a(f"v_lshlrev_b32 v13, 4, v0\ns_mov_b32 s66, {XP}\ns_mov_b32 s67, {XP+5120}\ns_mov_b32 s68, {XP+10240}\ns_mov_b32 s69, {XP+15360}")
    a("s_mov_b32 s63, 0xffff0000")
    a("v_lshlrev_b32 v136, 16, v246\nv_and_b32 v137, s63, v246\nv_lshlrev_b32 v138, 16, v247\nv_and_b32 v139, s63, v247")
    a(f"v_add_u32 v17, {HB}, v13\ns_lshl_b32 s62, {SW}, 3\ns_add_u32 s62, s62, {SB}\nv_mov_b32 v19, s62")
    a(f"s_cmp_eq_u32 {SW}, 2\ns_cselect_b32 s72, 0, -1\ns_mov_b32 exec_hi, s72")
    stamp(9)
    if opt.get('gate', 1):
        a(f"s_mov_b64 s[98:99], exec\ns_mov_b64 exec, 0xfffff\ns_and_b32 s62, s2, 7\ns_lshl_b32 s62, s62, 7\ns_add_u32 s62, s62, {UF}\nv_lshlrev_b32 v14, 2, v1\nv_mov_b32 v16, v14\ns_mov_b32 s61, 0")
        a("L_g6:")
        a(f"buffer_load_dword v100, v16, {S_WS}, s62 offen {LF}\ns_waitcnt vmcnt(0)")
        a(f"v_cmp_ne_u32 vcc, {TAG}, v100\ns_add_u32 s61, s61, 1\ns_cmp_gt_u32 s61, {opt.get('gatemax', 64)}\ns_cbranch_scc1 L_g6x\ns_cbranch_vccnz L_g6")
        a("L_g6x:")
        for _ in range(opt.get('gextra', 0)):
            a(f"buffer_load_dword v100, v16, {S_WS}, s62 offen {LF}\ns_waitcnt vmcnt(0)")
        a("s_mov_b64 exec, s[98:99]")
    MPROG = opt.get('mprog', 0)
    def m_row_add(xx):
        b = 100+4*xx
        a(f"v_lshlrev_b32 v140, 16, v{b}\nv_and_b32 v141, s63, v{b}\nv_lshlrev_b32 v142, 16, v{b+2}\nv_and_b32 v143, s63, v{b+2}")
        a("v_pk_add_f32 v[136:137], v[136:137], v[140:141]\nv_pk_add_f32 v[138:139], v[138:139], v[142:143]")
    if MPROG:
        for xx in range(8):
            a(f"buffer_load_dwordx4 {vr(100+4*xx)}, v13, {S_WS}, s{66+(xx>>1)} offen offset:{2560*(xx&1)} sc1{GN}")
        for xx in range(8):
            a(f"s_waitcnt vmcnt({7-xx})")
            if xx == 0: a(f"v_xor_b32 v14, {TAG}, v101")
            else: a(f"v_bitop3_b32 v14, v{100+4*xx+1}, {TAG}, v14 bitop3:0xbe")
            a(f"v_bitop3_b32 v14, v{100+4*xx+3}, {TAG}, v14 bitop3:0xbe")
            m_row_add(xx)
        a("v_cmp_ne_u32 vcc, 0, v14\ns_cbranch_vccz L_M_sum\ns_and_b64 exec, exec, vcc")
    poll_begin("L_p6")
    for xx in range(8):
        a(f"buffer_load_dwordx4 {vr(100+4*xx)}, v13, {S_WS}, s{66+(xx>>1)} offen offset:{2560*(xx&1)} sc1{GN}")
    a("s_waitcnt vmcnt(0)")
    tagcheck("v14", [f"v{100+4*xx+k}" for xx in range(8) for k in (1,3)])
    poll_end("L_p6", "v14")
    a("s_mov_b32 exec_hi, s72")
    a("v_lshlrev_b32 v136, 16, v246\nv_and_b32 v137, s63, v246\nv_lshlrev_b32 v138, 16, v247\nv_and_b32 v139, s63, v247")
    for xx in range(8): m_row_add(xx)
    a("L_M_sum:")
    for _ in range(opt.get('padnop', 0)): a("s_nop 0")
    if opt.get('padjmp', 0):
        for i in range(opt['padjmp']):
            a(f"s_branch L_pj{i}\n.p2align 6\nL_pj{i}:")
    stamp(10)
    a("v_cvt_pk_bf16_f32 v140, v136, v137\nv_cvt_pk_bf16_f32 v141, v138, v139")
    a("v_lshlrev_b32 v136, 16, v140\nv_and_b32 v137, s63, v140\nv_lshlrev_b32 v138, 16, v141\nv_and_b32 v139, s63, v141")
    a("ds_write_b128 v17, v[136:139]")
    for k in range(4): a(f"v_subrev_f32 v{140+k}, s3, v{136+k}")
    a("v_add_f32 v132, v140, v141\nv_mul_f32 v133, v140, v140\nv_add_f32 v134, v142, v143\nv_fmac_f32 v133, v141, v141\nv_add_f32 v132, v132, v134\nv_fmac_f32 v133, v142, v142\nv_fmac_f32 v133, v143, v143")
    a("s_mov_b64 exec, -1")
    wave_allreduce("v_add_f32", ["v132", "v133"], ["v134", "v135"])
    a("s_mov_b64 exec, 1\nds_write_b64 v19, v[132:133]\ns_mov_b64 exec, -1")
    a(f"s_or_b32 s62, s2, {SW}\ns_cmp_eq_u32 s62, 0\ns_cbranch_scc0 L_noep")
    a(f"v_mov_b32 v16, {TAG}\ns_mov_b64 exec, 1\nbuffer_store_dword v16, v18, {S_WS}, 0 offen sc1\ns_mov_b64 exec, -1")
    a("L_noep:")
    a("s_waitcnt lgkmcnt(0)")
    a("L_M_wait:")
    a("s_barrier")
    a(f"v_mov_b32 v16, {SB}\nds_read_b128 v[120:123], v16\nds_read_b64 v[124:125], v16 offset:16\nds_read_b32 v136, v15\ns_mov_b32 s62, {f2u(1.0/640):#x}\ns_waitcnt lgkmcnt(0)")
    a("v_add_f32 v130, v120, v122\nv_add_f32 v132, v121, v123\nv_add_f32 v130, v130, v124\nv_add_f32 v132, v132, v125")
    a("v_mul_f32 v130, s62, v130\nv_mul_f32 v132, s62, v132")
    a("v_fma_f32 v132, -v130, v130, v132")
    a("v_add_f32 v130, s3, v130")
    a(f"v_add_f32 v133, {f2u(EPS):#x}, v132\nv_rsq_f32 v133, v133")
    a("v_sub_f32 v140, v136, v130")
    a("v_mul_f32 v134, v133, v133\nv_mul_f32 v134, v134, v132")
    a(f"v_add_f32 v134, {f2u(EPS):#x}, v134\nv_rsq_f32 v134, v134\nv_mul_f32 v140, v140, v133\ns_mov_b32 s62, {f2u(C1):#x}\nv_mul_f32 v140, v140, v134")
    for k in range(3):
        a(f"v_readlane_b32 s{70+2*k}, v140, {k}")
    for k in range(3):
        t = f"s[{70+2*k}:{71+2*k}]"
        U = lambda i: f"v[{152+2*i}:{153+2*i}]"
        Z = lambda i: f"v[{160+2*i}:{161+2*i}]"
        for i in range(4): a(f"v_pk_fma_f32 {U(i)}, v[{210+2*i}:{211+2*i}], {t}, v[{218+2*i}:{219+2*i}] op_sel_hi:[1,0,1]")
        for i in range(4): a(f"v_pk_mul_f32 {Z(i)}, {U(i)}, {U(i)}")
        for i in range(4): a(f"v_pk_fma_f32 {Z(i)}, {Z(i)}, s[62:63], v[144:145] op_sel_hi:[1,0,1]")
        for i in range(4): a(f"v_pk_mul_f32 {Z(i)}, {Z(i)}, {U(i)}")
        for i in range(4): a(f"v_exp_f32 v{160+2*i}, v{160+2*i}\nv_exp_f32 v{161+2*i}, v{161+2*i}")
        for i in range(4): a(f"v_pk_mul_f32 {U(i)}, {U(i)}, v[{226+2*i}:{227+2*i}]")
        for i in range(4): a(f"v_pk_add_f32 {Z(i)}, {Z(i)}, 1.0 op_sel_hi:[1,0]")
        for i in range(4): a(f"v_rcp_f32 v{160+2*i}, v{160+2*i}\nv_rcp_f32 v{161+2*i}, v{161+2*i}")
        for i in range(4): a(f"v_pk_fma_f32 v[{146+2*k}:{147+2*k}], {U(i)}, {Z(i)}, v[{146+2*k}:{147+2*k}]")
    for k in range(3): a(f"v_add_f32 v{146+2*k}, v{146+2*k}, v{147+2*k}")
    wave_allreduce("v_add_f32", ["v146","v148","v150"], ["v147","v149","v151"])
    a(f"s_lshl_b32 s62, {SW}, 4\ns_add_u32 s62, s62, {MRED}\nv_mov_b32 v15, s62\nv_mov_b32 v147, v148\nv_mov_b32 v148, v150")
    a("s_mov_b64 exec, 1\nds_write_b96 v15, v[146:148]\ns_mov_b64 exec, -1")
    a("s_waitcnt lgkmcnt(0)\ns_barrier")
    a(f"s_cmp_eq_u32 {SW}, 0\ns_cbranch_scc0 L_fin")
    a(f"v_lshlrev_b32 v15, 2, v1\nv_add_u32 v15, {MRED}, v15")
    a("ds_read_b32 v100, v15\nds_read_b32 v101, v15 offset:16\nds_read_b32 v102, v15 offset:32\nds_read_b32 v103, v15 offset:48")
    srd(S_T, 26, 1280)
    a("v_add_u32 v15, s64, v1\nv_lshlrev_b32 v16, 1, v15")
    a("v_add_f32 v136, v136, v208")
    a("s_waitcnt lgkmcnt(0)")
    a("v_add_f32 v100, v100, v101\nv_add_f32 v102, v102, v103\nv_add_f32 v100, v100, v102\nv_add_f32 v100, v100, v136")
    a("v_cvt_pk_bf16_f32 v100, v100, v100")
    a("v_cmp_gt_u32 vcc, 640, v15\ns_and_b64 exec, vcc, 7")
    a("s_cbranch_execz L_fin")
    a(f"buffer_store_short v100, v16, {S_T}, 0 offen")
    a("L_fin:")
    if opt.get('pin'):
        a(f"s_waitcnt lgkmcnt(0)\ns_add_u32 s76, s76, {opt['pin']}")
        a("L_pin:\ns_memrealtime s[78:79]\ns_waitcnt lgkmcnt(0)\ns_sub_u32 s80, s78, s76\ns_cmp_lt_i32 s80, 0\ns_cbranch_scc1 L_pin")
    if profile and opt.get('dbgout'):
        stamp(11)
        a("s_mov_b64 exec, -1\ns_waitcnt lgkmcnt(0)")
        srd(S_T, 28, 256)
        a(f"s_cmp_eq_u32 {SW}, 0\ns_cbranch_scc0 L_end")
        a("v_mov_b32 v18, 0\ns_mov_b64 exec, 1")
        a(f"s_not_b32 s62, s76\nv_mov_b32 v15, s62\nbuffer_atomic_umax v15, v18, {S_T}, 0 offen")
        a(f"v_mov_b32 v15, s98\nbuffer_atomic_umax v15, v18, {S_T}, 0 offen offset:44")
        a("s_bitcmp1_b32 s2, 7\ns_cbranch_scc1 L_dy")
        for k in range(1, 9):
            a(f"v_mov_b32 v15, s{76+2*k}\nbuffer_atomic_umax v15, v18, {S_T}, 0 offen offset:{4*k}")
        a(f"v_mov_b32 v15, s{76+2*10}\nbuffer_atomic_umax v15, v18, {S_T}, 0 offen offset:40")
        a(f"v_mov_b32 v15, s{76+2*9}\nbuffer_atomic_umax v15, v18, {S_T}, 0 offen offset:36")
        a("s_branch L_end\nL_dy:")
        for j, k in enumerate((2, 4, 6, 8)):
            a(f"v_mov_b32 v15, s{76+2*k}\nbuffer_atomic_umax v15, v18, {S_T}, 0 offen offset:{48+4*j}")
    elif profile:
        stamp(11)
        a("s_mov_b64 exec, -1\ns_waitcnt lgkmcnt(0)")
        a(f"s_lshl_b32 s62, s2, 2\ns_add_u32 s62, s62, {SW}\ns_lshl_b32 s62, s62, 6\ns_add_u32 s62, s62, {TS}")
        a("v_mov_b32 v18, 0\ns_mov_b64 exec, 1")
        for k in range(12):
            a(f"v_mov_b32 v15, s{76+2*k}\nbuffer_store_dword v15, v18, {S_WS}, s62 offen offset:{4*k}")
        a(f"v_mov_b32 v15, s100\nbuffer_store_dword v15, v18, {S_WS}, s62 offen offset:48")
        a(f"s_getreg_b32 s100, hwreg(HW_REG_XCC_ID)\nv_mov_b32 v15, s100\nbuffer_store_dword v15, v18, {S_WS}, s62 offen offset:52")
        a(f"s_getreg_b32 s100, hwreg(HW_REG_HW_ID)\nv_mov_b32 v15, s100\nbuffer_store_dword v15, v18, {S_WS}, s62 offen offset:56")
    a("L_end:")
    a("s_endpgm")
    a("L_code_end:")
    a(f".set CODE_BYTES, L_code_end - {NAME}")
    a('.section .rodata,"a"\n.p2align 6')
    a(f".amdhsa_kernel {NAME}")
    a("  .amdhsa_next_free_vgpr 512\n  .amdhsa_next_free_sgpr 102\n  .amdhsa_accum_offset 256\n  .amdhsa_group_segment_fixed_size 0\n  .amdhsa_kernarg_size 112\n  .amdhsa_user_sgpr_count 2\n  .amdhsa_user_sgpr_kernarg_segment_ptr 1\n  .amdhsa_system_sgpr_workgroup_id_x 1")
    a(".end_amdhsa_kernel")
    n = a.hazard_pass()
    return a.text(), n

LAYOUT = dict(QG=QG, QA=QA, ST=ST, CP=CP, HG=HG, OUTP=OUTP, OP=OP, TS=TS, XP=XP)
if __name__ == "__main__":
    prof = "prof" in sys.argv[2:]
    opt = {}
    for x in sys.argv[2:]:
        if '=' in x:
            k, v = x.split('='); opt[k] = int(v) if v.lstrip('-').isdigit() else v
    txt, n = gen(profile=prof, opt=opt)
    open(sys.argv[1], "w").write(txt)
    print("auto nops:", n, "lines:", txt.count("\n"), LAYOUT)
```

```python
import sys, math, struct
from asmlib import Asm

NAME = "sequential_preLN__compressed_kv_cla__mixer_token_mlp__decode_kernel"
HEADER = open('sequential_preLN__compressed_kv_cla__mixer_token_mlp__decode.s.ref').read().split('; Override')[0]

def f2u(x): return struct.unpack('<I', struct.pack('<f', x))[0]

QG   = 4096
QA   = QG + 131072
ST   = QA + 65536
CP   = ST + 16384
HG   = CP + 65536
SENT2 = HG + 4096
SENT5 = SENT2 + 16384
QGB  = SENT5 + 16384
CPB  = QGB + 131072
OUTP = CPB + 65536
OUTPB = OUTP + 128*2560
XP   = OUTPB + 128*2560
UF   = XP + 8*2560
YF   = UF + 1024
OP   = (2 << 20) + 4096
TS   = (4 << 20) + 65536
assert YF + 8*128 <= OP
WS_SIZE = 5 << 20
CKV_STRIDE = 1056
QS = 135168; PX = 143616; MX = 147712; LX = 147968; MRED = 148224; MB = 148288
WUK = 0; WUV = 32768; OS = 65536; S1RED = 74752; WX = 82944; RRED = 83456
S1RED_C = 148480
LDS_BYTES = 156672
WO_STRIDE = 1312
GS = 65536
HB = PX; SB = MB; RR = PX + 2560

SCALE = (128 ** -0.5) * math.log2(math.e)
C0 = -2.0 * math.sqrt(2.0 / math.pi) * math.log2(math.e)
C1 = C0 * 0.044715
EPS = 1e-5

S_WS, S_X, S_A, S_B, S_C, S_T = 's[32:35]', 's[36:39]', 's[40:43]', 's[44:47]', 's[48:51]', 's[52:55]'
TAG, SW, SR, SH, SSUB = 's56', 's57', 's58', 's59', 's60'

def gen(profile=False, spin_limit=400000, opt=None):
    opt = opt or {}
    WARM = opt.get('warm', 1)
    STPOS = opt.get('stpos', 1)
    a = Asm()
    NT = " nt" if opt.get('nt', 1) else ""
    LF = opt.get('lflag', 'nt')
    GN = ' nt' if opt.get('gnt', 0) else ''
    SN = ' nt' if opt.get('snt', 0) else ''
    BP = opt.get('bper', 32) - 1
    SMASK = opt.get('smask', 0xfff)
    def stamp(k):
        if profile and (SMASK >> k) & 1:
            assert k < 12
            a(f"s_memrealtime s[{76+2*k}:{77+2*k}]")
    def srd(dst, ptr, size):
        d = int(dst[2:dst.index(':')])
        a(f"s_mov_b32 s{d}, s{ptr}\ns_mov_b32 s{d+1}, s{ptr+1}\ns_mov_b32 s{d+2}, {size}\ns_mov_b32 s{d+3}, 0x00020000")
    DPPS = ("quad_perm:[1,0,3,2]", "quad_perm:[2,3,0,1]", "row_half_mirror", "row_mirror")
    def row_allreduce(op, vs):
        for m in DPPS:
            for v in vs: a(f"{op}_dpp {v}, {v}, {v} {m} row_mask:0xf bank_mask:0xf")
    def swapred(sw, op, vs, ts):
        for v, t in zip(vs, ts): a(f"v_mov_b32 {t}, {v}")
        for v, t in zip(vs, ts): a(f"{sw} {v}, {t}")
        for v, t in zip(vs, ts): a(f"{op} {v}, {v}, {t}")
    def swap16(op, vs, ts): swapred("v_permlane16_swap_b32", op, vs, ts)
    def swap32(op, vs, ts): swapred("v_permlane32_swap_b32", op, vs, ts)
    def wave_allreduce(op, vs, ts):
        row_allreduce(op, vs); swap16(op, vs, ts); swap32(op, vs, ts)
    MASKED = opt.get('masked', 1)
    def poll_begin(name, dual=None):
        a(f"s_mov_b32 s61, 0")
        a(f"{name}:")
        if dual:
            a(f"s_and_b32 s75, s61, {BP}\ns_cmp_eq_u32 s75, {BP}\ns_cselect_b32 {dual[0]}, {dual[2]}, {dual[1]}")
    def poll_end(name, bad):
        a(f"v_cmp_ne_u32 vcc, 0, {bad}")
        a(f"s_add_u32 s61, s61, 1")
        a(f"s_cbranch_vccz {name}_x")
        a(f"s_cmp_gt_u32 s61, {spin_limit}")
        a(f"s_cbranch_scc1 {name}_x")
        if MASKED:
            a(f"s_and_b64 exec, exec, vcc")
            a(f"s_branch {name}")
        else:
            a(f"s_cbranch_vccnz {name}")
        a(f"{name}_x:")
        if MASKED: a("s_mov_b64 exec, -1")
        if profile and opt.get('cntfor') == name:
            a("s_mov_b32 s100, s61")
    def tagcheck(bad, tags):
        a(f"v_xor_b32 {bad}, {TAG}, {tags[0]}")
        for t in tags[1:]:
            a(f"v_bitop3_b32 {bad}, {t}, {TAG}, {bad} bitop3:0xbe")
    def mfma(d, A, B, first):
        a(f"v_mfma_f32_16x16x32_bf16 {d}, {A}, {B}, {'0' if first else d}")
    def vr(b, n=4): return f"v[{b}:{b+n-1}]"
    def ar(b, n=4): return f"a[{b}:{b+n-1}]"

    a.lines += [l for l in HEADER.strip().split('\n')]
    a(f"; @launch grid=(256,1,1) block=(256,1,1) lds={LDS_BYTES}")
    a('.amdgcn_target "amdgcn-amd-amdhsa--gfx950"')
    for l in """
One persistent launch, 256 workgroups (one per CU).  Absorbed MLA decode + token mixer, all stages chained through d_ws:
  S1 (all)  q partials      = LN(x) . w_q              rows split 8 ways per head
  S2 (X)    q_abs[h, c]     = q[h] . w_uk[c, h]        (scale and log2(e) folded in)
  S3 (Y)    scores, running max / sum and P.c_kv for 128 keys x 8 heads (MFMA)
  S4 (X)    combine the 32 key splits (true max), ctx partial = ctx_lat . w_uv
  S5 (Y)    out partial for 32 columns over the 4 heads of the workgroup id class (id & 7)
  M  (all)  h = x + out, LN(LN(h)), token MLP for 3 columns per workgroup
X = ids 0..127, Y = ids 128..255.  Hand-offs are 8-byte granules {payload, tag}; tag = (word 0 of d_ws at entry) + 1,
word 0 is set to the tag at the end.  Hand-offs inside one id class are written twice: a plain store (seen quickly when the
class shares an L2) and a write-through copy that consumers probe every 32nd poll, so no placement is assumed.
""".strip().split("\n"): a.c(l)
    a(f".text\n.globl {NAME}\n.p2align 8\n.type {NAME},@function\n{NAME}:")
    WPOS = opt.get('wpos', 0)
    def warm_load():
        a("s_getpc_b64 s[52:53]\nL_pc:\ns_sub_u32 s52, s52, L_pc-%s\ns_subb_u32 s53, s53, 0\nv_lshlrev_b32 v254, 7, v0\ns_mov_b32 s54, CODE_BYTES\ns_mov_b32 s55, 0x00020000" % NAME)
        a("buffer_load_dword v251, v254, s[52:55], 0 offen")
    a("s_load_dwordx16 s[4:19], s[0:1], 0\ns_load_dwordx8 s[20:27], s[0:1], 64\ns_load_dwordx4 s[28:31], s[0:1], 96")
    if WARM and WPOS == 0: warm_load()
    stamp(0)
    if opt.get('pin'): a("s_memrealtime s[76:77]")
    if profile: a("s_mov_b32 s100, 99")
    a("s_cmp_ge_u32 s2, 256\ns_cbranch_scc1 L_end")
    a("v_and_b32 v1, 63, v0\nv_lshrrev_b32 v2, 6, v0\nv_and_b32 v3, 15, v0\nv_bfe_u32 v4, v0, 4, 2")
    a(f"v_readfirstlane_b32 {SW}, v2")
    a(f"s_and_b32 s61, s2, 7\ns_bfe_u32 s62, s2, 0x40003\ns_lshl_b32 {SR}, s61, 4\ns_add_u32 {SR}, {SR}, s62")
    a(f"s_lshr_b32 {SH}, {SR}, 2\ns_and_b32 {SSUB}, {SR}, 3")
    a("v_mov_b32 v18, 0")
    for k in range(240, 245): a(f"v_mov_b32 v{k}, 0")
    a("s_lshr_b32 s72, s2, 6\ns_and_b32 s73, s2, 7\ns_lshl_b32 s73, s73, 2\ns_add_u32 s72, s72, s73")
    a("s_bfe_u32 s73, s2, 0x30003")
    a("v_lshlrev_b32 v5, 4, v1\nv_lshlrev_b32 v17, 2, v1")
    a(f"v_lshrrev_b32 v6, 4, v0\nv_mul_u32_u24 v13, 5, v6\ns_mul_i32 s62, s73, 160\nv_lshlrev_b32 v7, 1, v13\nv_add_u32 v7, s62, v7\nv_and_b32 v14, 2, v7\nv_lshlrev_b32 v14, 3, v14\nv_and_b32 v7, -4, v7")
    a("v_lshlrev_b32 v8, 4, v3\nv_lshl_add_u32 v8, v13, 13, v8\nv_mov_b32 v255, v14")
    a(f"s_mul_i32 s61, s73, {80*8192}\ns_lshl_b32 s62, s72, 8\ns_add_u32 s61, s61, s62")
    a("v_xor_b32 v9, v3, v4\nv_lshlrev_b32 v9, 4, v9\nv_lshl_add_u32 v9, v4, 13, v9")
    a("v_xor_b32 v10, 64, v9\nv_xor_b32 v11, 128, v9\nv_xor_b32 v12, 192, v9")
    a(f"s_mov_b32 s34, {WS_SIZE}\ns_mov_b32 s35, 0x00020000\ns_mov_b32 s38, 1280\ns_mov_b32 s39, 0x00020000\ns_mov_b32 s42, 5242880\ns_mov_b32 s43, 0x00020000")
    a("s_waitcnt lgkmcnt(0)")
    a("s_mov_b32 s36, s4\ns_mov_b32 s37, s5\ns_mov_b32 s32, s30\ns_mov_b32 s33, s31\ns_mov_b32 s40, s8\ns_mov_b32 s41, s9")
    a(f"buffer_load_dwordx4 v[32:35], v5, {S_X}, 0 offen\nbuffer_load_dword v36, v17, {S_X}, 0 offen offset:1024")
    a(f"buffer_load_dword v250, v18, {S_WS}, 0 offen")
    if opt.get('tlbw', 0):
        a(f"s_mov_b32 s62, {2<<20}\ns_mov_b32 s63, {(4<<20)+8192}")
        a(f"buffer_load_dword v255, v18, {S_WS}, s62 offen\nbuffer_load_dword v255, v18, {S_WS}, s63 offen")
    def m_coef_loads():
        a("v_lshlrev_b32 v17, 2, v0")
        for k, p in enumerate((18, 20, 22)):
            srd(S_T, p, 3456)
            for i in range(4):
                a(f"buffer_load_dword v{196+4*k+i}, v17, {S_T}, 0 offen offset:{1024*i}")
        srd(S_T, 24, 2)
        a(f"buffer_load_ushort v208, v18, {S_T}, 0 offen")
    def m_coef_unpack():
        a("s_mov_b32 s63, 0xffff0000")
        for k in range(3):
            for i in range(4):
                s_ = 196+4*k+i; d = 210+8*k+2*i
                a(f"v_lshlrev_b32 v{d}, 16, v{s_}\nv_and_b32 v{d+1}, s63, v{s_}")
        a("v_lshlrev_b32 v208, 16, v208")
    def rewarm(tagname):
        if not opt.get('rewarm', 0): return 0
        a(f"s_getpc_b64 s[52:53]\nL_pc{tagname}:\ns_mov_b32 s54, L_code_end-L_pc{tagname}\ns_mov_b32 s55, 0x00020000\nv_lshlrev_b32 v254, 7, v0")
        a("buffer_load_dword v251, v254, s[52:55], 0 offen")
        return 1
    def tail_prefetch():
        a(f"v_lshlrev_b32 v245, 3, v0\nbuffer_load_dwordx2 v[246:247], v245, {S_X}, 0 offen")
        if opt.get('gate', 1):
            a(f"s_and_b32 s62, s2, 7\ns_lshl_b32 s62, s62, 7\ns_add_u32 s62, s62, {UF}\nv_lshlrev_b32 v249, 2, v1\nv_and_b32 v249, 127, v249")
            a(f"buffer_load_dword v252, v249, {S_WS}, s62 offen {LF}")
    def wo_slice_dma(su="s74", lds0=0):
        a(f"v_lshrrev_b32 v9, 2, v1\nv_mul_u32_u24 v9, 1280, v9\nv_bfe_u32 v10, v1, 4, 1\nv_lshlrev_b32 v10, 1, v10\nv_and_b32 v11, 3, v1\nv_xor_b32 v10, v10, v11\nv_lshl_add_u32 v9, v10, 4, v9")
        a(f"s_and_b32 s62, s2, 7\ns_lshl_b32 s62, s62, 2\ns_add_u32 s62, s62, {SW}\ns_mul_i32 s62, s62, {128*1280}\ns_lshl_b32 s63, {su}, 6\ns_add_u32 s62, s62, s63\ns_lshl_b32 s63, {SW}, 13\ns_add_u32 s63, s63, {lds0}")
        for k in range(8):
            a(f"s_mov_b32 m0, s63\ns_add_u32 s63, s63, 1024")
            a(f"buffer_load_dwordx4 v9, {S_B}, s62 offen lds")
            if k < 7: a(f"s_add_u32 s62, s62, {16*1280}")
    def wo_slice_frags(lds0=0, a0=0):
        a(f"v_lshrrev_b32 v9, 2, v3\nv_lshl_add_u32 v9, v4, 2, v9\nv_lshlrev_b32 v9, 6, v9\nv_and_b32 v10, 1, v4\nv_lshl_add_u32 v9, v10, 5, v9\nv_and_b32 v10, 3, v3\nv_lshl_add_u32 v9, v10, 3, v9\ns_lshl_b32 s62, {SW}, 13\nv_add_u32 v9, s62, v9\nv_xor_b32 v10, 32, v9")
        for tt in range(2):
            for dq in range(4):
                for uu in range(2):
                    r = a0+(tt*4+dq)*4+2*uu
                    a(f"ds_read_b64_tr_b16 a[{r}:{r+1}], {'v9' if tt == 0 else 'v10'} offset:{lds0+2048*dq+1024*uu}")
    def s5_addresses():
        if opt.get('g4dense', 1):
            a("v_lshlrev_b32 v240, 4, v1")
            a(f"v_lshrrev_b32 v236, 5, v1\nv_lshlrev_b32 v236, 8, v236\nv_bfe_u32 v235, v1, 2, 2\nv_lshl_add_u32 v236, v235, 6, v236\nv_and_b32 v235, 3, v1\nv_lshl_add_u32 v236, v235, 4, v236\nv_bfe_u32 v235, v1, 4, 1\nv_lshl_add_u32 v236, v235, 3, v236")
            a(f"s_lshl_b32 s62, {SW}, 10\ns_add_u32 s62, s62, {GS}\nv_add_u32 v236, s62, v236")
            a(f"v_and_b32 v235, 3, v3\nv_lshlrev_b32 v235, 4, v235\nv_lshl_add_u32 v235, v4, 6, v235\nv_add_u32 v235, s62, v235")
        else:
            a(f"v_and_b32 v240, 3, v3\nv_lshlrev_b32 v240, 4, v240\nv_lshl_add_u32 v240, v4, 6, v240")
        a(f"s_and_b32 s62, s2, 7\ns_lshl_b32 s63, s62, 2\ns_add_u32 s63, s63, {SW}\ns_lshl_b32 s63, s63, 11\ns_add_u32 s101, s63, {CP}")
        a(f"s_mul_i32 s63, s62, 2560\ns_lshl_b32 s65, s74, 7\ns_add_u32 s63, s63, s65\ns_add_u32 s63, s63, {XP}\nv_lshlrev_b32 v243, 2, v1\nv_add_u32 v243, s63, v243")
        a(f"s_lshl_b32 s62, s62, 7\ns_lshl_b32 s63, s74, 2\ns_add_u32 s62, s62, s63\ns_add_u32 s62, s62, {UF}\nv_mov_b32 v244, s62")
        a(f"v_lshlrev_b32 v241, 2, v1\nv_add_u32 v242, {RR}, v241\ns_lshl_b32 s62, {SW}, 7\nv_add_u32 v241, s62, v242")
        if opt.get('ptouch', 0):
            a(f"s_mov_b64 exec, 1\nbuffer_load_dword v252, v243, {S_WS}, 0 offen\nbuffer_load_dword v252, v243, {S_WS}, 0 offen offset:2048\ns_mov_b64 exec, -1")
        if opt.get('prewarm', 1):
            a(f"v_lshlrev_b32 v253, 7, v3\nbuffer_load_dword v252, v253, {S_WS}, s101 offen {LF}")
    def sentinel(base):
        lab = f"L_s{base}"
        a(f"s_cmp_eq_u32 {SW}, 0\ns_cbranch_scc0 {lab}")
        a(f"v_mov_b32 v240, {TAG}\nv_mov_b32 v241, {TAG}\nv_mov_b32 v242, {TAG}\nv_mov_b32 v243, {TAG}\nv_lshlrev_b32 v244, 4, v1")
        a(f"s_lshl_b32 s62, {SR}, 7\ns_add_u32 s62, s62, {base}\ns_mov_b64 exec, 0xff")
        a(f"buffer_store_dwordx4 v[240:243], v244, {S_WS}, s62 offen sc1")
        a(f"s_mov_b64 exec, -1\n{lab}:")

    NW = 1 if WARM else 0
    PWX = 1 if opt.get("prewarm", 1) else 0

    a.c("================= S1: q partials, head h1 = 4*xcd + (idx>>3), rows 80*me..80*me+79, me = idx&7")
    a(f"buffer_load_dwordx3 v[52:54], v7, {S_X}, 0 offen")
    for i in range(5):
        a(f"buffer_load_dwordx4 {vr(60+4*i)}, v8, {S_A}, s61 offen{NT}")
        if i < 4: a(f"s_add_u32 s61, s61, 8192")
    WL = 1 if (WARM and WPOS == 1) else 0
    if WL: warm_load()
    a("s_bitcmp1_b32 s2, 7\ns_cbranch_scc1 L_nouk")
    srd(S_B, 10, 4194304)
    a(f"s_lshl_b32 s66, {SSUB}, 20\ns_lshl_b32 s63, {SH}, 8\ns_add_u32 s66, s66, s63\ns_lshl_b32 s63, {SW}, 18\ns_add_u32 s66, s66, s63")
    a(f"s_lshl_b32 s67, {SW}, 13")
    NUP = opt.get('nup', 8)
    def uk_dma(k):
        a(f"s_mov_b32 m0, s67\ns_add_u32 s67, s67, 1024")
        a(f"buffer_load_dwordx4 v{9+(k&3)}, {S_B}, s66 offen{NT} lds")
        if k < 7: a(f"s_add_u32 s66, s66, 32768")
    for k in range(NUP): uk_dma(k)
    if PWX:
        a(f"v_and_b32 v253, 31, v1\nv_lshlrev_b32 v253, 7, v253\ns_lshl_b32 s62, {SH}, 12\ns_add_u32 s62, s62, {QG}")
        a(f"buffer_load_dword v252, v253, {S_WS}, s62 offen {LF}")
    PTX = 0
    if opt.get('ptouch', 0):
        a(f"s_lshl_b32 s62, {SR}, 9\ns_lshl_b32 s63, {SW}, 7\ns_add_u32 s62, s62, s63\ns_add_u32 s62, s62, {QA}")
        a(f"buffer_load_dword v252, v18, {S_WS}, s62 offen")
        PTX = 1
    a("s_branch L_s1c")
    a("L_nouk:")
    EARLY = opt.get('early', 0)
    ER = opt.get('erows', 0)
    def ckv_group(q, j0=0, j1=8):
        a(f"s_add_u32 s62, {SSUB}, {q}\ns_and_b32 s62, s62, 3\ns_add_u32 s63, s69, {(q*8+j0)*CKV_STRIDE}\ns_lshl_b32 s62, s62, 13\ns_add_u32 s62, s62, s68")
        if j0: a(f"s_add_u32 s62, s62, {1024*j0}")
        for j in range(j0, j1):
            a(f"s_mov_b32 m0, s63\ns_add_u32 s63, s63, {CKV_STRIDE}")
            a(f"buffer_load_dwordx4 v9, {S_B}, s62 offen{' nt' if opt.get('ntc', 0) == 2 or (opt.get('ntc', 0) == 1 and q == 0) else ''} lds")
            if j < j1-1: a(f"s_add_u32 s62, s62, 1024")
    srd(S_B, 6, 4194304)
    a("v_lshlrev_b32 v9, 4, v1")
    a(f"s_lshl_b32 s68, {SH}, 17\ns_lshl_b32 s63, {SW}, 15\ns_add_u32 s68, s68, s63")
    a(f"s_mul_i32 s69, {SW}, {32*CKV_STRIDE}")
    for q in range(EARLY): ckv_group(q)
    if ER: ckv_group(0, 0, ER)
    a("L_s1c:")
    a(f"v_lshlrev_b32 v241, 9, v6\nv_lshl_add_u32 v241, v3, 4, v241\nv_add_u32 v241, {S1RED_C}, v241")
    a(f"v_and_b32 v14, 31, v1\nv_lshrrev_b32 v242, 3, v14\ns_lshl_b32 s62, {SW}, 2\nv_add_u32 v242, s62, v242\nv_lshlrev_b32 v242, 4, v242")
    a("v_bfe_u32 v16, v1, 2, 1\nv_lshl_add_u32 v242, v16, 8, v242\nv_and_b32 v16, 3, v1\nv_lshl_add_u32 v242, v16, 2, v242\nv_lshrrev_b32 v16, 5, v1\nv_lshl_add_u32 v242, v16, 12, v242")
    a(f"v_add_u32 v242, {S1RED_C}, v242")
    a(f"s_lshl_b32 s70, s72, 12\ns_lshl_b32 s63, {SW}, 10\ns_add_u32 s70, s70, s63\ns_lshl_b32 s63, s73, 4\ns_add_u32 s70, s70, s63\ns_add_u32 s70, s70, {QG}\ns_add_u32 s71, s70, {QGB-QG}")
    a("v_lshrrev_b32 v237, 3, v14\nv_lshlrev_b32 v237, 7, v237\nv_bfe_u32 v16, v14, 2, 1\nv_lshl_add_u32 v237, v16, 9, v237\nv_bfe_u32 v16, v14, 1, 1\nv_lshl_add_u32 v237, v16, 3, v237")
    stamp(1)
    def s1_body(extra, late=()):
        late = list(late)
        a(f"s_waitcnt vmcnt({6+extra})")
        a(f"v_readfirstlane_b32 {TAG}, v250\ns_add_u32 {TAG}, {TAG}, 1")
        a("s_mov_b32 s63, 0xffff0000")
        for j in range(5):
            a(f"v_lshlrev_b32 v{100+2*j}, 16, v{32+j}\nv_and_b32 v{101+2*j}, s63, v{32+j}")
        a("v_readfirstlane_b32 s64, v100")
        for k in range(100, 110): a(f"v_subrev_f32 v{k}, s64, v{k}")
        a("s_mov_b32 s3, s64")
        a("v_add_f32 v110, v100, v101\nv_mul_f32 v112, v100, v100")
        a("v_fmac_f32 v112, v101, v101")
        for k in range(102, 110): a(f"v_add_f32 v110, v110, v{k}\nv_fmac_f32 v112, v{k}, v{k}")
        wave_allreduce("v_add_f32", ["v110", "v112"], ["v111", "v113"])
        a(f"s_mov_b32 s65, {f2u(1.0/640):#x}\nv_mul_f32 v110, s65, v110\nv_mul_f32 v112, s65, v112")
        a(f"v_fma_f32 v112, -v110, v110, v112\nv_add_f32 v112, {f2u(EPS):#x}, v112\nv_rsq_f32 v113, v112")
        a("v_add_f32 v110, s64, v110")
        a(f"s_waitcnt vmcnt({5+extra})")
        a("v_alignbit_b32 v55, v53, v52, v255\nv_alignbit_b32 v56, v54, v53, v255\nv_lshrrev_b32 v57, v255, v54")
        a("v_lshlrev_b32 v40, 16, v55\nv_and_b32 v42, s63, v55\nv_lshlrev_b32 v44, 16, v56\nv_and_b32 v46, s63, v56\nv_lshlrev_b32 v48, 16, v57")
        for i in range(5):
            r = 40+2*i
            a(f"v_sub_f32 v{r}, v{r}, v110\nv_mul_f32 v{r}, v{r}, v113")
        for k in range(100, 108): a(f"v_mov_b32 v{k}, 0")
        issued = 0
        for i in range(5):
            a(f"s_waitcnt vmcnt({4-i+extra+issued})")
            w = 60+4*i; l = 40+2*i
            for d in range(4):
                a(f"v_lshlrev_b32 v{108+2*(d&1)}, 16, v{w+d}\nv_and_b32 v{109+2*(d&1)}, s63, v{w+d}")
                a(f"v_pk_fma_f32 v[{100+2*d}:{101+2*d}], v[{108+2*(d&1)}:{109+2*(d&1)}], v[{l}:{l+1}], v[{100+2*d}:{101+2*d}] op_sel_hi:[1,0,1]")
            if late:
                late.pop(0)(); issued += 1
    a("s_bitcmp1_b32 s2, 7\ns_cbranch_scc1 L_s1y")
    s1_body(NUP+PWX+WL+PTX, [(lambda k=k: uk_dma(k)) for k in range(NUP, 8)])
    a("s_branch L_s1r")
    a("L_s1y:")
    s1_body(8*EARLY+WL+ER)
    a("L_s1r:")
    stamp(2)
    MID = opt.get('mid', 0)
    a("ds_write_b128 v241, v[100:103]\nds_write_b128 v241, v[104:107] offset:256")
    if MID:
        a("s_bitcmp1_b32 s2, 7\ns_cbranch_scc0 L_nomid")
        ckv_group(0)
        a("L_nomid:")
    a("s_waitcnt lgkmcnt(0)\ns_barrier")
    for k in range(4): a(f"ds_read2st64_b32 v[{100+2*k}:{101+2*k}], v242 offset0:{4*k} offset1:{4*k+2}")
    a("s_waitcnt lgkmcnt(0)")
    a("v_add_f32 v100, v100, v101\nv_add_f32 v102, v102, v103\nv_add_f32 v104, v104, v105\nv_add_f32 v106, v106, v107")
    a("v_add_f32 v100, v100, v102\nv_add_f32 v104, v104, v106\nv_add_f32 v100, v100, v104")
    swap32("v_add_f32", ["v100"], ["v101"])
    a("v_mov_b32_dpp v101, v100 row_shl:1 row_mask:0xf bank_mask:0xf")
    a(f"v_cvt_pk_bf16_f32 v238, v100, v101\nv_mov_b32 v239, {TAG}")
    a("s_mov_b32 exec_lo, 0x55555555\ns_mov_b32 exec_hi, 0")
    a(f"buffer_store_dwordx2 v[238:239], v237, {S_WS}, s70 offen")
    a("s_bitcmp1_b32 s2, 7\ns_cbranch_scc0 L_Xgo")
    a(f"buffer_store_dwordx2 v[238:239], v237, {S_WS}, s71 offen sc1")
    a("s_mov_b64 exec, -1")
    a("s_branch L_Y")
    a("L_Xgo:")
    a("s_mov_b64 exec, -1")

    a.c("================= X role: S2 (q_abs), S4 (ctx partial), R")
    srd(S_C, 12, 4194304)
    G1E = opt.get('g1early', 1)
    a(f"v_and_b32 v17, 7, v3\nv_lshlrev_b32 v17, 4, v17\nv_lshl_add_u32 v17, v4, 7, v17\ns_lshl_b32 s63, {SH}, 12\ns_add_u32 s63, s63, {QG}\ns_add_u32 s64, s63, {QGB-QG}")
    if G1E:
        a(f"s_waitcnt vmcnt({1+opt.get('g1k', 2)})")
        for s in range(4):
            r = 148+8*s
            a(f"buffer_load_dwordx4 {vr(r)}, v17, {S_WS}, s63 offen offset:{1024*s} {LF}")
            a(f"buffer_load_dwordx4 {vr(r+4)}, v17, {S_WS}, s63 offen offset:{1024*s+512} {LF}")
    a(f"s_lshl_b32 s62, {SW}, 5\nv_add_u32 v13, s62, v3\nv_lshlrev_b32 v13, 8, v13\nv_xor_b32 v14, v3, v4\nv_lshl_add_u32 v13, v14, 4, v13")
    a("v_xor_b32 v14, 64, v13\nv_xor_b32 v15, 128, v13\nv_xor_b32 v16, 192, v13")
    a(f"s_waitcnt vmcnt({9 if G1E else 1})")
    for tile in range(2):
        for s in range(4):
            a(f"ds_read_b128 {vr(116+(tile*4+s)*4)}, v{13+s} offset:{WUK+4096*tile}")
    stamp(3)
    a("v_mov_b32 v13, v17")
    if G1E:
        a("s_waitcnt vmcnt(0)")
        tagcheck("v14", [f"v{148+8*s+k}" for s in range(4) for k in (1,3,5,7)])
        a("s_mov_b32 s61, 0\nv_cmp_ne_u32 vcc, 0, v14\ns_cbranch_vccz L_p1_x")
        if MASKED: a("s_and_b64 exec, exec, vcc")
    def qgb_store():
        a("s_mov_b64 s[78-2:78-1], exec" if False else "s_mov_b64 s[98:99], exec")
        a("s_mov_b32 exec_lo, 0x55555555\ns_mov_b32 exec_hi, 0")
        a(f"buffer_store_dwordx2 v[238:239], v237, {S_WS}, s71 offen sc1")
        a("s_mov_b64 exec, s[98:99]")
    poll_begin("L_p1", ("s62", "s63", "s64"))
    a(f"s_cmp_eq_u32 s61, {BP}\ns_cbranch_scc0 L_p1n")
    qgb_store()
    a("L_p1n:")
    def dual_loads(name, emit):
        a(f"s_cmp_eq_u32 s75, {BP}\ns_cbranch_scc1 {name}_b")
        emit(LF)
        a(f"s_branch {name}_c\n{name}_b:")
        emit("sc1")
        a(f"{name}_c:")
    def g1_loads(fl):
        for s in range(4):
            r = 148+8*s
            a(f"buffer_load_dwordx4 {vr(r)}, v13, {S_WS}, s62 offen offset:{1024*s} {fl}")
            a(f"buffer_load_dwordx4 {vr(r+4)}, v13, {S_WS}, s62 offen offset:{1024*s+512} {fl}")
    dual_loads("L_p1", g1_loads)
    a("s_waitcnt vmcnt(0)")
    tagcheck("v14", [f"v{148+8*s+k}" for s in range(4) for k in (1,3,5,7)])
    poll_end("L_p1", "v14")
    a(f"s_cmp_gt_u32 s61, {BP}\ns_cbranch_scc1 L_p1m")
    qgb_store()
    a("L_p1m:")
    stamp(4)
    if opt.get('sent2', 0): sentinel(SENT2)
    for s in range(4):
        r = 148+8*s
        a(f"v_mov_b32 v{r+1}, v{r+2}\nv_mov_b32 v{r+2}, v{r+4}\nv_mov_b32 v{r+3}, v{r+6}")
    a("s_waitcnt lgkmcnt(0)")
    for s in range(4):
        for tile in range(2):
            mfma(vr(180+4*tile), vr(148+8*s), vr(116+(tile*4+s)*4), s == 0)
    a(f"s_mov_b32 s63, {f2u(SCALE):#x}")
    a("v_lshlrev_b32 v13, 2, v3\nv_lshl_add_u32 v13, v4, 6, v13\nv_cmp_eq_u32 vcc, 1, v4")
    a(f"s_lshl_b32 s62, {SR}, 9\ns_lshl_b32 s64, {SW}, 7\ns_add_u32 s62, s62, s64\ns_add_u32 s62, s62, {QA}")
    a("v_add_f32 v180, v180, v181\nv_add_f32 v184, v184, v185\nv_add_f32 v182, v182, v183\nv_add_f32 v186, v186, v187")
    a("v_add_f32 v180, v180, v182\nv_add_f32 v184, v184, v186")
    swap16("v_add_f32", ["v180", "v184"], ["v181", "v185"])
    a("v_cndmask_b32 v180, v180, v184, vcc\nv_mul_f32 v180, s63, v180")
    a("v_mov_b32_dpp v181, v180 row_shl:1 row_mask:0xf bank_mask:0xf")
    a(f"v_cvt_pk_bf16_f32 v188, v180, v181\nv_mov_b32 v189, {TAG}")
    a("s_mov_b32 exec_lo, 0x55555555\ns_mov_b32 exec_hi, 0")
    a(f"buffer_store_dwordx2 v[188:189], v13, {S_WS}, s62 offen sc1")
    a("s_mov_b64 exec, -1")
    stamp(5)
    a("v_lshrrev_b32 v15, 1, v3\nv_and_b32 v16, 1, v4\nv_lshlrev_b32 v16, 2, v16\nv_xor_b32 v15, v15, v16\nv_lshlrev_b32 v15, 5, v15\nv_and_b32 v16, 1, v0\nv_lshl_add_u32 v15, v16, 4, v15\nv_lshl_add_u32 v15, v4, 13, v15")
    a(f"s_lshl_b32 s62, {SW}, 1\ns_and_b32 s63, s62, 3\ns_lshl_b32 s63, s63, 5\nv_xor_b32 v16, s63, v15\ns_add_u32 s62, s62, 1\ns_and_b32 s63, s62, 3\ns_lshl_b32 s63, s63, 5\nv_xor_b32 v15, s63, v15")
    a(f"s_lshl_b32 s62, {SSUB}, 20\ns_lshl_b32 s63, {SH}, 8\ns_add_u32 s62, s62, s63\ns_lshl_b32 s63, {SW}, 18\ns_add_u32 s62, s62, s63")
    a(f"s_lshl_b32 s63, {SW}, 13\ns_add_u32 s63, s63, {WUV}")
    for k in range(8):
        a(f"s_mov_b32 m0, s63\ns_add_u32 s63, s63, 1024")
        a(f"buffer_load_dwordx4 {'v16' if k < 4 else 'v15'}, {S_C}, s62 offen{NT if opt.get('ntuv', 1) else ''} lds")
        if k < 7: a("s_add_u32 s62, s62, 32768")
    rewarm("x")
    m_coef_loads()
    tail_prefetch()
    a("s_waitcnt vmcnt(0)\ns_barrier")
    a("v_lshrrev_b32 v19, 2, v3\nv_lshl_add_u32 v19, v4, 2, v19")
    a("v_lshrrev_b32 v20, 2, v3\nv_and_b32 v21, 1, v4\nv_lshl_add_u32 v21, v21, 2, v20")
    a(f"s_lshl_b32 s62, {SW}, 1\nv_xor_b32 v21, s62, v21\nv_lshlrev_b32 v21, 5, v21")
    a("v_lshl_add_u32 v20, v20, 4, v4\nv_lshl_add_u32 v20, v20, 8, v21\nv_and_b32 v21, 3, v3\nv_lshl_add_u32 v20, v21, 3, v20\nv_xor_b32 v21, 32, v20")
    for tt in range(2):
        for j in range(4):
            for u in range(2):
                r = 60+(tt*4+j)*4+2*u; tau = 2*j+u
                a(f"ds_read_b64_tr_b16 v[{r}:{r+1}], {'v20' if tt==0 else 'v21'} offset:{WUV+16384*(tau>>2)+1024*(tau&3)}")
    m_coef_unpack()
    a("v_lshlrev_b32 v22, 4, v0\nv_and_b32 v23, 31, v1\nv_lshlrev_b32 v23, 9, v23")
    a(f"s_lshl_b32 s62, {SR}, 14\ns_add_u32 s66, s62, {OP}\ns_add_u32 s67, s66, 4096\ns_add_u32 s68, s66, 8192\ns_add_u32 s69, s66, 12288")
    a(f"s_lshr_b32 s62, {SH}, 3\ns_lshl_b32 s62, s62, 7\ns_and_b32 s63, {SH}, 7\ns_lshl_b32 s63, s63, 4\ns_add_u32 s62, s62, s63\ns_add_u32 s70, s62, {ST}")
    a(f"v_lshrrev_b32 v24, 5, v0\nv_mul_u32_u24 v24, 288, v24\nv_and_b32 v25, 31, v0\nv_lshl_add_u32 v24, v25, 3, v24\nv_add_u32 v24, {OS}, v24")
    a(f"s_lshl_b32 s62, {SW}, 7\ns_add_u32 s71, s62, {WX}\nv_and_b32 v25, 31, v1\nv_lshlrev_b32 v25, 2, v25\nv_add_u32 v25, s71, v25")
    a(f"v_lshlrev_b32 v27, 4, v4\nv_add_u32 v27, s71, v27")
    a(f"v_mul_u32_u24 v28, 288, v19\nv_and_b32 v29, 3, v3\nv_lshl_add_u32 v28, v29, 3, v28\nv_add_u32 v28, {OS}, v28")
    a(f"s_lshl_b32 s72, {SH}, 11\ns_lshl_b32 s63, {SW}, 9\ns_add_u32 s72, s72, s63\ns_lshl_b32 s63, {SSUB}, 4\ns_add_u32 s72, s72, s63\ns_add_u32 s72, s72, {CP}\ns_add_u32 s73, s72, {CPB-CP}")
    a("v_lshrrev_b32 v30, 2, v3\nv_lshlrev_b32 v30, 6, v30\nv_bfe_u32 v14, v3, 1, 1\nv_lshl_add_u32 v30, v14, 3, v30\nv_lshl_add_u32 v30, v4, 8, v30\nv_cmp_eq_u32 s[8:9], 1, v4")
    stamp(6)
    if opt.get('gate3', 0):
        a(f"s_and_b32 s62, s2, 7\ns_lshl_b32 s62, s62, 7\ns_add_u32 s62, s62, {YF}\nv_lshlrev_b32 v16, 2, v1\ns_mov_b64 exec, 0xffff\ns_mov_b32 s61, 0")
        a("L_g3:")
        a(f"buffer_load_dword v100, v16, {S_WS}, s62 offen {LF}\ns_waitcnt vmcnt(0)")
        a(f"v_cmp_ne_u32 vcc, {TAG}, v100\ns_add_u32 s61, s61, 1\ns_cmp_gt_u32 s61, 64\ns_cbranch_scc1 L_g3x\ns_cbranch_vccnz L_g3")
        a("L_g3x:\ns_mov_b64 exec, -1")
    a("s_mov_b32 exec_hi, 0")
    poll_begin("L_p3a")
    a(f"buffer_load_dwordx4 v[116:119], v23, {S_WS}, s70 offen sc1")
    a("s_waitcnt vmcnt(0)")
    tagcheck("v14", ["v117", "v119"])
    poll_end("L_p3a", "v14")
    if opt.get('dbg3'): stamp(10)
    for i in range(4):
        a(f"buffer_load_dwordx4 {vr(100+4*i)}, v22, {S_WS}, s{66+i} offen sc1{GN}")
    a("v_mov_b32 v120, v116")
    row_allreduce("v_max_f32", ["v120"]); swap16("v_max_f32", ["v120"], ["v121"])
    a("v_sub_f32 v116, v116, v120\nv_exp_f32 v116, v116\nv_mul_f32 v118, v116, v118")
    row_allreduce("v_add_f32", ["v118"]); swap16("v_add_f32", ["v118"], ["v121"])
    a("v_rcp_f32 v118, v118\nv_mul_f32 v116, v116, v118")
    a("s_mov_b32 exec_hi, 0\nds_write_b32 v25, v116\ns_mov_b64 exec, -1")
    a("ds_read_b128 v[120:123], v27\nds_read_b128 v[124:127], v27 offset:64")
    a("s_waitcnt vmcnt(0)")
    tagcheck("v14", [f"v{100+4*i+k}" for i in range(4) for k in (1,3)])
    a("v_cmp_ne_u32 vcc, 0, v14\ns_cbranch_vccz L_p3b_x")
    if MASKED: a("s_and_b64 exec, exec, vcc")
    poll_begin("L_p3b")
    for i in range(4):
        a(f"buffer_load_dwordx4 {vr(100+4*i)}, v22, {S_WS}, s{66+i} offen sc1{GN}")
    a("s_waitcnt vmcnt(0)")
    tagcheck("v14", [f"v{100+4*i+k}" for i in range(4) for k in (1,3)])
    poll_end("L_p3b", "v14")
    stamp(7)
    for i in range(4):
        a(f"v_mov_b32 v{101+4*i}, v{102+4*i}\nds_write_b64 v24, v[{100+4*i}:{101+4*i}] offset:{2304*i}")
    a("s_waitcnt lgkmcnt(0)\ns_barrier")
    for t in range(8):
        for u in range(2):
            r = 132+4*t+2*u
            a(f"ds_read_b64_tr_b16 v[{r}:{r+1}], v28 offset:{4608*u+32*t}")
    a("v_cvt_pk_bf16_f32 v128, v120, v121\nv_cvt_pk_bf16_f32 v129, v122, v123\nv_cvt_pk_bf16_f32 v130, v124, v125\nv_cvt_pk_bf16_f32 v131, v126, v127")
    for t in range(8):
        a(f"s_waitcnt lgkmcnt({14-2*t})")
        mfma(vr(164+4*t), vr(132+4*t), vr(128), True)
    for j in range(4):
        d0 = 164+8*j; o = 100+4*j
        a(f"v_cvt_pk_bf16_f32 v{o}, v{d0}, v{d0+1}\nv_cvt_pk_bf16_f32 v{o+1}, v{d0+2}, v{d0+3}\nv_cvt_pk_bf16_f32 v{o+2}, v{d0+4}, v{d0+5}\nv_cvt_pk_bf16_f32 v{o+3}, v{d0+6}, v{d0+7}")
    for j in range(4):
        for tt in range(2):
            mfma(vr(116+4*tt), vr(100+4*j), vr(60+(tt*4+j)*4), j == 0)
    a("v_cndmask_b32 v116, v116, v120, s[8:9]")
    a("v_mov_b32_dpp v117, v116 row_shl:1 row_mask:0xf bank_mask:0xf")
    a(f"v_cvt_pk_bf16_f32 v118, v116, v117\nv_mov_b32 v119, {TAG}")
    a("s_mov_b32 exec_lo, 0x55555555\ns_mov_b32 exec_hi, 0")
    a(f"buffer_store_dwordx2 v[118:119], v30, {S_WS}, s72 offen")
    a(f"buffer_store_dwordx2 v[118:119], v30, {S_WS}, s73 offen sc1")
    a("s_mov_b64 exec, -1")
    stamp(8)
    a("s_branch L_M")

    a.c("================= Y role: S3 (attention), S5 (out partial)")
    a("L_Y:")
    a("v_lshlrev_b32 v5, 4, v1")
    YD = 0
    for q in range(max(EARLY, MID), 4): ckv_group(q, ER if q == 0 else 0, 8)
    stamp(1)
    srd(S_B, 14, 5242880)
    a("s_bfe_u32 s74, s2, 0x40003")
    YPRE = opt.get('ypre', 0)
    PWY = 0
    if YPRE:
        m_coef_loads()
        tail_prefetch()
        s5_addresses()
        PWY = 13 + 1 + (1 if opt.get('gate', 1) else 0) + (1 if opt.get('prewarm', 1) else 0)
    a(f"s_lshl_b32 s62, {SW}, 5\nv_add_u32 v6, s62, v3\nv_mul_u32_u24 v6, {CKV_STRIDE}, v6\nv_lshl_add_u32 v6, v4, 4, v6")
    a("v_lshrrev_b32 v19, 2, v3\nv_lshl_add_u32 v19, v4, 2, v19")
    a(f"v_mul_u32_u24 v7, {CKV_STRIDE}, v19\nv_and_b32 v8, 3, v3\nv_lshl_add_u32 v7, v8, 3, v7\ns_lshl_b32 s62, {SW}, 8\nv_add_u32 v7, s62, v7\nv_add_u32 v8, {64*CKV_STRIDE}, v7")
    a("v_lshlrev_b32 v22, 4, v0")
    a(f"s_lshl_b32 s62, {SSUB}, 14\ns_add_u32 s66, s62, {QA}\ns_add_u32 s67, s66, 4096\ns_add_u32 s68, s66, 8192\ns_add_u32 s69, s66, 12288")
    a(f"v_lshrrev_b32 v24, 7, v0\nv_mul_u32_u24 v24, {CKV_STRIDE}, v24\nv_and_b32 v25, 127, v0\nv_lshl_add_u32 v24, v25, 3, v24\nv_add_u32 v24, {QS}, v24")
    a(f"v_and_b32 v25, 7, v3\nv_mul_u32_u24 v25, {CKV_STRIDE}, v25\nv_lshl_add_u32 v25, v4, 4, v25\nv_add_u32 v25, {QS}, v25")
    a(f"s_lshl_b32 s62, {SW}, 2\ns_add_u32 s62, s62, {MX}\nv_lshlrev_b32 v26, 4, v3\nv_add_u32 v27, s62, v26\nv_add_u32 v28, {MX}, v26")
    a(f"s_lshl_b32 s62, {SW}, 10\ns_add_u32 s62, s62, {PX}\nv_add_u32 v29, s62, v5\nv_add_u32 v31, {PX}, v5")
    for k in range(4): a(f"v_mov_b32 v{184+k}, 0x3f803f80")
    a(f"s_and_b32 s62, s2, 7\ns_lshl_b32 s62, s62, 7\ns_bfe_u32 s63, s2, 0x40003\ns_lshl_b32 s63, s63, 2\ns_add_u32 s62, s62, s63\ns_add_u32 s62, s62, {YF}\nv_mov_b32 v183, s62")
    a("v_and_b32 v21, 1, v3\nv_cmp_eq_u32 s[8:9], 1, v21\nv_and_b32 v21, 2, v3\nv_cmp_eq_u32 s[10:11], 2, v21")
    OSPLIT = opt.get('osplit', 1)
    if OSPLIT:
        a("v_and_b32 v30, 1, v4\nv_lshlrev_b32 v30, 18, v30\nv_lshl_add_u32 v30, v3, 4, v30\nv_lshrrev_b32 v21, 1, v4\nv_lshl_add_u32 v30, v21, 17, v30\nv_cmp_eq_u32 s[12:13], 1, v21")
    else:
        a("v_and_b32 v30, 1, v4\nv_lshlrev_b32 v30, 18, v30\nv_lshl_add_u32 v30, v3, 4, v30\nv_lshrrev_b32 v21, 1, v4\nv_lshl_add_u32 v30, v21, 8, v30\nv_cmp_eq_u32 s[12:13], 1, v21")
    a(f"s_lshl_b32 s73, {SSUB}, 19\ns_lshl_b32 s63, {SW}, 14\ns_add_u32 s73, s73, s63\ns_lshl_b32 s63, {SH}, 9\ns_add_u32 s73, s73, s63\ns_add_u32 s73, s73, {OP}")
    a(f"s_lshl_b32 s72, {SR}, 7\ns_add_u32 s72, s72, {ST}")
    G2E = opt.get('g2early', 1)
    for tile in range(2):
        if tile == 1 and G2E:
            for i in range(4):
                a(f"buffer_load_dwordx4 {vr(100+4*i)}, v22, {S_WS}, s{66+i} offen sc1{GN}")
        a(f"s_waitcnt vmcnt({PWY + (16 if tile == 0 else (4 if G2E else 0))})")
        if tile == 1: stamp(2)
        for s in range(16):
            a(f"ds_read_b128 {ar((tile*16+s)*4)}, v6 offset:{tile*16*CKV_STRIDE+64*s}")
    stamp(3)
    if opt.get('sent2', 0):
        poll_begin("L_p2a")
        a(f"buffer_load_dword v100, v23, {S_WS}, s70 offen sc1")
        a("s_waitcnt vmcnt(0)")
        tagcheck("v14", ["v100"])
        poll_end("L_p2a", "v14")
    if G2E:
        a("s_waitcnt vmcnt(0)")
        tagcheck("v14", [f"v{100+4*i+k}" for i in range(4) for k in (1,3)])
        a("v_cmp_ne_u32 vcc, 0, v14\ns_cbranch_vccz L_p2_x")
        if MASKED: a("s_and_b64 exec, exec, vcc")
    poll_begin("L_p2")
    for i in range(4):
        a(f"buffer_load_dwordx4 {vr(100+4*i)}, v22, {S_WS}, s{66+i} offen sc1{GN}")
    a("s_waitcnt vmcnt(0)")
    tagcheck("v14", [f"v{100+4*i+k}" for i in range(4) for k in (1,3)])
    poll_end("L_p2", "v14")
    stamp(4)
    for i in range(4):
        a(f"v_mov_b32 v{101+4*i}, v{102+4*i}\nds_write_b64 v24, v[{100+4*i}:{101+4*i}] offset:{2*CKV_STRIDE*i}")
    a("s_waitcnt lgkmcnt(0)\ns_barrier")
    for s in range(16):
        a(f"ds_read_b128 {vr(32+4*s)}, v25 offset:{64*s}")
    if opt.get('ptouch', 0):
        a(f"v_lshrrev_b32 v253, 2, v1\nv_lshlrev_b32 v253, 16, v253\nv_and_b32 v252, 3, v1\nv_lshl_add_u32 v253, v252, 7, v253\ns_mov_b32 exec_hi, 0")
        a(f"buffer_load_dword v252, v253, {S_WS}, s73 offen\ns_mov_b64 exec, 1")
        a(f"buffer_load_dword v252, v18, {S_WS}, s72 offen\ns_mov_b64 exec, -1")
    wo_n = [0]
    a(f"s_mul_i32 s71, {SR}, 40960")
    def wo_load():
        i = wo_n[0]; wo_n[0] += 1
        a(f"buffer_load_dwordx4 {vr(192)}, v22, {S_B}, s71 offen{' nt' if opt.get('ntwo', 0) else ''}\ns_add_u32 s71, s71, 4096")
    pv = []
    for t in range(8):
        for j in range(4):
            for u in range(2):
                r = 128+(t*4+j)*4+2*u
                pv.append(f"ds_read_b64_tr_b16 a[{r}:{r+1}], {'v7' if j < 2 else 'v8'} offset:{(32*(j&1)+16*u)*CKV_STRIDE+32*t}")
    for s in range(16):
        if s < 4: a(f"s_waitcnt lgkmcnt({12-4*s})")
        for tile in range(2):
            sidx = s
            mfma(vr(100+4*tile), ar((tile*16+s)*4), vr(32+4*s), s == 0)
            if s >= 3:
                for _ in range(3 if pv else 0):
                    if pv: a(pv.pop(0))
            if tile == 1 and s in (2, 5, 8, 11, 14): wo_load()
    while pv: a(pv.pop(0))
    stamp(5)
    a("v_max3_f32 v108, v100, v101, v102\nv_max3_f32 v109, v103, v104, v105\nv_max3_f32 v108, v108, v106, v107\nv_max_f32 v108, v108, v109")
    swap16("v_max_f32", ["v108"], ["v109"]); swap32("v_max_f32", ["v108"], ["v109"])
    a("ds_write_b32 v27, v108")
    a("s_waitcnt lgkmcnt(0)\ns_barrier")
    a(f"ds_read_b128 v[108:111], v28\ns_waitcnt lgkmcnt(0)")
    a("v_max3_f32 v108, v108, v109, v110\nv_max_f32 v108, v108, v111")
    for k in range(8): a(f"v_sub_f32 v{100+k}, v{100+k}, v108")
    for k in range(8): a(f"v_exp_f32 v{100+k}, v{100+k}")
    a("v_cvt_pk_bf16_f32 v112, v100, v101\nv_cvt_pk_bf16_f32 v113, v102, v103\nv_cvt_pk_bf16_f32 v114, v104, v105\nv_cvt_pk_bf16_f32 v115, v106, v107")
    a("ds_write_b128 v29, v[112:115]")
    a("s_waitcnt lgkmcnt(0)\ns_barrier")
    if opt.get('dbg3'): stamp(10)
    G3G = opt.get('gate3', 0)
    if G3G:
        a(f"s_cmp_eq_u32 {SW}, 0\ns_cbranch_scc0 L_nh3\nv_mov_b32 v21, {TAG}\ns_mov_b64 exec, 1")
        a(f"buffer_store_dword v21, v183, {S_WS}, 0 offen\ns_mov_b64 exec, -1\nL_nh3:")
    for j in range(4): a(f"ds_read_b128 {vr(32+4*j)}, v31 offset:{1024*j}")
    STA = opt.get('stafter', 0)
    STMF = opt.get('stmf', 32)
    def stats_store():
        a(f"s_cmp_eq_u32 {SW}, 0\ns_cbranch_scc0 L_Y_nostat")
        a("v_cndmask_b32 v110, v188, v189, s[8:9]\nv_cndmask_b32 v111, v190, v191, s[8:9]\nv_cndmask_b32 v110, v110, v111, s[10:11]")
        a(f"v_mov_b32 v109, {TAG}\nv_mov_b32 v111, {TAG}")
        a("s_mov_b64 exec, 0x00f0000f")
        a(f"buffer_store_dwordx4 v[108:111], v26, {S_WS}, s72 offen sc1")
        a("s_mov_b64 exec, -1\nL_Y_nostat:")
    def o_pack(hf, k):
        o = 160+4*(2*hf+k); L = []
        for e in range(4):
            d = 120+4*(4*hf+e)
            L.append(f"v_cndmask_b32 v{d+k}, v{d+k}, v{d+2+k}, s[12:13]")
        d0 = 120+16*hf
        L += [f"v_cvt_pk_bf16_f32 v{o}, v{d0+k}, v{d0+4+k}", f"v_mov_b32 v{o+1}, {TAG}", f"v_cvt_pk_bf16_f32 v{o+2}, v{d0+8+k}, v{d0+12+k}", f"v_mov_b32 v{o+3}, {TAG}"]
        L.append(f"buffer_store_dwordx4 {vr(o)}, v30, {S_WS}, {'s73' if k == 0 else 's71x'} offen offset:{256*hf} sc1{SN}")
        return L
    if OSPLIT:
        a("s_add_u32 s75, s73, 65536")
        a("s_waitcnt lgkmcnt(0)")
        for j in range(4): mfma(vr(188), vr(32+4*j), vr(184), j == 0)
        pend = []
        n = 0
        for t in range(8):
            for j in range(4):
                mfma(vr(120+4*t), vr(32+4*j), ar(128+(t*4+j)*4), j == 0)
                n += 1
                if n in (4, 10, 16, 22, 28): wo_load()
                if n == opt.get('stn', 18): stats_store()
                if n == 18:
                    pend = [x.replace('s71x', 's75') for x in o_pack(0, 0) + o_pack(0, 1)]
                if n > 18:
                    for _ in range(2):
                        if pend: a(pend.pop(0))
        while pend: a(pend.pop(0))
        if opt.get('stn', 18) > 32: stats_store()
        for k in range(2):
            for x in o_pack(1, k): a(x.replace('s71x', 's75'))
    else:
        if STMF < 32:
            for j in range(4):
                a(f"s_waitcnt lgkmcnt({3-j})")
                mfma(vr(188), vr(32+4*j), vr(184), j == 0)
        for j in range(4):
            if STMF >= 32:
                a(f"s_waitcnt lgkmcnt({3-j})")
                mfma(vr(188), vr(32+4*j), vr(184), j == 0)
            for t in range(8):
                if j*8+t == STMF: stats_store()
                mfma(vr(120+4*t), vr(32+4*j), ar(128+(t*4+j)*4), j == 0)
                if (j*8+t) in (3, 9, 15, 21, 27): wo_load()
        if STMF < 32: STA = -1
        for r in range(4):
            if r == STA: stats_store()
            o = 160+4*r
            for e in range(4): a(f"v_cndmask_b32 v{120+4*e+r}, v{120+4*e+r}, v{136+4*e+r}, s[12:13]")
            a(f"v_cvt_pk_bf16_f32 v{o}, v{120+r}, v{124+r}\nv_mov_b32 v{o+1}, {TAG}\nv_cvt_pk_bf16_f32 v{o+2}, v{128+r}, v{132+r}\nv_mov_b32 v{o+3}, {TAG}")
            a(f"buffer_store_dwordx4 {vr(o)}, v30, {S_WS}, s73 offen sc1")
            if r < 3: a("s_add_u32 s73, s73, 65536")
        if STA == 4: stats_store()
    stamp(6)
    if YPRE: m_coef_unpack()
    a("s_add_u32 s65, s74, 16")
    a(f"s_waitcnt vmcnt({2 if OSPLIT else 4})")
    wo_slice_dma("s74", 0)
    a("s_cmp_lt_u32 s74, 4\ns_cbranch_scc0 L_Y_one")
    wo_slice_dma("s65", 32768)
    a("L_Y_one:")
    rewarm("y")
    if not YPRE:
        m_coef_loads()
        tail_prefetch()
        s5_addresses()
    a("s_waitcnt vmcnt(0)")
    wo_slice_frags(0, 0)
    a("s_cmp_lt_u32 s74, 4\ns_cbranch_scc0 L_Y_one2")
    wo_slice_frags(32768, 32)
    a("L_Y_one2:")
    if not YPRE: m_coef_unpack()
    stamp(7)
    a.c("================= S5: out[32u..32u+31] over the 4 heads of this XCD group (wave = head)")
    a(f"s_add_u32 s68, s101, {CPB-CP}")
    a("s_waitcnt lgkmcnt(0)")
    poll_begin("L_p4", ("s66", "s101", "s68"))
    G4D = opt.get('g4dense', 1)
    def g4_loads(fl):
        if G4D:
            a(f"buffer_load_dwordx4 v[140:143], v240, {S_WS}, s66 offen {fl}\nbuffer_load_dwordx4 v[144:147], v240, {S_WS}, s66 offen offset:1024 {fl}")
        else:
            for dq in range(4):
                a(f"buffer_load_dwordx4 {vr(100+8*dq)}, v240, {S_WS}, s66 offen offset:{512*dq} {fl}")
                a(f"buffer_load_dwordx4 {vr(104+8*dq)}, v240, {S_WS}, s66 offen offset:{512*dq+256} {fl}")
    dual_loads("L_p4", g4_loads)
    a("s_waitcnt vmcnt(0)")
    tagcheck("v14", ["v141", "v143", "v145", "v147"] if G4D else [f"v{100+8*dq+k}" for dq in range(4) for k in (1,3,5,7)])
    poll_end("L_p4", "v14")
    stamp(8)
    if G4D:
        a("v_mov_b32 v141, v142\nv_mov_b32 v145, v146")
        a("ds_write_b64 v236, v[140:141]\nds_write_b64 v236, v[144:145] offset:512")
        for dq in range(4): a(f"ds_read_b128 {vr(100+8*dq)}, v235 offset:{256*dq}")
        a("s_waitcnt lgkmcnt(0)")
    else:
        for dq in range(4):
            r = 100+8*dq
            a(f"v_mov_b32 v{r+1}, v{r+2}\nv_mov_b32 v{r+2}, v{r+4}\nv_mov_b32 v{r+3}, v{r+6}")
    a("v_cmp_eq_u32 vcc, 1, v4")
    def unit_mm(a0, d0, lds_off):
        for dq in range(4):
            for tt in range(2):
                mfma(vr(d0+4*tt), vr(100+8*dq), ar(a0+(tt*4+dq)*4), dq == 0)
        a(f"v_pk_add_f32 v[{d0}:{d0+1}], v[{d0}:{d0+1}], v[{d0+2}:{d0+3}]\nv_pk_add_f32 v[{d0+4}:{d0+5}], v[{d0+4}:{d0+5}], v[{d0+6}:{d0+7}]")
        a(f"v_add_f32 v{d0}, v{d0}, v{d0+1}\nv_add_f32 v{d0+4}, v{d0+4}, v{d0+5}")
        a(f"v_cndmask_b32 v{d0}, v{d0}, v{d0+4}, vcc")
        a(f"s_mov_b32 exec_hi, 0\nds_write_b32 v241, v{d0} offset:{lds_off}\ns_mov_b64 exec, -1")
    unit_mm(0, 156, 0)
    a("s_cmp_lt_u32 s74, 4\ns_cbranch_scc0 L_Y_one3")
    unit_mm(32, 148, 512)
    a("L_Y_one3:")
    a("s_waitcnt lgkmcnt(0)\ns_barrier")
    a(f"s_cmp_eq_u32 {SW}, 0\ns_cbranch_scc1 L_Y_pub\ns_cmp_eq_u32 {SW}, 1\ns_cbranch_scc0 L_M\ns_cmp_lt_u32 s74, 4\ns_cbranch_scc0 L_M")
    a(f"v_add_u32 v242, 512, v242\nv_add_u32 v243, {16*128}, v243\nv_add_u32 v244, 64, v244")
    a("L_Y_pub:")
    a("ds_read_b32 v136, v242\nds_read_b32 v137, v242 offset:128\nds_read_b32 v138, v242 offset:256\nds_read_b32 v139, v242 offset:384")
    a("s_waitcnt lgkmcnt(0)")
    a("v_pk_add_f32 v[136:137], v[136:137], v[138:139]\nv_add_f32 v136, v136, v137")
    a("v_mov_b32_dpp v137, v136 row_shl:1 row_mask:0xf bank_mask:0xf")
    a(f"v_cvt_pk_bf16_f32 v138, v136, v137\nv_mov_b32 v139, {TAG}")
    a("s_mov_b32 exec_lo, 0x55555555\ns_mov_b32 exec_hi, 0")
    a(f"buffer_store_dwordx2 v[138:139], v243, {S_WS}, 0 offen sc1")
    if opt.get('gate', 1):
        a("s_mov_b64 exec, 1")
        a(f"buffer_store_dword v139, v244, {S_WS}, 0 offen")
    a("s_mov_b64 exec, -1")

    a.c("================= M stage")
    a("L_M:")
    a("s_mul_i32 s64, s2, 3\ns_cmp_ge_u32 s64, 640\ns_cbranch_scc1 L_fin")
    a(f"v_mov_b32 v144, {f2u(C0):#x}\nv_mov_b32 v145, {f2u(C0):#x}")
    for k in range(3): a(f"v_mov_b32 v{146+2*k}, 0\nv_mov_b32 v{147+2*k}, 0")
    a(f"v_add_u32 v15, s64, v1\nv_min_u32 v15, 639, v15\nv_lshlrev_b32 v15, 2, v15\nv_add_u32 v15, {HB}, v15")
    a("v_mov_b32 v132, 0\nv_mov_b32 v133, 0")
    a(f"s_cmp_eq_u32 {SW}, 3\ns_cbranch_scc1 L_M_wait")
    a(f"v_lshlrev_b32 v13, 4, v0\ns_mov_b32 s66, {XP}\ns_mov_b32 s67, {XP+5120}\ns_mov_b32 s68, {XP+10240}\ns_mov_b32 s69, {XP+15360}")
    a("s_mov_b32 s63, 0xffff0000")
    a("v_lshlrev_b32 v136, 16, v246\nv_and_b32 v137, s63, v246\nv_lshlrev_b32 v138, 16, v247\nv_and_b32 v139, s63, v247")
    a(f"v_add_u32 v17, {HB}, v13\ns_lshl_b32 s62, {SW}, 3\ns_add_u32 s62, s62, {SB}\nv_mov_b32 v19, s62")
    a(f"s_cmp_eq_u32 {SW}, 2\ns_cselect_b32 s72, 0, -1\ns_mov_b32 exec_hi, s72")
    stamp(9)
    if opt.get('gate', 1):
        a(f"s_mov_b64 s[98:99], exec\ns_mov_b64 exec, 0xfffff\ns_and_b32 s62, s2, 7\ns_lshl_b32 s62, s62, 7\ns_add_u32 s62, s62, {UF}\nv_lshlrev_b32 v14, 2, v1\nv_mov_b32 v16, v14\ns_mov_b32 s61, 0")
        a("L_g6:")
        a(f"buffer_load_dword v100, v16, {S_WS}, s62 offen {LF}\ns_waitcnt vmcnt(0)")
        a(f"v_cmp_ne_u32 vcc, {TAG}, v100\ns_add_u32 s61, s61, 1\ns_cmp_gt_u32 s61, {opt.get('gatemax', 64)}\ns_cbranch_scc1 L_g6x\ns_cbranch_vccnz L_g6")
        a("L_g6x:")
        for _ in range(opt.get('gextra', 0)):
            a(f"buffer_load_dword v100, v16, {S_WS}, s62 offen {LF}\ns_waitcnt vmcnt(0)")
        a("s_mov_b64 exec, s[98:99]")
    MPROG = opt.get('mprog', 0)
    def m_row_add(xx):
        b = 100+4*xx
        a(f"v_lshlrev_b32 v140, 16, v{b}\nv_and_b32 v141, s63, v{b}\nv_lshlrev_b32 v142, 16, v{b+2}\nv_and_b32 v143, s63, v{b+2}")
        a("v_pk_add_f32 v[136:137], v[136:137], v[140:141]\nv_pk_add_f32 v[138:139], v[138:139], v[142:143]")
    if MPROG:
        for xx in range(8):
            a(f"buffer_load_dwordx4 {vr(100+4*xx)}, v13, {S_WS}, s{66+(xx>>1)} offen offset:{2560*(xx&1)} sc1{GN}")
        for xx in range(8):
            a(f"s_waitcnt vmcnt({7-xx})")
            if xx == 0: a(f"v_xor_b32 v14, {TAG}, v101")
            else: a(f"v_bitop3_b32 v14, v{100+4*xx+1}, {TAG}, v14 bitop3:0xbe")
            a(f"v_bitop3_b32 v14, v{100+4*xx+3}, {TAG}, v14 bitop3:0xbe")
            m_row_add(xx)
        a("v_cmp_ne_u32 vcc, 0, v14\ns_cbranch_vccz L_M_sum\ns_and_b64 exec, exec, vcc")
    poll_begin("L_p6")
    for xx in range(8):
        a(f"buffer_load_dwordx4 {vr(100+4*xx)}, v13, {S_WS}, s{66+(xx>>1)} offen offset:{2560*(xx&1)} sc1{GN}")
    a("s_waitcnt vmcnt(0)")
    tagcheck("v14", [f"v{100+4*xx+k}" for xx in range(8) for k in (1,3)])
    poll_end("L_p6", "v14")
    a("s_mov_b32 exec_hi, s72")
    a("v_lshlrev_b32 v136, 16, v246\nv_and_b32 v137, s63, v246\nv_lshlrev_b32 v138, 16, v247\nv_and_b32 v139, s63, v247")
    for xx in range(8): m_row_add(xx)
    a("L_M_sum:")
    for _ in range(opt.get('padnop', 0)): a("s_nop 0")
    if opt.get('padjmp', 0):
        for i in range(opt['padjmp']):
            a(f"s_branch L_pj{i}\n.p2align 6\nL_pj{i}:")
    stamp(10)
    a("v_cvt_pk_bf16_f32 v140, v136, v137\nv_cvt_pk_bf16_f32 v141, v138, v139")
    a("v_lshlrev_b32 v136, 16, v140\nv_and_b32 v137, s63, v140\nv_lshlrev_b32 v138, 16, v141\nv_and_b32 v139, s63, v141")
    a("ds_write_b128 v17, v[136:139]")
    for k in range(4): a(f"v_subrev_f32 v{140+k}, s3, v{136+k}")
    a("v_add_f32 v132, v140, v141\nv_mul_f32 v133, v140, v140\nv_add_f32 v134, v142, v143\nv_fmac_f32 v133, v141, v141\nv_add_f32 v132, v132, v134\nv_fmac_f32 v133, v142, v142\nv_fmac_f32 v133, v143, v143")
    a("s_mov_b64 exec, -1")
    wave_allreduce("v_add_f32", ["v132", "v133"], ["v134", "v135"])
    a("s_mov_b64 exec, 1\nds_write_b64 v19, v[132:133]\ns_mov_b64 exec, -1")
    a(f"s_or_b32 s62, s2, {SW}\ns_cmp_eq_u32 s62, 0\ns_cbranch_scc0 L_noep")
    a(f"v_mov_b32 v16, {TAG}\ns_mov_b64 exec, 1\nbuffer_store_dword v16, v18, {S_WS}, 0 offen sc1\ns_mov_b64 exec, -1")
    a("L_noep:")
    a("s_waitcnt lgkmcnt(0)")
    a("L_M_wait:")
    a("s_barrier")
    a(f"v_mov_b32 v16, {SB}\nds_read_b128 v[120:123], v16\nds_read_b64 v[124:125], v16 offset:16\nds_read_b32 v136, v15\ns_mov_b32 s62, {f2u(1.0/640):#x}\ns_waitcnt lgkmcnt(0)")
    a("v_add_f32 v130, v120, v122\nv_add_f32 v132, v121, v123\nv_add_f32 v130, v130, v124\nv_add_f32 v132, v132, v125")
    a("v_mul_f32 v130, s62, v130\nv_mul_f32 v132, s62, v132")
    a("v_fma_f32 v132, -v130, v130, v132")
    a("v_add_f32 v130, s3, v130")
    a(f"v_add_f32 v133, {f2u(EPS):#x}, v132\nv_rsq_f32 v133, v133")
    a("v_sub_f32 v140, v136, v130")
    a("v_mul_f32 v134, v133, v133\nv_mul_f32 v134, v134, v132")
    a(f"v_add_f32 v134, {f2u(EPS):#x}, v134\nv_rsq_f32 v134, v134\nv_mul_f32 v140, v140, v133\ns_mov_b32 s62, {f2u(C1):#x}\nv_mul_f32 v140, v140, v134")
    for k in range(3):
        a(f"v_readlane_b32 s{70+2*k}, v140, {k}")
    for k in range(3):
        t = f"s[{70+2*k}:{71+2*k}]"
        U = lambda i: f"v[{152+2*i}:{153+2*i}]"
        Z = lambda i: f"v[{160+2*i}:{161+2*i}]"
        for i in range(4): a(f"v_pk_fma_f32 {U(i)}, v[{210+2*i}:{211+2*i}], {t}, v[{218+2*i}:{219+2*i}] op_sel_hi:[1,0,1]")
        for i in range(4): a(f"v_pk_mul_f32 {Z(i)}, {U(i)}, {U(i)}")
        for i in range(4): a(f"v_pk_fma_f32 {Z(i)}, {Z(i)}, s[62:63], v[144:145] op_sel_hi:[1,0,1]")
        for i in range(4): a(f"v_pk_mul_f32 {Z(i)}, {Z(i)}, {U(i)}")
        for i in range(4): a(f"v_exp_f32 v{160+2*i}, v{160+2*i}\nv_exp_f32 v{161+2*i}, v{161+2*i}")
        for i in range(4): a(f"v_pk_mul_f32 {U(i)}, {U(i)}, v[{226+2*i}:{227+2*i}]")
        for i in range(4): a(f"v_pk_add_f32 {Z(i)}, {Z(i)}, 1.0 op_sel_hi:[1,0]")
        for i in range(4): a(f"v_rcp_f32 v{160+2*i}, v{160+2*i}\nv_rcp_f32 v{161+2*i}, v{161+2*i}")
        for i in range(4): a(f"v_pk_fma_f32 v[{146+2*k}:{147+2*k}], {U(i)}, {Z(i)}, v[{146+2*k}:{147+2*k}]")
    for k in range(3): a(f"v_add_f32 v{146+2*k}, v{146+2*k}, v{147+2*k}")
    wave_allreduce("v_add_f32", ["v146","v148","v150"], ["v147","v149","v151"])
    a(f"s_lshl_b32 s62, {SW}, 4\ns_add_u32 s62, s62, {MRED}\nv_mov_b32 v15, s62\nv_mov_b32 v147, v148\nv_mov_b32 v148, v150")
    a("s_mov_b64 exec, 1\nds_write_b96 v15, v[146:148]\ns_mov_b64 exec, -1")
    a("s_waitcnt lgkmcnt(0)\ns_barrier")
    a(f"s_cmp_eq_u32 {SW}, 0\ns_cbranch_scc0 L_fin")
    a(f"v_lshlrev_b32 v15, 2, v1\nv_add_u32 v15, {MRED}, v15")
    a("ds_read_b32 v100, v15\nds_read_b32 v101, v15 offset:16\nds_read_b32 v102, v15 offset:32\nds_read_b32 v103, v15 offset:48")
    srd(S_T, 26, 1280)
    a("v_add_u32 v15, s64, v1\nv_lshlrev_b32 v16, 1, v15")
    a("v_add_f32 v136, v136, v208")
    a("s_waitcnt lgkmcnt(0)")
    a("v_add_f32 v100, v100, v101\nv_add_f32 v102, v102, v103\nv_add_f32 v100, v100, v102\nv_add_f32 v100, v100, v136")
    a("v_cvt_pk_bf16_f32 v100, v100, v100")
    a("v_cmp_gt_u32 vcc, 640, v15\ns_and_b64 exec, vcc, 7")
    a("s_cbranch_execz L_fin")
    a(f"buffer_store_short v100, v16, {S_T}, 0 offen")
    a("L_fin:")
    if opt.get('pin'):
        a(f"s_waitcnt lgkmcnt(0)\ns_add_u32 s76, s76, {opt['pin']}")
        a("L_pin:\ns_memrealtime s[78:79]\ns_waitcnt lgkmcnt(0)\ns_sub_u32 s80, s78, s76\ns_cmp_lt_i32 s80, 0\ns_cbranch_scc1 L_pin")
    if profile and opt.get('dbgout'):
        stamp(11)
        a("s_mov_b64 exec, -1\ns_waitcnt lgkmcnt(0)")
        srd(S_T, 28, 256)
        a(f"s_cmp_eq_u32 {SW}, 0\ns_cbranch_scc0 L_end")
        a("v_mov_b32 v18, 0\ns_mov_b64 exec, 1")
        a(f"s_not_b32 s62, s76\nv_mov_b32 v15, s62\nbuffer_atomic_umax v15, v18, {S_T}, 0 offen")
        a(f"v_mov_b32 v15, s98\nbuffer_atomic_umax v15, v18, {S_T}, 0 offen offset:44")
        a("s_bitcmp1_b32 s2, 7\ns_cbranch_scc1 L_dy")
        for k in range(1, 9):
            a(f"v_mov_b32 v15, s{76+2*k}\nbuffer_atomic_umax v15, v18, {S_T}, 0 offen offset:{4*k}")
        a(f"v_mov_b32 v15, s{76+2*10}\nbuffer_atomic_umax v15, v18, {S_T}, 0 offen offset:40")
        a(f"v_mov_b32 v15, s{76+2*9}\nbuffer_atomic_umax v15, v18, {S_T}, 0 offen offset:36")
        a("s_branch L_end\nL_dy:")
        for j, k in enumerate((2, 4, 6, 8)):
            a(f"v_mov_b32 v15, s{76+2*k}\nbuffer_atomic_umax v15, v18, {S_T}, 0 offen offset:{48+4*j}")
    elif profile:
        stamp(11)
        a("s_mov_b64 exec, -1\ns_waitcnt lgkmcnt(0)")
        a(f"s_lshl_b32 s62, s2, 2\ns_add_u32 s62, s62, {SW}\ns_lshl_b32 s62, s62, 6\ns_add_u32 s62, s62, {TS}")
        a("v_mov_b32 v18, 0\ns_mov_b64 exec, 1")
        for k in range(12):
            a(f"v_mov_b32 v15, s{76+2*k}\nbuffer_store_dword v15, v18, {S_WS}, s62 offen offset:{4*k}")
        a(f"v_mov_b32 v15, s100\nbuffer_store_dword v15, v18, {S_WS}, s62 offen offset:48")
        a(f"s_getreg_b32 s100, hwreg(HW_REG_XCC_ID)\nv_mov_b32 v15, s100\nbuffer_store_dword v15, v18, {S_WS}, s62 offen offset:52")
        a(f"s_getreg_b32 s100, hwreg(HW_REG_HW_ID)\nv_mov_b32 v15, s100\nbuffer_store_dword v15, v18, {S_WS}, s62 offen offset:56")
    a("L_end:")
    a("s_endpgm")
    a("L_code_end:")
    a(f".set CODE_BYTES, L_code_end - {NAME}")
    a('.section .rodata,"a"\n.p2align 6')
    a(f".amdhsa_kernel {NAME}")
    a("  .amdhsa_next_free_vgpr 512\n  .amdhsa_next_free_sgpr 102\n  .amdhsa_accum_offset 256\n  .amdhsa_group_segment_fixed_size 0\n  .amdhsa_kernarg_size 112\n  .amdhsa_user_sgpr_count 2\n  .amdhsa_user_sgpr_kernarg_segment_ptr 1\n  .amdhsa_system_sgpr_workgroup_id_x 1")
    a(".end_amdhsa_kernel")
    n = a.hazard_pass()
    return a.text(), n

LAYOUT = dict(QG=QG, QA=QA, ST=ST, CP=CP, HG=HG, OUTP=OUTP, OP=OP, TS=TS, XP=XP)
if __name__ == "__main__":
    prof = "prof" in sys.argv[2:]
    opt = {}
    for x in sys.argv[2:]:
        if '=' in x:
            k, v = x.split('='); opt[k] = int(v) if v.lstrip('-').isdigit() else v
    txt, n = gen(profile=prof, opt=opt)
    open(sys.argv[1], "w").write(txt)
    print("auto nops:", n, "lines:", txt.count("\n"), LAYOUT)
```
